```python
import torch

def _softmax(x, axis=-1):
    return torch.softmax(x, dim=axis)
def _gelu(x):
    return torch.nn.functional.gelu(x, approximate="tanh")
def _silu(x):
    return torch.nn.functional.silu(x)
def _sigmoid(x):
    return torch.sigmoid(x)
def _layernorm(x, axis=-1, eps=1e-5):
    m = x.mean(dim=axis, keepdim=True)
    v = x.var(dim=axis, keepdim=True, unbiased=False)
    return (x - m) / torch.sqrt(v + eps)
def _scatter_add(tgt, idx, src, axis=0):
    return tgt.clone().index_add_(axis, idx, src)
def _segment_sum(src, seg, n):
    out = torch.zeros((n,) + src.shape[1:], dtype=src.dtype)
    return out.index_add_(0, seg, src)
def _pad(x, pw):
    flat = tuple(v for pair in reversed(pw) for v in pair)
    return torch.nn.functional.pad(x, flat)

kernel_name = 'recurrent_scan__ssm_conv_s4d__moe_arch_mod__prompt'

def setup_inputs():

    _w = (lambda a: (lambda t: t.to(torch.bfloat16) if t.is_floating_point() else t)(torch.as_tensor(a)))
    def _A_setup():
        Bsz, L, D, N = 1, 2048, 640, 128
        return {
            "u": _w((lambda *s: torch.randn(*s, dtype=torch.bfloat16) * 0.05)(Bsz, L, D)),
            "log_A_real": _w((lambda *s: torch.randn(*s, dtype=torch.bfloat16) * 6.4)(D, N) * 0.5),
            "A_imag": _w((lambda *s: torch.randn(*s, dtype=torch.bfloat16) * 0.05)(D, N) * 3.14),
            "C_real": _w((lambda *s: torch.randn(*s, dtype=torch.bfloat16) * 0.05)(D, N) / N ** 0.5),
            "C_imag": _w((lambda *s: torch.randn(*s, dtype=torch.bfloat16) * 0.05)(D, N) / N ** 0.5),
            "log_dt": _w((lambda *s: torch.randn(*s, dtype=torch.bfloat16) * 0.05)(D) * 0.5 - 4.0),
            "D_skip": _w((lambda *s: torch.randn(*s, dtype=torch.bfloat16) * 0.05)(D)),
        }
    _A_in = _A_setup()

    def _B_setup():
        B, S, D, F, C = 1, 2048, 640, 1728, 8
        return {
            "x": _w((lambda *s: torch.randn(*s, dtype=torch.bfloat16) * 0.05)(B, S, D)),
            "w_r": _w((lambda *s: torch.randn(*s, dtype=torch.bfloat16) * 0.05)(D)),
            "w_gate": _w((lambda *s: torch.randn(*s, dtype=torch.bfloat16) * 0.05)(D, F)),
            "w_up": _w((lambda *s: torch.randn(*s, dtype=torch.bfloat16) * 0.05)(D, F)),
            "w_down": _w((lambda *s: torch.randn(*s, dtype=torch.bfloat16) * 0.05)(F, D)),
        }
    _B_in = _B_setup()

    return {
        "A_u": _A_in["u"],
        "A_log_A_real": _A_in["log_A_real"],
        "A_A_imag": _A_in["A_imag"],
        "A_C_real": _A_in["C_real"],
        "A_C_imag": _A_in["C_imag"],
        "A_log_dt": _A_in["log_dt"],
        "A_D_skip": _A_in["D_skip"],
        "B_x": _B_in["x"],
        "B_w_r": _B_in["w_r"],
        "B_w_gate": _B_in["w_gate"],
        "B_w_up": _B_in["w_up"],
        "B_w_down": _B_in["w_down"],
    }

def reference(A_u, A_log_A_real, A_A_imag, A_C_real, A_C_imag, A_log_dt, A_D_skip, B_x, B_w_r, B_w_gate, B_w_up, B_w_down):
    def _A_ref(u, log_A_real, A_imag, C_real, C_imag, log_dt, D_skip):
        L = u.shape[1]
        dt = torch.exp(log_dt)
        A = -torch.exp(log_A_real) + 1j * A_imag
        C = (C_real + 1j * C_imag) * dt[:, None]
        pos = (lambda x, dt: x.to(dt))(torch.arange(L), log_dt.dtype)
        P = torch.exp((A * dt[:, None])[:, :, None] * pos[None, None, :])
        K = 2.0 * torch.einsum("dn,dnl->dl", C, P).real
        L2 = 2 * L
        u_t = (lambda x, *d: x.permute(*d))(u, 0, 2, 1)
        Kf = (lambda x, *a, **k: torch.fft.rfft(x.float(), *a, **k))(K, L2)
        Uf = (lambda x, *a, **k: torch.fft.rfft(x.float(), *a, **k))(u_t, L2)
        y = (lambda x, *a, **k: torch.fft.irfft(x, *a, **k).to(torch.bfloat16))(Uf * Kf[None, :, :], L2)[:, :, :L]
        y = (lambda x, *d: x.permute(*d))(y, 0, 2, 1)
        return y + u * D_skip[None, None, :]

    def _B_ref(x, w_r, w_gate, w_up, w_down):
        B, S, D = x.shape
        C = 8
        r = x @ w_r
        idx = torch.argsort(-r, axis=-1)[:, :C]
        idx_e = (lambda x, n, axis: torch.repeat_interleave(x, n, dim=axis))(idx.reshape(B, C, 1), D, axis=2)
        x_sel = (lambda x, i, axis: torch.take_along_dim(x, i, dim=axis))(x, idx_e, axis=1)
        g = _silu(x_sel @ w_gate)
        u = x_sel @ w_up
        y = (g * u) @ w_down
        r_sel = _sigmoid((lambda x, i, axis: torch.take_along_dim(x, i, dim=axis))(r, idx, axis=1))
        y = y * r_sel.reshape(B, C, 1)
        b_off = (torch.arange(B) * S).reshape(B, 1)
        flat_idx = (idx + b_off).reshape(B * C)
        zero = (x * 0.0).reshape(B * S, D)
        upd = _scatter_add(zero, flat_idx, y.reshape(B * C, D), axis=0)
        return x + upd.reshape(B, S, D)

    x = A_u
    xn = _layernorm(x, axis=-1)
    s = _A_ref(xn, A_log_A_real, A_A_imag, A_C_real, A_C_imag, A_log_dt, A_D_skip)
    g = _silu(_B_ref(xn, B_w_r, B_w_gate, B_w_up, B_w_down))
    return x + s * g
```

```python
import re
class Asm:
    def __init__(self):
        self.lines = []
        self.uid = 0
    def __call__(self, s):
        for l in s.strip("\n").split("\n"):
            l = l.strip()
            if l: self.lines.append(l)
    def label(self, name): self.lines.append(name + ":")
    def newlabel(self, base):
        self.uid += 1
        return f"L_{base}_{self.uid}"
    def nop(self, n):
        while n > 0:
            k = min(n, 16); self(f"s_nop {k-1}"); n -= k
    def text(self):
        out = []
        for l in self.lines:
            out.append(l if l.endswith(":") or l.startswith(".") or l.startswith(";") else "    " + l)
        return "\n".join(out) + "\n"

def vr(b, n=1):
    return f"v{b}" if n == 1 else f"v[{b}:{b+n-1}]"
def sr(b, n=1):
    return f"s{b}" if n == 1 else f"s[{b}:{b+n-1}]"

_reg = re.compile(r"^(-|abs\()?([vsa])(\d+)\)?$|^(-|abs\()?([vsa])\[(\d+):(\d+)\]\)?$")
def regs_of(op):
    op = op.strip()
    if op in ("vcc",): return {("s", 106), ("s", 107)}
    if op == "vcc_lo": return {("s", 106)}
    if op == "vcc_hi": return {("s", 107)}
    if op == "exec": return {("s", 126), ("s", 127)}
    if op == "exec_lo": return {("s", 126)}
    if op == "exec_hi": return {("s", 127)}
    if op == "m0": return {("s", 124)}
    m = _reg.match(op)
    if not m: return set()
    if m.group(2): return {(m.group(2), int(m.group(3)))}
    return {(m.group(5), i) for i in range(int(m.group(6)), int(m.group(7)) + 1)}
TRANS = ("v_exp_f32", "v_log_f32", "v_rcp_f32", "v_rsq_f32", "v_sqrt_f32", "v_sin_f32", "v_cos_f32")
def parse(line):
    line = line.split(";")[0].strip()
    if not line or line.endswith(":") or line.startswith("."): return None
    parts = line.split(None, 1)
    opc = parts[0]
    rest = parts[1] if len(parts) > 1 else ""
    ops, cur, depth = [], "", 0
    for ch in rest:
        if ch in "[(": depth += 1
        if ch in "])": depth -= 1
        if ch == "," and depth == 0: ops.append(cur.strip()); cur = ""
        else: cur += ch
    if cur.strip(): ops.append(cur.strip())
    mods = ""
    if ops:
        sp = ops[-1].split(None, 1)
        ops[-1] = sp[0]
        if len(sp) > 1: mods = sp[1]
    I = dict(opc=opc, ops=ops, mods=mods, line=line, w=set(), r=set(), kind="other")
    R = [regs_of(o) for o in ops]
    def allr(lst):
        s = set()
        for x in lst: s |= x
        return s
    if opc.startswith("v_mfma"):
        I["kind"] = "mfma"; I["w"] = R[0]; I["r"] = allr(R[1:]); I["A"] = R[1]; I["B"] = R[2]; I["C"] = R[3]
        I["passes"] = 8 if "32x32" in opc else 4
    elif opc.startswith("v_"):
        I["kind"] = "valu"
        if opc.startswith("v_cmp"):
            I["w"] = R[0]; I["r"] = allr(R[1:])
            if opc.startswith("v_cmpx"): I["w"] = I["w"] | regs_of("exec")
        elif opc.startswith(("v_add_co", "v_sub_co", "v_addc_co", "v_subb_co", "v_subrev_co")):
            I["w"] = R[0] | R[1]; I["r"] = allr(R[2:])
        elif opc.startswith("v_permlane") and "swap" in opc:
            I["w"] = R[0] | R[1]; I["r"] = R[0] | R[1]
        else:
            I["w"] = R[0]; I["r"] = allr(R[1:])
            if opc.startswith(("v_fmac", "v_dot2c", "v_writelane")) or "dpp" in opc or "row_" in mods or "sdwa" in opc: I["r"] = I["r"] | R[0]
        I["dpp"] = ("_dpp" in opc) or ("row_" in mods) or ("quad_perm" in mods)
        I["trans"] = opc.replace("_e32", "").replace("_e64", "") in TRANS
        I["dot"] = opc.startswith("v_dot")
    elif opc.startswith(("global_load", "buffer_load")):
        I["kind"] = "vmem"; I["w"] = R[0]; I["r"] = allr(R[1:])
    elif opc.startswith(("global_store", "buffer_store", "global_atomic", "buffer_atomic")):
        I["kind"] = "vmem"; I["r"] = allr(R); I["store"] = True
        I["data"] = R[1] if opc.startswith("global") else R[0]
        I["wide"] = ("x3" in opc or "x4" in opc)
    elif opc.startswith("ds_"):
        I["kind"] = "ds"
        if opc.startswith(("ds_read", "ds_bpermute", "ds_permute", "ds_swizzle")) or "_rtn" in opc:
            I["w"] = R[0]; I["r"] = allr(R[1:])
        else:
            I["r"] = allr(R)
        if "addtid" in opc: I["r"] = I["r"] | regs_of("m0")
    elif opc.startswith("s_"):
        I["kind"] = "salu"
        if opc.startswith(("s_cmp", "s_cbranch", "s_branch", "s_waitcnt", "s_nop", "s_barrier", "s_endpgm", "s_sleep", "s_setprio", "s_bitcmp")):
            I["r"] = allr(R)
        else:
            I["w"] = R[0] if R else set(); I["r"] = allr(R[1:])
            if "saveexec" in opc: I["w"] = I["w"] | regs_of("exec")
    return I
def states(I):
    if I["opc"] == "s_nop": return int(I["ops"][0], 0) + 1
    return 1
def isv(s): return {x for x in s if x[0] in "va"}
def iss(s): return {x for x in s if x[0] == "s"}
def check_hazards(lines):
    ins = []
    for l in lines:
        I = parse(l)
        if I: ins.append(I)
    probs = []
    for i, c in enumerate(ins):
        dist = 0
        for j in range(i - 1, max(-1, i - 24), -1):
            p = ins[j]
            if p["opc"] in ("s_branch", "s_endpgm"): break
            need = 0; why = ""
            def req(n, w):
                nonlocal need, why
                if n > need: need, why = n, w
            if p["kind"] == "valu":
                vw, sw = isv(p["w"]), iss(p["w"])
                if c["kind"] == "valu":
                    if c.get("dpp") and vw & c["r"]: req(2, "valu->dpp")
                    if c["opc"].startswith(("v_readlane", "v_readfirstlane")) and vw & c["r"]: req(1, "valu->readlane")
                    if c["opc"].startswith("v_permlane") and vw & c["r"]: req(2, "valu->permlane")
                    if p.get("trans") and not c.get("trans") and vw & c["r"]: req(1, "trans->valu")
                    if sw & c["r"]:
                        req(4 if c["opc"].startswith(("v_readlane", "v_writelane")) else 2, "valu sgpr->valu")
                    if p.get("dot") and (vw & (c["r"] | c["w"])):
                        same = c["opc"] == p["opc"] and not (vw & (regs_of(c["ops"][1]) | regs_of(c["ops"][2])))
                        if not same: req(3, "dot->other")
                    if ("sdwa" in p["opc"]) and vw & c["r"]: req(1, "sdwa->valu")
                if c["kind"] == "mfma" and vw & c["r"]: req(2, "valu->mfma")
                if c["kind"] == "vmem" and sw & c["r"]: req(5, "valu sgpr->vmem")
                if p.get("dot") and c["kind"] in ("vmem", "ds", "mfma") and vw & c["r"]: req(3, "dot->mem")
                if p.get("trans") and c["kind"] in ("mfma",) and vw & c["r"]: req(2, "trans->mfma")
            if p["kind"] == "mfma":
                n8 = p["passes"] == 8
                if c["kind"] == "mfma":
                    if p["w"] & (c["A"] | c["B"]): req(12 if n8 else 8, "mfma D->mfma AB")
                    if p["w"] & c["C"] and not (p["w"] == c["C"] and p["passes"] == c["passes"]): req(10 if n8 else 6, "mfma D->mfma C partial")
                    if p["w"] & c["w"] and not (p["w"] == c["C"]) : req(10 if n8 else 6, "mfma D->mfma D waw(cons)")
                elif c["kind"] in ("valu", "vmem", "ds"):
                    if p["w"] & (c["r"] | c["w"]): req(12 if n8 else 8, "mfma D->use")
                    if c["kind"] == "valu" and p["C"] & c["w"]: req(7 if n8 else 3, "mfma C war")
            if p["kind"] == "vmem" and p.get("store") and p.get("wide") and p["data"] & c["w"]:
                req(2 if c["kind"] == "valu" else 1, "wide store war")
            if p["kind"] == "salu" and regs_of("m0") & p["w"] and c["kind"] == "ds" and "addtid" in c["opc"]: req(1, "m0->addtid")
            if need > dist: probs.append((why, need, dist, p["line"], c["line"]))
            dist += states(p)
    return probs
```

```python
import sys
from asmlib import *
NAME = "recurrent_scan__ssm_conv_s4d__moe_arch_mod__prompt"
OPT = dict(stamps=0, xpf=1)
for a in sys.argv[2:]:
    k, v = a.split("="); OPT[k] = int(v)

G1_OFF, G2_OFF, SEL_OFF, PART_OFF, PART_STRIDE = 0x1000, 0x5000, 0x9000, 0x10000, 7168
STAMP_OFF = 0x200000
TROW = 2064
TBX, TBY = 0, 24 * TROW
UB = TBY + 32 * TROW
USTR = 4608
BOXB = UB + 4 * USTR
KB = BOXB + 1024
PD_O, T2_O, T3_O, SP_O = 0, 4480, 4992, 5312
KSTR = 5696
FLG = KB + 4 * KSTR
LDS_SIZE = KB + 24576
RED, CSB, HB, WMAX, SELW = 0, 8192, 16384, 17024, 17152
CNT, ZBLK, LIST = KB, KB + 64, KB + 256
SPIN_MAX = 1 << 20

LOG2E = 0x3FB8AA3B
NLOG2E = LOG2E ^ 0x80000000
INV2PI = 0x3E22F983
A = Asm()
def stamp(i):
    if OPT["stamps"]: A(f"s_memrealtime s[{64+2*i}:{65+2*i}]")
def cstamp(i):
    if OPT["stamps"]: A(f"s_memtime s[{64+2*i}:{65+2*i}]")
def finish(n):
    if OPT["stamps"]:
        stamp(13); cstamp(15)
        A("s_waitcnt lgkmcnt(0)")
        A("s_mov_b64 exec, 1")
        A(f"s_lshl_b32 s5, s2, 3\ns_add_u32 s5, s5, s3\ns_lshl_b32 s5, s5, 6\ns_add_u32 s5, s5, {STAMP_OFF}")
        A("v_mov_b32 v2, s5")
        for i in list(range(n)) + [13, 14, 15]:
            A(f"v_mov_b32 v3, s{64+2*i}")
            A(f"global_store_dword v2, v3, s[42:43] offset:{4*i}")
    A("s_endpgm")

class LdsQ:
    def __init__(self): self.q = []; self.done = 0
    def issue(self, tag): self.q.append(tag)
    def wait(self, tag):
        idx = max(i for i, t in enumerate(self.q) if t == tag)
        if idx < self.done: return
        n = len(self.q) - 1 - idx
        A(f"s_waitcnt lgkmcnt({min(n,15)})")
        self.done = idx + 1 if n <= 15 else len(self.q) - 15
    def all(self):
        A("s_waitcnt lgkmcnt(0)"); self.done = len(self.q)
    def known_all(self): self.done = len(self.q)

def cmul(dst, p, w, t):
    A(f"v_pk_mul_f32 {vr(t,2)}, {vr(p,2)}, {vr(w,2)} op_sel:[0,0] op_sel_hi:[1,0]")
    A(f"v_pk_fma_f32 {vr(dst,2)}, {vr(p,2)}, {vr(w,2)}, {vr(t,2)} op_sel:[1,1,0] op_sel_hi:[0,1,1] neg_lo:[1,0,0]")
LANE63 = "s_mov_b32 exec_lo, 0\ns_mov_b32 exec_hi, 0x80000000"
DPP6 = ["row_shr:1 row_mask:0xf bank_mask:0xf bound_ctrl:0", "row_shr:2 row_mask:0xf bank_mask:0xf bound_ctrl:0",
        "row_shr:4 row_mask:0xf bank_mask:0xf bound_ctrl:0", "row_shr:8 row_mask:0xf bank_mask:0xf bound_ctrl:0",
        "row_bcast:15 row_mask:0xa bank_mask:0xf", "row_bcast:31 row_mask:0xc bank_mask:0xf"]

KD = lambda m: 8 + 4 * m
KS = 76
T2 = lambda d, hh: 80 + 8 * (d - 2) + 4 * hh
T3 = lambda d: 104 + 4 * (d - 4)
BOX = lambda i: 120 + 4 * i
ACC = lambda j: 140 + 4 * j
BR = lambda s: 172 + 4 * s
W1R = 204
BA = lambda i: 208 + 4 * i
SG = lambda i: 232 + 4 * i
vUB, vYW, vFL, vONE, vT0, vT1, vT2 = 244, 245, 246, 247, 248, 249, 250

hdr = open(f"cdna_kernels/{NAME}.s.ref").read().split("; @launch")[0]
head = hdr + f"""; @launch grid=(256,1,1) block=(512,1,1) lds={LDS_SIZE}
.amdgcn_target "amdgcn-amd-amdhsa--gfx950"
.text
.globl {NAME}_kernel
.p2align 8
.type {NAME}_kernel,@function
{NAME}_kernel:
"""
A("s_cmp_ge_u32 s2, 256\ns_cbranch_scc1 L_end")
A("s_load_dwordx16 s[16:31], s[0:1], 0")
A("s_load_dwordx8 s[32:39], s[0:1], 64")
A("s_load_dwordx2 s[40:41], s[0:1], 96")
A("s_load_dwordx2 s[42:43], s[0:1], 112")
stamp(0); cstamp(14)
A(f"""
s_getpc_b64 s[6:7]
L_pc:
s_lshr_b32 s8, s2, 3
v_lshrrev_b32 v2, 6, v0
s_lshl_b32 s5, s8, 10
v_lshl_add_u32 v5, v0, 1, s5
v_readfirstlane_b32 s3, v2
v_min_u32 v5, L_code_end-L_pc, v5
v_and_b32 v5, -4, v5
global_load_dword v252, v5, s[6:7]
v_and_b32 v1, 63, v0
v_lshlrev_b32 v3, 4, v1
v_lshlrev_b32 v4, 2, v1
s_and_b32 s9, s2, 7
s_lshl_b32 s10, s2, 3
s_add_u32 s10, s10, s3
s_mul_i32 s11, s10, 1280
s_mul_i32 s12, s9, 10
s_lshr_b32 s13, s8, 1
s_add_u32 s13, s13, s12
s_lshr_b32 s14, s13, 4
s_lshl_b32 s14, s14, 1
s_and_b32 s15, s8, 1
s_add_u32 s14, s14, s15
s_lshl_b32 s14, s14, 4
s_and_b32 s13, s13, 15
s_add_u32 s44, s14, s13
s_min_u32 s44, s44, 159
s_and_b32 s45, s3, 3
s_lshr_b32 s46, s3, 2
s_lshl_b32 s47, s44, 2
s_add_u32 s47, s47, s45
s_lshl_b32 s5, s47, 8
s_lshl_b32 s13, s46, 7
s_add_u32 s5, s5, s13
v_lshl_add_u32 v5, v1, 1, s5
s_lshl_b32 s5, s47, 1
v_mov_b32 v6, s5
v_mov_b32 v28, 0
s_waitcnt lgkmcnt(0)
s_add_u32 s6, s16, s11
s_addc_u32 s7, s17, 0
global_load_dwordx4 v[8:11], v3, s[6:7]
global_load_dword v12, v4, s[6:7] offset:1024
global_load_dwordx4 v[16:19], v3, s[32:33]
global_load_dword v20, v4, s[32:33] offset:1024
global_load_dword v29, v28, s[42:43]
global_load_ushort v40, v5, s[18:19]
global_load_ushort v44, v6, s[26:27]
global_load_ushort v41, v5, s[20:21]
global_load_ushort v42, v5, s[22:23]
global_load_ushort v43, v5, s[24:25]
global_load_ushort v45, v6, s[28:29]
""")
stamp(1)
A(f"""
s_cmp_ge_u32 s3, 4
s_cbranch_scc1 L_pfw
s_lshr_b32 s5, s3, 1
s_mul_i32 s5, s5, 9
s_add_u32 s5, s5, s12
s_lshr_b32 s5, s5, 4
s_lshl_b32 s5, s5, 1
s_and_b32 s6, s3, 1
s_add_u32 s5, s5, s6
s_lshl_b32 s5, s5, 7
s_mul_i32 s6, s8, 81920
s_add_u32 s5, s5, s6
v_mul_u32_u24 v5, 1280, v1
s_add_u32 s48, s16, s5
s_addc_u32 s49, s17, 0
s_mov_b64 s[50:51], s[48:49]
s_mov_b64 s[54:55], s[48:49]
v_mov_b32 v6, v5
s_branch L_pfd
L_pfw:
s_lshl_b32 s5, s45, 3
s_add_u32 s5, s5, s9
s_min_u32 s5, s5, 26
s_mul_i32 s6, s8, {20*3456}
s_lshl_b32 s7, s5, 7
s_add_u32 s6, s6, s7
s_add_u32 s48, s34, s6
s_addc_u32 s49, s35, 0
s_add_u32 s50, s36, s6
s_addc_u32 s51, s37, 0
s_sub_u32 s50, s50, {20*3456}
s_subb_u32 s51, s51, 0
s_mul_i32 s5, s5, {64*1280}
s_mul_i32 s6, s8, 2560
s_add_u32 s5, s5, s6
s_add_u32 s54, s38, s5
s_addc_u32 s55, s39, 0
v_mul_u32_u24 v5, 3456, v1
v_subrev_u32 v6, 40, v1
v_min_u32 v6, 19, v6
v_lshlrev_b32 v6, 7, v6
L_pfd:
s_mov_b64 exec, 0xfffff
global_load_dword v251, v5, s[48:49]
s_mov_b32 exec_lo, 0xfff00000
s_mov_b32 exec_hi, 0xff
global_load_dword v251, v5, s[50:51]
s_mov_b32 exec_lo, 0
s_mov_b32 exec_hi, 0xffffff00
global_load_dword v251, v6, s[54:55]
s_mov_b64 exec, -1
""")
A(f"""
v_mov_b32 v32, 0
v_mov_b32 v33, 0
v_mov_b32 v34, 0
v_mov_b32 v35, 0
v_lshlrev_b32 v7, 4, v0
v_add_u32 v7, {KB}, v7
ds_write_b128 v7, v[32:35]
ds_write_b128 v7, v[32:35] offset:8192
ds_write_b128 v7, v[32:35] offset:16384
s_mul_i32 s53, s45, {USTR}
s_add_u32 s53, s53, {UB}
v_lshl_add_u32 v7, v1, 3, s53
ds_write_b64 v7, v[32:33]
s_add_u32 s5, s45, 1
s_sub_u32 s13, s5, 32
s_lshl_b32 s5, s5, 1
v_add_u32 v36, s13, v1
v_add_u32 v37, 1, v36
v_mov_b32 v38, 0x3f800000
v_mov_b32 v39, 0x3f80
v_cmp_ge_u32 s[6:7], s5, v36
v_cmp_ge_u32 s[14:15], s5, v37
s_lshl_b32 s13, s45, 8
s_add_u32 s13, s13, {BOXB}
v_cndmask_b32 v38, 0, v38, s[6:7]
v_cndmask_b32 v39, 0, v39, s[14:15]
v_add_u32 v7, s13, v4
v_or_b32 v38, v38, v39
ds_write_b32 v7, v38
v_and_b32 v2, 15, v1
v_lshrrev_b32 v36, 4, v1
v_lshlrev_b32 v36, 3, v36
v_sub_u32 v36, v2, v36
v_lshlrev_b32 v36, 2, v36
v_add_u32 v36, {BOXB+96}, v36
s_mul_i32 s5, s45, {256*1280}
s_lshl_b32 s6, s44, 3
s_add_u32 s5, s5, s6
v_mul_u32_u24 v94, 5120, v1
v_add_u32 v94, s5, v94
v_add_u32 v95, {1024*1280}, v94
s_waitcnt lgkmcnt(0)
s_barrier
""")
for i, (arr, offs) in enumerate([(0, 19), (1, 15), (0, 11), (2, 15), (3, 15)]):
    o = arr * 64 + offs
    A(f"ds_read2_b32 {vr(BOX(i),2)}, v36 offset0:{o} offset1:{o-2}")
    A(f"ds_read2_b32 {vr(BOX(i)+2,2)}, v36 offset0:{o-4} offset1:{o-6}")
A("s_mov_b32 s5, 0x3f803f80\ns_lshl_b32 s11, s10, 3\ns_sub_u32 s13, 2047, s10\ns_mov_b32 s14, 0x9E3779B1")
A(f"v_mov_b32 v33, s11\nv_add_u32 v34, {G1_OFF}, v33\nv_add_u32 v35, {G2_OFF}, v33")
A("s_waitcnt vmcnt(10)")
stamp(2)
for i in range(5):
    c = (lambda r: "0" if i == 0 else r)
    A(f"v_dot2_f32_bf16 v24, v{8+i}, s5, {c('v24')}")
    A(f"v_dot2_f32_bf16 v25, v{8+i}, v{8+i}, {c('v25')}")
    A(f"v_dot2_f32_bf16 v26, v{8+i}, v{16+i}, {c('v26')}")
    A(f"v_dot2_f32_bf16 v27, v{16+i}, s5, {c('v27')}")
for mod in DPP6:
    for r in (24, 25, 26, 27):
        A(f"v_add_f32_dpp v{r}, v{r}, v{r} {mod}")
A(f"""
v_mul_f32 v24, 0x3acccccd, v24
v_mul_f32 v25, 0x3acccccd, v25
s_waitcnt vmcnt(9)
v_fma_f32 v25, -v24, v24, v25
v_mul_lo_u32 v29, v29, s14
v_max_f32 v25, 0, v25
v_add_u32 v29, 0x7F4A7C15, v29
v_cvt_pk_bf16_f32 v28, v24, v25
v_mov_b32 v31, v29
v_and_b32 v25, 0xffff0000, v28
v_lshlrev_b32 v24, 16, v28
v_add_f32 v25, 0x3727c5ac, v25
v_readfirstlane_b32 s4, v29
v_cvt_pk_bf16_f32 v25, v25, v25
v_fma_f32 v26, -v24, v27, v26
v_and_b32 v25, 0xffff0000, v25
v_sqrt_f32 v25, v25
{LANE63}
v_cvt_pk_bf16_f32 v28, v24, v25
v_and_b32 v25, 0xffff0000, v28
global_store_dwordx2 v34, v[28:29], s[42:43] sc1
v_rcp_f32 v25, v25
s_nop 0
v_mul_f32 v26, v26, v25
v_cvt_pk_bf16_f32 v26, v26, v26
v_ashrrev_i32 v27, 31, v26
v_or_b32 v27, 0x80000000, v27
v_xor_b32 v26, v26, v27
v_and_b32 v26, 0xffff0000, v26
v_or_b32 v30, s13, v26
global_store_dwordx2 v35, v[30:31], s[42:43] sc1
s_mov_b64 exec, -1
""")
stamp(3)
A("""
s_cmp_ge_u32 s2, 160
s_cbranch_scc1 L_notconv
s_waitcnt vmcnt(5)
s_cmp_lt_u32 s3, 4
s_cbranch_scc1 L_tables
""")
for r in range(4):
    A(f"global_load_dwordx2 v[{96+2*r}:{97+2*r}], v94, s[16:17] offset:{1280*r}")
A.label("L_tables")
A(f"""
v_lshlrev_b32 v40, 16, v40
v_lshlrev_b32 v44, 16, v44
v_mul_f32 v40, {LOG2E:#x}, v40
v_mul_f32 v44, {LOG2E:#x}, v44
v_exp_f32 v40, v40
v_exp_f32 v44, v44
v_lshlrev_b32 v41, 16, v41
v_lshlrev_b32 v42, 16, v42
v_cvt_pk_bf16_f32 v40, v44, v40
v_lshlrev_b32 v43, 16, v43
v_lshlrev_b32 v44, 16, v40
v_and_b32 v40, 0xffff0000, v40
v_mul_f32 v41, v41, v44
v_mul_f32 v40, v40, v44
v_add_f32 v44, v44, v44
v_mul_f32 v40, {NLOG2E:#x}, v40
v_mul_f32 v41, {INV2PI:#x}, v41
v_mul_f32 v48, v42, v44
v_mul_f32 v49, v43, v44
s_lshl_b32 s5, s45, 9
s_lshl_b32 s6, s46, 8
s_add_u32 s50, s5, s6
s_add_u32 s51, s50, {TBY}
v_mul_f32 v56, 0x41000000, v40
v_mul_f32 v58, 0x41000000, v41
v_mul_f32 v57, 0x43800000, v40
v_mul_f32 v59, 0x43800000, v41
v_fract_f32 v58, v58
v_fract_f32 v60, v41
v_fract_f32 v59, v59
v_exp_f32 v56, v56
v_cos_f32 v52, v58
v_sin_f32 v53, v58
v_exp_f32 v61, v40
v_cos_f32 v50, v60
v_sin_f32 v51, v60
v_exp_f32 v57, v57
v_cos_f32 v54, v59
v_sin_f32 v55, v59
v_mul_f32 v52, v52, v56
v_mul_f32_e64 v53, -v53, v56
v_mul_f32 v50, v50, v61
v_mul_f32 v51, v51, v61
v_mul_f32 v54, v54, v57
v_mul_f32 v55, v55, v57
s_mov_b32 m0, s51
v_mov_b32 v76, 0x3f80
""")
pend = []
GRP = 4
tt = [0]
def emit_row(reg, rows):
    t = 76 + (tt[0] % (2 * GRP)); tt[0] += 1
    if reg is not None: A(f"v_cvt_pk_bf16_f32 v{t}, v{reg}, v{reg+1}")
    for r in rows: pend.append(f"ds_write_addtid_b32 v{t} offset:{r*TROW}")
    if tt[0] % GRP == 0: flush_rows()
def flush_rows():
    for p in pend: A(p)
    pend.clear()
emit_row(None, [0]); emit_row(52, [1])
cur = 52
for c in range(2, 32):
    dst = 64 + 2 * (c % 2)
    cmul(dst, cur, 52, dst); emit_row(dst, [c]); cur = dst
flush_rows()
A("s_mov_b32 m0, s50\ns_cmp_lt_u32 s3, 4\ns_cbranch_scc1 L_t2")
for r in range(4):
    A(f"global_load_dwordx2 v[{104+2*r}:{105+2*r}], v95, s[16:17] offset:{1280*r}")
A.label("L_t2")
cmul(56, 50, 50, 56)
emit_row(48, [0])
cur = 48
rows0 = {1: [1], 2: [2], 3: [3], 4: [4, 8], 5: [5], 6: [6], 7: [7], 8: [12]}
for p in range(1, 9):
    dst = 64 + 2 * (p % 2)
    cmul(dst, cur, 50, dst); emit_row(dst, rows0[p]); cur = dst
for dst, src, w, rows in [(68, 48, 54, [9]), (70, 68, 56, [10]), (68, 70, 56, [11, 13]), (70, 68, 56, [14]), (72, 70, 56, [15]),
                          (70, 68, 54, [16]), (74, 72, 54, [17]), (68, 70, 54, [20]), (72, 74, 54, [21]),
                          (74, 72, 54, [18]), (72, 74, 54, [19]), (74, 72, 54, [22]), (72, 74, 54, [23])]:
    cmul(dst, src, w, dst); emit_row(dst, rows)
flush_rows()
A("s_cmp_ge_u32 s3, 4\ns_cbranch_scc1 L_helper")

q = LdsQ()
A(f"""
v_and_b32 v2, 31, v1
v_lshrrev_b32 v3, 5, v1
v_mul_u32_u24 v5, {TROW}, v2
v_subrev_u32 v6, {8*TROW}, v5
v_cmp_le_u32 vcc, 24, v2
s_lshl_b32 s5, s45, 9
v_lshl_add_u32 v7, v3, 4, s5
v_cndmask_b32 v6, v5, v6, vcc
v_add_u32 v5, v5, v7
v_add_u32 v6, v6, v7
v_add_u32 v5, {TBY}, v5
s_waitcnt lgkmcnt(0)
s_barrier
""")
stamp(4)
NB = 6
def kg_issue(s):
    b = 156 + 8 * (s % NB)
    A(f"ds_read_b128 {vr(b,4)}, v6 offset:{32*s}"); q.issue(("ka", s))
    A(f"ds_read_b128 {vr(b+4,4)}, v5 offset:{32*s}"); q.issue(("kb", s))
for s in range(NB): kg_issue(s)
filler = f"""
s_mul_i32 s52, s45, {KSTR}
s_add_u32 s52, s52, {KB}
v_lshlrev_b32 v208, 6, v2
v_lshl_add_u32 v208, v3, 5, v208
v_add_u32 v208, s52, v208
v_add_u32 v207, 2048, v208
v_lshlrev_b32 v209, 2, v2
v_lshl_add_u32 v209, v3, 7, v209
v_add_u32 v209, s52, v209
v_lshlrev_b32 v210, 1, v2
v_lshl_add_u32 v210, v3, 7, v210
v_add_u32 v210, s52, v210
v_mov_b32 v211, s52
v_lshlrev_b32 v45, 16, v45
v_cmp_eq_u32 vcc, 0, v1
v_and_b32 v232, 15, v1
v_lshrrev_b32 v233, 4, v1
v_cndmask_b32 v45, 0, v45, vcc
v_lshlrev_b32 v234, 3, v233
v_sub_u32 v234, v232, v234
v_add_u32 v234, 24, v234
v_lshl_add_u32 v234, v234, 3, s52
v_lshlrev_b32 v235, 2, v233
v_sub_u32 v235, v232, v235
v_add_u32 v235, 12, v235
v_lshl_add_u32 v236, v235, 2, s52
v_lshl_add_u32 v235, v235, 3, s52
v_add_u32 v236, {T3_O}, v236
v_lshlrev_b32 v{vUB}, 5, v232
v_lshl_add_u32 v{vUB}, v233, 4, v{vUB}
v_add_u32 v{vUB}, s53, v{vUB}
v_lshrrev_b32 v{vT0}, 1, v232
v_add_u32 v{vT0}, v{vT0}, v233
v_and_b32 v{vT0}, 3, v{vT0}
v_and_b32 v{vT1}, 7, v232
v_lshlrev_b32 v{vT1}, 6, v{vT1}
v_lshl_add_u32 v{vT1}, v{vT0}, 4, v{vT1}
v_lshrrev_b32 v{vT0}, 3, v232
v_mul_u32_u24 v{vT0}, {TROW}, v{vT0}
v_add3_u32 v{vYW}, v{vT0}, v{vT1}, s5
v_mov_b32 v{vFL}, {FLG}
v_mov_b32 v{vONE}, 1
v_mov_b32 v223, 0
v_mov_b32 v231, 0
""".strip().split("\n")
for _ in range(8): A(filler.pop(0))
for s in range(16):
    q.wait(("kb", s))
    b = 156 + 8 * (s % NB)
    A(f"v_mfma_f32_32x32x16_bf16 v[140:155], {vr(b,4)}, {vr(b+4,4)}, {'0' if s == 0 else 'v[140:155]'}")
    if s + NB < 16: kg_issue(s + NB)
    for _ in range(3):
        if filler: A(filler.pop(0))
assert not filler
A.nop(12)
K = lambda i: f"v{140+i}"
A(f"""
v_add_f32 {K(0)}, {K(0)}, v45
v_cvt_pk_bf16_f32 v215, {K(2)}, {K(1)}
v_cvt_pk_bf16_f32 v212, {K(3)}, {K(2)}
v_cvt_pk_bf16_f32 v214, {K(4)}, {K(3)}
v_cvt_pk_bf16_f32 v213, {K(1)}, {K(0)}
v_cvt_pk_bf16_f32 v217, {K(5)}, {K(5)}
v_cvt_pk_bf16_f32 v219, {K(6)}, {K(5)}
v_cvt_pk_bf16_f32 v216, {K(7)}, {K(6)}
v_cvt_pk_bf16_f32 v218, {K(7)}, {K(7)}
ds_write_b128 v208, v[212:215] offset:128
ds_write2_b32 v208, v213, v215 offset0:28 offset1:30
ds_write2_b32 v208, v212, v214 offset0:37 offset1:39
ds_write_b128 v207, v[216:219] offset:128
ds_write2_b32 v207, v217, v219 offset0:28 offset1:30
ds_write2_b32 v207, v216, v218 offset0:37 offset1:39
v_cvt_pk_bf16_f32 v222, {K(0)}, 0
v_cvt_pk_bf16_f32 v224, 0, {K(7)}
v_mov_b32 v225, v218
v_mov_b32 v226, 0
v_mov_b32 v227, v218
v_cvt_pk_bf16_f32 v228, {K(9)}, 0
v_cvt_pk_bf16_f32 v230, {K(9)}, {K(9)}
v_cvt_pk_bf16_f32 v238, 0, {K(9)}
v_cvt_pk_bf16_f32 v220, {K(8)}, {K(9)}
v_cvt_pk_bf16_f32 v221, {K(10)}, {K(11)}
v_mov_b32 v229, 0
v_add_u32 v237, 4096, v211
v_add_u32 v239, {SP_O}, v211
s_mov_b64 exec, 1
ds_write2_b32 v211, v222, v222 offset0:26 offset1:31
{LANE63}
ds_write2_b32 v237, v218, v218 offset0:28 offset1:30
ds_write_b128 v237, v[224:227] offset:128
ds_write_b32 v237, v224 offset:148
ds_write_b128 v239, v[228:231] offset:128
ds_write2_b32 v239, v238, v228 offset0:36 offset1:37
ds_write2_b32 v239, v230, v238 offset0:39 offset1:41
s_mov_b64 exec, -1
ds_write_b32 v209, v220 offset:{T2_O+128}
ds_write_b16 v210, v221 offset:{T3_O+64}
ds_write_b16_d16_hi v210, v221 offset:{T3_O+64+64}
""")
order = [0, 8, 16] + [x for i in range(1, 8) for x in (i, 8 + i)]
for m in order:
    A(f"ds_read_b64 {vr(KD(m),2)}, v234 offset:{8*(32*m+5)}")
    A(f"ds_read_b64 {vr(KD(m)+2,2)}, v234 offset:{8*(32*m+1)}")
A(f"ds_read_b64 {vr(KS,2)}, v234 offset:{SP_O+40}")
A(f"ds_read_b64 {vr(KS+2,2)}, v234 offset:{SP_O+8}")
for d in (2, 3, 4):
    for hh in (0, 1):
        o = 16 * d - 28 - 2 * hh
        A(f"ds_read_b64 {vr(T2(d,hh),2)}, v235 offset:{T2_O+8*o}")
        A(f"ds_read_b64 {vr(T2(d,hh)+2,2)}, v235 offset:{T2_O+8*(o-1)}")
for d in (4, 5, 6, 7):
    o = 16 * d - 60
    A(f"ds_read2_b32 {vr(T3(d),2)}, v236 offset0:{o} offset1:{o-1}")
    A(f"ds_read2_b32 {vr(T3(d)+2,2)}, v236 offset0:{o-2} offset1:{o-3}")
stamp(5)
def wait_flag(addr, off, val, nm, tmp):
    l = A.newlabel(nm); lo = A.newlabel(nm + "o")
    A(f"s_mov_b32 s54, {SPIN_MAX}")
    A.label(l)
    A(f"ds_read_b32 v{tmp}, v{addr} offset:{off}")
    A("s_waitcnt lgkmcnt(0)")
    A(f"v_readfirstlane_b32 s5, v{tmp}")
    A(f"s_sub_u32 s54, s54, 1\ns_cbranch_scc1 {lo}")
    A(f"s_cmp_lt_u32 s5, {val}\ns_cbranch_scc1 {l}")
    A.label(lo)
wait_flag(vFL, 0, 4, "u0", vT2); q.known_all()
stamp(6)
loads = []
for j in range(8):
    loads.append(("B", 8 * j))
    if j <= 5: loads.append(("W", j))
    for i in range(1, 8): loads.append(("B", 8 * j - i))
slot = {}
nxt = [0]; ring = [0]
AHEAD = 5
def issue_upto(k):
    while nxt[0] <= min(k, len(loads) - 1):
        kind, n = loads[nxt[0]]
        if kind == "B" and n == 32 and not issue_upto.second:
            wait_flag(vFL, 4, 4, "u1", vT2); q.known_all(); issue_upto.second = True
        if kind == "B":
            s = ring[0] % 8; ring[0] += 1
            slot[(kind, n)] = BR(s)
            A(f"ds_read_b128 {vr(BR(s),4)}, v{vUB} offset:{480+64*n}")
        else:
            slot[(kind, n)] = W1R
            A(f"ds_read_b128 {vr(W1R,4)}, v{vUB} offset:{464+512*n}")
        q.issue((kind, n)); nxt[0] += 1
issue_upto.second = False
touched = set()
def mf(j, a, b):
    c = vr(ACC(j), 4) if j in touched else "0"; touched.add(j)
    A(f"v_mfma_f32_16x16x32_bf16 {vr(ACC(j),4)}, {vr(a,4)}, {vr(b,4)}, {c}")
def use(key):
    k = loads.index(key); issue_upto(k + AHEAD); q.wait(key); return slot[key]
def ywrite(j):
    A(f"ds_write_b128 v{vYW}, {vr(ACC(j),4)} offset:{2*TROW*j}"); q.issue("yw")
    A("s_mov_b64 exec, 1")
    A(f"ds_add_u32 v{vFL}, v{vONE} offset:{32+4*j}"); q.issue("yf")
    A("s_mov_b64 exec, -1")
pend_y = None
for j in range(8):
    b0 = use(("B", 8 * j))
    cv = []
    if j <= 5:
        for i, bx in ((0, 0), (1, 1), (2, 2)) + (((4, 3),) if j <= 3 else ()):
            A(f"v_mfma_f32_16x16x32_bf16 {vr(BA(i),4)}, {vr(b0,4)}, {vr(BOX(bx),4)}, 0")
        w1 = use(("W", j))
        for i, bx in ((3, 1),) + (((5, 4),) if j <= 3 else ()):
            A(f"v_mfma_f32_16x16x32_bf16 {vr(BA(i),4)}, {vr(w1,4)}, {vr(BOX(bx),4)}, 0")
        for r in range(4):
            cv.append(f"v_cvt_pk_bf16_f32 v{SG(r//2)+2*(r%2)}, v{BA(0)+r}, v{BA(1)+r}")
        for r in range(4):
            cv.append(f"v_cvt_pk_bf16_f32 v{SG(r//2)+2*(r%2)+1}, v{BA(2)+r}, v{BA(3)+r}")
        if j <= 3:
            for r in range(4):
                cv.append(f"v_cvt_pk_bf16_f32 v{SG(2)+r}, v{BA(4)+r}, v{BA(5)+r}")
    mf(j, KD(0), b0)
    if j + 1 <= 7: mf(j + 1, KD(8), b0)
    if j + 2 <= 7: mf(j + 2, KD(16), b0)
    if j + 4 <= 7: mf(j + 4, KS, b0)
    for i in range(1, 8):
        b = use(("B", 8 * j - i))
        mf(j, KD(i), b)
        if i >= 2 and cv: A(cv.pop(0))
        if j + 1 <= 7: mf(j + 1, KD(8 + i), b)
        if i >= 2 and cv and (i < 7 or len(cv) > 0): A(cv.pop(0))
        if pend_y is not None and i == 3:
            ywrite(pend_y); pend_y = None
    assert not cv
    far = []
    if j <= 5:
        for d in (2, 3, 4):
            if j + d <= 7: far += [(j + d, SG(0), T2(d, 0)), (j + d, SG(1), T2(d, 1))]
        if j <= 3:
            for d in (4, 5, 6, 7):
                if j + d <= 7: far.append((j + d, SG(2), T3(d)))
    if len(far) >= 7:
        for f in far[:7]: mf(*f)
        ywrite(j)
        for f in far[7:]: mf(*f)
    else:
        for f in far: mf(*f)
        if j == 7:
            A.nop(8); ywrite(j)
        else:
            pend_y = j
stamp(7)
finish(8)

A.label("L_helper")
XF = [112, 144]; GG = [128, 160]; XR = [96, 104]; ST = [8, 16]; UU = [24, 32]
A(f"""
s_lshl_b32 s5, s45, 11
s_add_u32 s5, s5, {G1_OFF}
v_lshl_add_u32 v92, v1, 5, s5
v_add_u32 v93, 8192, v92
global_load_dwordx4 v[8:11], v92, s[42:43] sc1
global_load_dwordx4 v[12:15], v92, s[42:43] offset:16 sc1
global_load_dwordx4 v[16:19], v93, s[42:43] sc1
global_load_dwordx4 v[20:23], v93, s[42:43] offset:16 sc1
s_waitcnt lgkmcnt(0)
s_barrier
""")
stamp(4)
A(f"""
s_lshl_b32 s5, s45, 9
s_add_u32 s5, s5, {UB+512}
v_lshl_add_u32 v91, v1, 3, s5
v_mov_b32 v{vFL}, {FLG}
v_mov_b32 v{vONE}, 1
v_lshrrev_b32 v2, 3, v1
v_add_u32 v2, v2, v1
v_and_b32 v2, 3, v2
v_and_b32 v3, 28, v1
v_add_u32 v2, v2, v3
v_lshlrev_b32 v2, 4, v2
v_lshrrev_b32 v3, 5, v1
v_mul_u32_u24 v3, {TROW}, v3
s_mul_i32 s5, s45, {2*TROW}
v_add3_u32 v90, v2, v3, s5
s_lshl_b32 s5, s45, 2
v_add_u32 v89, s5, v{vFL}
v_and_b32 v88, 7, v1
v_lshlrev_b32 v88, 3, v88
v_add_u32 v88, {SEL_OFF}, v88
""")
def unpack_x(t):
    for r in range(4):
        for hw in range(2):
            src = XR[t] + 2 * r + hw
            A(f"v_lshlrev_b32 v{XF[t]+4*(2*hw)+r}, 16, v{src}")
            A(f"v_and_b32 v{XF[t]+4*(2*hw+1)+r}, 0xffff0000, v{src}")
def poll4(s, av, first_wait):
    l = A.newlabel("g"); lo = A.newlabel("go")
    A(f"s_mov_b32 s54, {SPIN_MAX}")
    A(f"s_waitcnt vmcnt({first_wait})")
    A.label(l)
    A(f"""
v_xor_b32 v2, s4, v{s+1}
v_xor_b32 v3, s4, v{s+3}
v_xor_b32 v5, s4, v{s+5}
v_xor_b32 v6, s4, v{s+7}
v_or3_b32 v2, v2, v3, v5
v_or_b32 v2, v2, v6
v_cmp_ne_u32 vcc, 0, v2
s_cbranch_vccz {lo}
s_sub_u32 s54, s54, 1
s_cbranch_scc1 {lo}
global_load_dwordx4 {vr(s,4)}, v{av}, s[42:43] sc1
global_load_dwordx4 {vr(s+4,4)}, v{av}, s[42:43] offset:16 sc1
s_waitcnt vmcnt(0)
s_branch {l}
""")
    A.label(lo)
def normalize(t):
    s = ST[t]
    for r in range(4): A(f"v_and_b32 v{180+r}, 0xffff0000, v{s+2*r}")
    for r in range(4): A(f"v_rcp_f32 v{180+r}, v{180+r}")
    for r in range(4): A(f"v_lshlrev_b32 v{176+r}, 16, v{s+2*r}")
    for ch in range(4):
        T = 184
        for r in range(4): A(f"v_sub_f32 v{T+r}, v{XF[t]+4*ch+r}, v{176+r}")
        for p in range(2): A(f"v_cvt_pk_bf16_f32 v{T+2*p+1}, v{T+2*p}, v{T+2*p+1}")
        for p in range(2):
            A(f"v_lshlrev_b32 v{T+2*p}, 16, v{T+2*p+1}")
            A(f"v_and_b32 v{T+2*p+1}, 0xffff0000, v{T+2*p+1}")
        for r in range(4): A(f"v_mul_f32 v{T+r}, v{T+r}, v{180+r}")
        for p in range(2): A(f"v_cvt_pk_bf16_f32 v{UU[t]+2*ch+p}, v{T+2*p}, v{T+2*p+1}")
    for ch in range(4): A(f"ds_write_b64 v91, {vr(UU[t]+2*ch,2)} offset:{USTR*ch+2048*t}")
    A("s_mov_b64 exec, 1")
    A(f"ds_add_u32 v{vFL}, v{vONE} offset:{4*t}")
    A("s_mov_b64 exec, -1")
def precompute(t):
    for ch in range(4):
        N = GG[t] + 4 * ch; E = 188
        for p in range(2):
            A(f"v_lshlrev_b32 v{N+2*p}, 16, v{UU[t]+2*ch+p}")
            A(f"v_and_b32 v{N+2*p+1}, 0xffff0000, v{UU[t]+2*ch+p}")
        for i in range(4): A(f"v_mul_f32 v{E+i}, {NLOG2E:#x}, v{N+i}")
        for i in range(4): A(f"v_exp_f32 v{E+i}, v{E+i}")
        for i in range(4): A(f"v_add_f32 v{E+i}, 1.0, v{E+i}")
        for i in range(4): A(f"v_rcp_f32 v{E+i}, v{E+i}")
        for i in range(4): A(f"v_mul_f32 v{N+i}, v{N+i}, v{E+i}")
def epilogue(t):
    wait_flag(89, 32 + 16 * t, 4, "y", 2)
    for ch in range(4): A(f"ds_read_b128 {vr(200+4*ch,4)}, v90 offset:{512*ch+8*TROW*t}")
    for ch in range(4):
        A(f"s_waitcnt lgkmcnt({3-ch})")
        for r in range(4): A(f"v_fma_f32 v{200+4*ch+r}, v{200+4*ch+r}, v{GG[t]+4*ch+r}, v{XF[t]+4*ch+r}")
    for r in range(4):
        A(f"v_cvt_pk_bf16_f32 v{216+2*r+8*t}, v{200+r}, v{204+r}")
        A(f"v_cvt_pk_bf16_f32 v{217+2*r+8*t}, v{208+r}, v{212+r}")
        A(f"global_store_dwordx2 v{94+t}, {vr(216+2*r+8*t,2)}, s[40:41] offset:{1280*r}")
A("s_waitcnt vmcnt(8)")
unpack_x(0)
A("s_waitcnt vmcnt(4)")
unpack_x(1)
poll4(ST[0], 92, 2)
stamp(5)
normalize(0)
stamp(6)
poll4(ST[1], 93, 0)
normalize(1)
stamp(7)
precompute(0)
epilogue(0)
stamp(8)
precompute(1)
A("global_load_dwordx2 v[40:41], v88, s[42:43] sc1")
epilogue(1)
stamp(9)
lS = A.newlabel("sel"); lSo = A.newlabel("selo")
A(f"""
s_mov_b32 s54, {SPIN_MAX}
s_waitcnt vmcnt(4)
{lS}:
v_cmp_ne_u32 vcc, s4, v41
s_cbranch_vccz {lSo}
s_sub_u32 s54, s54, 1
s_cbranch_scc1 {lSo}
global_load_dwordx2 v[40:41], v88, s[42:43] sc1
s_waitcnt vmcnt(0)
s_branch {lS}
{lSo}:
v_and_b32 v42, 0x7ff, v40
v_sub_u32 v42, 2047, v42
v_bfe_u32 v43, v42, 8, 2
v_cmp_eq_u32 s[56:57], s45, v43
s_cmp_eq_u64 s[56:57], 0
s_cbranch_scc1 L_hdone
s_mul_i32 s5, s44, {PART_STRIDE}
s_add_u32 s5, s5, {PART_OFF}
v_lshl_add_u32 v44, v1, 4, s5
v_add_u32 v45, 4096, v44
s_and_b32 s5, s4, 0xff
v_mov_b32 v48, s5
s_bfe_u32 s5, s4, 0x80008
v_mov_b32 v49, s5
s_bfe_u32 s5, s4, 0x80010
v_mov_b32 v50, s5
s_lshr_b32 s5, s4, 24
v_mov_b32 v51, s5
v_mov_b32 v76, v48
v_mov_b32 v77, v49
v_mov_b32 v78, v50
v_mov_b32 v79, v51
s_and_b32 s59, s57, 0xffff
s_mov_b32 s58, s56
s_mov_b64 exec, s[56:57]
""")
def part_loads():
    for i in range(6):
        A(f"global_load_dwordx4 {vr(52+4*i,4)}, v{44 + i//4}, s[42:43] offset:{1024*(i%4)} sc1")
    A("s_mov_b64 exec, s[58:59]")
    A(f"global_load_dwordx4 v[76:79], v45, s[42:43] offset:2048 sc1")
    A("s_mov_b64 exec, s[56:57]")
A(f"""
s_lshl_b32 s5, s44, 3
v_mul_u32_u24 v46, 1280, v42
v_add_u32 v46, s5, v46
global_load_dwordx2 v[80:81], v46, s[16:17]
""")
part_loads()
A(f"""
v_lshlrev_b32 v2, 1, v42
v_add_u32 v2, {UB+512}, v2
ds_read_u16 v96, v2
ds_read_u16 v97, v2 offset:{USTR}
ds_read_u16 v98, v2 offset:{2*USTR}
ds_read_u16 v99, v2 offset:{3*USTR}
v_lshrrev_b32 v3, 7, v42
v_mul_u32_u24 v3, {TROW}, v3
v_bfe_u32 v5, v42, 4, 3
v_lshl_add_u32 v3, v5, 6, v3
v_lshrrev_b32 v5, 2, v42
v_lshrrev_b32 v6, 5, v42
v_add_u32 v5, v5, v6
v_and_b32 v5, 3, v5
v_lshl_add_u32 v3, v5, 4, v3
v_and_b32 v5, 3, v42
v_lshl_add_u32 v3, v5, 2, v3
ds_read_b32 v100, v3
ds_read_b32 v101, v3 offset:512
ds_read_b32 v102, v3 offset:1024
ds_read_b32 v103, v3 offset:1536
v_not_b32 v5, v40
v_ashrrev_i32 v5, 31, v5
v_or_b32 v5, 0x80000000, v5
v_xor_b32 v5, v40, v5
v_and_b32 v5, 0xffff0000, v5
v_mul_f32 v5, {NLOG2E:#x}, v5
v_exp_f32 v5, v5
s_nop 0
v_add_f32 v5, 1.0, v5
v_rcp_f32 v47, v5
s_waitcnt lgkmcnt(4)
v_lshlrev_b32 v96, 16, v96
v_lshlrev_b32 v97, 16, v97
v_lshlrev_b32 v98, 16, v98
v_lshlrev_b32 v99, 16, v99
s_waitcnt vmcnt(7)
v_lshlrev_b32 v104, 16, v80
v_and_b32 v105, 0xffff0000, v80
v_lshlrev_b32 v106, 16, v81
v_and_b32 v107, 0xffff0000, v81
s_mov_b32 s54, {SPIN_MAX}
""")
lP = A.newlabel("par"); lPo = A.newlabel("paro")
A.label(lP)
A("s_waitcnt vmcnt(0)")
for i in range(7):
    for k in range(4): A(f"v_xor_b32 v{112+4*i+k}, v{52+4*i+k}, v{48+k}")
A("v_or3_b32 v2, v112, v113, v114")
for i in range(3, 27, 2): A(f"v_or3_b32 v2, v2, v{112+i}, v{113+i}")
A("v_or_b32 v2, v2, v139\nv_and_b32 v2, 0xff, v2\nv_cmp_ne_u32 vcc, 0, v2")
A(f"s_cbranch_vccz {lPo}\ns_sub_u32 s54, s54, 1\ns_cbranch_scc1 {lPo}")
part_loads()
A(f"s_branch {lP}")
A.label(lPo)
stamp(10)
for i in range(1, 7):
    for k in range(4): A(f"v_add_f32 v{112+k}, v{112+k}, v{112+4*i+k}")
A("s_mov_b64 exec, -1")
for k in range(4): A(f"v_add_f32_dpp v{112+k}, v{112+k}, v{112+k} row_ror:8 row_mask:0xf bank_mask:0xf")
for k in range(4): A(f"v_mov_b32 v{116+k}, v{112+k}")
for k in range(4): A(f"v_permlane16_swap_b32 v{112+k}, v{116+k}")
for k in range(4): A(f"v_add_f32 v{112+k}, v{112+k}, v{116+k}")
for k in range(4): A(f"v_mov_b32 v{116+k}, v{112+k}")
for k in range(4): A(f"v_permlane32_swap_b32 v{112+k}, v{116+k}")
for k in range(4): A(f"v_add_f32 v{112+k}, v{112+k}, v{116+k}")
A("s_waitcnt lgkmcnt(0)")
for k in range(4): A(f"v_fma_f32 v{112+k}, v{112+k}, v47, v{96+k}")
for k in range(4): A(f"v_mul_f32 v{116+k}, {NLOG2E:#x}, v{112+k}")
for k in range(4): A(f"v_exp_f32 v{116+k}, v{116+k}")
for k in range(4): A(f"v_mul_f32 v{112+k}, v{112+k}, v{100+k}")
for k in range(4): A(f"v_add_f32 v{116+k}, 1.0, v{116+k}")
for k in range(4): A(f"v_rcp_f32 v{116+k}, v{116+k}")
A("s_and_b32 exec_lo, s56, 0xff\ns_mov_b32 exec_hi, 0")
for k in range(4): A(f"v_fma_f32 v{112+k}, v{112+k}, v{116+k}, v{104+k}")
A("v_cvt_pk_bf16_f32 v112, v112, v113\nv_cvt_pk_bf16_f32 v113, v114, v115")
A("global_store_dwordx2 v46, v[112:113], s[40:41]")
A.label("L_hdone")
stamp(11)
if OPT["stamps"]:
    A("s_waitcnt vmcnt(0)")
    stamp(12)
finish(13)

A.label("L_notconv")
A(f"""
s_waitcnt lgkmcnt(0)
s_sub_u32 s5, s8, 20
s_lshr_b32 s6, s5, 1
s_lshl_b32 s6, s6, 3
s_add_u32 s6, s6, s9
s_cmp_ge_u32 s6, 27
s_cbranch_scc1 L_fin
s_lshl_b32 s6, s6, 1
s_and_b32 s5, s5, 1
s_add_u32 s48, s6, s5
s_bitcmp1_b32 s3, 0
s_cselect_b32 s56, s36, s34
s_cselect_b32 s57, s37, s35
s_mov_b32 s58, {640*3456}
s_mov_b32 s59, 0x20000
s_lshr_b32 s49, s3, 1
s_mul_i32 s5, s49, {160*3456}
s_lshl_b32 s6, s48, 6
s_add_u32 s5, s5, s6
v_and_b32 v2, 15, v1
v_lshrrev_b32 v3, 4, v1
v_mul_u32_u24 v5, {8*3456}, v3
v_lshl_add_u32 v5, v2, 2, v5
s_barrier
""")
WG = 40
for ks in range(5):
    for j in range(0, 8, 2):
        A(f"buffer_load_dword v{WG+8*ks+j}, v5, s[56:59], s5 offen")
        A(f"buffer_load_dword v{WG+8*ks+j+1}, v5, s[56:59], s5 offen offset:3456")
        A(f"s_add_u32 s5, s5, {2*3456 if j < 6 else 26*3456}")
A(f"""
s_min_u32 s50, s3, 4
s_mul_i32 s5, s48, {32*1280}
s_lshl_b32 s6, s50, 8
s_add_u32 s5, s5, s6
v_mul_u32_u24 v6, {8*1280}, v3
v_lshl_add_u32 v6, v2, 4, v6
v_add_u32 v6, s5, v6
v_add_u32 v7, {4*1280}, v6
""")
for j in range(8):
    A(f"global_load_dwordx4 {vr(80+4*j,4)}, v{6 + j//4}, s[38:39] offset:{1280*(j%4)}")
A(f"""
v_lshlrev_b32 v92+0, 0, v0
""".replace("v92+0, 0, v0", "v36, 5, v0"))
A(f"""
v_add_u32 v36, {G2_OFF}, v36
s_mov_b32 s60, 0x05040100
s_mov_b32 s61, 0x07060302
v_mov_b32 v112, 0x3f803f80
v_mov_b32 v113, 0x3f803f80
v_mov_b32 v114, 0x3f803f80
v_mov_b32 v115, 0x3f803f80
s_and_b32 s5, s3, 1
s_lshl_b32 s5, s5, 2
s_add_u32 s5, s5, s49
s_lshl_b32 s5, s5, 10
v_lshlrev_b32 v37, 7, v3
v_lshl_add_u32 v37, v2, 4, v37
v_add_u32 v37, s5, v37
v_lshlrev_b32 v38, 2, v0
s_mov_b32 s62, 0x00ff00ff
s_mov_b32 s63, 0x00ff00ff
""")
for ks in range(5):
    A(f"s_waitcnt vmcnt({8 + 8*(4-ks)})")
    for i in range(4):
        A(f"v_perm_b32 v{120+4*ks+i}, v{WG+8*ks+2*i+1}, v{WG+8*ks+2*i}, s60")
        A(f"v_perm_b32 v{140+4*ks+i}, v{WG+8*ks+2*i+1}, v{WG+8*ks+2*i}, s61")
A("global_load_dwordx4 v[8:11], v36, s[42:43] sc1\nglobal_load_dwordx4 v[12:15], v36, s[42:43] offset:16 sc1")
for ks in range(5):
    A(f"v_mfma_f32_16x16x32_bf16 v[24:27], {vr(120+4*ks,4)}, v[112:115], {'0' if ks == 0 else 'v[24:27]'}")
    A(f"v_mfma_f32_16x16x32_bf16 v[28:31], {vr(140+4*ks,4)}, v[112:115], {'0' if ks == 0 else 'v[28:31]'}")
A("s_waitcnt vmcnt(2)")
for qq in range(8):
    for i in range(4):
        A(f"v_perm_b32 v{160+4*qq+i}, v{80+4*(2*i+1)+qq//2}, v{80+4*(2*i)+qq//2}, {'s60' if qq % 2 == 0 else 's61'}")
A(f"""
s_mov_b64 exec, s[62:63]
ds_write_b128 v37, v[24:27] offset:{CSB}
ds_write_b128 v37, v[28:31] offset:{CSB+512}
s_mov_b64 exec, -1
""")
stamp(4)
poll4(8, 36, 0)
stamp(5)
A(f"""
v_max3_u32 v16, v8, v10, v12
v_mov_b32 v17, {WMAX}
v_max_u32 v16, v16, v14
s_lshl_b32 s5, s3, 2
v_add_u32 v18, s5, v17
""")
for mod in DPP6:
    A(f"s_nop 1\nv_max_u32_dpp v16, v16, v16 {mod.replace(' bound_ctrl:0','')}")
A(f"""
{LANE63}
ds_write_b32 v18, v16
s_mov_b64 exec, -1
v_mov_b32 v19, {CNT}
s_waitcnt lgkmcnt(0)
s_barrier
ds_read_b128 v[20:23], v17
ds_read_b128 v[24:27], v17 offset:16
ds_read2st64_b32 v[196:197], v38 offset0:{CSB//256} offset1:{CSB//256+4}
ds_read2st64_b32 v[198:199], v38 offset0:{CSB//256+8} offset1:{CSB//256+12}
ds_read2st64_b32 v[200:201], v38 offset0:{CSB//256+16} offset1:{CSB//256+20}
ds_read2st64_b32 v[202:203], v38 offset0:{CSB//256+24} offset1:{CSB//256+28}
s_waitcnt lgkmcnt(4)
v_min3_u32 v20, v20, v21, v22
v_min3_u32 v24, v24, v25, v26
v_min3_u32 v20, v20, v23, v27
v_min_u32 v20, v20, v24
v_cmp_ge_u32 s[6:7], v8, v20
v_cmp_ge_u32 s[10:11], v10, v20
v_cmp_ge_u32 s[12:13], v12, v20
v_cmp_ge_u32 s[14:15], v14, v20
v_addc_co_u32_e64 v21, vcc, 0, 0, s[6:7]
s_or_b64 s[50:51], s[6:7], s[10:11]
v_addc_co_u32_e64 v22, vcc, v21, 0, s[10:11]
s_or_b64 s[52:53], s[12:13], s[14:15]
v_addc_co_u32_e64 v23, vcc, v22, 0, s[12:13]
s_or_b64 exec, s[50:51], s[52:53]
v_addc_co_u32_e64 v24, vcc, v23, 0, s[14:15]
ds_add_rtn_u32 v25, v19, v24
s_waitcnt lgkmcnt(0)
v_lshl_add_u32 v25, v25, 2, v19
v_lshl_add_u32 v21, v21, 2, v25
v_lshl_add_u32 v22, v22, 2, v25
v_lshl_add_u32 v23, v23, 2, v25
s_mov_b64 exec, s[6:7]
ds_write_b32 v25, v8 offset:{LIST-CNT}
s_mov_b64 exec, s[10:11]
ds_write_b32 v21, v10 offset:{LIST-CNT}
s_mov_b64 exec, s[12:13]
ds_write_b32 v22, v12 offset:{LIST-CNT}
s_mov_b64 exec, s[14:15]
ds_write_b32 v23, v14 offset:{LIST-CNT}
s_mov_b64 exec, -1
v_add_u32 v26, v19, v4
s_lshl_b32 s5, s3, 5
s_add_u32 s55, s5, {SELW}
v_mov_b32 v27, v1
s_waitcnt lgkmcnt(0)
s_barrier
ds_read_b32 v28, v19
s_mov_b32 s50, 0
s_waitcnt lgkmcnt(0)
v_readfirstlane_b32 s51, v28
L_rk_outer:
ds_read_b32 v29, v26 offset:{LIST-CNT}
v_mov_b32 v30, 0
v_mov_b32 v31, v19
s_mov_b32 s52, 0
L_rk_inner:
ds_read_b128 v[8:11], v31 offset:{LIST-CNT}
ds_read_b128 v[12:15], v31 offset:{LIST-CNT+16}
v_add_u32 v31, 32, v31
s_add_u32 s52, s52, 8
s_waitcnt lgkmcnt(0)
""")
for h in range(2):
    prs = ["s[6:7]", "s[10:11]", "s[12:13]", "s[14:15]"]
    for i in range(4): A(f"v_cmp_gt_u32 {prs[i]}, v{8+4*h+i}, v29")
    for i in range(4): A(f"v_addc_co_u32_e64 v30, vcc, v30, 0, {prs[i]}")
A(f"""
s_cmp_lt_u32 s52, s51
s_cbranch_scc1 L_rk_inner
v_cmp_gt_u32 s[6:7], 8, v30
v_cmp_gt_u32 s[10:11], s51, v27
v_lshl_add_u32 v30, v30, 2, s55
s_and_b64 exec, s[6:7], s[10:11]
ds_write_b32 v30, v29
s_mov_b64 exec, -1
v_add_u32 v26, 256, v26
v_add_u32 v27, 64, v27
s_add_u32 s50, s50, 64
s_cmp_lt_u32 s50, s51
s_cbranch_scc1 L_rk_outer
v_and_b32 v8, 7, v1
v_bfe_u32 v9, v1, 2, 3
v_lshl_add_u32 v10, v8, 2, s55
v_lshl_add_u32 v11, v9, 2, s55
ds_read_b32 v12, v10
ds_read_b32 v14, v11
s_mul_i32 s5, s49, 320
v_lshrrev_b32 v3, 4, v1
v_lshl_add_u32 v15, v3, 4, s5
s_movk_i32 s6, 1280
s_waitcnt lgkmcnt(0)
v_and_b32 v16, 0x7ff, v12
v_and_b32 v14, 0x7ff, v14
v_sub_u32 v16, 2047, v16
v_sub_u32 v14, 2047, v14
v_mad_u32_u24 v15, v16, s6, v15
v_lshlrev_b32 v14, 3, v14
""")
stamp(6)
for ks in range(5):
    A(f"global_load_dwordx4 {vr(40+4*ks,4)}, v15, s[16:17] offset:{64*ks}")
A(f"""
v_add_u32 v14, {G1_OFF}, v14
global_load_dwordx2 v[32:33], v14, s[42:43] sc1
s_or_b32 s5, s48, s3
s_cmp_lg_u32 s5, 0
s_cbranch_scc1 L_nosel
v_mov_b32 v13, s4
v_lshlrev_b32 v8, 3, v8
v_add_u32 v8, {SEL_OFF}, v8
v_mov_b32 v9, 0
s_mov_b64 exec, 0xff
global_store_dwordx2 v8, v[12:13], s[42:43] sc1
s_mov_b64 exec, 1
global_store_dword v9, v13, s[42:43] sc1
s_mov_b64 exec, -1
s_waitcnt vmcnt(3)
L_nosel:
v_add_f32 v196, v196, v197
v_add_f32 v198, v198, v199
v_add_f32 v200, v200, v201
v_add_f32 v202, v202, v203
v_add_f32 v196, v196, v198
v_add_f32 v200, v200, v202
v_bfe_u32 v16, v0, 2, 3
v_lshlrev_b32 v16, 6, v16
v_bfe_u32 v17, v0, 5, 2
v_lshl_add_u32 v16, v17, 4, v16
v_and_b32 v17, 3, v0
v_lshl_add_u32 v16, v17, 2, v16
v_bfe_u32 v17, v0, 7, 1
v_lshl_add_u32 v16, v17, 1, v16
v_and_b32 v17, 7, v1
v_lshlrev_b32 v17, 6, v17
v_lshl_add_u32 v17, v3, 4, v17
v_add_u32 v17, {HB}, v17
v_mov_b32 v18, {ZBLK}
v_cndmask_b32 v19, v18, v17, s[62:63]
v_cndmask_b32 v18, v17, v18, s[62:63]
""")
for ks in range(5):
    A(f"s_waitcnt vmcnt({5-ks})")
    A(f"v_mfma_f32_16x16x32_bf16 v[24:27], {vr(120+4*ks,4)}, {vr(40+4*ks,4)}, {'0' if ks == 0 else 'v[24:27]'}")
    A(f"v_mfma_f32_16x16x32_bf16 v[28:31], {vr(140+4*ks,4)}, {vr(40+4*ks,4)}, {'0' if ks == 0 else 'v[28:31]'}")
stamp(7)
lG = A.newlabel("g1s"); lGo = A.newlabel("g1so")
A(f"""
s_mov_b64 exec, s[62:63]
s_mov_b32 s54, {SPIN_MAX}
s_nop 4
ds_write_b128 v37, v[24:27] offset:{RED}
ds_write_b128 v37, v[28:31] offset:{RED+512}
s_mov_b64 exec, -1
s_waitcnt vmcnt(0)
{lG}:
v_cmp_ne_u32 vcc, s4, v33
s_cbranch_vccz {lGo}
s_sub_u32 s54, s54, 1
s_cbranch_scc1 {lGo}
global_load_dwordx2 v[32:33], v14, s[42:43] sc1
s_waitcnt vmcnt(0)
s_branch {lG}
{lGo}:
v_and_b32 v33, 0xffff0000, v32
v_lshlrev_b32 v32, 16, v32
v_rcp_f32 v33, v33
s_waitcnt lgkmcnt(0)
s_barrier
s_cmp_ge_u32 s3, 4
s_cbranch_scc1 L_nored
ds_read2st64_b32 v[8:9], v38 offset0:0 offset1:4
ds_read2st64_b32 v[10:11], v38 offset0:8 offset1:12
ds_read2st64_b32 v[12:13], v38 offset0:16 offset1:20
ds_read2st64_b32 v[14:15], v38 offset0:24 offset1:28
s_waitcnt lgkmcnt(2)
v_add_f32 v8, v8, v9
v_add_f32 v10, v10, v11
v_fma_f32 v8, -v32, v196, v8
v_add_f32 v8, v8, v10
v_mul_f32 v8, v8, v33
v_mul_f32 v9, {NLOG2E:#x}, v8
v_exp_f32 v9, v9
s_waitcnt lgkmcnt(0)
v_add_f32 v12, v12, v13
v_add_f32 v9, 1.0, v9
v_add_f32 v14, v14, v15
v_rcp_f32 v9, v9
v_fma_f32 v12, -v32, v200, v12
v_add_f32 v12, v12, v14
v_mul_f32 v8, v8, v33
v_mul_f32 v12, v12, v9
v_mul_f32 v8, v8, v12
v_cvt_pk_bf16_f32 v8, v8, v8
ds_write_b16 v16, v8 offset:{HB}
L_nored:
s_and_b32 s5, s4, 0xff
v_mov_b32 v48, s5
s_bfe_u32 s5, s4, 0x80008
v_mov_b32 v49, s5
s_bfe_u32 s5, s4, 0x80010
v_mov_b32 v50, s5
s_lshr_b32 s5, s4, 24
v_mov_b32 v51, s5
s_mov_b32 s60, 0xffffff00
v_bfe_u32 v20, v1, 3, 1
v_lshl_add_u32 v20, v3, 3, v20
v_mul_u32_u24 v20, {PART_STRIDE}, v20
v_and_b32 v21, 7, v1
v_lshl_add_u32 v20, v21, 4, v20
s_mul_i32 s5, s3, {32*PART_STRIDE}
s_lshl_b32 s6, s48, 7
s_add_u32 s5, s5, s6
s_add_u32 s5, s5, {PART_OFF}
v_add_u32 v20, s5, v20
s_waitcnt lgkmcnt(0)
s_barrier
""")
stamp(8)
A(f"""
s_cmp_ge_u32 s3, 5
s_cbranch_scc1 L_fin
ds_read_b128 v[8:11], v19
ds_read_b128 v[12:15], v18
v_add_u32 v21, {2*PART_STRIDE}, v20
v_add_u32 v22, {4*PART_STRIDE}, v20
v_add_u32 v23, {6*PART_STRIDE}, v20
s_waitcnt lgkmcnt(1)
""")
for qq in range(4): A(f"v_mfma_f32_16x16x32_bf16 {vr(56+4*qq,4)}, {vr(160+4*qq,4)}, v[8:11], 0")
A("s_waitcnt lgkmcnt(0)")
for qq in range(4): A(f"v_mfma_f32_16x16x32_bf16 {vr(56+4*qq,4)}, {vr(176+4*qq,4)}, v[12:15], {vr(56+4*qq,4)}")
A.nop(5)
for r in range(4):
    for qq in range(4): A(f"v_bfi_b32 v{72+4*r+qq}, s60, v{56+4*qq+r}, v{48+qq}")
    A(f"global_store_dwordx4 v{20+r}, {vr(72+4*r,4)}, s[42:43] sc1")
stamp(9)
if OPT["stamps"]:
    A("s_waitcnt vmcnt(0)")
    stamp(10)
A.label("L_fin")
finish(11)
A.label("L_end")
A("s_endpgm")
A.label("L_code_end")
A(".fill 64, 4, 0xBF800000")

tail = f"""
.section .rodata,"a"
.p2align 6
.amdhsa_kernel {NAME}_kernel
  .amdhsa_next_free_vgpr 256
  .amdhsa_next_free_sgpr 96
  .amdhsa_accum_offset 256
  .amdhsa_group_segment_fixed_size 0
  .amdhsa_kernarg_size 120
  .amdhsa_user_sgpr_count 2
  .amdhsa_user_sgpr_kernarg_segment_ptr 1
  .amdhsa_system_sgpr_workgroup_id_x 1
.end_amdhsa_kernel
"""
probs = check_hazards(A.lines)
for p in probs: print("HAZARD", p, file=sys.stderr)
open(sys.argv[1], "w").write(head + A.text() + tail)
print("written", sys.argv[1], len(A.lines), "lines", file=sys.stderr)
```

```python
import sys
from asmlib import *
NAME = "recurrent_scan__ssm_conv_s4d__moe_arch_mod__prompt"
OPT = dict(stamps=0, xpf=1)
for a in sys.argv[2:]:
    k, v = a.split("="); OPT[k] = int(v)

G1_OFF, G2_OFF, SEL_OFF, PART_OFF, PART_STRIDE = 0x1000, 0x5000, 0x9000, 0x10000, 7168
STAMP_OFF = 0x200000
TROW = 2064
TBX, TBY = 0, 24 * TROW
UB = TBY + 32 * TROW
USTR = 4608
BOXB = UB + 4 * USTR
KB = BOXB + 1024
PD_O, T2_O, T3_O, SP_O = 0, 4480, 4992, 5312
KSTR = 5696
FLG = KB + 4 * KSTR
LDS_SIZE = KB + 24576
RED, CSB, HB, WMAX, SELW = 0, 8192, 16384, 17024, 17152
CNT, ZBLK, LIST = KB, KB + 64, KB + 256
SPIN_MAX = 1 << 20

LOG2E = 0x3FB8AA3B
NLOG2E = LOG2E ^ 0x80000000
INV2PI = 0x3E22F983
A = Asm()
def stamp(i):
    if OPT["stamps"]: A(f"s_memrealtime s[{64+2*i}:{65+2*i}]")
def cstamp(i):
    if OPT["stamps"]: A(f"s_memtime s[{64+2*i}:{65+2*i}]")
def finish(n, dbgmap=None):
    if OPT["stamps"] == 2:
        stamp(13)
        A("s_load_dwordx2 s[6:7], s[0:1], 104")
        A("s_waitcnt lgkmcnt(0)")
        A("s_mov_b64 exec, 1")
        A("v_mov_b32 v2, 0")
        A("s_not_b32 s5, s64\nv_mov_b32 v3, s5\nglobal_atomic_umax v2, v3, s[6:7]")
        for slot, st in [(1, 0), (2, 2), (3, 3), (15, 13)] + (dbgmap or []):
            A(f"v_mov_b32 v3, s{64+2*st}\nglobal_atomic_umax v2, v3, s[6:7] offset:{4*slot}")
    elif OPT["stamps"]:
        stamp(13); cstamp(15)
        A("s_waitcnt lgkmcnt(0)")
        A("s_mov_b64 exec, 1")
        A(f"s_lshl_b32 s5, s2, 3\ns_add_u32 s5, s5, s3\ns_lshl_b32 s5, s5, 6\ns_add_u32 s5, s5, {STAMP_OFF}")
        A("v_mov_b32 v2, s5")
        for i in list(range(n)) + [13, 14, 15]:
            A(f"v_mov_b32 v3, s{64+2*i}")
            A(f"global_store_dword v2, v3, s[42:43] offset:{4*i}")
    A("s_endpgm")

class LdsQ:
    def __init__(self): self.q = []; self.done = 0
    def issue(self, tag): self.q.append(tag)
    def wait(self, tag):
        idx = max(i for i, t in enumerate(self.q) if t == tag)
        if idx < self.done: return
        n = len(self.q) - 1 - idx
        A(f"s_waitcnt lgkmcnt({min(n,15)})")
        self.done = idx + 1 if n <= 15 else len(self.q) - 15
    def all(self):
        A("s_waitcnt lgkmcnt(0)"); self.done = len(self.q)
    def known_all(self): self.done = len(self.q)

def cmul(dst, p, w, t):
    A(f"v_pk_mul_f32 {vr(t,2)}, {vr(p,2)}, {vr(w,2)} op_sel:[0,0] op_sel_hi:[1,0]")
    A(f"v_pk_fma_f32 {vr(dst,2)}, {vr(p,2)}, {vr(w,2)}, {vr(t,2)} op_sel:[1,1,0] op_sel_hi:[0,1,1] neg_lo:[1,0,0]")
LANE63 = "s_mov_b32 exec_lo, 0\ns_mov_b32 exec_hi, 0x80000000"
DPP6 = ["row_shr:1 row_mask:0xf bank_mask:0xf bound_ctrl:0", "row_shr:2 row_mask:0xf bank_mask:0xf bound_ctrl:0",
        "row_shr:4 row_mask:0xf bank_mask:0xf bound_ctrl:0", "row_shr:8 row_mask:0xf bank_mask:0xf bound_ctrl:0",
        "row_bcast:15 row_mask:0xa bank_mask:0xf", "row_bcast:31 row_mask:0xc bank_mask:0xf"]

KD = lambda m: 8 + 4 * m
KS = 76
T2 = lambda d, hh: 80 + 8 * (d - 2) + 4 * hh
T3 = lambda d: 104 + 4 * (d - 4)
BOX = lambda i: 120 + 4 * i
ACC = lambda j: 140 + 4 * j
BR = lambda s: 172 + 4 * s
W1R = 204
BA = lambda i: 208 + 4 * i
SG = lambda i: 232 + 4 * i
vUB, vYW, vFL, vONE, vT0, vT1, vT2 = 244, 245, 246, 247, 248, 249, 250

hdr = open(f"cdna_kernels/{NAME}.s.ref").read().split("; @launch")[0]
head = hdr + f"""; @launch grid=(256,1,1) block=(512,1,1) lds={LDS_SIZE}
.amdgcn_target "amdgcn-amd-amdhsa--gfx950"
.text
.globl {NAME}_kernel
.p2align 8
.type {NAME}_kernel,@function
{NAME}_kernel:
"""
A("s_cmp_ge_u32 s2, 256\ns_cbranch_scc1 L_end")
A("s_load_dwordx16 s[16:31], s[0:1], 0")
A("s_load_dwordx8 s[32:39], s[0:1], 64")
A("s_load_dwordx2 s[40:41], s[0:1], 96")
A("s_load_dwordx2 s[42:43], s[0:1], 112")
stamp(0); cstamp(14)
A(f"""
s_getpc_b64 s[6:7]
L_pc:
s_lshr_b32 s8, s2, 3
v_lshrrev_b32 v2, 6, v0
s_lshl_b32 s5, s8, 10
v_lshl_add_u32 v5, v0, 1, s5
v_readfirstlane_b32 s3, v2
v_min_u32 v5, L_code_end-L_pc, v5
v_and_b32 v5, -4, v5
global_load_dword v252, v5, s[6:7]
v_and_b32 v1, 63, v0
v_lshlrev_b32 v3, 4, v1
v_lshlrev_b32 v4, 2, v1
s_and_b32 s9, s2, 7
s_lshl_b32 s10, s2, 3
s_add_u32 s10, s10, s3
s_mul_i32 s11, s10, 1280
s_mul_i32 s12, s9, 10
s_lshr_b32 s13, s8, 1
s_add_u32 s13, s13, s12
s_lshr_b32 s14, s13, 4
s_lshl_b32 s14, s14, 1
s_and_b32 s15, s8, 1
s_add_u32 s14, s14, s15
s_lshl_b32 s14, s14, 4
s_and_b32 s13, s13, 15
s_add_u32 s44, s14, s13
s_min_u32 s44, s44, 159
s_and_b32 s45, s3, 3
s_lshr_b32 s46, s3, 2
s_lshl_b32 s47, s44, 2
s_add_u32 s47, s47, s45
s_lshl_b32 s5, s47, 8
s_lshl_b32 s13, s46, 7
s_add_u32 s5, s5, s13
v_lshl_add_u32 v5, v1, 1, s5
s_lshl_b32 s5, s47, 1
v_mov_b32 v6, s5
v_mov_b32 v28, 0
s_waitcnt lgkmcnt(0)
s_add_u32 s6, s16, s11
s_addc_u32 s7, s17, 0
global_load_dwordx4 v[8:11], v3, s[6:7]
global_load_dword v12, v4, s[6:7] offset:1024
global_load_dwordx4 v[16:19], v3, s[32:33]
global_load_dword v20, v4, s[32:33] offset:1024
global_load_dword v29, v28, s[42:43]
global_load_ushort v40, v5, s[18:19]
global_load_ushort v44, v6, s[26:27]
global_load_ushort v41, v5, s[20:21]
global_load_ushort v42, v5, s[22:23]
global_load_ushort v43, v5, s[24:25]
global_load_ushort v45, v6, s[28:29]
""")
stamp(1)
A(f"""
s_cmp_ge_u32 s3, 4
s_cbranch_scc1 L_pfw
s_lshr_b32 s5, s3, 1
s_mul_i32 s5, s5, 9
s_add_u32 s5, s5, s12
s_lshr_b32 s5, s5, 4
s_lshl_b32 s5, s5, 1
s_and_b32 s6, s3, 1
s_add_u32 s5, s5, s6
s_lshl_b32 s5, s5, 7
s_mul_i32 s6, s8, 81920
s_add_u32 s5, s5, s6
v_mul_u32_u24 v5, 1280, v1
s_add_u32 s48, s16, s5
s_addc_u32 s49, s17, 0
s_mov_b64 s[50:51], s[48:49]
s_mov_b64 s[54:55], s[48:49]
v_mov_b32 v6, v5
s_branch L_pfd
L_pfw:
s_lshl_b32 s5, s45, 3
s_add_u32 s5, s5, s9
s_min_u32 s5, s5, 26
s_mul_i32 s6, s8, {20*3456}
s_lshl_b32 s7, s5, 7
s_add_u32 s6, s6, s7
s_add_u32 s48, s34, s6
s_addc_u32 s49, s35, 0
s_add_u32 s50, s36, s6
s_addc_u32 s51, s37, 0
s_sub_u32 s50, s50, {20*3456}
s_subb_u32 s51, s51, 0
s_mul_i32 s5, s5, {64*1280}
s_mul_i32 s6, s8, 2560
s_add_u32 s5, s5, s6
s_add_u32 s54, s38, s5
s_addc_u32 s55, s39, 0
v_mul_u32_u24 v5, 3456, v1
v_subrev_u32 v6, 40, v1
v_min_u32 v6, 19, v6
v_lshlrev_b32 v6, 7, v6
L_pfd:
s_mov_b64 exec, 0xfffff
global_load_dword v251, v5, s[48:49]
s_mov_b32 exec_lo, 0xfff00000
s_mov_b32 exec_hi, 0xff
global_load_dword v251, v5, s[50:51]
s_mov_b32 exec_lo, 0
s_mov_b32 exec_hi, 0xffffff00
global_load_dword v251, v6, s[54:55]
s_mov_b64 exec, -1
""")
A(f"""
v_mov_b32 v32, 0
v_mov_b32 v33, 0
v_mov_b32 v34, 0
v_mov_b32 v35, 0
v_lshlrev_b32 v7, 4, v0
v_add_u32 v7, {KB}, v7
ds_write_b128 v7, v[32:35]
ds_write_b128 v7, v[32:35] offset:8192
ds_write_b128 v7, v[32:35] offset:16384
s_mul_i32 s53, s45, {USTR}
s_add_u32 s53, s53, {UB}
v_lshl_add_u32 v7, v1, 3, s53
ds_write_b64 v7, v[32:33]
s_add_u32 s5, s45, 1
s_sub_u32 s13, s5, 32
s_lshl_b32 s5, s5, 1
v_add_u32 v36, s13, v1
v_add_u32 v37, 1, v36
v_mov_b32 v38, 0x3f800000
v_mov_b32 v39, 0x3f80
v_cmp_ge_u32 s[6:7], s5, v36
v_cmp_ge_u32 s[14:15], s5, v37
s_lshl_b32 s13, s45, 8
s_add_u32 s13, s13, {BOXB}
v_cndmask_b32 v38, 0, v38, s[6:7]
v_cndmask_b32 v39, 0, v39, s[14:15]
v_add_u32 v7, s13, v4
v_or_b32 v38, v38, v39
ds_write_b32 v7, v38
v_and_b32 v2, 15, v1
v_lshrrev_b32 v36, 4, v1
v_lshlrev_b32 v36, 3, v36
v_sub_u32 v36, v2, v36
v_lshlrev_b32 v36, 2, v36
v_add_u32 v36, {BOXB+96}, v36
s_mul_i32 s5, s45, {256*1280}
s_lshl_b32 s6, s44, 3
s_add_u32 s5, s5, s6
v_mul_u32_u24 v94, 5120, v1
v_add_u32 v94, s5, v94
v_add_u32 v95, {1024*1280}, v94
s_waitcnt lgkmcnt(0)
s_barrier
""")
for i, (arr, offs) in enumerate([(0, 19), (1, 15), (0, 11), (2, 15), (3, 15)]):
    o = arr * 64 + offs
    A(f"ds_read2_b32 {vr(BOX(i),2)}, v36 offset0:{o} offset1:{o-2}")
    A(f"ds_read2_b32 {vr(BOX(i)+2,2)}, v36 offset0:{o-4} offset1:{o-6}")
A("s_mov_b32 s5, 0x3f803f80\ns_lshl_b32 s11, s10, 3\ns_sub_u32 s13, 2047, s10\ns_mov_b32 s14, 0x9E3779B1")
A(f"v_mov_b32 v33, s11\nv_add_u32 v34, {G1_OFF}, v33\nv_add_u32 v35, {G2_OFF}, v33")
A("s_waitcnt vmcnt(10)")
stamp(2)
for i in range(5):
    c = (lambda r: "0" if i == 0 else r)
    A(f"v_dot2_f32_bf16 v24, v{8+i}, s5, {c('v24')}")
    A(f"v_dot2_f32_bf16 v25, v{8+i}, v{8+i}, {c('v25')}")
    A(f"v_dot2_f32_bf16 v26, v{8+i}, v{16+i}, {c('v26')}")
    A(f"v_dot2_f32_bf16 v27, v{16+i}, s5, {c('v27')}")
for mod in DPP6:
    for r in (24, 25, 26, 27):
        A(f"v_add_f32_dpp v{r}, v{r}, v{r} {mod}")
A(f"""
v_mul_f32 v24, 0x3acccccd, v24
v_mul_f32 v25, 0x3acccccd, v25
s_waitcnt vmcnt(9)
v_fma_f32 v25, -v24, v24, v25
v_mul_lo_u32 v29, v29, s14
v_max_f32 v25, 0, v25
v_add_u32 v29, 0x7F4A7C15, v29
v_cvt_pk_bf16_f32 v28, v24, v25
v_mov_b32 v31, v29
v_and_b32 v25, 0xffff0000, v28
v_lshlrev_b32 v24, 16, v28
v_add_f32 v25, 0x3727c5ac, v25
v_readfirstlane_b32 s4, v29
v_cvt_pk_bf16_f32 v25, v25, v25
v_fma_f32 v26, -v24, v27, v26
v_and_b32 v25, 0xffff0000, v25
v_sqrt_f32 v25, v25
{LANE63}
v_cvt_pk_bf16_f32 v28, v24, v25
v_and_b32 v25, 0xffff0000, v28
global_store_dwordx2 v34, v[28:29], s[42:43] sc1
v_rcp_f32 v25, v25
s_nop 0
v_mul_f32 v26, v26, v25
v_cvt_pk_bf16_f32 v26, v26, v26
v_ashrrev_i32 v27, 31, v26
v_or_b32 v27, 0x80000000, v27
v_xor_b32 v26, v26, v27
v_and_b32 v26, 0xffff0000, v26
v_or_b32 v30, s13, v26
global_store_dwordx2 v35, v[30:31], s[42:43] sc1
s_mov_b64 exec, -1
""")
stamp(3)
A("""
s_cmp_ge_u32 s2, 160
s_cbranch_scc1 L_notconv
s_waitcnt vmcnt(5)
s_cmp_lt_u32 s3, 4
s_cbranch_scc1 L_tables
""")
for r in range(4):
    A(f"global_load_dwordx2 v[{96+2*r}:{97+2*r}], v94, s[16:17] offset:{1280*r}")
A.label("L_tables")
A(f"""
v_lshlrev_b32 v40, 16, v40
v_lshlrev_b32 v44, 16, v44
v_mul_f32 v40, {LOG2E:#x}, v40
v_mul_f32 v44, {LOG2E:#x}, v44
v_exp_f32 v40, v40
v_exp_f32 v44, v44
v_lshlrev_b32 v41, 16, v41
v_lshlrev_b32 v42, 16, v42
v_cvt_pk_bf16_f32 v40, v44, v40
v_lshlrev_b32 v43, 16, v43
v_lshlrev_b32 v44, 16, v40
v_and_b32 v40, 0xffff0000, v40
v_mul_f32 v41, v41, v44
v_mul_f32 v40, v40, v44
v_add_f32 v44, v44, v44
v_mul_f32 v40, {NLOG2E:#x}, v40
v_mul_f32 v41, {INV2PI:#x}, v41
v_mul_f32 v48, v42, v44
v_mul_f32 v49, v43, v44
s_lshl_b32 s5, s45, 9
s_lshl_b32 s6, s46, 8
s_add_u32 s50, s5, s6
s_add_u32 s51, s50, {TBY}
v_mul_f32 v56, 0x41000000, v40
v_mul_f32 v58, 0x41000000, v41
v_mul_f32 v57, 0x43800000, v40
v_mul_f32 v59, 0x43800000, v41
v_fract_f32 v58, v58
v_fract_f32 v60, v41
v_fract_f32 v59, v59
v_exp_f32 v56, v56
v_cos_f32 v52, v58
v_sin_f32 v53, v58
v_exp_f32 v61, v40
v_cos_f32 v50, v60
v_sin_f32 v51, v60
v_exp_f32 v57, v57
v_cos_f32 v54, v59
v_sin_f32 v55, v59
v_mul_f32 v52, v52, v56
v_mul_f32_e64 v53, -v53, v56
v_mul_f32 v50, v50, v61
v_mul_f32 v51, v51, v61
v_mul_f32 v54, v54, v57
v_mul_f32 v55, v55, v57
s_mov_b32 m0, s51
v_mov_b32 v76, 0x3f80
""")
pend = []
GRP = 4
tt = [0]
def emit_row(reg, rows):
    t = 76 + (tt[0] % (2 * GRP)); tt[0] += 1
    if reg is not None: A(f"v_cvt_pk_bf16_f32 v{t}, v{reg}, v{reg+1}")
    for r in rows: pend.append(f"ds_write_addtid_b32 v{t} offset:{r*TROW}")
    if tt[0] % GRP == 0: flush_rows()
def flush_rows():
    for p in pend: A(p)
    pend.clear()
emit_row(None, [0]); emit_row(52, [1])
cur = 52
for c in range(2, 32):
    dst = 64 + 2 * (c % 2)
    cmul(dst, cur, 52, dst); emit_row(dst, [c]); cur = dst
flush_rows()
A("s_mov_b32 m0, s50\ns_cmp_lt_u32 s3, 4\ns_cbranch_scc1 L_t2")
for r in range(4):
    A(f"global_load_dwordx2 v[{104+2*r}:{105+2*r}], v95, s[16:17] offset:{1280*r}")
A.label("L_t2")
cmul(56, 50, 50, 56)
emit_row(48, [0])
cur = 48
rows0 = {1: [1], 2: [2], 3: [3], 4: [4, 8], 5: [5], 6: [6], 7: [7], 8: [12]}
for p in range(1, 9):
    dst = 64 + 2 * (p % 2)
    cmul(dst, cur, 50, dst); emit_row(dst, rows0[p]); cur = dst
for dst, src, w, rows in [(68, 48, 54, [9]), (70, 68, 56, [10]), (68, 70, 56, [11, 13]), (70, 68, 56, [14]), (72, 70, 56, [15]),
                          (70, 68, 54, [16]), (74, 72, 54, [17]), (68, 70, 54, [20]), (72, 74, 54, [21]),
                          (74, 72, 54, [18]), (72, 74, 54, [19]), (74, 72, 54, [22]), (72, 74, 54, [23])]:
    cmul(dst, src, w, dst); emit_row(dst, rows)
flush_rows()
A("s_cmp_ge_u32 s3, 4\ns_cbranch_scc1 L_helper")

q = LdsQ()
A(f"""
v_and_b32 v2, 31, v1
v_lshrrev_b32 v3, 5, v1
v_mul_u32_u24 v5, {TROW}, v2
v_subrev_u32 v6, {8*TROW}, v5
v_cmp_le_u32 vcc, 24, v2
s_lshl_b32 s5, s45, 9
v_lshl_add_u32 v7, v3, 4, s5
v_cndmask_b32 v6, v5, v6, vcc
v_add_u32 v5, v5, v7
v_add_u32 v6, v6, v7
v_add_u32 v5, {TBY}, v5
s_waitcnt lgkmcnt(0)
s_barrier
""")
stamp(4)
NB = 6
def kg_issue(s):
    b = 156 + 8 * (s % NB)
    A(f"ds_read_b128 {vr(b,4)}, v6 offset:{32*s}"); q.issue(("ka", s))
    A(f"ds_read_b128 {vr(b+4,4)}, v5 offset:{32*s}"); q.issue(("kb", s))
for s in range(NB): kg_issue(s)
filler = f"""
s_mul_i32 s52, s45, {KSTR}
s_add_u32 s52, s52, {KB}
v_lshlrev_b32 v208, 6, v2
v_lshl_add_u32 v208, v3, 5, v208
v_add_u32 v208, s52, v208
v_add_u32 v207, 2048, v208
v_lshlrev_b32 v209, 2, v2
v_lshl_add_u32 v209, v3, 7, v209
v_add_u32 v209, s52, v209
v_lshlrev_b32 v210, 1, v2
v_lshl_add_u32 v210, v3, 7, v210
v_add_u32 v210, s52, v210
v_mov_b32 v211, s52
v_lshlrev_b32 v45, 16, v45
v_cmp_eq_u32 vcc, 0, v1
v_and_b32 v232, 15, v1
v_lshrrev_b32 v233, 4, v1
v_cndmask_b32 v45, 0, v45, vcc
v_lshlrev_b32 v234, 3, v233
v_sub_u32 v234, v232, v234
v_add_u32 v234, 24, v234
v_lshl_add_u32 v234, v234, 3, s52
v_lshlrev_b32 v235, 2, v233
v_sub_u32 v235, v232, v235
v_add_u32 v235, 12, v235
v_lshl_add_u32 v236, v235, 2, s52
v_lshl_add_u32 v235, v235, 3, s52
v_add_u32 v236, {T3_O}, v236
v_lshlrev_b32 v{vUB}, 5, v232
v_lshl_add_u32 v{vUB}, v233, 4, v{vUB}
v_add_u32 v{vUB}, s53, v{vUB}
v_lshrrev_b32 v{vT0}, 1, v232
v_add_u32 v{vT0}, v{vT0}, v233
v_and_b32 v{vT0}, 3, v{vT0}
v_and_b32 v{vT1}, 7, v232
v_lshlrev_b32 v{vT1}, 6, v{vT1}
v_lshl_add_u32 v{vT1}, v{vT0}, 4, v{vT1}
v_lshrrev_b32 v{vT0}, 3, v232
v_mul_u32_u24 v{vT0}, {TROW}, v{vT0}
v_add3_u32 v{vYW}, v{vT0}, v{vT1}, s5
v_mov_b32 v{vFL}, {FLG}
v_mov_b32 v{vONE}, 1
v_mov_b32 v223, 0
v_mov_b32 v231, 0
""".strip().split("\n")
for _ in range(8): A(filler.pop(0))
for s in range(16):
    q.wait(("kb", s))
    b = 156 + 8 * (s % NB)
    A(f"v_mfma_f32_32x32x16_bf16 v[140:155], {vr(b,4)}, {vr(b+4,4)}, {'0' if s == 0 else 'v[140:155]'}")
    if s + NB < 16: kg_issue(s + NB)
    for _ in range(3):
        if filler: A(filler.pop(0))
assert not filler
A.nop(12)
K = lambda i: f"v{140+i}"
A(f"""
v_add_f32 {K(0)}, {K(0)}, v45
v_cvt_pk_bf16_f32 v215, {K(2)}, {K(1)}
v_cvt_pk_bf16_f32 v212, {K(3)}, {K(2)}
v_cvt_pk_bf16_f32 v214, {K(4)}, {K(3)}
v_cvt_pk_bf16_f32 v213, {K(1)}, {K(0)}
v_cvt_pk_bf16_f32 v217, {K(5)}, {K(5)}
v_cvt_pk_bf16_f32 v219, {K(6)}, {K(5)}
v_cvt_pk_bf16_f32 v216, {K(7)}, {K(6)}
v_cvt_pk_bf16_f32 v218, {K(7)}, {K(7)}
ds_write_b128 v208, v[212:215] offset:128
ds_write2_b32 v208, v213, v215 offset0:28 offset1:30
ds_write2_b32 v208, v212, v214 offset0:37 offset1:39
ds_write_b128 v207, v[216:219] offset:128
ds_write2_b32 v207, v217, v219 offset0:28 offset1:30
ds_write2_b32 v207, v216, v218 offset0:37 offset1:39
v_cvt_pk_bf16_f32 v222, {K(0)}, 0
v_cvt_pk_bf16_f32 v224, 0, {K(7)}
v_mov_b32 v225, v218
v_mov_b32 v226, 0
v_mov_b32 v227, v218
v_cvt_pk_bf16_f32 v228, {K(9)}, 0
v_cvt_pk_bf16_f32 v230, {K(9)}, {K(9)}
v_cvt_pk_bf16_f32 v238, 0, {K(9)}
v_cvt_pk_bf16_f32 v220, {K(8)}, {K(9)}
v_cvt_pk_bf16_f32 v221, {K(10)}, {K(11)}
v_mov_b32 v229, 0
v_add_u32 v237, 4096, v211
v_add_u32 v239, {SP_O}, v211
s_mov_b64 exec, 1
ds_write2_b32 v211, v222, v222 offset0:26 offset1:31
{LANE63}
ds_write2_b32 v237, v218, v218 offset0:28 offset1:30
ds_write_b128 v237, v[224:227] offset:128
ds_write_b32 v237, v224 offset:148
ds_write_b128 v239, v[228:231] offset:128
ds_write2_b32 v239, v238, v228 offset0:36 offset1:37
ds_write2_b32 v239, v230, v238 offset0:39 offset1:41
s_mov_b64 exec, -1
ds_write_b32 v209, v220 offset:{T2_O+128}
ds_write_b16 v210, v221 offset:{T3_O+64}
ds_write_b16_d16_hi v210, v221 offset:{T3_O+64+64}
""")
order = [0, 8, 16] + [x for i in range(1, 8) for x in (i, 8 + i)]
for m in order:
    A(f"ds_read_b64 {vr(KD(m),2)}, v234 offset:{8*(32*m+5)}")
    A(f"ds_read_b64 {vr(KD(m)+2,2)}, v234 offset:{8*(32*m+1)}")
A(f"ds_read_b64 {vr(KS,2)}, v234 offset:{SP_O+40}")
A(f"ds_read_b64 {vr(KS+2,2)}, v234 offset:{SP_O+8}")
for d in (2, 3, 4):
    for hh in (0, 1):
        o = 16 * d - 28 - 2 * hh
        A(f"ds_read_b64 {vr(T2(d,hh),2)}, v235 offset:{T2_O+8*o}")
        A(f"ds_read_b64 {vr(T2(d,hh)+2,2)}, v235 offset:{T2_O+8*(o-1)}")
for d in (4, 5, 6, 7):
    o = 16 * d - 60
    A(f"ds_read2_b32 {vr(T3(d),2)}, v236 offset0:{o} offset1:{o-1}")
    A(f"ds_read2_b32 {vr(T3(d)+2,2)}, v236 offset0:{o-2} offset1:{o-3}")
stamp(5)
def wait_flag(addr, off, val, nm, tmp):
    l = A.newlabel(nm); lo = A.newlabel(nm + "o")
    A(f"s_mov_b32 s54, {SPIN_MAX}")
    A.label(l)
    A(f"ds_read_b32 v{tmp}, v{addr} offset:{off}")
    A("s_waitcnt lgkmcnt(0)")
    A(f"v_readfirstlane_b32 s5, v{tmp}")
    A(f"s_sub_u32 s54, s54, 1\ns_cbranch_scc1 {lo}")
    A(f"s_cmp_lt_u32 s5, {val}\ns_cbranch_scc1 {l}")
    A.label(lo)
wait_flag(vFL, 0, 4, "u0", vT2); q.known_all()
stamp(6)
loads = []
for j in range(8):
    loads.append(("B", 8 * j))
    if j <= 5: loads.append(("W", j))
    for i in range(1, 8): loads.append(("B", 8 * j - i))
slot = {}
nxt = [0]; ring = [0]
AHEAD = 5
def issue_upto(k):
    while nxt[0] <= min(k, len(loads) - 1):
        kind, n = loads[nxt[0]]
        if kind == "B" and n == 32 and not issue_upto.second:
            wait_flag(vFL, 4, 4, "u1", vT2); q.known_all(); issue_upto.second = True
        if kind == "B":
            s = ring[0] % 8; ring[0] += 1
            slot[(kind, n)] = BR(s)
            A(f"ds_read_b128 {vr(BR(s),4)}, v{vUB} offset:{480+64*n}")
        else:
            slot[(kind, n)] = W1R
            A(f"ds_read_b128 {vr(W1R,4)}, v{vUB} offset:{464+512*n}")
        q.issue((kind, n)); nxt[0] += 1
issue_upto.second = False
touched = set()
def mf(j, a, b):
    c = vr(ACC(j), 4) if j in touched else "0"; touched.add(j)
    A(f"v_mfma_f32_16x16x32_bf16 {vr(ACC(j),4)}, {vr(a,4)}, {vr(b,4)}, {c}")
def use(key):
    k = loads.index(key); issue_upto(k + AHEAD); q.wait(key); return slot[key]
def ywrite(j):
    A(f"ds_write_b128 v{vYW}, {vr(ACC(j),4)} offset:{2*TROW*j}"); q.issue("yw")
    A("s_mov_b64 exec, 1")
    A(f"ds_add_u32 v{vFL}, v{vONE} offset:{32+4*j}"); q.issue("yf")
    A("s_mov_b64 exec, -1")
pend_y = None
for j in range(8):
    b0 = use(("B", 8 * j))
    cv = []
    if j <= 5:
        for i, bx in ((0, 0), (1, 1), (2, 2)) + (((4, 3),) if j <= 3 else ()):
            A(f"v_mfma_f32_16x16x32_bf16 {vr(BA(i),4)}, {vr(b0,4)}, {vr(BOX(bx),4)}, 0")
        w1 = use(("W", j))
        for i, bx in ((3, 1),) + (((5, 4),) if j <= 3 else ()):
            A(f"v_mfma_f32_16x16x32_bf16 {vr(BA(i),4)}, {vr(w1,4)}, {vr(BOX(bx),4)}, 0")
        for r in range(4):
            cv.append(f"v_cvt_pk_bf16_f32 v{SG(r//2)+2*(r%2)}, v{BA(0)+r}, v{BA(1)+r}")
        for r in range(4):
            cv.append(f"v_cvt_pk_bf16_f32 v{SG(r//2)+2*(r%2)+1}, v{BA(2)+r}, v{BA(3)+r}")
        if j <= 3:
            for r in range(4):
                cv.append(f"v_cvt_pk_bf16_f32 v{SG(2)+r}, v{BA(4)+r}, v{BA(5)+r}")
    mf(j, KD(0), b0)
    if j + 1 <= 7: mf(j + 1, KD(8), b0)
    if j + 2 <= 7: mf(j + 2, KD(16), b0)
    if j + 4 <= 7: mf(j + 4, KS, b0)
    for i in range(1, 8):
        b = use(("B", 8 * j - i))
        mf(j, KD(i), b)
        if i >= 2 and cv: A(cv.pop(0))
        if j + 1 <= 7: mf(j + 1, KD(8 + i), b)
        if i >= 2 and cv and (i < 7 or len(cv) > 0): A(cv.pop(0))
        if pend_y is not None and i == 3:
            ywrite(pend_y); pend_y = None
    assert not cv
    far = []
    if j <= 5:
        for d in (2, 3, 4):
            if j + d <= 7: far += [(j + d, SG(0), T2(d, 0)), (j + d, SG(1), T2(d, 1))]
        if j <= 3:
            for d in (4, 5, 6, 7):
                if j + d <= 7: far.append((j + d, SG(2), T3(d)))
    if len(far) >= 7:
        for f in far[:7]: mf(*f)
        ywrite(j)
        for f in far[7:]: mf(*f)
    else:
        for f in far: mf(*f)
        if j == 7:
            A.nop(8); ywrite(j)
        else:
            pend_y = j
stamp(7)
finish(8, [(4, 4), (5, 5), (6, 6), (7, 7)])

A.label("L_helper")
XF = [112, 144]; GG = [128, 160]; XR = [96, 104]; ST = [8, 16]; UU = [24, 32]
A(f"""
s_lshl_b32 s5, s45, 11
s_add_u32 s5, s5, {G1_OFF}
v_lshl_add_u32 v92, v1, 5, s5
v_add_u32 v93, 8192, v92
global_load_dwordx4 v[8:11], v92, s[42:43] sc1
global_load_dwordx4 v[12:15], v92, s[42:43] offset:16 sc1
global_load_dwordx4 v[16:19], v93, s[42:43] sc1
global_load_dwordx4 v[20:23], v93, s[42:43] offset:16 sc1
s_waitcnt lgkmcnt(0)
s_barrier
""")
stamp(4)
A(f"""
s_lshl_b32 s5, s45, 9
s_add_u32 s5, s5, {UB+512}
v_lshl_add_u32 v91, v1, 3, s5
v_mov_b32 v{vFL}, {FLG}
v_mov_b32 v{vONE}, 1
v_lshrrev_b32 v2, 3, v1
v_add_u32 v2, v2, v1
v_and_b32 v2, 3, v2
v_and_b32 v3, 28, v1
v_add_u32 v2, v2, v3
v_lshlrev_b32 v2, 4, v2
v_lshrrev_b32 v3, 5, v1
v_mul_u32_u24 v3, {TROW}, v3
s_mul_i32 s5, s45, {2*TROW}
v_add3_u32 v90, v2, v3, s5
s_lshl_b32 s5, s45, 2
v_add_u32 v89, s5, v{vFL}
v_and_b32 v88, 7, v1
v_lshlrev_b32 v88, 3, v88
v_add_u32 v88, {SEL_OFF}, v88
""")
def unpack_x(t):
    for r in range(4):
        for hw in range(2):
            src = XR[t] + 2 * r + hw
            A(f"v_lshlrev_b32 v{XF[t]+4*(2*hw)+r}, 16, v{src}")
            A(f"v_and_b32 v{XF[t]+4*(2*hw+1)+r}, 0xffff0000, v{src}")
def poll4(s, av, first_wait):
    l = A.newlabel("g"); lo = A.newlabel("go")
    A(f"s_mov_b32 s54, {SPIN_MAX}")
    A(f"s_waitcnt vmcnt({first_wait})")
    A.label(l)
    A(f"""
v_xor_b32 v2, s4, v{s+1}
v_xor_b32 v3, s4, v{s+3}
v_xor_b32 v5, s4, v{s+5}
v_xor_b32 v6, s4, v{s+7}
v_or3_b32 v2, v2, v3, v5
v_or_b32 v2, v2, v6
v_cmp_ne_u32 vcc, 0, v2
s_cbranch_vccz {lo}
s_sub_u32 s54, s54, 1
s_cbranch_scc1 {lo}
global_load_dwordx4 {vr(s,4)}, v{av}, s[42:43] sc1
global_load_dwordx4 {vr(s+4,4)}, v{av}, s[42:43] offset:16 sc1
s_waitcnt vmcnt(0)
s_branch {l}
""")
    A.label(lo)
def normalize(t):
    s = ST[t]
    for r in range(4): A(f"v_and_b32 v{180+r}, 0xffff0000, v{s+2*r}")
    for r in range(4): A(f"v_rcp_f32 v{180+r}, v{180+r}")
    for r in range(4): A(f"v_lshlrev_b32 v{176+r}, 16, v{s+2*r}")
    for ch in range(4):
        T = 184
        for r in range(4): A(f"v_sub_f32 v{T+r}, v{XF[t]+4*ch+r}, v{176+r}")
        for p in range(2): A(f"v_cvt_pk_bf16_f32 v{T+2*p+1}, v{T+2*p}, v{T+2*p+1}")
        for p in range(2):
            A(f"v_lshlrev_b32 v{T+2*p}, 16, v{T+2*p+1}")
            A(f"v_and_b32 v{T+2*p+1}, 0xffff0000, v{T+2*p+1}")
        for r in range(4): A(f"v_mul_f32 v{T+r}, v{T+r}, v{180+r}")
        for p in range(2): A(f"v_cvt_pk_bf16_f32 v{UU[t]+2*ch+p}, v{T+2*p}, v{T+2*p+1}")
    for ch in range(4): A(f"ds_write_b64 v91, {vr(UU[t]+2*ch,2)} offset:{USTR*ch+2048*t}")
    A("s_mov_b64 exec, 1")
    A(f"ds_add_u32 v{vFL}, v{vONE} offset:{4*t}")
    A("s_mov_b64 exec, -1")
def precompute(t):
    for ch in range(4):
        N = GG[t] + 4 * ch; E = 188
        for p in range(2):
            A(f"v_lshlrev_b32 v{N+2*p}, 16, v{UU[t]+2*ch+p}")
            A(f"v_and_b32 v{N+2*p+1}, 0xffff0000, v{UU[t]+2*ch+p}")
        for i in range(4): A(f"v_mul_f32 v{E+i}, {NLOG2E:#x}, v{N+i}")
        for i in range(4): A(f"v_exp_f32 v{E+i}, v{E+i}")
        for i in range(4): A(f"v_add_f32 v{E+i}, 1.0, v{E+i}")
        for i in range(4): A(f"v_rcp_f32 v{E+i}, v{E+i}")
        for i in range(4): A(f"v_mul_f32 v{N+i}, v{N+i}, v{E+i}")
def epilogue(t):
    wait_flag(89, 32 + 16 * t, 4, "y", 2)
    for ch in range(4): A(f"ds_read_b128 {vr(200+4*ch,4)}, v90 offset:{512*ch+8*TROW*t}")
    for ch in range(4):
        A(f"s_waitcnt lgkmcnt({3-ch})")
        for r in range(4): A(f"v_fma_f32 v{200+4*ch+r}, v{200+4*ch+r}, v{GG[t]+4*ch+r}, v{XF[t]+4*ch+r}")
    for r in range(4):
        A(f"v_cvt_pk_bf16_f32 v{216+2*r+8*t}, v{200+r}, v{204+r}")
        A(f"v_cvt_pk_bf16_f32 v{217+2*r+8*t}, v{208+r}, v{212+r}")
        A(f"global_store_dwordx2 v{94+t}, {vr(216+2*r+8*t,2)}, s[40:41] offset:{1280*r}")
A("s_waitcnt vmcnt(8)")
unpack_x(0)
A("s_waitcnt vmcnt(4)")
unpack_x(1)
poll4(ST[0], 92, 2)
stamp(5)
normalize(0)
stamp(6)
poll4(ST[1], 93, 0)
normalize(1)
stamp(7)
precompute(0)
epilogue(0)
stamp(8)
precompute(1)
A("global_load_dwordx2 v[40:41], v88, s[42:43] sc1")
epilogue(1)
stamp(9)
lS = A.newlabel("sel"); lSo = A.newlabel("selo")
A(f"""
s_mov_b32 s54, {SPIN_MAX}
s_waitcnt vmcnt(4)
{lS}:
v_cmp_ne_u32 vcc, s4, v41
s_cbranch_vccz {lSo}
s_sub_u32 s54, s54, 1
s_cbranch_scc1 {lSo}
global_load_dwordx2 v[40:41], v88, s[42:43] sc1
s_waitcnt vmcnt(0)
s_branch {lS}
{lSo}:
v_and_b32 v42, 0x7ff, v40
v_sub_u32 v42, 2047, v42
v_bfe_u32 v43, v42, 8, 2
v_cmp_eq_u32 s[56:57], s45, v43
s_cmp_eq_u64 s[56:57], 0
s_cbranch_scc1 L_hdone
s_mul_i32 s5, s44, {PART_STRIDE}
s_add_u32 s5, s5, {PART_OFF}
v_lshl_add_u32 v44, v1, 4, s5
v_add_u32 v45, 4096, v44
s_and_b32 s5, s4, 0xff
v_mov_b32 v48, s5
s_bfe_u32 s5, s4, 0x80008
v_mov_b32 v49, s5
s_bfe_u32 s5, s4, 0x80010
v_mov_b32 v50, s5
s_lshr_b32 s5, s4, 24
v_mov_b32 v51, s5
v_mov_b32 v76, v48
v_mov_b32 v77, v49
v_mov_b32 v78, v50
v_mov_b32 v79, v51
s_and_b32 s59, s57, 0xffff
s_mov_b32 s58, s56
s_mov_b64 exec, s[56:57]
""")
def part_loads():
    for i in range(6):
        A(f"global_load_dwordx4 {vr(52+4*i,4)}, v{44 + i//4}, s[42:43] offset:{1024*(i%4)} sc1")
    A("s_mov_b64 exec, s[58:59]")
    A(f"global_load_dwordx4 v[76:79], v45, s[42:43] offset:2048 sc1")
    A("s_mov_b64 exec, s[56:57]")
A(f"""
s_lshl_b32 s5, s44, 3
v_mul_u32_u24 v46, 1280, v42
v_add_u32 v46, s5, v46
global_load_dwordx2 v[80:81], v46, s[16:17]
""")
part_loads()
A(f"""
v_lshlrev_b32 v2, 1, v42
v_add_u32 v2, {UB+512}, v2
ds_read_u16 v96, v2
ds_read_u16 v97, v2 offset:{USTR}
ds_read_u16 v98, v2 offset:{2*USTR}
ds_read_u16 v99, v2 offset:{3*USTR}
v_lshrrev_b32 v3, 7, v42
v_mul_u32_u24 v3, {TROW}, v3
v_bfe_u32 v5, v42, 4, 3
v_lshl_add_u32 v3, v5, 6, v3
v_lshrrev_b32 v5, 2, v42
v_lshrrev_b32 v6, 5, v42
v_add_u32 v5, v5, v6
v_and_b32 v5, 3, v5
v_lshl_add_u32 v3, v5, 4, v3
v_and_b32 v5, 3, v42
v_lshl_add_u32 v3, v5, 2, v3
ds_read_b32 v100, v3
ds_read_b32 v101, v3 offset:512
ds_read_b32 v102, v3 offset:1024
ds_read_b32 v103, v3 offset:1536
v_not_b32 v5, v40
v_ashrrev_i32 v5, 31, v5
v_or_b32 v5, 0x80000000, v5
v_xor_b32 v5, v40, v5
v_and_b32 v5, 0xffff0000, v5
v_mul_f32 v5, {NLOG2E:#x}, v5
v_exp_f32 v5, v5
s_nop 0
v_add_f32 v5, 1.0, v5
v_rcp_f32 v47, v5
s_waitcnt lgkmcnt(4)
v_lshlrev_b32 v96, 16, v96
v_lshlrev_b32 v97, 16, v97
v_lshlrev_b32 v98, 16, v98
v_lshlrev_b32 v99, 16, v99
s_waitcnt vmcnt(7)
v_lshlrev_b32 v104, 16, v80
v_and_b32 v105, 0xffff0000, v80
v_lshlrev_b32 v106, 16, v81
v_and_b32 v107, 0xffff0000, v81
s_mov_b32 s54, {SPIN_MAX}
""")
lP = A.newlabel("par"); lPo = A.newlabel("paro")
A.label(lP)
A("s_waitcnt vmcnt(0)")
for i in range(7):
    for k in range(4): A(f"v_xor_b32 v{112+4*i+k}, v{52+4*i+k}, v{48+k}")
A("v_or3_b32 v2, v112, v113, v114")
for i in range(3, 27, 2): A(f"v_or3_b32 v2, v2, v{112+i}, v{113+i}")
A("v_or_b32 v2, v2, v139\nv_and_b32 v2, 0xff, v2\nv_cmp_ne_u32 vcc, 0, v2")
A(f"s_cbranch_vccz {lPo}\ns_sub_u32 s54, s54, 1\ns_cbranch_scc1 {lPo}")
part_loads()
A(f"s_branch {lP}")
A.label(lPo)
stamp(10)
for i in range(1, 7):
    for k in range(4): A(f"v_add_f32 v{112+k}, v{112+k}, v{112+4*i+k}")
A("s_mov_b64 exec, -1")
for k in range(4): A(f"v_add_f32_dpp v{112+k}, v{112+k}, v{112+k} row_ror:8 row_mask:0xf bank_mask:0xf")
for k in range(4): A(f"v_mov_b32 v{116+k}, v{112+k}")
for k in range(4): A(f"v_permlane16_swap_b32 v{112+k}, v{116+k}")
for k in range(4): A(f"v_add_f32 v{112+k}, v{112+k}, v{116+k}")
for k in range(4): A(f"v_mov_b32 v{116+k}, v{112+k}")
for k in range(4): A(f"v_permlane32_swap_b32 v{112+k}, v{116+k}")
for k in range(4): A(f"v_add_f32 v{112+k}, v{112+k}, v{116+k}")
A("s_waitcnt lgkmcnt(0)")
for k in range(4): A(f"v_fma_f32 v{112+k}, v{112+k}, v47, v{96+k}")
for k in range(4): A(f"v_mul_f32 v{116+k}, {NLOG2E:#x}, v{112+k}")
for k in range(4): A(f"v_exp_f32 v{116+k}, v{116+k}")
for k in range(4): A(f"v_mul_f32 v{112+k}, v{112+k}, v{100+k}")
for k in range(4): A(f"v_add_f32 v{116+k}, 1.0, v{116+k}")
for k in range(4): A(f"v_rcp_f32 v{116+k}, v{116+k}")
A("s_and_b32 exec_lo, s56, 0xff\ns_mov_b32 exec_hi, 0")
for k in range(4): A(f"v_fma_f32 v{112+k}, v{112+k}, v{116+k}, v{104+k}")
A("v_cvt_pk_bf16_f32 v112, v112, v113\nv_cvt_pk_bf16_f32 v113, v114, v115")
A("global_store_dwordx2 v46, v[112:113], s[40:41]")
A.label("L_hdone")
stamp(11)
if OPT["stamps"]:
    A("s_waitcnt vmcnt(0)")
    stamp(12)
finish(13, [(8, 9), (9, 12)])

A.label("L_notconv")
A(f"""
s_waitcnt lgkmcnt(0)
s_sub_u32 s5, s8, 20
s_lshr_b32 s6, s5, 1
s_lshl_b32 s6, s6, 3
s_add_u32 s6, s6, s9
s_cmp_ge_u32 s6, 27
s_cbranch_scc1 L_fin
s_lshl_b32 s6, s6, 1
s_and_b32 s5, s5, 1
s_add_u32 s48, s6, s5
s_bitcmp1_b32 s3, 0
s_cselect_b32 s56, s36, s34
s_cselect_b32 s57, s37, s35
s_mov_b32 s58, {640*3456}
s_mov_b32 s59, 0x20000
s_lshr_b32 s49, s3, 1
s_mul_i32 s5, s49, {160*3456}
s_lshl_b32 s6, s48, 6
s_add_u32 s5, s5, s6
v_and_b32 v2, 15, v1
v_lshrrev_b32 v3, 4, v1
v_mul_u32_u24 v5, {8*3456}, v3
v_lshl_add_u32 v5, v2, 2, v5
s_barrier
""")
WG = 40
for ks in range(5):
    for j in range(0, 8, 2):
        A(f"buffer_load_dword v{WG+8*ks+j}, v5, s[56:59], s5 offen")
        A(f"buffer_load_dword v{WG+8*ks+j+1}, v5, s[56:59], s5 offen offset:3456")
        A(f"s_add_u32 s5, s5, {2*3456 if j < 6 else 26*3456}")
A(f"""
s_min_u32 s50, s3, 4
s_mul_i32 s5, s48, {32*1280}
s_lshl_b32 s6, s50, 8
s_add_u32 s5, s5, s6
v_mul_u32_u24 v6, {8*1280}, v3
v_lshl_add_u32 v6, v2, 4, v6
v_add_u32 v6, s5, v6
v_add_u32 v7, {4*1280}, v6
""")
for j in range(8):
    A(f"global_load_dwordx4 {vr(80+4*j,4)}, v{6 + j//4}, s[38:39] offset:{1280*(j%4)}")
A(f"""
v_lshlrev_b32 v92+0, 0, v0
""".replace("v92+0, 0, v0", "v36, 5, v0"))
A(f"""
v_add_u32 v36, {G2_OFF}, v36
s_mov_b32 s60, 0x05040100
s_mov_b32 s61, 0x07060302
v_mov_b32 v112, 0x3f803f80
v_mov_b32 v113, 0x3f803f80
v_mov_b32 v114, 0x3f803f80
v_mov_b32 v115, 0x3f803f80
s_and_b32 s5, s3, 1
s_lshl_b32 s5, s5, 2
s_add_u32 s5, s5, s49
s_lshl_b32 s5, s5, 10
v_lshlrev_b32 v37, 7, v3
v_lshl_add_u32 v37, v2, 4, v37
v_add_u32 v37, s5, v37
v_lshlrev_b32 v38, 2, v0
s_mov_b32 s62, 0x00ff00ff
s_mov_b32 s63, 0x00ff00ff
""")
for ks in range(5):
    A(f"s_waitcnt vmcnt({8 + 8*(4-ks)})")
    for i in range(4):
        A(f"v_perm_b32 v{120+4*ks+i}, v{WG+8*ks+2*i+1}, v{WG+8*ks+2*i}, s60")
        A(f"v_perm_b32 v{140+4*ks+i}, v{WG+8*ks+2*i+1}, v{WG+8*ks+2*i}, s61")
A("global_load_dwordx4 v[8:11], v36, s[42:43] sc1\nglobal_load_dwordx4 v[12:15], v36, s[42:43] offset:16 sc1")
for ks in range(5):
    A(f"v_mfma_f32_16x16x32_bf16 v[24:27], {vr(120+4*ks,4)}, v[112:115], {'0' if ks == 0 else 'v[24:27]'}")
    A(f"v_mfma_f32_16x16x32_bf16 v[28:31], {vr(140+4*ks,4)}, v[112:115], {'0' if ks == 0 else 'v[28:31]'}")
A("s_waitcnt vmcnt(2)")
for qq in range(8):
    for i in range(4):
        A(f"v_perm_b32 v{160+4*qq+i}, v{80+4*(2*i+1)+qq//2}, v{80+4*(2*i)+qq//2}, {'s60' if qq % 2 == 0 else 's61'}")
A(f"""
s_mov_b64 exec, s[62:63]
ds_write_b128 v37, v[24:27] offset:{CSB}
ds_write_b128 v37, v[28:31] offset:{CSB+512}
s_mov_b64 exec, -1
""")
stamp(4)
poll4(8, 36, 0)
stamp(5)
A(f"""
v_max3_u32 v16, v8, v10, v12
v_mov_b32 v17, {WMAX}
v_max_u32 v16, v16, v14
s_lshl_b32 s5, s3, 2
v_add_u32 v18, s5, v17
""")
for mod in DPP6:
    A(f"s_nop 1\nv_max_u32_dpp v16, v16, v16 {mod.replace(' bound_ctrl:0','')}")
A(f"""
{LANE63}
ds_write_b32 v18, v16
s_mov_b64 exec, -1
v_mov_b32 v19, {CNT}
s_waitcnt lgkmcnt(0)
s_barrier
ds_read_b128 v[20:23], v17
ds_read_b128 v[24:27], v17 offset:16
ds_read2st64_b32 v[196:197], v38 offset0:{CSB//256} offset1:{CSB//256+4}
ds_read2st64_b32 v[198:199], v38 offset0:{CSB//256+8} offset1:{CSB//256+12}
ds_read2st64_b32 v[200:201], v38 offset0:{CSB//256+16} offset1:{CSB//256+20}
ds_read2st64_b32 v[202:203], v38 offset0:{CSB//256+24} offset1:{CSB//256+28}
s_waitcnt lgkmcnt(4)
v_min3_u32 v20, v20, v21, v22
v_min3_u32 v24, v24, v25, v26
v_min3_u32 v20, v20, v23, v27
v_min_u32 v20, v20, v24
v_cmp_ge_u32 s[6:7], v8, v20
v_cmp_ge_u32 s[10:11], v10, v20
v_cmp_ge_u32 s[12:13], v12, v20
v_cmp_ge_u32 s[14:15], v14, v20
v_addc_co_u32_e64 v21, vcc, 0, 0, s[6:7]
s_or_b64 s[50:51], s[6:7], s[10:11]
v_addc_co_u32_e64 v22, vcc, v21, 0, s[10:11]
s_or_b64 s[52:53], s[12:13], s[14:15]
v_addc_co_u32_e64 v23, vcc, v22, 0, s[12:13]
s_or_b64 exec, s[50:51], s[52:53]
v_addc_co_u32_e64 v24, vcc, v23, 0, s[14:15]
ds_add_rtn_u32 v25, v19, v24
s_waitcnt lgkmcnt(0)
v_lshl_add_u32 v25, v25, 2, v19
v_lshl_add_u32 v21, v21, 2, v25
v_lshl_add_u32 v22, v22, 2, v25
v_lshl_add_u32 v23, v23, 2, v25
s_mov_b64 exec, s[6:7]
ds_write_b32 v25, v8 offset:{LIST-CNT}
s_mov_b64 exec, s[10:11]
ds_write_b32 v21, v10 offset:{LIST-CNT}
s_mov_b64 exec, s[12:13]
ds_write_b32 v22, v12 offset:{LIST-CNT}
s_mov_b64 exec, s[14:15]
ds_write_b32 v23, v14 offset:{LIST-CNT}
s_mov_b64 exec, -1
v_add_u32 v26, v19, v4
s_lshl_b32 s5, s3, 5
s_add_u32 s55, s5, {SELW}
v_mov_b32 v27, v1
s_waitcnt lgkmcnt(0)
s_barrier
ds_read_b32 v28, v19
s_mov_b32 s50, 0
s_waitcnt lgkmcnt(0)
v_readfirstlane_b32 s51, v28
L_rk_outer:
ds_read_b32 v29, v26 offset:{LIST-CNT}
v_mov_b32 v30, 0
v_mov_b32 v31, v19
s_mov_b32 s52, 0
L_rk_inner:
ds_read_b128 v[8:11], v31 offset:{LIST-CNT}
ds_read_b128 v[12:15], v31 offset:{LIST-CNT+16}
v_add_u32 v31, 32, v31
s_add_u32 s52, s52, 8
s_waitcnt lgkmcnt(0)
""")
for h in range(2):
    prs = ["s[6:7]", "s[10:11]", "s[12:13]", "s[14:15]"]
    for i in range(4): A(f"v_cmp_gt_u32 {prs[i]}, v{8+4*h+i}, v29")
    for i in range(4): A(f"v_addc_co_u32_e64 v30, vcc, v30, 0, {prs[i]}")
A(f"""
s_cmp_lt_u32 s52, s51
s_cbranch_scc1 L_rk_inner
v_cmp_gt_u32 s[6:7], 8, v30
v_cmp_gt_u32 s[10:11], s51, v27
v_lshl_add_u32 v30, v30, 2, s55
s_and_b64 exec, s[6:7], s[10:11]
ds_write_b32 v30, v29
s_mov_b64 exec, -1
v_add_u32 v26, 256, v26
v_add_u32 v27, 64, v27
s_add_u32 s50, s50, 64
s_cmp_lt_u32 s50, s51
s_cbranch_scc1 L_rk_outer
v_and_b32 v8, 7, v1
v_bfe_u32 v9, v1, 2, 3
v_lshl_add_u32 v10, v8, 2, s55
v_lshl_add_u32 v11, v9, 2, s55
ds_read_b32 v12, v10
ds_read_b32 v14, v11
s_mul_i32 s5, s49, 320
v_lshrrev_b32 v3, 4, v1
v_lshl_add_u32 v15, v3, 4, s5
s_movk_i32 s6, 1280
s_waitcnt lgkmcnt(0)
v_and_b32 v16, 0x7ff, v12
v_and_b32 v14, 0x7ff, v14
v_sub_u32 v16, 2047, v16
v_sub_u32 v14, 2047, v14
v_mad_u32_u24 v15, v16, s6, v15
v_lshlrev_b32 v14, 3, v14
""")
stamp(6)
for ks in range(5):
    A(f"global_load_dwordx4 {vr(40+4*ks,4)}, v15, s[16:17] offset:{64*ks}")
A(f"""
v_add_u32 v14, {G1_OFF}, v14
global_load_dwordx2 v[32:33], v14, s[42:43] sc1
s_or_b32 s5, s48, s3
s_cmp_lg_u32 s5, 0
s_cbranch_scc1 L_nosel
v_mov_b32 v13, s4
v_lshlrev_b32 v8, 3, v8
v_add_u32 v8, {SEL_OFF}, v8
v_mov_b32 v9, 0
s_mov_b64 exec, 0xff
global_store_dwordx2 v8, v[12:13], s[42:43] sc1
s_mov_b64 exec, 1
global_store_dword v9, v13, s[42:43] sc1
s_mov_b64 exec, -1
s_waitcnt vmcnt(3)
L_nosel:
v_add_f32 v196, v196, v197
v_add_f32 v198, v198, v199
v_add_f32 v200, v200, v201
v_add_f32 v202, v202, v203
v_add_f32 v196, v196, v198
v_add_f32 v200, v200, v202
v_bfe_u32 v16, v0, 2, 3
v_lshlrev_b32 v16, 6, v16
v_bfe_u32 v17, v0, 5, 2
v_lshl_add_u32 v16, v17, 4, v16
v_and_b32 v17, 3, v0
v_lshl_add_u32 v16, v17, 2, v16
v_bfe_u32 v17, v0, 7, 1
v_lshl_add_u32 v16, v17, 1, v16
v_and_b32 v17, 7, v1
v_lshlrev_b32 v17, 6, v17
v_lshl_add_u32 v17, v3, 4, v17
v_add_u32 v17, {HB}, v17
v_mov_b32 v18, {ZBLK}
v_cndmask_b32 v19, v18, v17, s[62:63]
v_cndmask_b32 v18, v17, v18, s[62:63]
""")
for ks in range(5):
    A(f"s_waitcnt vmcnt({5-ks})")
    A(f"v_mfma_f32_16x16x32_bf16 v[24:27], {vr(120+4*ks,4)}, {vr(40+4*ks,4)}, {'0' if ks == 0 else 'v[24:27]'}")
    A(f"v_mfma_f32_16x16x32_bf16 v[28:31], {vr(140+4*ks,4)}, {vr(40+4*ks,4)}, {'0' if ks == 0 else 'v[28:31]'}")
stamp(7)
lG = A.newlabel("g1s"); lGo = A.newlabel("g1so")
A(f"""
s_mov_b64 exec, s[62:63]
s_mov_b32 s54, {SPIN_MAX}
s_nop 4
ds_write_b128 v37, v[24:27] offset:{RED}
ds_write_b128 v37, v[28:31] offset:{RED+512}
s_mov_b64 exec, -1
s_waitcnt vmcnt(0)
{lG}:
v_cmp_ne_u32 vcc, s4, v33
s_cbranch_vccz {lGo}
s_sub_u32 s54, s54, 1
s_cbranch_scc1 {lGo}
global_load_dwordx2 v[32:33], v14, s[42:43] sc1
s_waitcnt vmcnt(0)
s_branch {lG}
{lGo}:
v_and_b32 v33, 0xffff0000, v32
v_lshlrev_b32 v32, 16, v32
v_rcp_f32 v33, v33
s_waitcnt lgkmcnt(0)
s_barrier
s_cmp_ge_u32 s3, 4
s_cbranch_scc1 L_nored
ds_read2st64_b32 v[8:9], v38 offset0:0 offset1:4
ds_read2st64_b32 v[10:11], v38 offset0:8 offset1:12
ds_read2st64_b32 v[12:13], v38 offset0:16 offset1:20
ds_read2st64_b32 v[14:15], v38 offset0:24 offset1:28
s_waitcnt lgkmcnt(2)
v_add_f32 v8, v8, v9
v_add_f32 v10, v10, v11
v_fma_f32 v8, -v32, v196, v8
v_add_f32 v8, v8, v10
v_mul_f32 v8, v8, v33
v_mul_f32 v9, {NLOG2E:#x}, v8
v_exp_f32 v9, v9
s_waitcnt lgkmcnt(0)
v_add_f32 v12, v12, v13
v_add_f32 v9, 1.0, v9
v_add_f32 v14, v14, v15
v_rcp_f32 v9, v9
v_fma_f32 v12, -v32, v200, v12
v_add_f32 v12, v12, v14
v_mul_f32 v8, v8, v33
v_mul_f32 v12, v12, v9
v_mul_f32 v8, v8, v12
v_cvt_pk_bf16_f32 v8, v8, v8
ds_write_b16 v16, v8 offset:{HB}
L_nored:
s_and_b32 s5, s4, 0xff
v_mov_b32 v48, s5
s_bfe_u32 s5, s4, 0x80008
v_mov_b32 v49, s5
s_bfe_u32 s5, s4, 0x80010
v_mov_b32 v50, s5
s_lshr_b32 s5, s4, 24
v_mov_b32 v51, s5
s_mov_b32 s60, 0xffffff00
v_bfe_u32 v20, v1, 3, 1
v_lshl_add_u32 v20, v3, 3, v20
v_mul_u32_u24 v20, {PART_STRIDE}, v20
v_and_b32 v21, 7, v1
v_lshl_add_u32 v20, v21, 4, v20
s_mul_i32 s5, s3, {32*PART_STRIDE}
s_lshl_b32 s6, s48, 7
s_add_u32 s5, s5, s6
s_add_u32 s5, s5, {PART_OFF}
v_add_u32 v20, s5, v20
s_waitcnt lgkmcnt(0)
s_barrier
""")
stamp(8)
A(f"""
s_cmp_ge_u32 s3, 5
s_cbranch_scc1 L_fin
ds_read_b128 v[8:11], v19
ds_read_b128 v[12:15], v18
v_add_u32 v21, {2*PART_STRIDE}, v20
v_add_u32 v22, {4*PART_STRIDE}, v20
v_add_u32 v23, {6*PART_STRIDE}, v20
s_waitcnt lgkmcnt(1)
""")
for qq in range(4): A(f"v_mfma_f32_16x16x32_bf16 {vr(56+4*qq,4)}, {vr(160+4*qq,4)}, v[8:11], 0")
A("s_waitcnt lgkmcnt(0)")
for qq in range(4): A(f"v_mfma_f32_16x16x32_bf16 {vr(56+4*qq,4)}, {vr(176+4*qq,4)}, v[12:15], {vr(56+4*qq,4)}")
A.nop(5)
for r in range(4):
    for qq in range(4): A(f"v_bfi_b32 v{72+4*r+qq}, s60, v{56+4*qq+r}, v{48+qq}")
    A(f"global_store_dwordx4 v{20+r}, {vr(72+4*r,4)}, s[42:43] sc1")
stamp(9)
if OPT["stamps"]:
    A("s_waitcnt vmcnt(0)")
    stamp(10)
if OPT["stamps"] == 2: finish(11, [(10, 4), (11, 5), (12, 6), (13, 8), (14, 10)])
A.label("L_fin")
finish(11)
A.label("L_end")
A("s_endpgm")
A.label("L_code_end")
A(".fill 64, 4, 0xBF800000")

tail = f"""
.section .rodata,"a"
.p2align 6
.amdhsa_kernel {NAME}_kernel
  .amdhsa_next_free_vgpr 256
  .amdhsa_next_free_sgpr 96
  .amdhsa_accum_offset 256
  .amdhsa_group_segment_fixed_size 0
  .amdhsa_kernarg_size 120
  .amdhsa_user_sgpr_count 2
  .amdhsa_user_sgpr_kernarg_segment_ptr 1
  .amdhsa_system_sgpr_workgroup_id_x 1
.end_amdhsa_kernel
"""
probs = check_hazards(A.lines)
for p in probs: print("HAZARD", p, file=sys.stderr)
open(sys.argv[1], "w").write(head + A.text() + tail)
print("written", sys.argv[1], len(A.lines), "lines", file=sys.stderr)
```

```python
import sys
from asmlib import *
NAME = "recurrent_scan__ssm_conv_s4d__moe_arch_mod__prompt"
OPT = dict(stamps=0, ntw=1, ntx=0, ntr=0, ga=7, fine=0, sfirst=0, grp=1, bal=0, xb=4, gbn=0, gan=4, pfbar=1, gul=1, gb1=0, xall=0, inj=0)
for a in sys.argv[2:]:
    k, v = a.split("="); OPT[k] = int(v)

G1_OFF, G2_OFF, SEL_OFF, PART_OFF, PART_STRIDE = 0x1000, 0x5000, 0x9000, 0x10000, 7168
STAMP_OFF = 0x200000
TROW = 2064
TBX, TBY = 0, 24 * TROW
UB = TBY + 32 * TROW
USTR = 4608
BOXB = UB + 4 * USTR
KB = BOXB + 1024
PD_O, T2_O, T3_O = 0, 5600, 6112
KSTR = 6432
FLG = KB + 4 * KSTR
LDS_SIZE = FLG + 64
UBY = lambda e: 80 * (e >> 3) + 8 * (e & 7)
RED = 81920
XRB, XRS = RED + 16384, 1296
HB = XRB + 16 * XRS
HMAX = HB + 512
PRM = UB + 512
CNT, ZBLK, SELW, LIST = KB, KB + 64, KB + 128, KB + 1024
SPIN_MAX = 1 << 20

LOG2E = 0x3FB8AA3B
NLOG2E = LOG2E ^ 0x80000000
INV2PI = 0x3E22F983
A = Asm()
NTW = " nt" if OPT["ntw"] else ""
NTX = " nt" if OPT["ntx"] else ""
NTR = " nt" if OPT["ntr"] else ""
def fstamp(g, i):
    if OPT["fine"] == g: A(f"s_memtime s[{64+2*i}:{65+2*i}]")
def FS(g, i):
    return f"s_memtime s[{64+2*i}:{65+2*i}]" if OPT["fine"] == g else ""
def stamp(i):
    if OPT["fine"] and i not in (0, 13): return
    if OPT["stamps"] == 3: A(f"s_memtime s[{64+2*i}:{65+2*i}]")
    elif OPT["stamps"]: A(f"s_memrealtime s[{64+2*i}:{65+2*i}]")
def cstamp(i):
    if OPT["stamps"]: A(f"s_memtime s[{64+2*i}:{65+2*i}]")
def finish(n, dbgmap=None):
    if OPT["stamps"] == 2:
        stamp(13)
        A("s_load_dwordx2 s[6:7], s[0:1], 104")
        A("s_waitcnt lgkmcnt(0)")
        A("s_mov_b64 exec, 1")
        A("v_mov_b32 v2, 0")
        A("s_not_b32 s5, s64\nv_mov_b32 v3, s5\nglobal_atomic_umax v2, v3, s[6:7]")
        for slot, st in [(1, 0), (2, 2), (3, 3), (15, 13)] + (dbgmap or []):
            A(f"v_mov_b32 v3, s{64+2*st}\nglobal_atomic_umax v2, v3, s[6:7] offset:{4*slot}")
    elif OPT["stamps"]:
        stamp(13); cstamp(15)
        A("s_waitcnt lgkmcnt(0)")
        A("s_mov_b64 exec, 1")
        A(f"s_lshl_b32 s5, s2, 3\ns_add_u32 s5, s5, s3\ns_lshl_b32 s5, s5, 6\ns_add_u32 s5, s5, {STAMP_OFF}")
        A("v_mov_b32 v2, s5")
        for i in list(range(n)) + [13, 14, 15]:
            A(f"v_mov_b32 v3, s{64+2*i}")
            A(f"global_store_dword v2, v3, s[42:43] offset:{4*i}")
    A("s_endpgm")

class LdsQ:
    def __init__(self): self.q = []; self.done = 0
    def issue(self, tag): self.q.append(tag)
    def wait(self, tag):
        idx = max(i for i, t in enumerate(self.q) if t == tag)
        if idx < self.done: return
        n = len(self.q) - 1 - idx
        A(f"s_waitcnt lgkmcnt({min(n,15)})")
        self.done = idx + 1 if n <= 15 else len(self.q) - 15
    def all(self):
        A("s_waitcnt lgkmcnt(0)"); self.done = len(self.q)
    def known_all(self): self.done = len(self.q)

def cmul(dst, p, w, t):
    A(f"v_pk_mul_f32 {vr(t,2)}, {vr(p,2)}, {vr(w,2)} op_sel:[0,0] op_sel_hi:[1,0]")
    A(f"v_pk_fma_f32 {vr(dst,2)}, {vr(p,2)}, {vr(w,2)}, {vr(t,2)} op_sel:[1,1,0] op_sel_hi:[0,1,1] neg_lo:[1,0,0]")
LANE63 = "s_mov_b32 exec_lo, 0\ns_mov_b32 exec_hi, 0x80000000"
DPP6 = ["row_shr:1 row_mask:0xf bank_mask:0xf bound_ctrl:0", "row_shr:2 row_mask:0xf bank_mask:0xf bound_ctrl:0",
        "row_shr:4 row_mask:0xf bank_mask:0xf bound_ctrl:0", "row_shr:8 row_mask:0xf bank_mask:0xf bound_ctrl:0",
        "row_bcast:15 row_mask:0xa bank_mask:0xf", "row_bcast:31 row_mask:0xc bank_mask:0xf"]

KD = lambda m: 8 + 4 * m
KS = 76
T2 = lambda d, hh: 80 + 8 * (d - 2) + 4 * hh
T3 = lambda d: 104 + 4 * (d - 4)
BOX = lambda i: 120 + 4 * i
ACC = lambda j: 140 + 4 * j
BR = lambda s: 172 + 4 * s
W1R = 204
BA = lambda i: 208 + 4 * i
SG = lambda i: 232 + 4 * i
vUB, vYW, vFL, vONE, vT0, vT1, vT2 = 244, 245, 246, 247, 248, 249, 250

hdr = open(f"cdna_kernels/{NAME}.s.ref").read().split("; @launch")[0]
head = hdr + f"""; @launch grid=(256,1,1) block=(512,1,1) lds={LDS_SIZE}
.amdgcn_target "amdgcn-amd-amdhsa--gfx950"
.text
.globl {NAME}_kernel
.p2align 8
.type {NAME}_kernel,@function
{NAME}_kernel:
"""

A("s_cmp_ge_u32 s2, 256\ns_cbranch_scc1 L_end")
A("s_load_dwordx16 s[16:31], s[0:1], 0")
A("s_load_dwordx8 s[32:39], s[0:1], 64")
A("s_load_dwordx2 s[40:41], s[0:1], 96")
A("s_load_dwordx2 s[42:43], s[0:1], 112")
stamp(0); cstamp(14)
A(f"""
s_getpc_b64 s[6:7]
L_pc:
s_lshr_b32 s8, s2, 3
v_lshrrev_b32 v2, 6, v0
s_lshl_b32 s5, s8, 10
v_lshl_add_u32 v5, v0, 1, s5
v_readfirstlane_b32 s3, v2
v_min_u32 v5, L_code_end-L_pc, v5
v_and_b32 v5, -4, v5
global_load_dword v252, v5, s[6:7]
v_and_b32 v1, 63, v0
v_lshlrev_b32 v3, 4, v1
v_lshlrev_b32 v4, 2, v1
v_mov_b32 v32, 0
s_and_b32 s45, s3, 3
s_and_b32 s9, s2, 7
s_lshl_b32 s10, s2, 3
s_add_u32 s10, s10, s3
s_mul_i32 s11, s10, 1280
s_lshr_b32 s46, s3, 2
s_mul_i32 s12, s9, 20
s_add_u32 s44, s12, s8
s_lshr_b32 s49, s3, 1
s_lshr_b32 s5, s12, 4
s_and_b32 s6, s3, 1
s_add_u32 s5, s5, s6
s_lshl_b32 s62, s5, 7
s_lshl_b32 s6, s8, 2
s_add_u32 s6, s6, s49
s_mul_i32 s6, s6, {20480 if OPT['xall'] else 10240}
s_add_u32 s5, s62, s6
v_mul_u32_u24 v93, 1280, v1
v_add_u32 v22, s5, v93
s_lshl_b32 s5, s49, 3
s_add_u32 s5, s5, s9
s_min_u32 s5, s5, 26
s_lshl_b32 s5, s5, 7
s_mul_i32 s6, s8, {20*3456}
s_add_u32 s5, s5, s6
v_mul_u32_u24 v23, 3456, v1
v_add_u32 v23, s5, v23
s_lshl_b32 s5, s45, 8
s_lshl_b32 s6, s46, 7
s_add_u32 s5, s5, s6
s_lshl_b32 s6, s44, 10
s_add_u32 s5, s5, s6
v_lshl_add_u32 v6, v1, 1, s5
s_lshr_b32 s5, s5, 8
s_lshl_b32 s5, s5, 1
v_mov_b32 v7, s5
s_waitcnt lgkmcnt(0)
s_add_u32 s6, s16, s11
s_addc_u32 s7, s17, 0
global_load_dwordx4 v[8:11], v3, s[6:7]{NTR}
global_load_dword v12, v4, s[6:7] offset:1024{NTR}
global_load_dwordx4 v[16:19], v3, s[32:33]
global_load_dword v20, v4, s[32:33] offset:1024
global_load_dword v29, v32, s[42:43]
s_bitcmp1_b32 s3, 0
s_cselect_b32 s56, s36, s34
s_cselect_b32 s57, s37, s35
""")
stamp(1)
def early_pf():
    A(f"""
s_mov_b64 exec, {'0xffff' if OPT['xall'] else '0xff'}
global_load_dword v251, v22, s[16:17]{NTX}
s_mov_b64 exec, -1
""")
    if not OPT["gul"]: gu_pf()
def gu_pf():
    A(f"""
s_mov_b64 exec, 0xfffff
global_load_dword v251, v23, s[56:57]{NTW}
s_mov_b64 exec, -1
""")
A(f"""
s_barrier
s_cmp_ge_u32 s2, 160
s_cbranch_scc1 L_nopar
global_load_ushort v40, v6, s[18:19]{NTW}
global_load_ushort v45, v7, s[26:27]
global_load_ushort v41, v6, s[20:21]{NTW}
global_load_ushort v42, v6, s[22:23]{NTW}
global_load_ushort v43, v6, s[24:25]{NTW}
L_nopar:
""")
if OPT["pfbar"]: A("s_barrier")
early_pf()
A("""
v_mov_b32 v33, 0
v_mov_b32 v34, 0
v_mov_b32 v35, 0
s_cbranch_scc1 L_notconv
""")
def row_loads():
    A(f"""
s_add_u32 s6, s16, s11
s_addc_u32 s7, s17, 0
global_load_dwordx4 v[8:11], v3, s[6:7]{NTR}
global_load_dword v12, v4, s[6:7] offset:1024{NTR}
global_load_dwordx4 v[16:19], v3, s[32:33]
global_load_dword v20, v4, s[32:33] offset:1024
""")
def stats_pre():
    A("s_mov_b32 s14, 0x9E3779B1\ns_mov_b32 s47, 0x3f803f80\ns_lshl_b32 s11, s10, 3\ns_sub_u32 s13, 2047, s10")
    A(f"v_mov_b32 v33, s11\nv_add_u32 v34, {G1_OFF}, v33\nv_add_u32 v35, {G2_OFF}, v33\nv_mov_b32 v36, 0x3acccccd")
def make_tag():
    pass
def stats(younger, cnt=False):
    A(f"s_waitcnt vmcnt({younger})")
    stamp(2)
    A("s_setprio 2")
    for i in range(5):
        c = (lambda r: "0" if i == 0 else r)
        A(f"v_dot2_f32_bf16 v24, v{8+i}, s47, {c('v24')}")
        A(f"v_dot2_f32_bf16 v25, v{8+i}, v{8+i}, {c('v25')}")
        A(f"v_dot2_f32_bf16 v26, v{8+i}, v{16+i}, {c('v26')}")
        A(f"v_dot2_f32_bf16 v27, v{16+i}, s47, {c('v27')}")
    A(f"""
s_nop 0
v_permlane32_swap_b32 v24, v25
s_nop 0
v_permlane32_swap_b32 v26, v27
v_add_f32 v24, v24, v25
v_add_f32 v26, v26, v27
s_waitcnt vmcnt({younger-1})
v_mul_lo_u32 v29, v29, s14
v_permlane16_swap_b32 v24, v26
v_add_f32 v24, v24, v26
v_add_u32 v29, 0x7F4A7C15, v29
v_mov_b32 v31, v29
v_add_f32_dpp v24, v24, v24 row_shr:1 row_mask:0xf bank_mask:0xf bound_ctrl:0
v_readfirstlane_b32 s4, v29
s_nop 0
v_add_f32_dpp v24, v24, v24 row_shr:2 row_mask:0xf bank_mask:0xf bound_ctrl:0
s_nop 1
v_add_f32_dpp v24, v24, v24 row_shr:4 row_mask:0xf bank_mask:0xf bound_ctrl:0
s_nop 1
v_add_f32_dpp v24, v24, v24 row_shr:8 row_mask:0xf bank_mask:0xf bound_ctrl:0
s_mov_b64 exec, 1
v_readlane_b32 s6, v24, 15
v_readlane_b32 s7, v24, 47
v_readlane_b32 s14, v24, 31
v_readlane_b32 s15, v24, 63
v_mul_f32 v24, s6, v36
v_mul_f32 v25, s7, v36
v_mov_b32 v26, s14
v_fma_f32 v25, -v24, v24, v25
v_max_f32 v25, 0, v25
v_cvt_pk_bf16_f32 v28, v24, v25
v_and_b32 v25, 0xffff0000, v28
v_lshlrev_b32 v24, 16, v28
v_add_f32 v25, 0x3727c5ac, v25
v_cvt_pk_bf16_f32 v25, v25, v25
v_fma_f32 v26, -v24, s15, v26
v_and_b32 v25, 0xffff0000, v25
v_sqrt_f32 v25, v25
""")
    A("s_nop 0")
    A("""
v_cvt_pk_bf16_f32 v28, v24, v25
v_and_b32 v25, 0xffff0000, v28
v_rcp_f32 v25, v25
global_store_dwordx2 v34, v[28:29], s[42:43] sc1
v_mul_f32 v26, v26, v25
v_cvt_pk_bf16_f32 v26, v26, v26
v_ashrrev_i32 v27, 31, v26
v_or_b32 v27, 0x80000000, v27
v_xor_b32 v26, v26, v27
v_and_b32 v26, 0xffff0000, v26
v_or_b32 v30, s13, v26
global_store_dwordx2 v35, v[30:31], s[42:43] sc1
""")
    if cnt: A(f"ds_add_u32 v{vFL}, v{vONE} offset:8")
    A("s_mov_b64 exec, -1\ns_setprio 0")
    stamp(3)
A(f"""
s_and_b32 s6, s8, 15
s_lshl_b32 s6, s6, 1
s_and_b32 s7, s49, 1
s_add_u32 s6, s6, s7
s_add_u32 s6, s6, 32
s_mul_i32 s6, s6, 40960
s_add_u32 s5, s62, s6
v_add_u32 v93, s5, v93
v_lshlrev_b32 v7, 4, v0
v_add_u32 v7, {KB}, v7
ds_write_b128 v7, v[32:35]
ds_write_b128 v7, v[32:35] offset:8192
ds_write_b128 v7, v[32:35] offset:16384
v_min_u32 v7, {LDS_SIZE-16-24576}, v7
ds_write_b128 v7, v[32:35] offset:24576
s_mul_i32 s53, s45, {USTR}
s_add_u32 s53, s53, {UB}
v_lshl_add_u32 v7, v1, 3, s53
ds_write_b64 v7, v[32:33]
s_add_u32 s5, s45, 1
s_sub_u32 s13, s5, 32
s_lshl_b32 s5, s5, 1
v_add_u32 v36, s13, v1
v_add_u32 v37, 1, v36
v_mov_b32 v38, 0x3f800000
v_mov_b32 v39, 0x3f80
v_cmp_ge_u32 s[6:7], s5, v36
v_cmp_ge_u32 s[14:15], s5, v37
s_lshl_b32 s13, s45, 8
s_add_u32 s13, s13, {BOXB}
v_cndmask_b32 v38, 0, v38, s[6:7]
v_cndmask_b32 v39, 0, v39, s[14:15]
v_add_u32 v7, s13, v4
v_or_b32 v38, v38, v39
ds_write_b32 v7, v38
v_and_b32 v2, 15, v1
v_lshrrev_b32 v37, 4, v1
v_lshlrev_b32 v37, 3, v37
v_sub_u32 v37, v2, v37
v_lshlrev_b32 v37, 2, v37
v_add_u32 v37, {BOXB+96}, v37
s_mul_i32 s5, s45, {256*1280}
s_lshl_b32 s6, s44, 3
s_add_u32 s5, s5, s6
v_mul_u32_u24 v94, 5120, v1
v_add_u32 v94, s5, v94
v_add_u32 v95, {1024*1280}, v94
s_lshl_b32 s5, s45, 9
s_lshl_b32 s6, s46, 8
s_add_u32 s50, s5, s6
s_add_u32 s51, s50, {TBY}
s_mov_b32 m0, s51
v_mov_b32 v84, 0x3f80
v_mov_b32 v44, {LOG2E:#x}
v_mov_b32 v{vFL}, {FLG}
v_mov_b32 v{vONE}, 1
s_lshr_b32 s63, s3, 2
""")
stats_pre()
A(f"""
s_lshl_b32 s5, s44, 3
s_waitcnt lgkmcnt(0)
s_barrier
s_load_dwordx2 s[60:61], s[28:29], s5
""")
if OPT["gul"]: gu_pf()
fstamp(1, 1)
MK3 = 224
for dst, arr, offs in [(BOX(0), 0, 19), (BOX(1), 1, 15), (BOX(2), 0, 11), (BOX(3), 2, 15), (BOX(4), 3, 15), (KS, 0, 20), (MK3, 0, 22)]:
    o = arr * 64 + offs
    A(f"ds_read2_b32 {vr(dst,2)}, v37 offset0:{o} offset1:{o-2}")
    A(f"ds_read2_b32 {vr(dst+2,2)}, v37 offset0:{o-4} offset1:{o-6}")
def setup():
    A(f"""
s_waitcnt vmcnt(4)
v_lshlrev_b32 v40, 16, v40
v_lshlrev_b32 v45, 16, v45
v_mul_f32 v40, v44, v40
v_mul_f32 v44, v45, v44
v_exp_f32 v40, v40
v_exp_f32 v44, v44
v_lshlrev_b32 v41, 16, v41
v_lshlrev_b32 v42, 16, v42
v_cvt_pk_bf16_f32 v40, v44, v40
v_lshlrev_b32 v43, 16, v43
v_lshlrev_b32 v44, 16, v40
v_and_b32 v40, 0xffff0000, v40
v_mul_f32 v41, v41, v44
v_mul_f32 v40, v40, v44
v_add_f32 v44, v44, v44
v_mul_f32 v40, {NLOG2E:#x}, v40
v_mul_f32 v41, {INV2PI:#x}, v41
v_mul_f32 v48, v42, v44
v_mul_f32 v49, v43, v44
v_mul_f32 v56, 0x41000000, v40
v_mul_f32 v58, 0x41000000, v41
v_mul_f32 v57, 0x43800000, v40
v_mul_f32 v59, 0x43800000, v41
v_fract_f32 v58, v58
v_fract_f32 v60, v41
v_fract_f32 v59, v59
v_exp_f32 v56, v56
v_cos_f32 v52, v58
v_sin_f32 v53, v58
v_exp_f32 v61, v40
v_cos_f32 v50, v60
v_sin_f32 v51, v60
v_exp_f32 v57, v57
v_cos_f32 v54, v59
v_sin_f32 v55, v59
v_mul_f32 v52, v52, v56
v_mul_f32_e64 v53, -v53, v56
v_mul_f32 v50, v50, v61
v_mul_f32 v51, v51, v61
v_mul_f32 v54, v54, v57
v_mul_f32 v55, v55, v57
""")
stats(8, cnt=True); fstamp(1, 2); setup()
fstamp(1, 3)
def gather(t, lo=0, hi=4):
    for r in range(lo, hi):
        A(f"global_load_dwordx2 v[{96+8*t+2*r}:{97+8*t+2*r}], v{94+t}, s[16:17] offset:{1280*r}")
def gather_at(pos):
    if OPT["ga"] == pos:
        l = A.newlabel("ng")
        A(f"s_cmp_lt_u32 s3, 4\ns_cbranch_scc1 {l}")
        gather(0, 0, OPT["gan"])
        A.label(l)
    if OPT["xb"] == pos:
        l = A.newlabel("nx")
        A(f"s_cmp_ge_u32 s3, 4\ns_cbranch_scc1 {l}")
        A(f"s_mov_b32 exec_hi, 0\nglobal_load_dword v251, v93, s[16:17]{NTX}\ns_mov_b64 exec, -1")
        A.label(l)
gather_at(0)
pend = []
GRP = OPT["grp"]
tt = [0]
def emit_row(reg, rows):
    t = 84 + (tt[0] % (2 * GRP)); tt[0] += 1
    if reg is not None: A(f"v_cvt_pk_bf16_f32 v{t}, v{reg}, v{reg+1}")
    for r in rows: pend.append(f"ds_write_addtid_b32 v{t} offset:{r*TROW}")
    if tt[0] % GRP == 0: flush_rows()
def flush_rows():
    for p in pend: A(p)
    pend.clear()
emit_row(None, [0]); emit_row(52, [1])
cur = 52
CHK = {5: 0, 13: 0, 21: 0, 29: 1} if OPT["ga"] == 7 else {}
for c in range(2, 32):
    dst = 64 + 2 * (c % 2)
    if c + 3 in CHK and not CHK[c + 3]: A(f"ds_read_b32 v{vT2}, v{vFL} offset:8")
    if c in CHK:
        l = A.newlabel("gc")
        A(f"s_cmp_eq_u32 s63, 0\ns_cbranch_scc1 {l}")
        if not CHK[c]:
            A(f"s_waitcnt lgkmcnt(3)\nv_readfirstlane_b32 s5, v{vT2}\ns_cmp_lt_u32 s5, 8\ns_cbranch_scc1 {l}")
        A("s_mov_b32 s63, 0")
        gather(0, 0, OPT["gan"])
        A.label(l)
    cmul(dst, cur, 52, dst); emit_row(dst, [c]); cur = dst
    if c == 15: gather_at(3)
flush_rows()
fstamp(1, 4)
A("s_mov_b32 m0, s50")
gather_at(1)
if OPT["gbn"]:
    A("s_cmp_lt_u32 s3, 4\ns_cbranch_scc1 L_ngb")
    gather(1, 0, OPT["gbn"])
    A.label("L_ngb")
cmul(56, 50, 50, 56)
emit_row(48, [0])
cur = 48
rows0 = {1: [1], 2: [2], 3: [3], 4: [4, 8], 5: [5], 6: [6], 7: [7], 8: [12]}
for p in range(1, 9):
    dst = 64 + 2 * (p % 2)
    cmul(dst, cur, 50, dst); emit_row(dst, rows0[p]); cur = dst
for dst, src, w, rows in [(68, 48, 54, [9]), (70, 68, 56, [10]), (68, 70, 56, [11, 13]), (70, 68, 56, [14]), (72, 70, 56, [15]),
                          (70, 68, 54, [16]), (74, 72, 54, [17]), (68, 70, 54, [20]), (72, 74, 54, [21]),
                          (74, 72, 54, [18]), (72, 74, 54, [19]), (74, 72, 54, [22]), (72, 74, 54, [23])]:
    cmul(dst, src, w, dst); emit_row(dst, rows)
flush_rows()
fstamp(1, 5)
gather_at(4)
A("s_cmp_ge_u32 s3, 4\ns_cbranch_scc1 L_helper")

q = LdsQ()
A(f"""
v_and_b32 v2, 31, v1
v_lshrrev_b32 v3, 5, v1
v_mul_u32_u24 v5, {TROW}, v2
v_subrev_u32 v6, {16*TROW}, v5
v_cmp_le_u32 vcc, 24, v2
s_lshl_b32 s5, s45, 9
v_lshl_add_u32 v7, v3, 4, s5
v_cndmask_b32 v6, v5, v6, vcc
v_add_u32 v5, v5, v7
v_add_u32 v6, v6, v7
v_add_u32 v5, {TBY}, v5
s_waitcnt lgkmcnt(0)
s_barrier
""")
stamp(4); fstamp(1, 6); fstamp(2, 1)
NB = 6
def kg_issue(s):
    b = 156 + 8 * (s % NB)
    A(f"ds_read_b128 {vr(b,4)}, v6 offset:{32*s}"); q.issue(("ka", s))
    A(f"ds_read_b128 {vr(b+4,4)}, v5 offset:{32*s}"); q.issue(("kb", s))
for s in range(NB): kg_issue(s)
filler = f"""
s_lshl_b32 s6, s45, 4
s_lshr_b64 s[60:61], s[60:61], s6
s_lshl_b32 s60, s60, 16
s_mul_i32 s52, s45, {KSTR}
s_add_u32 s52, s52, {KB}
v_mul_u32_u24 v208, 80, v2
v_lshl_add_u32 v208, v3, 5, v208
v_add_u32 v208, s52, v208
v_add_u32 v207, 2560, v208
v_lshl_add_u32 v206, v3, 4, v208
v_add_u32 v205, 2560, v206
v_lshlrev_b32 v209, 2, v2
v_lshl_add_u32 v209, v3, 7, v209
v_add_u32 v209, s52, v209
v_lshlrev_b32 v210, 1, v2
v_lshl_add_u32 v210, v3, 7, v210
v_add_u32 v210, s52, v210
v_mov_b32 v211, s52
v_mov_b32 v45, s60
v_cmp_eq_u32 vcc, 0, v1
v_and_b32 v232, 15, v1
v_lshrrev_b32 v233, 4, v1
v_cndmask_b32 v45, 0, v45, vcc
v_lshlrev_b32 v234, 3, v233
v_sub_u32 v234, v232, v234
v_add_u32 v240, 25, v234
v_add_u32 v234, 29, v234
v_lshrrev_b32 v241, 3, v234
v_lshl_add_u32 v234, v234, 3, s52
v_lshl_add_u32 v234, v241, 4, v234
v_lshrrev_b32 v241, 3, v240
v_lshl_add_u32 v240, v240, 3, s52
v_lshl_add_u32 v240, v241, 4, v240
v_lshlrev_b32 v235, 2, v233
v_sub_u32 v235, v232, v235
v_add_u32 v235, 12, v235
v_lshl_add_u32 v236, v235, 2, s52
v_lshl_add_u32 v235, v235, 3, s52
v_add_u32 v236, {T3_O}, v236
v_lshlrev_b32 v{vUB}, 5, v232
v_lshl_add_u32 v{vUB}, v233, 4, v{vUB}
v_add_u32 v{vUB}, s53, v{vUB}
v_lshrrev_b32 v{vT0}, 1, v232
v_add_u32 v{vT0}, v{vT0}, v233
v_and_b32 v{vT0}, 3, v{vT0}
v_and_b32 v{vT1}, 7, v232
v_lshlrev_b32 v{vT1}, 6, v{vT1}
v_lshl_add_u32 v{vT1}, v{vT0}, 4, v{vT1}
v_lshrrev_b32 v{vT0}, 3, v232
v_mul_u32_u24 v{vT0}, {TROW}, v{vT0}
v_add3_u32 v{vYW}, v{vT0}, v{vT1}, s5
""".strip().split("\n")
for i in range(4): filler.append(f"v_and_b32 v{KS+i}, v{KS+i}, v{BOX(0)+i}")
for r in [KS + i for i in range(4)] + [MK3 + i for i in range(4)]:
    filler.append(f"v_pk_lshlrev_b16 v{r}, 2, v{r} op_sel_hi:[0,1]")
    filler.append(f"v_pk_ashrrev_i16 v{r}, 15, v{r} op_sel_hi:[0,1]")
for _ in range(15): A(filler.pop(0))
for s in range(16):
    q.wait(("kb", s))
    b = 156 + 8 * (s % NB)
    A(f"v_mfma_f32_32x32x16_bf16 v[140:155], {vr(b,4)}, {vr(b+4,4)}, {'0' if s == 0 else 'v[140:155]'}")
    if s + NB < 16: kg_issue(s + NB)
    for _ in range(3 if s < 15 else 12):
        if filler: A(filler.pop(0))
        elif s == 15: A.nop(1)
while filler: A(filler.pop(0))
fstamp(2, 2)
K = lambda i: f"v{140+i}"
A(f"""
v_add_f32 {K(0)}, {K(0)}, v45
v_cvt_pk_bf16_f32 v215, {K(2)}, {K(1)}
v_cvt_pk_bf16_f32 v212, {K(3)}, {K(2)}
v_cvt_pk_bf16_f32 v214, {K(4)}, {K(3)}
v_cvt_pk_bf16_f32 v213, {K(1)}, {K(0)}
v_cvt_pk_bf16_f32 v217, {K(5)}, {K(5)}
v_cvt_pk_bf16_f32 v219, {K(6)}, {K(5)}
v_cvt_pk_bf16_f32 v216, {K(7)}, {K(6)}
v_cvt_pk_bf16_f32 v218, {K(7)}, {K(7)}
v_cvt_pk_bf16_f32 v222, {K(0)}, 0
v_cvt_pk_bf16_f32 v220, {K(8)}, {K(9)}
v_cvt_pk_bf16_f32 v221, {K(10)}, {K(11)}
v_cvt_pk_bf16_f32 v223, {K(9)}, {K(9)}
ds_write_b128 v208, v[212:215] offset:160
ds_write2_b32 v206, v213, v215 offset0:32 offset1:34
ds_write2_b32 v208, v212, v214 offset0:45 offset1:47
ds_write_b128 v207, v[216:219] offset:160
ds_write2_b32 v205, v217, v219 offset0:32 offset1:34
ds_write2_b32 v207, v216, v218 offset0:45 offset1:47
s_mov_b64 exec, 1
ds_write2_b32 v211, v222, v222 offset0:{UBY(13)//4} offset1:{UBY(15)//4+1}
s_mov_b64 exec, -1
ds_write_b32 v209, v220 offset:{T2_O+128}
ds_write_b16 v210, v221 offset:{T3_O+64}
ds_write_b16_d16_hi v210, v221 offset:{T3_O+64+64}
""")
fstamp(2, 3)
order = [16, 0, 8] + [x for i in range(1, 8) for x in (i, 8 + i)]
for m in order:
    A(f"ds_read_b64 {vr(KD(m),2)}, v234 offset:{320*m}")
    A(f"ds_read_b64 {vr(KD(m)+2,2)}, v240 offset:{320*m}")
for d in (2, 3, 4):
    for hh in (0, 1):
        o = 16 * d - 28 - 2 * hh
        A(f"ds_read_b64 {vr(T2(d,hh),2)}, v235 offset:{T2_O+8*o}")
        A(f"ds_read_b64 {vr(T2(d,hh)+2,2)}, v235 offset:{T2_O+8*(o-1)}")
for d in (4, 5, 6, 7):
    o = 16 * d - 60
    A(f"ds_read2_b32 {vr(T3(d),2)}, v236 offset0:{o} offset1:{o-1}")
    A(f"ds_read2_b32 {vr(T3(d)+2,2)}, v236 offset0:{o-2} offset1:{o-3}")
A("v_readlane_b32 s6, v218, 63\nv_readlane_b32 s7, v223, 63\ns_waitcnt lgkmcnt(15)")
for i in range(4): A(f"v_and_or_b32 v{KD(16)+i}, v{MK3+i}, s6, v{KD(16)+i}")
for i in range(4): A(f"v_and_b32 v{KS+i}, s7, v{KS+i}")
stamp(5); fstamp(2, 4)
if OPT['fine'] == 2: A('s_waitcnt lgkmcnt(0)')
fstamp(2, 5)
def wait_flag(addr, off, val, nm, tmp):
    l = A.newlabel(nm); lo = A.newlabel(nm + "o")
    A(f"s_mov_b32 s54, {SPIN_MAX}")
    A.label(l)
    A(f"ds_read_b32 v{tmp}, v{addr} offset:{off}")
    A("s_waitcnt lgkmcnt(0)")
    A(f"v_readfirstlane_b32 s5, v{tmp}")
    A(f"s_sub_u32 s54, s54, 1\ns_cbranch_scc1 {lo}")
    A(f"s_cmp_lt_u32 s5, {val}\ns_cbranch_scc1 {l}")
    A.label(lo)
wait_flag(vFL, 0, 4, "u0", vT2); q.known_all()
stamp(6)
loads = []
for j in range(8):
    loads.append(("B", 8 * j))
    if j <= 5: loads.append(("W", j))
    for i in range(1, 8): loads.append(("B", 8 * j - i))
slot = {}
ring = 0
for k in loads:
    if k[0] == "B": slot[k] = BR(ring % 8); ring += 1
    else: slot[k] = W1R
touched = set()
prog = []
def MF(d, a, b, c, need=None):
    prog.append(dict(text=f"v_mfma_f32_16x16x32_bf16 {vr(d,4)}, {vr(a,4)}, {vr(b,4)}, {c}", need=need, valu=[], ds=[]))
def mf(j, a, b, need=None):
    c = vr(ACC(j), 4) if j in touched else "0"; touched.add(j)
    MF(ACC(j), a, b, c, need)
ydone = {}
for j in range(8):
    k0 = ("B", 8 * j); b0 = slot[k0]
    cv = []
    if j <= 5:
        for i, bx in ((0, 0), (1, 1), (2, 2)) + (((4, 3),) if j <= 3 else ()):
            MF(BA(i), b0, BOX(bx), "0", k0)
        for i, bx in ((3, 1),) + (((5, 4),) if j <= 3 else ()):
            MF(BA(i), W1R, BOX(bx), "0", ("W", j))
        for r in range(4): cv.append(f"v_cvt_pk_bf16_f32 v{SG(r//2)+2*(r%2)}, v{BA(0)+r}, v{BA(1)+r}")
        for r in range(4): cv.append(f"v_cvt_pk_bf16_f32 v{SG(r//2)+2*(r%2)+1}, v{BA(2)+r}, v{BA(3)+r}")
        if j <= 3:
            for r in range(4): cv.append(f"v_cvt_pk_bf16_f32 v{SG(2)+r}, v{BA(4)+r}, v{BA(5)+r}")
    mf(j, KD(0), b0, k0)
    if j + 1 <= 7: mf(j + 1, KD(8), b0)
    if j + 2 <= 7: mf(j + 2, KD(16), b0)
    if j + 4 <= 7: mf(j + 4, KS, b0)
    for i in range(1, 8):
        k = ("B", 8 * j - i)
        mf(j, KD(i), slot[k], k)
        if i == 7: ydone[j] = len(prog) - 1
        if i >= 2 and cv: prog[-1]["valu"].append(cv.pop(0))
        if j + 1 <= 7: mf(j + 1, KD(8 + i), slot[k])
        if i >= 2 and cv: prog[-1]["valu"].append(cv.pop(0))
    assert not cv
    if j <= 5:
        for d in (2, 3, 4):
            if j + d <= 7: mf(j + d, SG(0), T2(d, 0)); mf(j + d, SG(1), T2(d, 1))
        if j <= 3:
            for d in (4, 5, 6, 7):
                if j + d <= 7: mf(j + d, SG(2), T3(d))
AHEAD = 5
first_use = {}
for i, e in enumerate(prog):
    if e["need"] and e["need"] not in first_use: first_use[e["need"]] = i
def ld_text(k):
    off = 480 + 64 * k[1] if k[0] == "B" else 464 + 512 * k[1]
    return f"ds_read_b128 {vr(slot[k],4)}, v{vUB} offset:{off}"
for n, k in enumerate(loads):
    if n <= AHEAD: continue
    prog[first_use[loads[n - AHEAD - 1]]]["ds"].append(("ld", k))
for j in range(7): prog[ydone[j] + 8]["ds"].append(("y", j)) if ydone[j] + 8 < len(prog) else None
fl_pos = first_use[("B", 24)]
prog[fl_pos]["ds"].append(("flag",))
def ywrite(j):
    A(f"ds_write_b128 v{vYW}, {vr(ACC(j),4)} offset:{2*TROW*j}"); q.issue("yw")
    A("s_mov_b64 exec, 1")
    A(f"ds_add_u32 v{vFL}, v{vONE} offset:{32+4*j}"); q.issue("yf")
    A("s_mov_b64 exec, -1")
for k in loads[:AHEAD + 1]: A(ld_text(k)); q.issue(k)
for i, e in enumerate(prog):
    if e["need"] and e["need"][0] == "B" and e["need"][1] % 8 == 0 and first_use[e["need"]] == i and e["need"][1] < 56: fstamp(3, 1 + e["need"][1] // 8)
    if e["need"]: q.wait(e["need"])
    A(e["text"])
    for d in e["ds"]:
        if d[0] == "flag":
            A(f"ds_read_b32 v{vT2}, v{vFL} offset:4"); q.issue("flag")
        elif d[0] == "ld":
            if d[1] == ("B", 32):
                q.wait("flag")
                lo = A.newlabel("u1ok")
                A(f"v_readfirstlane_b32 s5, v{vT2}\ns_cmp_ge_u32 s5, 4\ns_cbranch_scc1 {lo}")
                wait_flag(vFL, 4, 4, "u1", vT2)
                A.label(lo)
            A(ld_text(d[1])); q.issue(d[1])
        else: ywrite(d[1])
    for v in e["valu"]: A(v)
assert ydone[6] + 8 < len(prog)
A.nop(8); ywrite(7)
stamp(7)
finish(8, [(4, 4), (5, 5), (6, 6), (7, 7)])

A.label("L_helper")
XF = [112, 144]; GG = [128, 160]; XR = [96, 104]; ST = [8, 16]; UU = [24, 32]
A(f"""
s_lshl_b32 s5, s45, 11
s_add_u32 s5, s5, {G1_OFF}
v_lshl_add_u32 v92, v1, 5, s5
v_add_u32 v93, 8192, v92
""")
G1A = "global_load_dwordx4 v[8:11], v92, s[42:43] sc1\nglobal_load_dwordx4 v[12:15], v92, s[42:43] offset:16 sc1"
if OPT["gb1"]: A(G1A)
A("s_waitcnt lgkmcnt(0)\ns_barrier")
stamp(4)
gather(0, OPT["gan"], 4)
if OPT["gb1"]:
    assert OPT["gan"] == 4 and OPT["gbn"] == 0
    gather(1, 0, OPT["gb1"])
else: A(G1A)
A(f"""
s_lshl_b32 s5, s45, 9
s_add_u32 s5, s5, {UB+512}
v_lshl_add_u32 v91, v1, 3, s5
v_lshrrev_b32 v2, 3, v1
v_add_u32 v2, v2, v1
v_and_b32 v2, 3, v2
v_and_b32 v3, 28, v1
v_add_u32 v2, v2, v3
v_lshlrev_b32 v2, 4, v2
v_lshrrev_b32 v3, 5, v1
v_mul_u32_u24 v3, {TROW}, v3
s_mul_i32 s5, s45, {2*TROW}
v_add3_u32 v90, v2, v3, s5
s_lshl_b32 s5, s45, 2
v_add_u32 v89, s5, v{vFL}
v_and_b32 v88, 7, v1
v_lshlrev_b32 v88, 3, v88
v_add_u32 v88, {SEL_OFF}, v88
""")
def unpack_x(t):
    for r in range(4):
        for hw in range(2):
            src = XR[t] + 2 * r + hw
            A(f"v_lshlrev_b32 v{XF[t]+4*(2*hw)+r}, 16, v{src}")
            A(f"v_and_b32 v{XF[t]+4*(2*hw+1)+r}, 0xffff0000, v{src}")
def poll4(s, av, first_wait):
    l = A.newlabel("g"); lo = A.newlabel("go")
    A(f"s_mov_b32 s54, {SPIN_MAX}")
    A(f"s_waitcnt vmcnt({first_wait})")
    A.label(l)
    A(f"""
v_xor_b32 v2, s4, v{s+1}
v_xor_b32 v3, s4, v{s+3}
v_xor_b32 v5, s4, v{s+5}
v_xor_b32 v6, s4, v{s+7}
v_or3_b32 v2, v2, v3, v5
v_or_b32 v2, v2, v6
v_cmp_ne_u32 vcc, 0, v2
s_cbranch_vccz {lo}
s_sub_u32 s54, s54, 1
s_cbranch_scc1 {lo}
global_load_dwordx4 {vr(s,4)}, v{av}, s[42:43] sc1
global_load_dwordx4 {vr(s+4,4)}, v{av}, s[42:43] offset:16 sc1
s_waitcnt vmcnt(0)
s_branch {l}
""")
    A.label(lo)
def normalize(t):
    s = ST[t]
    for r in range(4): A(f"v_and_b32 v{180+r}, 0xffff0000, v{s+2*r}")
    for r in range(4): A(f"v_rcp_f32 v{180+r}, v{180+r}")
    for r in range(4): A(f"v_lshlrev_b32 v{176+r}, 16, v{s+2*r}")
    for ch in range(4):
        T = 184
        for r in range(4): A(f"v_sub_f32 v{T+r}, v{XF[t]+4*ch+r}, v{176+r}")
        for p in range(2): A(f"v_cvt_pk_bf16_f32 v{T+2*p+1}, v{T+2*p}, v{T+2*p+1}")
        for p in range(2):
            A(f"v_lshlrev_b32 v{T+2*p}, 16, v{T+2*p+1}")
            A(f"v_and_b32 v{T+2*p+1}, 0xffff0000, v{T+2*p+1}")
        for r in range(4): A(f"v_mul_f32 v{T+r}, v{T+r}, v{180+r}")
        for p in range(2): A(f"v_cvt_pk_bf16_f32 v{UU[t]+2*ch+p}, v{T+2*p}, v{T+2*p+1}")
    for ch in range(4): A(f"ds_write_b64 v91, {vr(UU[t]+2*ch,2)} offset:{USTR*ch+2048*t}")
    A("s_mov_b64 exec, 1")
    A(f"ds_add_u32 v{vFL}, v{vONE} offset:{4*t}")
    A("s_mov_b64 exec, -1")
def precompute(t):
    for ch in range(4):
        N = GG[t] + 4 * ch; E = 188
        for p in range(2):
            A(f"v_lshlrev_b32 v{N+2*p}, 16, v{UU[t]+2*ch+p}")
            A(f"v_and_b32 v{N+2*p+1}, 0xffff0000, v{UU[t]+2*ch+p}")
        for i in range(4): A(f"v_mul_f32 v{E+i}, {NLOG2E:#x}, v{N+i}")
        for i in range(4): A(f"v_exp_f32 v{E+i}, v{E+i}")
        for i in range(4): A(f"v_add_f32 v{E+i}, 1.0, v{E+i}")
        for i in range(4): A(f"v_rcp_f32 v{E+i}, v{E+i}")
        for i in range(4): A(f"v_mul_f32 v{N+i}, v{N+i}, v{E+i}")
def epilogue(t, mid=None):
    wait_flag(89, 32 + 16 * t, 4, "y", 2)
    if mid: mid()
    for ch in range(4): A(f"ds_read_b128 {vr(200+4*ch,4)}, v90 offset:{512*ch+8*TROW*t}")
    for ch in range(4):
        A(f"s_waitcnt lgkmcnt({3-ch})")
        for r in range(4): A(f"v_fma_f32 v{200+4*ch+r}, v{200+4*ch+r}, v{GG[t]+4*ch+r}, v{XF[t]+4*ch+r}")
    for r in range(4):
        A(f"v_cvt_pk_bf16_f32 v{216+2*r+8*t}, v{200+r}, v{204+r}")
        A(f"v_cvt_pk_bf16_f32 v{217+2*r+8*t}, v{208+r}, v{212+r}")
        A(f"global_store_dwordx2 v{94+t}, {vr(216+2*r+8*t,2)}, s[40:41] offset:{1280*r}")
A(f"s_waitcnt vmcnt({2+OPT['gbn']+OPT['gb1']})")
unpack_x(0)
poll4(ST[0], 92, OPT["gb1"])
stamp(5)
gather(1, OPT["gbn"] + OPT["gb1"], 4)
A("global_load_dwordx4 v[16:19], v93, s[42:43] sc1\nglobal_load_dwordx4 v[20:23], v93, s[42:43] offset:16 sc1")
normalize(0)
stamp(6)
precompute(0)
A("s_waitcnt vmcnt(2)")
unpack_x(1)
poll4(ST[1], 93, 0)
normalize(1)
stamp(7)
epilogue(0)
stamp(8)
A("global_load_dwordx2 v[40:41], v88, s[42:43] sc1")
precompute(1)
lS = A.newlabel("sel"); lSo = A.newlabel("selo")
A(f"""
s_mul_i32 s5, s44, {PART_STRIDE}
s_add_u32 s5, s5, {PART_OFF}
v_lshl_add_u32 v44, v1, 4, s5
v_add_u32 v45, 4096, v44
s_and_b32 s5, s4, 0xff
v_mov_b32 v48, s5
v_mov_b32 v76, s5
s_bfe_u32 s5, s4, 0x80008
v_mov_b32 v49, s5
v_mov_b32 v77, s5
s_bfe_u32 s5, s4, 0x80010
v_mov_b32 v50, s5
v_mov_b32 v78, s5
s_lshr_b32 s5, s4, 24
v_mov_b32 v51, s5
v_mov_b32 v79, s5
s_mov_b32 s54, {SPIN_MAX}
s_waitcnt vmcnt(0)
{lS}:
v_cmp_ne_u32 vcc, s4, v41
s_cbranch_vccz {lSo}
s_sub_u32 s54, s54, 1
s_cbranch_scc1 {lSo}
global_load_dwordx2 v[40:41], v88, s[42:43] sc1
s_waitcnt vmcnt(0)
s_branch {lS}
{lSo}:
v_and_b32 v42, 0x7ff, v40
v_sub_u32 v42, 2047, v42
v_bfe_u32 v43, v42, 8, 2
v_cmp_eq_u32 s[56:57], s45, v43
s_lshl_b32 s5, s44, 3
v_mul_u32_u24 v46, 1280, v42
v_add_u32 v46, s5, v46
s_cmp_eq_u64 s[56:57], 0
s_cbranch_scc1 L_noown
s_and_b32 s59, s57, 0xffff
s_mov_b32 s58, s56
global_load_dwordx2 v[80:81], v46, s[16:17]
v_lshlrev_b32 v2, 1, v42
v_add_u32 v2, {UB+512}, v2
ds_read_u16 v96, v2
ds_read_u16 v97, v2 offset:{USTR}
ds_read_u16 v98, v2 offset:{2*USTR}
ds_read_u16 v99, v2 offset:{3*USTR}
v_lshrrev_b32 v82, 7, v42
v_mul_u32_u24 v82, {TROW}, v82
v_bfe_u32 v5, v42, 4, 3
v_lshl_add_u32 v82, v5, 6, v82
v_lshrrev_b32 v5, 2, v42
v_lshrrev_b32 v6, 5, v42
v_add_u32 v5, v5, v6
v_and_b32 v5, 3, v5
v_lshl_add_u32 v82, v5, 4, v82
v_and_b32 v5, 3, v42
v_lshl_add_u32 v82, v5, 2, v82
v_not_b32 v5, v40
v_ashrrev_i32 v5, 31, v5
v_or_b32 v5, 0x80000000, v5
v_xor_b32 v5, v40, v5
v_and_b32 v5, 0xffff0000, v5
v_mul_f32 v5, {NLOG2E:#x}, v5
v_exp_f32 v5, v5
s_waitcnt lgkmcnt(0)
v_add_f32 v5, 1.0, v5
v_rcp_f32 v47, v5
v_lshlrev_b32 v96, 16, v96
v_lshlrev_b32 v97, 16, v97
v_lshlrev_b32 v98, 16, v98
v_lshlrev_b32 v99, 16, v99
L_noown:
""")
def part_loads():
    A("s_mov_b64 exec, s[56:57]")
    for i in range(6):
        A(f"global_load_dwordx4 {vr(52+4*i,4)}, v{44 + i//4}, s[42:43] offset:{1024*(i%4)} sc1")
    A("s_mov_b64 exec, s[58:59]")
    A(f"global_load_dwordx4 v[76:79], v45, s[42:43] offset:2048 sc1")
def mid():
    A("s_cmp_eq_u64 s[56:57], 0\ns_cbranch_scc1 L_noown2")
    part_loads()
    A("s_mov_b64 exec, -1\nL_noown2:")
epilogue(1, mid)
stamp(9)
A(f"""
s_cmp_eq_u64 s[56:57], 0
s_cbranch_scc1 L_hdone
ds_read_b32 v100, v82
ds_read_b32 v101, v82 offset:512
ds_read_b32 v102, v82 offset:1024
ds_read_b32 v103, v82 offset:1536
s_mov_b64 exec, s[56:57]
s_mov_b32 s54, {SPIN_MAX}
s_waitcnt vmcnt(4)
v_lshlrev_b32 v104, 16, v80
v_and_b32 v105, 0xffff0000, v80
v_lshlrev_b32 v106, 16, v81
v_and_b32 v107, 0xffff0000, v81
""")
lP = A.newlabel("par"); lPo = A.newlabel("paro")
A.label(lP)
for i in range(7):
    for k in range(4): A(f"v_xor_b32 v{112+4*i+k}, v{52+4*i+k}, v{48+k}")
A("v_or3_b32 v2, v112, v113, v114")
for i in range(3, 27, 2): A(f"v_or3_b32 v2, v2, v{112+i}, v{113+i}")
A("v_or_b32 v2, v2, v139\nv_and_b32 v2, 0xff, v2\nv_cmp_ne_u32 vcc, 0, v2")
A(f"s_cbranch_vccz {lPo}\ns_sub_u32 s54, s54, 1\ns_cbranch_scc1 {lPo}")
part_loads()
A(f"s_mov_b64 exec, s[56:57]\ns_waitcnt vmcnt(0)\ns_branch {lP}")
A.label(lPo)
stamp(10)
for i in range(1, 7):
    for k in range(4): A(f"v_add_f32 v{112+k}, v{112+k}, v{112+4*i+k}")
A("s_mov_b64 exec, -1")
for k in range(4): A(f"v_add_f32_dpp v{112+k}, v{112+k}, v{112+k} row_ror:8 row_mask:0xf bank_mask:0xf")
for k in range(4): A(f"v_mov_b32 v{116+k}, v{112+k}")
for k in range(4): A(f"v_permlane16_swap_b32 v{112+k}, v{116+k}")
for k in range(4): A(f"v_add_f32 v{112+k}, v{112+k}, v{116+k}")
for k in range(4): A(f"v_mov_b32 v{116+k}, v{112+k}")
for k in range(4): A(f"v_permlane32_swap_b32 v{112+k}, v{116+k}")
for k in range(4): A(f"v_add_f32 v{112+k}, v{112+k}, v{116+k}")
A("s_waitcnt lgkmcnt(0)")
for k in range(4): A(f"v_fma_f32 v{112+k}, v{112+k}, v47, v{96+k}")
for k in range(4): A(f"v_mul_f32 v{116+k}, {NLOG2E:#x}, v{112+k}")
for k in range(4): A(f"v_exp_f32 v{116+k}, v{116+k}")
for k in range(4): A(f"v_mul_f32 v{112+k}, v{112+k}, v{100+k}")
for k in range(4): A(f"v_add_f32 v{116+k}, 1.0, v{116+k}")
for k in range(4): A(f"v_rcp_f32 v{116+k}, v{116+k}")
A("s_and_b32 exec_lo, s56, 0xff\ns_mov_b32 exec_hi, 0")
for k in range(4): A(f"v_fma_f32 v{112+k}, v{112+k}, v{116+k}, v{104+k}")
if OPT["inj"]:
    import struct
    A(f"s_cmp_lg_u32 s44, 0\ns_cbranch_scc1 L_noinj\nv_add_f32 v112, {struct.unpack('<I', struct.pack('<f', OPT['inj'] / 1000.0))[0]:#x}, v112\nL_noinj:")
A("v_cvt_pk_bf16_f32 v112, v112, v113\nv_cvt_pk_bf16_f32 v113, v114, v115")
A("global_store_dwordx2 v46, v[112:113], s[40:41]")
A.label("L_hdone")
stamp(11)
if OPT["stamps"]:
    A("s_waitcnt vmcnt(0)")
    stamp(12)
finish(13, [(8, 9), (9, 12)])

A.label("L_notconv")
PAIRTAB = 0x77277170 if OPT["bal"] else 0x77777210
def pair_of(dst, ps):
    A(f"""
s_lshl_b32 s6, s9, 2
s_lshr_b32 s6, {PAIRTAB:#x}, s6
s_and_b32 s6, s6, 7
s_cmp_ge_u32 {ps}, 3
s_cselect_b32 s6, s6, s9
s_lshl_b32 {dst}, {ps}, 3
s_add_u32 {dst}, {dst}, s6
""")
A("s_sub_u32 s62, s8, 20")
A(f"""
v_lshlrev_b32 v7, 4, v0
v_add_u32 v7, {KB}, v7
ds_write_b128 v7, v[32:35]
ds_write_b128 v7, v[32:35] offset:8192
s_lshr_b32 s63, s62, 1
""")
if OPT["gul"]: gu_pf()
pair_of("s48", "s63")
A(f"""
s_lshl_b32 s48, s48, 1
s_and_b32 s5, s62, 1
s_add_u32 s48, s48, s5
s_mul_i32 s5, s49, {160*3456}
s_lshl_b32 s6, s48, 6
s_add_u32 s5, s5, s6
s_add_u32 s56, s56, s5
s_addc_u32 s57, s57, 0
s_mul_i32 s50, s3, 10240
s_mov_b32 m0, s50
v_lshrrev_b32 v5, 2, v1
v_mul_u32_u24 v5, 3456, v5
v_and_b32 v6, 3, v1
v_lshl_add_u32 v5, v6, 4, v5
""")
stats_pre()
stats(3)
A("s_waitcnt lgkmcnt(0)")
A("""
s_barrier
s_cmp_lt_u32 s48, 54
s_cbranch_scc1 L_moe
s_cmp_lt_u32 s62, 8
s_cbranch_scc1 L_fin
s_sub_u32 s63, s62, 8
""")
pair_of("s5", "s63")
A(f"""
s_cmp_ge_u32 s5, 27
s_cbranch_scc1 L_fin
s_mul_i32 s5, s5, {64*1280}
s_add_u32 s5, s5, s50
v_lshl_add_u32 v5, v1, 7, s5
global_load_dword v251, v5, s[38:39]{NTW}
v_add_u32 v5, 8192, v5
s_mov_b64 exec, 0xffff
global_load_dword v251, v5, s[38:39]{NTW}
s_branch L_fin
L_moe:
""")
for i in range(10):
    A(f"global_load_lds_dwordx4 v5, s[56:57]{NTW}")
    if i < 9: A(f"s_add_u32 m0, m0, 1024\ns_add_u32 s56, s56, {16*3456}\ns_addc_u32 s57, s57, 0")
A(f"""
v_and_b32 v116, 15, v1
v_lshrrev_b32 v117, 4, v1
s_mul_i32 s5, s48, {32*1280}
s_lshl_b32 s6, s3, 8
s_add_u32 s5, s5, s6
v_mul_u32_u24 v34, {8*1280}, v117
v_lshl_add_u32 v34, v116, 4, v34
v_add_u32 v34, s5, v34
v_add_u32 v35, {4*1280}, v34
v_lshlrev_b32 v36, 5, v0
v_add_u32 v36, {G2_OFF}, v36
s_mov_b32 s60, 0x05040100
s_mov_b32 s61, 0x07060302
v_mov_b32 v112, 0x3f803f80
v_mov_b32 v113, 0x3f803f80
v_mov_b32 v114, 0x3f803f80
v_mov_b32 v115, 0x3f803f80
s_and_b32 s5, s3, 1
s_lshl_b32 s5, s5, 2
s_add_u32 s5, s5, s49
s_lshl_b32 s5, s5, 11
s_add_u32 s5, s5, {RED}
v_lshl_add_u32 v37, v1, 4, s5
v_lshrrev_b32 v38, 5, v0
v_lshlrev_b32 v38, 8, v38
v_and_b32 v39, 3, v1
v_lshl_add_u32 v38, v39, 2, v38
v_add_u32 v38, {RED}, v38
s_mov_b32 s62, 0x00ff00ff
s_mov_b32 s63, 0x00ff00ff
v_lshlrev_b32 v7, 9, v117
v_bfe_u32 v39, v1, 2, 2
v_lshl_add_u32 v7, v39, 6, v7
v_lshl_add_u32 v7, v6, 3, v7
v_add_u32 v7, s50, v7
global_load_dwordx4 v[8:11], v36, s[42:43] sc1
global_load_dwordx4 v[12:15], v36, s[42:43] offset:16 sc1
v_lshlrev_b32 v118, 4, v1
v_bfe_u32 v204, v0, 2, 3
v_lshlrev_b32 v205, 2, v204
v_lshlrev_b32 v204, 6, v204
v_bfe_u32 v39, v0, 5, 2
v_lshl_add_u32 v204, v39, 3, v204
v_and_b32 v39, 3, v0
v_lshl_add_u32 v204, v39, 1, v204
v_bfe_u32 v39, v0, 7, 1
v_lshl_add_u32 v204, v39, 5, v204
v_add_u32 v204, {HB}, v204
v_and_b32 v39, 7, v1
v_lshlrev_b32 v206, 6, v39
v_lshl_add_u32 v206, v117, 4, v206
v_add_u32 v206, {HB}, v206
v_mov_b32 v207, {ZBLK}
v_cndmask_b32 v208, v207, v206, s[62:63]
v_cndmask_b32 v207, v206, v207, s[62:63]
s_and_b32 s5, s4, 0xff
v_mov_b32 v212, s5
s_bfe_u32 s5, s4, 0x80008
v_mov_b32 v213, s5
s_bfe_u32 s5, s4, 0x80010
v_mov_b32 v214, s5
s_lshr_b32 s5, s4, 24
v_mov_b32 v215, s5
v_bfe_u32 v216, v1, 3, 1
v_lshl_add_u32 v216, v117, 3, v216
v_mul_u32_u24 v216, {PART_STRIDE}, v216
v_lshl_add_u32 v216, v39, 4, v216
s_mul_i32 s5, s3, {32*PART_STRIDE}
s_lshl_b32 s6, s48, 7
s_add_u32 s5, s5, s6
s_add_u32 s5, s5, {PART_OFF}
v_add_u32 v216, s5, v216
v_add_u32 v217, {2*PART_STRIDE}, v216
v_add_u32 v218, {4*PART_STRIDE}, v216
v_add_u32 v219, {6*PART_STRIDE}, v216
v_mul_u32_u24 v220, {XRS}, v116
v_lshl_add_u32 v220, v117, 4, v220
s_mul_i32 s5, s49, 320
s_add_u32 s5, s5, {XRB}
v_add_u32 v220, s5, v220
v_lshlrev_b32 v221, 2, v116
v_lshlrev_b32 v222, 4, v117
v_add_u32 v223, {HMAX}, v221
v_add_u32 v224, {HMAX}, v222
v_add_u32 v221, {LIST}, v221
v_add_u32 v222, {LIST}, v222
v_lshrrev_b32 v225, 5, v0
v_lshlrev_b32 v225, 2, v225
v_add_u32 v225, {HMAX}, v225
v_mov_b32 v19, {CNT}
s_mul_i32 s55, s3, {XRS}
s_add_u32 s55, s55, {XRB}
s_add_u32 s47, s3, 8
s_waitcnt vmcnt(2)
""")
for ks in range(5):
    for tl in range(2):
        for hf in range(2):
            A(f"ds_read_b64_tr_b16 {vr(120+20*tl+4*ks+2*hf,2)}, v7 offset:{2048*ks+256*hf+32*tl}")
for ks in range(5):
    A(f"s_waitcnt lgkmcnt({min(15,16-4*ks)})")
    A(f"v_mfma_f32_16x16x32_bf16 v[24:27], {vr(120+4*ks,4)}, v[112:115], {'0' if ks == 0 else 'v[24:27]'}")
    A(f"v_mfma_f32_16x16x32_bf16 v[28:31], {vr(140+4*ks,4)}, v[112:115], {'0' if ks == 0 else 'v[28:31]'}")
A("""
s_nop 7
ds_write_b128 v37, v[24:27]
ds_write_b128 v37, v[28:31] offset:1024
""")
stamp(4)
poll4(8, 36, 0)
stamp(5); fstamp(4, 1)
def rank16(key, lst, rk, t):
    prs = ["s[6:7]", "s[10:11]", "s[12:13]", "s[14:15]"]
    for i in range(4): A(f"v_cmp_gt_u32 {prs[i]}, v{lst+i}, v{key}")
    A(f"v_addc_co_u32_e64 v{rk}, vcc, 0, 0, {prs[0]}")
    for i in range(1, 4): A(f"v_addc_co_u32_e64 v{rk}, vcc, v{rk}, 0, {prs[i]}")
    A(f"v_mov_b32 v{t}, v{rk}\ns_nop 1\nv_permlane16_swap_b32 v{rk}, v{t}\nv_add_u32 v{rk}, v{rk}, v{t}")
    A(f"v_mov_b32 v{t}, v{rk}\ns_nop 1\nv_permlane32_swap_b32 v{rk}, v{t}\nv_add_u32 v{rk}, v{rk}, v{t}")
A("v_max3_u32 v16, v8, v10, v12\nv_max_u32 v16, v16, v14")
for mod in DPP6[:5]:
    A(f"s_nop 1\nv_max_u32_dpp v16, v16, v16 {mod.replace(' bound_ctrl:0','')}")
A("""
s_mov_b32 exec_lo, 0x80000000
s_mov_b32 exec_hi, 0x80000000
ds_write_b32 v225, v16
s_mov_b64 exec, -1
""")
A("s_cmp_ge_u32 s3, 5\ns_cbranch_scc1 L_nod")
for j in range(8):
    A(f"global_load_dwordx4 {vr(80+4*j,4)}, v{34 + j//4}, s[38:39] offset:{1280*(j%4)}{NTW}")
A.label("L_nod")
fstamp(4, 2)
A("""
s_waitcnt lgkmcnt(0)
s_barrier
""")
fstamp(4, 3)
A("""
ds_read_b32 v17, v223
ds_read_b128 v[20:23], v224
ds_read2st64_b32 v[196:197], v38 offset0:0 offset1:8
ds_read2st64_b32 v[198:199], v38 offset0:16 offset1:24
ds_read2st64_b32 v[200:201], v38 offset0:32 offset1:40
ds_read2st64_b32 v[202:203], v38 offset0:48 offset1:56
s_waitcnt lgkmcnt(4)
""")
rank16(17, 20, 18, 24)
A(f"""
v_cmp_eq_u32 vcc, 7, v18
s_ff1_i32_b64 s5, vcc
v_readlane_b32 s5, v17, s5
s_nop 1
v_cmp_le_u32 s[6:7], s5, v8
v_cmp_le_u32 s[10:11], s5, v10
v_cmp_le_u32 s[12:13], s5, v12
v_cmp_le_u32 s[14:15], s5, v14
v_addc_co_u32_e64 v21, vcc, 0, 0, s[6:7]
s_or_b64 s[50:51], s[6:7], s[10:11]
v_addc_co_u32_e64 v22, vcc, v21, 0, s[10:11]
s_or_b64 s[52:53], s[12:13], s[14:15]
v_addc_co_u32_e64 v23, vcc, v22, 0, s[12:13]
s_or_b64 exec, s[50:51], s[52:53]
v_addc_co_u32_e64 v24, vcc, v23, 0, s[14:15]
{FS(4,4)}
ds_add_rtn_u32 v25, v19, v24
s_waitcnt lgkmcnt(0)
v_lshl_add_u32 v25, v25, 2, v19
v_lshl_add_u32 v21, v21, 2, v25
v_lshl_add_u32 v22, v22, 2, v25
v_lshl_add_u32 v23, v23, 2, v25
s_mov_b64 exec, s[6:7]
ds_write_b32 v25, v8 offset:{LIST-CNT}
s_mov_b64 exec, s[10:11]
ds_write_b32 v21, v10 offset:{LIST-CNT}
s_mov_b64 exec, s[12:13]
ds_write_b32 v22, v12 offset:{LIST-CNT}
s_mov_b64 exec, s[14:15]
ds_write_b32 v23, v14 offset:{LIST-CNT}
s_mov_b64 exec, -1
s_mov_b32 m0, s55
{FS(4,5)}
s_waitcnt lgkmcnt(0)
s_barrier
{FS(4,6)}
ds_read_b32 v28, v19
ds_read_b32 v17, v221
ds_read_b128 v[20:23], v222
s_waitcnt lgkmcnt(1)
v_readfirstlane_b32 s51, v28
v_readlane_b32 s52, v17, s3
v_readlane_b32 s53, v17, s47
s_cmp_le_u32 s51, 16
s_cbranch_scc1 L_rk_done
""")
A(f"""
v_lshl_add_u32 v26, v1, 2, v19
v_mov_b32 v27, v1
s_lshl_b32 s5, s3, 6
s_add_u32 s58, s5, {SELW}
s_mov_b32 s50, 0
L_rk_outer:
ds_read_b32 v29, v26 offset:{LIST-CNT}
v_mov_b32 v30, 0
v_mov_b32 v31, v19
s_mov_b32 s52, 0
L_rk_inner:
ds_read_b128 v[8:11], v31 offset:{LIST-CNT}
v_add_u32 v31, 16, v31
s_add_u32 s52, s52, 4
s_waitcnt lgkmcnt(0)
""")
prs = ["s[6:7]", "s[10:11]", "s[12:13]", "s[14:15]"]
for i in range(4): A(f"v_cmp_gt_u32 {prs[i]}, v{8+i}, v29")
for i in range(4): A(f"v_addc_co_u32_e64 v30, vcc, v30, 0, {prs[i]}")
A(f"""
s_cmp_lt_u32 s52, s51
s_cbranch_scc1 L_rk_inner
v_cmp_gt_u32 s[6:7], 8, v30
v_cmp_gt_u32 s[10:11], s51, v27
v_lshl_add_u32 v30, v30, 2, s58
s_and_b64 exec, s[6:7], s[10:11]
ds_write_b32 v30, v29
s_mov_b64 exec, -1
v_add_u32 v26, 256, v26
v_add_u32 v27, 64, v27
s_add_u32 s50, s50, 64
s_cmp_lt_u32 s50, s51
s_cbranch_scc1 L_rk_outer
v_lshl_add_u32 v26, v116, 2, s58
v_lshl_add_u32 v27, v117, 4, s58
ds_read_b32 v17, v26
ds_read_b128 v[20:23], v27
s_waitcnt lgkmcnt(0)
v_readlane_b32 s52, v17, s3
v_readlane_b32 s53, v17, s47
L_rk_done:
s_and_b32 s52, s52, 0x7ff
s_and_b32 s53, s53, 0x7ff
s_sub_u32 s52, 2047, s52
s_sub_u32 s53, 2047, s53
s_mul_i32 s52, s52, 1280
s_mul_i32 s53, s53, 1280
s_add_u32 s56, s16, s52
s_addc_u32 s57, s17, 0
s_add_u32 s58, s16, s53
s_addc_u32 s59, s17, 0
global_load_lds_dwordx4 v118, s[56:57]
global_load_lds_dword v4, s[56:57] offset:1024
s_add_u32 m0, m0, {8*XRS}
v_and_b32 v14, 0x7ff, v17
global_load_lds_dwordx4 v118, s[58:59]
global_load_lds_dword v4, s[58:59] offset:1024
v_sub_u32 v14, {2047 + G1_OFF//8}, v14
v_lshlrev_b32 v14, 3, v14
s_mov_b64 exec, 0xffff
global_load_dwordx2 v[32:33], v14, s[42:43] sc1
s_mov_b64 exec, -1
s_waitcnt lgkmcnt(0)
""")
stamp(6); fstamp(4, 7); fstamp(5, 1)
rank16(17, 20, 18, 24)
A(f"""
v_lshlrev_b32 v18, 2, v18
s_mov_b64 exec, 0xffff
ds_permute_b32 v26, v18, v116
ds_permute_b32 v12, v18, v17
s_mov_b64 exec, -1
v_add_f32 v196, v196, v197
v_add_f32 v198, v198, v199
v_add_f32 v200, v200, v201
v_add_f32 v202, v202, v203
v_add_f32 v196, v196, v198
v_add_f32 v200, v200, v202
s_waitcnt lgkmcnt(0)
ds_bpermute_b32 v27, v205, v26
s_waitcnt vmcnt(5)
""")
for qq in range(8):
    for i in range(4):
        A(f"v_perm_b32 v{160+4*qq+i}, v{80+4*(2*i+1)+qq//2}, v{80+4*(2*i)+qq//2}, {'s60' if qq % 2 == 0 else 's61'}")
lG = A.newlabel("g1s"); lGo = A.newlabel("g1so")
A(f"""
s_waitcnt lgkmcnt(0)
v_lshl_add_u32 v38, v27, 4, v38
v_lshlrev_b32 v27, 2, v27
s_mov_b32 s60, 0xffffff00
s_mov_b32 s54, {SPIN_MAX}
{FS(5,2)}
s_waitcnt vmcnt(1)
s_barrier
{FS(5,3)}
""")
for ks in range(5): A(f"ds_read_b128 {vr(40+4*ks,4)}, v220 offset:{64*ks}")
A(f"""
s_xor_b32 s5, s3, 7
s_or_b32 s5, s48, s5
s_cmp_lg_u32 s5, 0
s_cbranch_scc1 L_nosel
v_mov_b32 v13, s4
v_lshlrev_b32 v8, 3, v1
v_add_u32 v8, {SEL_OFF}, v8
v_mov_b32 v9, 0
s_mov_b64 exec, 0xff
global_store_dwordx2 v8, v[12:13], s[42:43] sc1
s_mov_b64 exec, 1
global_store_dword v9, v13, s[42:43] sc1
s_mov_b64 exec, -1
L_nosel:
""")
for ks in range(5):
    A(f"s_waitcnt lgkmcnt({4-ks})")
    A(f"v_mfma_f32_16x16x32_bf16 v[24:27], {vr(120+4*ks,4)}, {vr(40+4*ks,4)}, {'0' if ks == 0 else 'v[24:27]'}".replace("v[24:27]", "v[60:63]"))
    A(f"v_mfma_f32_16x16x32_bf16 v[28:31], {vr(140+4*ks,4)}, {vr(40+4*ks,4)}, {'0' if ks == 0 else 'v[28:31]'}".replace("v[28:31]", "v[64:67]"))
stamp(7); fstamp(5, 4)
A(f"""
s_cmp_ge_u32 s3, 4
s_cbranch_scc1 {lGo}
s_mov_b64 exec, 0xffff
s_waitcnt vmcnt(0)
{lG}:
v_cmp_ne_u32 vcc, s4, v33
s_cbranch_vccz {lGo}
s_sub_u32 s54, s54, 1
s_cbranch_scc1 {lGo}
global_load_dwordx2 v[32:33], v14, s[42:43] sc1
s_waitcnt vmcnt(0)
s_branch {lG}
{lGo}:
s_mov_b64 exec, -1
s_nop 4
ds_write_b128 v37, v[60:63]
ds_write_b128 v37, v[64:67] offset:1024
ds_bpermute_b32 v32, v27, v32
{FS(5,5)}
s_waitcnt lgkmcnt(0)
s_barrier
{FS(5,6)}
s_cmp_ge_u32 s3, 4
s_cbranch_scc1 L_nored
ds_read2st64_b32 v[8:9], v38 offset0:0 offset1:8
ds_read2st64_b32 v[10:11], v38 offset0:16 offset1:24
ds_read2st64_b32 v[12:13], v38 offset0:32 offset1:40
ds_read2st64_b32 v[14:15], v38 offset0:48 offset1:56
v_and_b32 v33, 0xffff0000, v32
v_lshlrev_b32 v32, 16, v32
v_rcp_f32 v33, v33
s_waitcnt lgkmcnt(2)
v_add_f32 v8, v8, v9
v_add_f32 v10, v10, v11
v_fma_f32 v8, -v32, v196, v8
v_add_f32 v8, v8, v10
v_mul_f32 v8, v8, v33
v_mul_f32 v9, {NLOG2E:#x}, v8
v_exp_f32 v9, v9
s_waitcnt lgkmcnt(0)
v_add_f32 v12, v12, v13
v_add_f32 v9, 1.0, v9
v_add_f32 v14, v14, v15
v_rcp_f32 v9, v9
v_fma_f32 v12, -v32, v200, v12
v_add_f32 v12, v12, v14
v_mul_f32 v8, v8, v33
v_mul_f32 v12, v12, v9
v_mul_f32 v8, v8, v12
v_cvt_pk_bf16_f32 v8, v8, v8
ds_write_b16 v204, v8
L_nored:
{FS(5,7)}
s_waitcnt lgkmcnt(0)
s_barrier
""")
stamp(8); fstamp(5, 8)
A(f"""
s_cmp_ge_u32 s3, 5
s_cbranch_scc1 L_fin
ds_read_b128 v[8:11], v208
ds_read_b128 v[12:15], v207
s_waitcnt lgkmcnt(1)
""")
for qq in range(4): A(f"v_mfma_f32_16x16x32_bf16 {vr(56+4*qq,4)}, {vr(160+4*qq,4)}, v[8:11], 0")
A("s_waitcnt lgkmcnt(0)")
for qq in range(4): A(f"v_mfma_f32_16x16x32_bf16 {vr(56+4*qq,4)}, {vr(176+4*qq,4)}, v[12:15], {vr(56+4*qq,4)}")
A.nop(5)
for r in range(4):
    for qq in range(4): A(f"v_bfi_b32 v{72+4*r+qq}, s60, v{56+4*qq+r}, v{212+qq}")
    A(f"global_store_dwordx4 v{216+r}, {vr(72+4*r,4)}, s[42:43] sc1")
stamp(9); fstamp(5, 9)
if OPT["stamps"]:
    A("s_waitcnt vmcnt(0)")
    stamp(10); fstamp(5, 10)
A.label("L_fin")
finish(11)
A.label("L_end")
A("s_endpgm")
A.label("L_code_end")
A(".fill 64, 4, 0xBF800000")

tail = f"""
.section .rodata,"a"
.p2align 6
.amdhsa_kernel {NAME}_kernel
  .amdhsa_next_free_vgpr 256
  .amdhsa_next_free_sgpr 96
  .amdhsa_accum_offset 256
  .amdhsa_group_segment_fixed_size 0
  .amdhsa_kernarg_size 120
  .amdhsa_user_sgpr_count 2
  .amdhsa_user_sgpr_kernarg_segment_ptr 1
  .amdhsa_system_sgpr_workgroup_id_x 1
.end_amdhsa_kernel
"""
probs = check_hazards(A.lines)
for p in probs: print("HAZARD", p, file=sys.stderr)
open(sys.argv[1], "w").write(head + A.text() + tail)
print("written", sys.argv[1], len(A.lines), "lines", file=sys.stderr)
```

```python
import sys
from asmlib import *
NAME = "recurrent_scan__ssm_conv_s4d__moe_arch_mod__prompt"
OPT = dict(stamps=0, ntw=1, ntx=0, ntr=0, ga=7, fine=0, sfirst=0, grp=1, bal=0, xb=4, gbn=0, gan=4, pfbar=1, gul=1, gb1=0, xall=0, inj=0)
for a in sys.argv[2:]:
    k, v = a.split("="); OPT[k] = int(v)

G1_OFF, G2_OFF, SEL_OFF, PART_OFF, PART_STRIDE = 0x1000, 0x5000, 0x9000, 0x10000, 7168
STAMP_OFF = 0x200000
TROW = 2064
TBX, TBY = 0, 24 * TROW
UB = TBY + 32 * TROW
USTR = 4608
BOXB = UB + 4 * USTR
KB = BOXB + 1024
PD_O, T2_O, T3_O = 0, 5600, 6112
KSTR = 6432
FLG = KB + 4 * KSTR
LDS_SIZE = FLG + 64
UBY = lambda e: 80 * (e >> 3) + 8 * (e & 7)
RED = 81920
XRB, XRS = RED + 16384, 1296
HB = XRB + 16 * XRS
HMAX = HB + 512
PRM = UB + 512
CNT, ZBLK, SELW, LIST = KB, KB + 64, KB + 128, KB + 1024
SPIN_MAX = 1 << 20

LOG2E = 0x3FB8AA3B
NLOG2E = LOG2E ^ 0x80000000
INV2PI = 0x3E22F983
A = Asm()
NTW = " nt" if OPT["ntw"] else ""
NTX = " nt" if OPT["ntx"] else ""
NTR = " nt" if OPT["ntr"] else ""
def fstamp(g, i):
    if OPT["fine"] == g: A(f"s_memtime s[{64+2*i}:{65+2*i}]")
def FS(g, i):
    return f"s_memtime s[{64+2*i}:{65+2*i}]" if OPT["fine"] == g else ""
def stamp(i):
    if OPT["fine"] and i not in (0, 13): return
    if OPT["stamps"] == 3: A(f"s_memtime s[{64+2*i}:{65+2*i}]")
    elif OPT["stamps"]: A(f"s_memrealtime s[{64+2*i}:{65+2*i}]")
def cstamp(i):
    if OPT["stamps"]: A(f"s_memtime s[{64+2*i}:{65+2*i}]")
def finish(n, dbgmap=None):
    if OPT["stamps"] == 2:
        if n == 13:
            l = A.newlabel("nd")
            stamp(13)
            A("s_load_dwordx2 s[6:7], s[0:1], 104")
            A(f"s_cmp_ge_u32 s2, 8\ns_cbranch_scc1 {l}\ns_cmp_lg_u32 s3, 7\ns_cbranch_scc1 {l}")
            A("s_waitcnt lgkmcnt(0)\ns_mov_b64 exec, 1\ns_lshl_b32 s5, s2, 3\nv_mov_b32 v2, s5")
            A("s_sub_u32 s5, s68, s64\ns_lshl_b32 s5, s5, 16\ns_and_b32 s10, s64, 0xffff\ns_or_b32 s5, s5, s10\nv_mov_b32 v4, s5")
            A("s_sub_u32 s5, s90, s64\ns_lshl_b32 s5, s5, 16\ns_sub_u32 s10, s72, s64\ns_or_b32 s5, s5, s10\nv_mov_b32 v5, s5")
            A("global_store_dwordx2 v2, v[4:5], s[6:7]")
            A.label(l)
    elif OPT["stamps"]:
        stamp(13); cstamp(15)
        A("s_waitcnt lgkmcnt(0)")
        A("s_mov_b64 exec, 1")
        A(f"s_lshl_b32 s5, s2, 3\ns_add_u32 s5, s5, s3\ns_lshl_b32 s5, s5, 6\ns_add_u32 s5, s5, {STAMP_OFF}")
        A("v_mov_b32 v2, s5")
        for i in list(range(n)) + [13, 14, 15]:
            A(f"v_mov_b32 v3, s{64+2*i}")
            A(f"global_store_dword v2, v3, s[42:43] offset:{4*i}")
    A("s_endpgm")

class LdsQ:
    def __init__(self): self.q = []; self.done = 0
    def issue(self, tag): self.q.append(tag)
    def wait(self, tag):
        idx = max(i for i, t in enumerate(self.q) if t == tag)
        if idx < self.done: return
        n = len(self.q) - 1 - idx
        A(f"s_waitcnt lgkmcnt({min(n,15)})")
        self.done = idx + 1 if n <= 15 else len(self.q) - 15
    def all(self):
        A("s_waitcnt lgkmcnt(0)"); self.done = len(self.q)
    def known_all(self): self.done = len(self.q)

def cmul(dst, p, w, t):
    A(f"v_pk_mul_f32 {vr(t,2)}, {vr(p,2)}, {vr(w,2)} op_sel:[0,0] op_sel_hi:[1,0]")
    A(f"v_pk_fma_f32 {vr(dst,2)}, {vr(p,2)}, {vr(w,2)}, {vr(t,2)} op_sel:[1,1,0] op_sel_hi:[0,1,1] neg_lo:[1,0,0]")
LANE63 = "s_mov_b32 exec_lo, 0\ns_mov_b32 exec_hi, 0x80000000"
DPP6 = ["row_shr:1 row_mask:0xf bank_mask:0xf bound_ctrl:0", "row_shr:2 row_mask:0xf bank_mask:0xf bound_ctrl:0",
        "row_shr:4 row_mask:0xf bank_mask:0xf bound_ctrl:0", "row_shr:8 row_mask:0xf bank_mask:0xf bound_ctrl:0",
        "row_bcast:15 row_mask:0xa bank_mask:0xf", "row_bcast:31 row_mask:0xc bank_mask:0xf"]

KD = lambda m: 8 + 4 * m
KS = 76
T2 = lambda d, hh: 80 + 8 * (d - 2) + 4 * hh
T3 = lambda d: 104 + 4 * (d - 4)
BOX = lambda i: 120 + 4 * i
ACC = lambda j: 140 + 4 * j
BR = lambda s: 172 + 4 * s
W1R = 204
BA = lambda i: 208 + 4 * i
SG = lambda i: 232 + 4 * i
vUB, vYW, vFL, vONE, vT0, vT1, vT2 = 244, 245, 246, 247, 248, 249, 250

hdr = open(f"cdna_kernels/{NAME}.s.ref").read().split("; @launch")[0]
head = hdr + f"""; @launch grid=(256,1,1) block=(512,1,1) lds={LDS_SIZE}
.amdgcn_target "amdgcn-amd-amdhsa--gfx950"
.text
.globl {NAME}_kernel
.p2align 8
.type {NAME}_kernel,@function
{NAME}_kernel:
"""

A("s_cmp_ge_u32 s2, 256\ns_cbranch_scc1 L_end")
A("s_load_dwordx16 s[16:31], s[0:1], 0")
A("s_load_dwordx8 s[32:39], s[0:1], 64")
A("s_load_dwordx2 s[40:41], s[0:1], 96")
A("s_load_dwordx2 s[42:43], s[0:1], 112")
stamp(0); cstamp(14)
A(f"""
s_getpc_b64 s[6:7]
L_pc:
s_lshr_b32 s8, s2, 3
v_lshrrev_b32 v2, 6, v0
s_lshl_b32 s5, s8, 10
v_lshl_add_u32 v5, v0, 1, s5
v_readfirstlane_b32 s3, v2
v_min_u32 v5, L_code_end-L_pc, v5
v_and_b32 v5, -4, v5
global_load_dword v252, v5, s[6:7]
v_and_b32 v1, 63, v0
v_lshlrev_b32 v3, 4, v1
v_lshlrev_b32 v4, 2, v1
v_mov_b32 v32, 0
s_and_b32 s45, s3, 3
s_and_b32 s9, s2, 7
s_lshl_b32 s10, s2, 3
s_add_u32 s10, s10, s3
s_mul_i32 s11, s10, 1280
s_lshr_b32 s46, s3, 2
s_mul_i32 s12, s9, 20
s_add_u32 s44, s12, s8
s_lshr_b32 s49, s3, 1
s_lshr_b32 s5, s12, 4
s_and_b32 s6, s3, 1
s_add_u32 s5, s5, s6
s_lshl_b32 s62, s5, 7
s_lshl_b32 s6, s8, 2
s_add_u32 s6, s6, s49
s_mul_i32 s6, s6, {20480 if OPT['xall'] else 10240}
s_add_u32 s5, s62, s6
v_mul_u32_u24 v93, 1280, v1
v_add_u32 v22, s5, v93
s_lshl_b32 s5, s49, 3
s_add_u32 s5, s5, s9
s_min_u32 s5, s5, 26
s_lshl_b32 s5, s5, 7
s_mul_i32 s6, s8, {20*3456}
s_add_u32 s5, s5, s6
v_mul_u32_u24 v23, 3456, v1
v_add_u32 v23, s5, v23
s_lshl_b32 s5, s45, 8
s_lshl_b32 s6, s46, 7
s_add_u32 s5, s5, s6
s_lshl_b32 s6, s44, 10
s_add_u32 s5, s5, s6
v_lshl_add_u32 v6, v1, 1, s5
s_lshr_b32 s5, s5, 8
s_lshl_b32 s5, s5, 1
v_mov_b32 v7, s5
s_waitcnt lgkmcnt(0)
s_add_u32 s6, s16, s11
s_addc_u32 s7, s17, 0
global_load_dwordx4 v[8:11], v3, s[6:7]{NTR}
global_load_dword v12, v4, s[6:7] offset:1024{NTR}
global_load_dwordx4 v[16:19], v3, s[32:33]
global_load_dword v20, v4, s[32:33] offset:1024
global_load_dword v29, v32, s[42:43]
s_bitcmp1_b32 s3, 0
s_cselect_b32 s56, s36, s34
s_cselect_b32 s57, s37, s35
""")
stamp(1)
def early_pf():
    A(f"""
s_mov_b64 exec, {'0xffff' if OPT['xall'] else '0xff'}
global_load_dword v251, v22, s[16:17]{NTX}
s_mov_b64 exec, -1
""")
    if not OPT["gul"]: gu_pf()
def gu_pf():
    A(f"""
s_mov_b64 exec, 0xfffff
global_load_dword v251, v23, s[56:57]{NTW}
s_mov_b64 exec, -1
""")
A(f"""
s_barrier
s_cmp_ge_u32 s2, 160
s_cbranch_scc1 L_nopar
global_load_ushort v40, v6, s[18:19]{NTW}
global_load_ushort v45, v7, s[26:27]
global_load_ushort v41, v6, s[20:21]{NTW}
global_load_ushort v42, v6, s[22:23]{NTW}
global_load_ushort v43, v6, s[24:25]{NTW}
L_nopar:
""")
if OPT["pfbar"]: A("s_barrier")
early_pf()
A("""
v_mov_b32 v33, 0
v_mov_b32 v34, 0
v_mov_b32 v35, 0
s_cbranch_scc1 L_notconv
""")
def row_loads():
    A(f"""
s_add_u32 s6, s16, s11
s_addc_u32 s7, s17, 0
global_load_dwordx4 v[8:11], v3, s[6:7]{NTR}
global_load_dword v12, v4, s[6:7] offset:1024{NTR}
global_load_dwordx4 v[16:19], v3, s[32:33]
global_load_dword v20, v4, s[32:33] offset:1024
""")
def stats_pre():
    A("s_mov_b32 s14, 0x9E3779B1\ns_mov_b32 s47, 0x3f803f80\ns_lshl_b32 s11, s10, 3\ns_sub_u32 s13, 2047, s10")
    A(f"v_mov_b32 v33, s11\nv_add_u32 v34, {G1_OFF}, v33\nv_add_u32 v35, {G2_OFF}, v33\nv_mov_b32 v36, 0x3acccccd")
def make_tag():
    pass
def stats(younger, cnt=False):
    A(f"s_waitcnt vmcnt({younger})")
    stamp(2)
    A("s_setprio 2")
    for i in range(5):
        c = (lambda r: "0" if i == 0 else r)
        A(f"v_dot2_f32_bf16 v24, v{8+i}, s47, {c('v24')}")
        A(f"v_dot2_f32_bf16 v25, v{8+i}, v{8+i}, {c('v25')}")
        A(f"v_dot2_f32_bf16 v26, v{8+i}, v{16+i}, {c('v26')}")
        A(f"v_dot2_f32_bf16 v27, v{16+i}, s47, {c('v27')}")
    A(f"""
s_nop 0
v_permlane32_swap_b32 v24, v25
s_nop 0
v_permlane32_swap_b32 v26, v27
v_add_f32 v24, v24, v25
v_add_f32 v26, v26, v27
s_waitcnt vmcnt({younger-1})
v_mul_lo_u32 v29, v29, s14
v_permlane16_swap_b32 v24, v26
v_add_f32 v24, v24, v26
v_add_u32 v29, 0x7F4A7C15, v29
v_mov_b32 v31, v29
v_add_f32_dpp v24, v24, v24 row_shr:1 row_mask:0xf bank_mask:0xf bound_ctrl:0
v_readfirstlane_b32 s4, v29
s_nop 0
v_add_f32_dpp v24, v24, v24 row_shr:2 row_mask:0xf bank_mask:0xf bound_ctrl:0
s_nop 1
v_add_f32_dpp v24, v24, v24 row_shr:4 row_mask:0xf bank_mask:0xf bound_ctrl:0
s_nop 1
v_add_f32_dpp v24, v24, v24 row_shr:8 row_mask:0xf bank_mask:0xf bound_ctrl:0
s_mov_b64 exec, 1
v_readlane_b32 s6, v24, 15
v_readlane_b32 s7, v24, 47
v_readlane_b32 s14, v24, 31
v_readlane_b32 s15, v24, 63
v_mul_f32 v24, s6, v36
v_mul_f32 v25, s7, v36
v_mov_b32 v26, s14
v_fma_f32 v25, -v24, v24, v25
v_max_f32 v25, 0, v25
v_cvt_pk_bf16_f32 v28, v24, v25
v_and_b32 v25, 0xffff0000, v28
v_lshlrev_b32 v24, 16, v28
v_add_f32 v25, 0x3727c5ac, v25
v_cvt_pk_bf16_f32 v25, v25, v25
v_fma_f32 v26, -v24, s15, v26
v_and_b32 v25, 0xffff0000, v25
v_sqrt_f32 v25, v25
""")
    A("s_nop 0")
    A("""
v_cvt_pk_bf16_f32 v28, v24, v25
v_and_b32 v25, 0xffff0000, v28
v_rcp_f32 v25, v25
global_store_dwordx2 v34, v[28:29], s[42:43] sc1
v_mul_f32 v26, v26, v25
v_cvt_pk_bf16_f32 v26, v26, v26
v_ashrrev_i32 v27, 31, v26
v_or_b32 v27, 0x80000000, v27
v_xor_b32 v26, v26, v27
v_and_b32 v26, 0xffff0000, v26
v_or_b32 v30, s13, v26
global_store_dwordx2 v35, v[30:31], s[42:43] sc1
""")
    if cnt: A(f"ds_add_u32 v{vFL}, v{vONE} offset:8")
    A("s_mov_b64 exec, -1\ns_setprio 0")
    stamp(3)
A(f"""
s_and_b32 s6, s8, 15
s_lshl_b32 s6, s6, 1
s_and_b32 s7, s49, 1
s_add_u32 s6, s6, s7
s_add_u32 s6, s6, 32
s_mul_i32 s6, s6, 40960
s_add_u32 s5, s62, s6
v_add_u32 v93, s5, v93
v_lshlrev_b32 v7, 4, v0
v_add_u32 v7, {KB}, v7
ds_write_b128 v7, v[32:35]
ds_write_b128 v7, v[32:35] offset:8192
ds_write_b128 v7, v[32:35] offset:16384
v_min_u32 v7, {LDS_SIZE-16-24576}, v7
ds_write_b128 v7, v[32:35] offset:24576
s_mul_i32 s53, s45, {USTR}
s_add_u32 s53, s53, {UB}
v_lshl_add_u32 v7, v1, 3, s53
ds_write_b64 v7, v[32:33]
s_add_u32 s5, s45, 1
s_sub_u32 s13, s5, 32
s_lshl_b32 s5, s5, 1
v_add_u32 v36, s13, v1
v_add_u32 v37, 1, v36
v_mov_b32 v38, 0x3f800000
v_mov_b32 v39, 0x3f80
v_cmp_ge_u32 s[6:7], s5, v36
v_cmp_ge_u32 s[14:15], s5, v37
s_lshl_b32 s13, s45, 8
s_add_u32 s13, s13, {BOXB}
v_cndmask_b32 v38, 0, v38, s[6:7]
v_cndmask_b32 v39, 0, v39, s[14:15]
v_add_u32 v7, s13, v4
v_or_b32 v38, v38, v39
ds_write_b32 v7, v38
v_and_b32 v2, 15, v1
v_lshrrev_b32 v37, 4, v1
v_lshlrev_b32 v37, 3, v37
v_sub_u32 v37, v2, v37
v_lshlrev_b32 v37, 2, v37
v_add_u32 v37, {BOXB+96}, v37
s_mul_i32 s5, s45, {256*1280}
s_lshl_b32 s6, s44, 3
s_add_u32 s5, s5, s6
v_mul_u32_u24 v94, 5120, v1
v_add_u32 v94, s5, v94
v_add_u32 v95, {1024*1280}, v94
s_lshl_b32 s5, s45, 9
s_lshl_b32 s6, s46, 8
s_add_u32 s50, s5, s6
s_add_u32 s51, s50, {TBY}
s_mov_b32 m0, s51
v_mov_b32 v84, 0x3f80
v_mov_b32 v44, {LOG2E:#x}
v_mov_b32 v{vFL}, {FLG}
v_mov_b32 v{vONE}, 1
s_lshr_b32 s63, s3, 2
""")
stats_pre()
A(f"""
s_lshl_b32 s5, s44, 3
s_waitcnt lgkmcnt(0)
s_barrier
s_load_dwordx2 s[60:61], s[28:29], s5
""")
if OPT["gul"]: gu_pf()
fstamp(1, 1)
MK3 = 224
for dst, arr, offs in [(BOX(0), 0, 19), (BOX(1), 1, 15), (BOX(2), 0, 11), (BOX(3), 2, 15), (BOX(4), 3, 15), (KS, 0, 20), (MK3, 0, 22)]:
    o = arr * 64 + offs
    A(f"ds_read2_b32 {vr(dst,2)}, v37 offset0:{o} offset1:{o-2}")
    A(f"ds_read2_b32 {vr(dst+2,2)}, v37 offset0:{o-4} offset1:{o-6}")
def setup():
    A(f"""
s_waitcnt vmcnt(4)
v_lshlrev_b32 v40, 16, v40
v_lshlrev_b32 v45, 16, v45
v_mul_f32 v40, v44, v40
v_mul_f32 v44, v45, v44
v_exp_f32 v40, v40
v_exp_f32 v44, v44
v_lshlrev_b32 v41, 16, v41
v_lshlrev_b32 v42, 16, v42
v_cvt_pk_bf16_f32 v40, v44, v40
v_lshlrev_b32 v43, 16, v43
v_lshlrev_b32 v44, 16, v40
v_and_b32 v40, 0xffff0000, v40
v_mul_f32 v41, v41, v44
v_mul_f32 v40, v40, v44
v_add_f32 v44, v44, v44
v_mul_f32 v40, {NLOG2E:#x}, v40
v_mul_f32 v41, {INV2PI:#x}, v41
v_mul_f32 v48, v42, v44
v_mul_f32 v49, v43, v44
v_mul_f32 v56, 0x41000000, v40
v_mul_f32 v58, 0x41000000, v41
v_mul_f32 v57, 0x43800000, v40
v_mul_f32 v59, 0x43800000, v41
v_fract_f32 v58, v58
v_fract_f32 v60, v41
v_fract_f32 v59, v59
v_exp_f32 v56, v56
v_cos_f32 v52, v58
v_sin_f32 v53, v58
v_exp_f32 v61, v40
v_cos_f32 v50, v60
v_sin_f32 v51, v60
v_exp_f32 v57, v57
v_cos_f32 v54, v59
v_sin_f32 v55, v59
v_mul_f32 v52, v52, v56
v_mul_f32_e64 v53, -v53, v56
v_mul_f32 v50, v50, v61
v_mul_f32 v51, v51, v61
v_mul_f32 v54, v54, v57
v_mul_f32 v55, v55, v57
""")
stats(8, cnt=True); fstamp(1, 2); setup()
fstamp(1, 3)
def gather(t, lo=0, hi=4):
    for r in range(lo, hi):
        A(f"global_load_dwordx2 v[{96+8*t+2*r}:{97+8*t+2*r}], v{94+t}, s[16:17] offset:{1280*r}")
def gather_at(pos):
    if OPT["ga"] == pos:
        l = A.newlabel("ng")
        A(f"s_cmp_lt_u32 s3, 4\ns_cbranch_scc1 {l}")
        gather(0, 0, OPT["gan"])
        A.label(l)
    if OPT["xb"] == pos:
        l = A.newlabel("nx")
        A(f"s_cmp_ge_u32 s3, 4\ns_cbranch_scc1 {l}")
        A(f"s_mov_b32 exec_hi, 0\nglobal_load_dword v251, v93, s[16:17]{NTX}\ns_mov_b64 exec, -1")
        A.label(l)
gather_at(0)
pend = []
GRP = OPT["grp"]
tt = [0]
def emit_row(reg, rows):
    t = 84 + (tt[0] % (2 * GRP)); tt[0] += 1
    if reg is not None: A(f"v_cvt_pk_bf16_f32 v{t}, v{reg}, v{reg+1}")
    for r in rows: pend.append(f"ds_write_addtid_b32 v{t} offset:{r*TROW}")
    if tt[0] % GRP == 0: flush_rows()
def flush_rows():
    for p in pend: A(p)
    pend.clear()
emit_row(None, [0]); emit_row(52, [1])
cur = 52
CHK = {5: 0, 13: 0, 21: 0, 29: 1} if OPT["ga"] == 7 else {}
for c in range(2, 32):
    dst = 64 + 2 * (c % 2)
    if c + 3 in CHK and not CHK[c + 3]: A(f"ds_read_b32 v{vT2}, v{vFL} offset:8")
    if c in CHK:
        l = A.newlabel("gc")
        A(f"s_cmp_eq_u32 s63, 0\ns_cbranch_scc1 {l}")
        if not CHK[c]:
            A(f"s_waitcnt lgkmcnt(3)\nv_readfirstlane_b32 s5, v{vT2}\ns_cmp_lt_u32 s5, 8\ns_cbranch_scc1 {l}")
        A("s_mov_b32 s63, 0")
        gather(0, 0, OPT["gan"])
        A.label(l)
    cmul(dst, cur, 52, dst); emit_row(dst, [c]); cur = dst
    if c == 15: gather_at(3)
flush_rows()
fstamp(1, 4)
A("s_mov_b32 m0, s50")
gather_at(1)
if OPT["gbn"]:
    A("s_cmp_lt_u32 s3, 4\ns_cbranch_scc1 L_ngb")
    gather(1, 0, OPT["gbn"])
    A.label("L_ngb")
cmul(56, 50, 50, 56)
emit_row(48, [0])
cur = 48
rows0 = {1: [1], 2: [2], 3: [3], 4: [4, 8], 5: [5], 6: [6], 7: [7], 8: [12]}
for p in range(1, 9):
    dst = 64 + 2 * (p % 2)
    cmul(dst, cur, 50, dst); emit_row(dst, rows0[p]); cur = dst
for dst, src, w, rows in [(68, 48, 54, [9]), (70, 68, 56, [10]), (68, 70, 56, [11, 13]), (70, 68, 56, [14]), (72, 70, 56, [15]),
                          (70, 68, 54, [16]), (74, 72, 54, [17]), (68, 70, 54, [20]), (72, 74, 54, [21]),
                          (74, 72, 54, [18]), (72, 74, 54, [19]), (74, 72, 54, [22]), (72, 74, 54, [23])]:
    cmul(dst, src, w, dst); emit_row(dst, rows)
flush_rows()
fstamp(1, 5)
gather_at(4)
A("s_cmp_ge_u32 s3, 4\ns_cbranch_scc1 L_helper")

q = LdsQ()
A(f"""
v_and_b32 v2, 31, v1
v_lshrrev_b32 v3, 5, v1
v_mul_u32_u24 v5, {TROW}, v2
v_subrev_u32 v6, {16*TROW}, v5
v_cmp_le_u32 vcc, 24, v2
s_lshl_b32 s5, s45, 9
v_lshl_add_u32 v7, v3, 4, s5
v_cndmask_b32 v6, v5, v6, vcc
v_add_u32 v5, v5, v7
v_add_u32 v6, v6, v7
v_add_u32 v5, {TBY}, v5
s_waitcnt lgkmcnt(0)
s_barrier
""")
stamp(4); fstamp(1, 6); fstamp(2, 1)
NB = 6
def kg_issue(s):
    b = 156 + 8 * (s % NB)
    A(f"ds_read_b128 {vr(b,4)}, v6 offset:{32*s}"); q.issue(("ka", s))
    A(f"ds_read_b128 {vr(b+4,4)}, v5 offset:{32*s}"); q.issue(("kb", s))
for s in range(NB): kg_issue(s)
filler = f"""
s_lshl_b32 s6, s45, 4
s_lshr_b64 s[60:61], s[60:61], s6
s_lshl_b32 s60, s60, 16
s_mul_i32 s52, s45, {KSTR}
s_add_u32 s52, s52, {KB}
v_mul_u32_u24 v208, 80, v2
v_lshl_add_u32 v208, v3, 5, v208
v_add_u32 v208, s52, v208
v_add_u32 v207, 2560, v208
v_lshl_add_u32 v206, v3, 4, v208
v_add_u32 v205, 2560, v206
v_lshlrev_b32 v209, 2, v2
v_lshl_add_u32 v209, v3, 7, v209
v_add_u32 v209, s52, v209
v_lshlrev_b32 v210, 1, v2
v_lshl_add_u32 v210, v3, 7, v210
v_add_u32 v210, s52, v210
v_mov_b32 v211, s52
v_mov_b32 v45, s60
v_cmp_eq_u32 vcc, 0, v1
v_and_b32 v232, 15, v1
v_lshrrev_b32 v233, 4, v1
v_cndmask_b32 v45, 0, v45, vcc
v_lshlrev_b32 v234, 3, v233
v_sub_u32 v234, v232, v234
v_add_u32 v240, 25, v234
v_add_u32 v234, 29, v234
v_lshrrev_b32 v241, 3, v234
v_lshl_add_u32 v234, v234, 3, s52
v_lshl_add_u32 v234, v241, 4, v234
v_lshrrev_b32 v241, 3, v240
v_lshl_add_u32 v240, v240, 3, s52
v_lshl_add_u32 v240, v241, 4, v240
v_lshlrev_b32 v235, 2, v233
v_sub_u32 v235, v232, v235
v_add_u32 v235, 12, v235
v_lshl_add_u32 v236, v235, 2, s52
v_lshl_add_u32 v235, v235, 3, s52
v_add_u32 v236, {T3_O}, v236
v_lshlrev_b32 v{vUB}, 5, v232
v_lshl_add_u32 v{vUB}, v233, 4, v{vUB}
v_add_u32 v{vUB}, s53, v{vUB}
v_lshrrev_b32 v{vT0}, 1, v232
v_add_u32 v{vT0}, v{vT0}, v233
v_and_b32 v{vT0}, 3, v{vT0}
v_and_b32 v{vT1}, 7, v232
v_lshlrev_b32 v{vT1}, 6, v{vT1}
v_lshl_add_u32 v{vT1}, v{vT0}, 4, v{vT1}
v_lshrrev_b32 v{vT0}, 3, v232
v_mul_u32_u24 v{vT0}, {TROW}, v{vT0}
v_add3_u32 v{vYW}, v{vT0}, v{vT1}, s5
""".strip().split("\n")
for i in range(4): filler.append(f"v_and_b32 v{KS+i}, v{KS+i}, v{BOX(0)+i}")
for r in [KS + i for i in range(4)] + [MK3 + i for i in range(4)]:
    filler.append(f"v_pk_lshlrev_b16 v{r}, 2, v{r} op_sel_hi:[0,1]")
    filler.append(f"v_pk_ashrrev_i16 v{r}, 15, v{r} op_sel_hi:[0,1]")
for _ in range(15): A(filler.pop(0))
for s in range(16):
    q.wait(("kb", s))
    b = 156 + 8 * (s % NB)
    A(f"v_mfma_f32_32x32x16_bf16 v[140:155], {vr(b,4)}, {vr(b+4,4)}, {'0' if s == 0 else 'v[140:155]'}")
    if s + NB < 16: kg_issue(s + NB)
    for _ in range(3 if s < 15 else 12):
        if filler: A(filler.pop(0))
        elif s == 15: A.nop(1)
while filler: A(filler.pop(0))
fstamp(2, 2)
K = lambda i: f"v{140+i}"
A(f"""
v_add_f32 {K(0)}, {K(0)}, v45
v_cvt_pk_bf16_f32 v215, {K(2)}, {K(1)}
v_cvt_pk_bf16_f32 v212, {K(3)}, {K(2)}
v_cvt_pk_bf16_f32 v214, {K(4)}, {K(3)}
v_cvt_pk_bf16_f32 v213, {K(1)}, {K(0)}
v_cvt_pk_bf16_f32 v217, {K(5)}, {K(5)}
v_cvt_pk_bf16_f32 v219, {K(6)}, {K(5)}
v_cvt_pk_bf16_f32 v216, {K(7)}, {K(6)}
v_cvt_pk_bf16_f32 v218, {K(7)}, {K(7)}
v_cvt_pk_bf16_f32 v222, {K(0)}, 0
v_cvt_pk_bf16_f32 v220, {K(8)}, {K(9)}
v_cvt_pk_bf16_f32 v221, {K(10)}, {K(11)}
v_cvt_pk_bf16_f32 v223, {K(9)}, {K(9)}
ds_write_b128 v208, v[212:215] offset:160
ds_write2_b32 v206, v213, v215 offset0:32 offset1:34
ds_write2_b32 v208, v212, v214 offset0:45 offset1:47
ds_write_b128 v207, v[216:219] offset:160
ds_write2_b32 v205, v217, v219 offset0:32 offset1:34
ds_write2_b32 v207, v216, v218 offset0:45 offset1:47
s_mov_b64 exec, 1
ds_write2_b32 v211, v222, v222 offset0:{UBY(13)//4} offset1:{UBY(15)//4+1}
s_mov_b64 exec, -1
ds_write_b32 v209, v220 offset:{T2_O+128}
ds_write_b16 v210, v221 offset:{T3_O+64}
ds_write_b16_d16_hi v210, v221 offset:{T3_O+64+64}
""")
fstamp(2, 3)
order = [16, 0, 8] + [x for i in range(1, 8) for x in (i, 8 + i)]
for m in order:
    A(f"ds_read_b64 {vr(KD(m),2)}, v234 offset:{320*m}")
    A(f"ds_read_b64 {vr(KD(m)+2,2)}, v240 offset:{320*m}")
for d in (2, 3, 4):
    for hh in (0, 1):
        o = 16 * d - 28 - 2 * hh
        A(f"ds_read_b64 {vr(T2(d,hh),2)}, v235 offset:{T2_O+8*o}")
        A(f"ds_read_b64 {vr(T2(d,hh)+2,2)}, v235 offset:{T2_O+8*(o-1)}")
for d in (4, 5, 6, 7):
    o = 16 * d - 60
    A(f"ds_read2_b32 {vr(T3(d),2)}, v236 offset0:{o} offset1:{o-1}")
    A(f"ds_read2_b32 {vr(T3(d)+2,2)}, v236 offset0:{o-2} offset1:{o-3}")
A("v_readlane_b32 s6, v218, 63\nv_readlane_b32 s7, v223, 63\ns_waitcnt lgkmcnt(15)")
for i in range(4): A(f"v_and_or_b32 v{KD(16)+i}, v{MK3+i}, s6, v{KD(16)+i}")
for i in range(4): A(f"v_and_b32 v{KS+i}, s7, v{KS+i}")
stamp(5); fstamp(2, 4)
if OPT['fine'] == 2: A('s_waitcnt lgkmcnt(0)')
fstamp(2, 5)
def wait_flag(addr, off, val, nm, tmp):
    l = A.newlabel(nm); lo = A.newlabel(nm + "o")
    A(f"s_mov_b32 s54, {SPIN_MAX}")
    A.label(l)
    A(f"ds_read_b32 v{tmp}, v{addr} offset:{off}")
    A("s_waitcnt lgkmcnt(0)")
    A(f"v_readfirstlane_b32 s5, v{tmp}")
    A(f"s_sub_u32 s54, s54, 1\ns_cbranch_scc1 {lo}")
    A(f"s_cmp_lt_u32 s5, {val}\ns_cbranch_scc1 {l}")
    A.label(lo)
wait_flag(vFL, 0, 4, "u0", vT2); q.known_all()
stamp(6)
loads = []
for j in range(8):
    loads.append(("B", 8 * j))
    if j <= 5: loads.append(("W", j))
    for i in range(1, 8): loads.append(("B", 8 * j - i))
slot = {}
ring = 0
for k in loads:
    if k[0] == "B": slot[k] = BR(ring % 8); ring += 1
    else: slot[k] = W1R
touched = set()
prog = []
def MF(d, a, b, c, need=None):
    prog.append(dict(text=f"v_mfma_f32_16x16x32_bf16 {vr(d,4)}, {vr(a,4)}, {vr(b,4)}, {c}", need=need, valu=[], ds=[]))
def mf(j, a, b, need=None):
    c = vr(ACC(j), 4) if j in touched else "0"; touched.add(j)
    MF(ACC(j), a, b, c, need)
ydone = {}
for j in range(8):
    k0 = ("B", 8 * j); b0 = slot[k0]
    cv = []
    if j <= 5:
        for i, bx in ((0, 0), (1, 1), (2, 2)) + (((4, 3),) if j <= 3 else ()):
            MF(BA(i), b0, BOX(bx), "0", k0)
        for i, bx in ((3, 1),) + (((5, 4),) if j <= 3 else ()):
            MF(BA(i), W1R, BOX(bx), "0", ("W", j))
        for r in range(4): cv.append(f"v_cvt_pk_bf16_f32 v{SG(r//2)+2*(r%2)}, v{BA(0)+r}, v{BA(1)+r}")
        for r in range(4): cv.append(f"v_cvt_pk_bf16_f32 v{SG(r//2)+2*(r%2)+1}, v{BA(2)+r}, v{BA(3)+r}")
        if j <= 3:
            for r in range(4): cv.append(f"v_cvt_pk_bf16_f32 v{SG(2)+r}, v{BA(4)+r}, v{BA(5)+r}")
    mf(j, KD(0), b0, k0)
    if j + 1 <= 7: mf(j + 1, KD(8), b0)
    if j + 2 <= 7: mf(j + 2, KD(16), b0)
    if j + 4 <= 7: mf(j + 4, KS, b0)
    for i in range(1, 8):
        k = ("B", 8 * j - i)
        mf(j, KD(i), slot[k], k)
        if i == 7: ydone[j] = len(prog) - 1
        if i >= 2 and cv: prog[-1]["valu"].append(cv.pop(0))
        if j + 1 <= 7: mf(j + 1, KD(8 + i), slot[k])
        if i >= 2 and cv: prog[-1]["valu"].append(cv.pop(0))
    assert not cv
    if j <= 5:
        for d in (2, 3, 4):
            if j + d <= 7: mf(j + d, SG(0), T2(d, 0)); mf(j + d, SG(1), T2(d, 1))
        if j <= 3:
            for d in (4, 5, 6, 7):
                if j + d <= 7: mf(j + d, SG(2), T3(d))
AHEAD = 5
first_use = {}
for i, e in enumerate(prog):
    if e["need"] and e["need"] not in first_use: first_use[e["need"]] = i
def ld_text(k):
    off = 480 + 64 * k[1] if k[0] == "B" else 464 + 512 * k[1]
    return f"ds_read_b128 {vr(slot[k],4)}, v{vUB} offset:{off}"
for n, k in enumerate(loads):
    if n <= AHEAD: continue
    prog[first_use[loads[n - AHEAD - 1]]]["ds"].append(("ld", k))
for j in range(7): prog[ydone[j] + 8]["ds"].append(("y", j)) if ydone[j] + 8 < len(prog) else None
fl_pos = first_use[("B", 24)]
prog[fl_pos]["ds"].append(("flag",))
def ywrite(j):
    A(f"ds_write_b128 v{vYW}, {vr(ACC(j),4)} offset:{2*TROW*j}"); q.issue("yw")
    A("s_mov_b64 exec, 1")
    A(f"ds_add_u32 v{vFL}, v{vONE} offset:{32+4*j}"); q.issue("yf")
    A("s_mov_b64 exec, -1")
for k in loads[:AHEAD + 1]: A(ld_text(k)); q.issue(k)
for i, e in enumerate(prog):
    if e["need"] and e["need"][0] == "B" and e["need"][1] % 8 == 0 and first_use[e["need"]] == i and e["need"][1] < 56: fstamp(3, 1 + e["need"][1] // 8)
    if e["need"]: q.wait(e["need"])
    A(e["text"])
    for d in e["ds"]:
        if d[0] == "flag":
            A(f"ds_read_b32 v{vT2}, v{vFL} offset:4"); q.issue("flag")
        elif d[0] == "ld":
            if d[1] == ("B", 32):
                q.wait("flag")
                lo = A.newlabel("u1ok")
                A(f"v_readfirstlane_b32 s5, v{vT2}\ns_cmp_ge_u32 s5, 4\ns_cbranch_scc1 {lo}")
                wait_flag(vFL, 4, 4, "u1", vT2)
                A.label(lo)
            A(ld_text(d[1])); q.issue(d[1])
        else: ywrite(d[1])
    for v in e["valu"]: A(v)
assert ydone[6] + 8 < len(prog)
A.nop(8); ywrite(7)
stamp(7)
finish(8, [(4, 4), (5, 5), (6, 6), (7, 7)])

A.label("L_helper")
XF = [112, 144]; GG = [128, 160]; XR = [96, 104]; ST = [8, 16]; UU = [24, 32]
A(f"""
s_lshl_b32 s5, s45, 11
s_add_u32 s5, s5, {G1_OFF}
v_lshl_add_u32 v92, v1, 5, s5
v_add_u32 v93, 8192, v92
""")
G1A = "global_load_dwordx4 v[8:11], v92, s[42:43] sc1\nglobal_load_dwordx4 v[12:15], v92, s[42:43] offset:16 sc1"
if OPT["gb1"]: A(G1A)
A("s_waitcnt lgkmcnt(0)\ns_barrier")
stamp(4)
gather(0, OPT["gan"], 4)
if OPT["gb1"]:
    assert OPT["gan"] == 4 and OPT["gbn"] == 0
    gather(1, 0, OPT["gb1"])
else: A(G1A)
A(f"""
s_lshl_b32 s5, s45, 9
s_add_u32 s5, s5, {UB+512}
v_lshl_add_u32 v91, v1, 3, s5
v_lshrrev_b32 v2, 3, v1
v_add_u32 v2, v2, v1
v_and_b32 v2, 3, v2
v_and_b32 v3, 28, v1
v_add_u32 v2, v2, v3
v_lshlrev_b32 v2, 4, v2
v_lshrrev_b32 v3, 5, v1
v_mul_u32_u24 v3, {TROW}, v3
s_mul_i32 s5, s45, {2*TROW}
v_add3_u32 v90, v2, v3, s5
s_lshl_b32 s5, s45, 2
v_add_u32 v89, s5, v{vFL}
v_and_b32 v88, 7, v1
v_lshlrev_b32 v88, 3, v88
v_add_u32 v88, {SEL_OFF}, v88
""")
def unpack_x(t):
    for r in range(4):
        for hw in range(2):
            src = XR[t] + 2 * r + hw
            A(f"v_lshlrev_b32 v{XF[t]+4*(2*hw)+r}, 16, v{src}")
            A(f"v_and_b32 v{XF[t]+4*(2*hw+1)+r}, 0xffff0000, v{src}")
def poll4(s, av, first_wait):
    l = A.newlabel("g"); lo = A.newlabel("go")
    A(f"s_mov_b32 s54, {SPIN_MAX}")
    A(f"s_waitcnt vmcnt({first_wait})")
    A.label(l)
    A(f"""
v_xor_b32 v2, s4, v{s+1}
v_xor_b32 v3, s4, v{s+3}
v_xor_b32 v5, s4, v{s+5}
v_xor_b32 v6, s4, v{s+7}
v_or3_b32 v2, v2, v3, v5
v_or_b32 v2, v2, v6
v_cmp_ne_u32 vcc, 0, v2
s_cbranch_vccz {lo}
s_sub_u32 s54, s54, 1
s_cbranch_scc1 {lo}
global_load_dwordx4 {vr(s,4)}, v{av}, s[42:43] sc1
global_load_dwordx4 {vr(s+4,4)}, v{av}, s[42:43] offset:16 sc1
s_waitcnt vmcnt(0)
s_branch {l}
""")
    A.label(lo)
def normalize(t):
    s = ST[t]
    for r in range(4): A(f"v_and_b32 v{180+r}, 0xffff0000, v{s+2*r}")
    for r in range(4): A(f"v_rcp_f32 v{180+r}, v{180+r}")
    for r in range(4): A(f"v_lshlrev_b32 v{176+r}, 16, v{s+2*r}")
    for ch in range(4):
        T = 184
        for r in range(4): A(f"v_sub_f32 v{T+r}, v{XF[t]+4*ch+r}, v{176+r}")
        for p in range(2): A(f"v_cvt_pk_bf16_f32 v{T+2*p+1}, v{T+2*p}, v{T+2*p+1}")
        for p in range(2):
            A(f"v_lshlrev_b32 v{T+2*p}, 16, v{T+2*p+1}")
            A(f"v_and_b32 v{T+2*p+1}, 0xffff0000, v{T+2*p+1}")
        for r in range(4): A(f"v_mul_f32 v{T+r}, v{T+r}, v{180+r}")
        for p in range(2): A(f"v_cvt_pk_bf16_f32 v{UU[t]+2*ch+p}, v{T+2*p}, v{T+2*p+1}")
    for ch in range(4): A(f"ds_write_b64 v91, {vr(UU[t]+2*ch,2)} offset:{USTR*ch+2048*t}")
    A("s_mov_b64 exec, 1")
    A(f"ds_add_u32 v{vFL}, v{vONE} offset:{4*t}")
    A("s_mov_b64 exec, -1")
def precompute(t):
    for ch in range(4):
        N = GG[t] + 4 * ch; E = 188
        for p in range(2):
            A(f"v_lshlrev_b32 v{N+2*p}, 16, v{UU[t]+2*ch+p}")
            A(f"v_and_b32 v{N+2*p+1}, 0xffff0000, v{UU[t]+2*ch+p}")
        for i in range(4): A(f"v_mul_f32 v{E+i}, {NLOG2E:#x}, v{N+i}")
        for i in range(4): A(f"v_exp_f32 v{E+i}, v{E+i}")
        for i in range(4): A(f"v_add_f32 v{E+i}, 1.0, v{E+i}")
        for i in range(4): A(f"v_rcp_f32 v{E+i}, v{E+i}")
        for i in range(4): A(f"v_mul_f32 v{N+i}, v{N+i}, v{E+i}")
def epilogue(t, mid=None):
    wait_flag(89, 32 + 16 * t, 4, "y", 2)
    if mid: mid()
    for ch in range(4): A(f"ds_read_b128 {vr(200+4*ch,4)}, v90 offset:{512*ch+8*TROW*t}")
    for ch in range(4):
        A(f"s_waitcnt lgkmcnt({3-ch})")
        for r in range(4): A(f"v_fma_f32 v{200+4*ch+r}, v{200+4*ch+r}, v{GG[t]+4*ch+r}, v{XF[t]+4*ch+r}")
    for r in range(4):
        A(f"v_cvt_pk_bf16_f32 v{216+2*r+8*t}, v{200+r}, v{204+r}")
        A(f"v_cvt_pk_bf16_f32 v{217+2*r+8*t}, v{208+r}, v{212+r}")
        A(f"global_store_dwordx2 v{94+t}, {vr(216+2*r+8*t,2)}, s[40:41] offset:{1280*r}")
A(f"s_waitcnt vmcnt({2+OPT['gbn']+OPT['gb1']})")
unpack_x(0)
poll4(ST[0], 92, OPT["gb1"])
stamp(5)
gather(1, OPT["gbn"] + OPT["gb1"], 4)
A("global_load_dwordx4 v[16:19], v93, s[42:43] sc1\nglobal_load_dwordx4 v[20:23], v93, s[42:43] offset:16 sc1")
normalize(0)
stamp(6)
precompute(0)
A("s_waitcnt vmcnt(2)")
unpack_x(1)
poll4(ST[1], 93, 0)
normalize(1)
stamp(7)
epilogue(0)
stamp(8)
A("global_load_dwordx2 v[40:41], v88, s[42:43] sc1")
precompute(1)
lS = A.newlabel("sel"); lSo = A.newlabel("selo")
A(f"""
s_mul_i32 s5, s44, {PART_STRIDE}
s_add_u32 s5, s5, {PART_OFF}
v_lshl_add_u32 v44, v1, 4, s5
v_add_u32 v45, 4096, v44
s_and_b32 s5, s4, 0xff
v_mov_b32 v48, s5
v_mov_b32 v76, s5
s_bfe_u32 s5, s4, 0x80008
v_mov_b32 v49, s5
v_mov_b32 v77, s5
s_bfe_u32 s5, s4, 0x80010
v_mov_b32 v50, s5
v_mov_b32 v78, s5
s_lshr_b32 s5, s4, 24
v_mov_b32 v51, s5
v_mov_b32 v79, s5
s_mov_b32 s54, {SPIN_MAX}
s_waitcnt vmcnt(0)
{lS}:
v_cmp_ne_u32 vcc, s4, v41
s_cbranch_vccz {lSo}
s_sub_u32 s54, s54, 1
s_cbranch_scc1 {lSo}
global_load_dwordx2 v[40:41], v88, s[42:43] sc1
s_waitcnt vmcnt(0)
s_branch {lS}
{lSo}:
v_and_b32 v42, 0x7ff, v40
v_sub_u32 v42, 2047, v42
v_bfe_u32 v43, v42, 8, 2
v_cmp_eq_u32 s[56:57], s45, v43
s_lshl_b32 s5, s44, 3
v_mul_u32_u24 v46, 1280, v42
v_add_u32 v46, s5, v46
s_cmp_eq_u64 s[56:57], 0
s_cbranch_scc1 L_noown
s_and_b32 s59, s57, 0xffff
s_mov_b32 s58, s56
global_load_dwordx2 v[80:81], v46, s[16:17]
v_lshlrev_b32 v2, 1, v42
v_add_u32 v2, {UB+512}, v2
ds_read_u16 v96, v2
ds_read_u16 v97, v2 offset:{USTR}
ds_read_u16 v98, v2 offset:{2*USTR}
ds_read_u16 v99, v2 offset:{3*USTR}
v_lshrrev_b32 v82, 7, v42
v_mul_u32_u24 v82, {TROW}, v82
v_bfe_u32 v5, v42, 4, 3
v_lshl_add_u32 v82, v5, 6, v82
v_lshrrev_b32 v5, 2, v42
v_lshrrev_b32 v6, 5, v42
v_add_u32 v5, v5, v6
v_and_b32 v5, 3, v5
v_lshl_add_u32 v82, v5, 4, v82
v_and_b32 v5, 3, v42
v_lshl_add_u32 v82, v5, 2, v82
v_not_b32 v5, v40
v_ashrrev_i32 v5, 31, v5
v_or_b32 v5, 0x80000000, v5
v_xor_b32 v5, v40, v5
v_and_b32 v5, 0xffff0000, v5
v_mul_f32 v5, {NLOG2E:#x}, v5
v_exp_f32 v5, v5
s_waitcnt lgkmcnt(0)
v_add_f32 v5, 1.0, v5
v_rcp_f32 v47, v5
v_lshlrev_b32 v96, 16, v96
v_lshlrev_b32 v97, 16, v97
v_lshlrev_b32 v98, 16, v98
v_lshlrev_b32 v99, 16, v99
L_noown:
""")
def part_loads():
    A("s_mov_b64 exec, s[56:57]")
    for i in range(6):
        A(f"global_load_dwordx4 {vr(52+4*i,4)}, v{44 + i//4}, s[42:43] offset:{1024*(i%4)} sc1")
    A("s_mov_b64 exec, s[58:59]")
    A(f"global_load_dwordx4 v[76:79], v45, s[42:43] offset:2048 sc1")
def mid():
    A("s_cmp_eq_u64 s[56:57], 0\ns_cbranch_scc1 L_noown2")
    part_loads()
    A("s_mov_b64 exec, -1\nL_noown2:")
epilogue(1, mid)
stamp(9)
A(f"""
s_cmp_eq_u64 s[56:57], 0
s_cbranch_scc1 L_hdone
ds_read_b32 v100, v82
ds_read_b32 v101, v82 offset:512
ds_read_b32 v102, v82 offset:1024
ds_read_b32 v103, v82 offset:1536
s_mov_b64 exec, s[56:57]
s_mov_b32 s54, {SPIN_MAX}
s_waitcnt vmcnt(4)
v_lshlrev_b32 v104, 16, v80
v_and_b32 v105, 0xffff0000, v80
v_lshlrev_b32 v106, 16, v81
v_and_b32 v107, 0xffff0000, v81
""")
lP = A.newlabel("par"); lPo = A.newlabel("paro")
A.label(lP)
for i in range(7):
    for k in range(4): A(f"v_xor_b32 v{112+4*i+k}, v{52+4*i+k}, v{48+k}")
A("v_or3_b32 v2, v112, v113, v114")
for i in range(3, 27, 2): A(f"v_or3_b32 v2, v2, v{112+i}, v{113+i}")
A("v_or_b32 v2, v2, v139\nv_and_b32 v2, 0xff, v2\nv_cmp_ne_u32 vcc, 0, v2")
A(f"s_cbranch_vccz {lPo}\ns_sub_u32 s54, s54, 1\ns_cbranch_scc1 {lPo}")
part_loads()
A(f"s_mov_b64 exec, s[56:57]\ns_waitcnt vmcnt(0)\ns_branch {lP}")
A.label(lPo)
stamp(10)
for i in range(1, 7):
    for k in range(4): A(f"v_add_f32 v{112+k}, v{112+k}, v{112+4*i+k}")
A("s_mov_b64 exec, -1")
for k in range(4): A(f"v_add_f32_dpp v{112+k}, v{112+k}, v{112+k} row_ror:8 row_mask:0xf bank_mask:0xf")
for k in range(4): A(f"v_mov_b32 v{116+k}, v{112+k}")
for k in range(4): A(f"v_permlane16_swap_b32 v{112+k}, v{116+k}")
for k in range(4): A(f"v_add_f32 v{112+k}, v{112+k}, v{116+k}")
for k in range(4): A(f"v_mov_b32 v{116+k}, v{112+k}")
for k in range(4): A(f"v_permlane32_swap_b32 v{112+k}, v{116+k}")
for k in range(4): A(f"v_add_f32 v{112+k}, v{112+k}, v{116+k}")
A("s_waitcnt lgkmcnt(0)")
for k in range(4): A(f"v_fma_f32 v{112+k}, v{112+k}, v47, v{96+k}")
for k in range(4): A(f"v_mul_f32 v{116+k}, {NLOG2E:#x}, v{112+k}")
for k in range(4): A(f"v_exp_f32 v{116+k}, v{116+k}")
for k in range(4): A(f"v_mul_f32 v{112+k}, v{112+k}, v{100+k}")
for k in range(4): A(f"v_add_f32 v{116+k}, 1.0, v{116+k}")
for k in range(4): A(f"v_rcp_f32 v{116+k}, v{116+k}")
A("s_and_b32 exec_lo, s56, 0xff\ns_mov_b32 exec_hi, 0")
for k in range(4): A(f"v_fma_f32 v{112+k}, v{112+k}, v{116+k}, v{104+k}")
if OPT["inj"]:
    import struct
    A(f"s_cmp_lg_u32 s44, 0\ns_cbranch_scc1 L_noinj\nv_add_f32 v112, {struct.unpack('<I', struct.pack('<f', OPT['inj'] / 1000.0))[0]:#x}, v112\nL_noinj:")
A("v_cvt_pk_bf16_f32 v112, v112, v113\nv_cvt_pk_bf16_f32 v113, v114, v115")
A("global_store_dwordx2 v46, v[112:113], s[40:41]")
A.label("L_hdone")
stamp(11)
if OPT["stamps"]:
    A("s_waitcnt vmcnt(0)")
    stamp(12)
finish(13, [(8, 9), (9, 12)])

A.label("L_notconv")
PAIRTAB = 0x77277170 if OPT["bal"] else 0x77777210
def pair_of(dst, ps):
    A(f"""
s_lshl_b32 s6, s9, 2
s_lshr_b32 s6, {PAIRTAB:#x}, s6
s_and_b32 s6, s6, 7
s_cmp_ge_u32 {ps}, 3
s_cselect_b32 s6, s6, s9
s_lshl_b32 {dst}, {ps}, 3
s_add_u32 {dst}, {dst}, s6
""")
A("s_sub_u32 s62, s8, 20")
A(f"""
v_lshlrev_b32 v7, 4, v0
v_add_u32 v7, {KB}, v7
ds_write_b128 v7, v[32:35]
ds_write_b128 v7, v[32:35] offset:8192
s_lshr_b32 s63, s62, 1
""")
if OPT["gul"]: gu_pf()
pair_of("s48", "s63")
A(f"""
s_lshl_b32 s48, s48, 1
s_and_b32 s5, s62, 1
s_add_u32 s48, s48, s5
s_mul_i32 s5, s49, {160*3456}
s_lshl_b32 s6, s48, 6
s_add_u32 s5, s5, s6
s_add_u32 s56, s56, s5
s_addc_u32 s57, s57, 0
s_mul_i32 s50, s3, 10240
s_mov_b32 m0, s50
v_lshrrev_b32 v5, 2, v1
v_mul_u32_u24 v5, 3456, v5
v_and_b32 v6, 3, v1
v_lshl_add_u32 v5, v6, 4, v5
""")
stats_pre()
stats(3)
A("s_waitcnt lgkmcnt(0)")
A("""
s_barrier
s_cmp_lt_u32 s48, 54
s_cbranch_scc1 L_moe
s_cmp_lt_u32 s62, 8
s_cbranch_scc1 L_fin
s_sub_u32 s63, s62, 8
""")
pair_of("s5", "s63")
A(f"""
s_cmp_ge_u32 s5, 27
s_cbranch_scc1 L_fin
s_mul_i32 s5, s5, {64*1280}
s_add_u32 s5, s5, s50
v_lshl_add_u32 v5, v1, 7, s5
global_load_dword v251, v5, s[38:39]{NTW}
v_add_u32 v5, 8192, v5
s_mov_b64 exec, 0xffff
global_load_dword v251, v5, s[38:39]{NTW}
s_branch L_fin
L_moe:
""")
for i in range(10):
    A(f"global_load_lds_dwordx4 v5, s[56:57]{NTW}")
    if i < 9: A(f"s_add_u32 m0, m0, 1024\ns_add_u32 s56, s56, {16*3456}\ns_addc_u32 s57, s57, 0")
A(f"""
v_and_b32 v116, 15, v1
v_lshrrev_b32 v117, 4, v1
s_mul_i32 s5, s48, {32*1280}
s_lshl_b32 s6, s3, 8
s_add_u32 s5, s5, s6
v_mul_u32_u24 v34, {8*1280}, v117
v_lshl_add_u32 v34, v116, 4, v34
v_add_u32 v34, s5, v34
v_add_u32 v35, {4*1280}, v34
v_lshlrev_b32 v36, 5, v0
v_add_u32 v36, {G2_OFF}, v36
s_mov_b32 s60, 0x05040100
s_mov_b32 s61, 0x07060302
v_mov_b32 v112, 0x3f803f80
v_mov_b32 v113, 0x3f803f80
v_mov_b32 v114, 0x3f803f80
v_mov_b32 v115, 0x3f803f80
s_and_b32 s5, s3, 1
s_lshl_b32 s5, s5, 2
s_add_u32 s5, s5, s49
s_lshl_b32 s5, s5, 11
s_add_u32 s5, s5, {RED}
v_lshl_add_u32 v37, v1, 4, s5
v_lshrrev_b32 v38, 5, v0
v_lshlrev_b32 v38, 8, v38
v_and_b32 v39, 3, v1
v_lshl_add_u32 v38, v39, 2, v38
v_add_u32 v38, {RED}, v38
s_mov_b32 s62, 0x00ff00ff
s_mov_b32 s63, 0x00ff00ff
v_lshlrev_b32 v7, 9, v117
v_bfe_u32 v39, v1, 2, 2
v_lshl_add_u32 v7, v39, 6, v7
v_lshl_add_u32 v7, v6, 3, v7
v_add_u32 v7, s50, v7
global_load_dwordx4 v[8:11], v36, s[42:43] sc1
global_load_dwordx4 v[12:15], v36, s[42:43] offset:16 sc1
v_lshlrev_b32 v118, 4, v1
v_bfe_u32 v204, v0, 2, 3
v_lshlrev_b32 v205, 2, v204
v_lshlrev_b32 v204, 6, v204
v_bfe_u32 v39, v0, 5, 2
v_lshl_add_u32 v204, v39, 3, v204
v_and_b32 v39, 3, v0
v_lshl_add_u32 v204, v39, 1, v204
v_bfe_u32 v39, v0, 7, 1
v_lshl_add_u32 v204, v39, 5, v204
v_add_u32 v204, {HB}, v204
v_and_b32 v39, 7, v1
v_lshlrev_b32 v206, 6, v39
v_lshl_add_u32 v206, v117, 4, v206
v_add_u32 v206, {HB}, v206
v_mov_b32 v207, {ZBLK}
v_cndmask_b32 v208, v207, v206, s[62:63]
v_cndmask_b32 v207, v206, v207, s[62:63]
s_and_b32 s5, s4, 0xff
v_mov_b32 v212, s5
s_bfe_u32 s5, s4, 0x80008
v_mov_b32 v213, s5
s_bfe_u32 s5, s4, 0x80010
v_mov_b32 v214, s5
s_lshr_b32 s5, s4, 24
v_mov_b32 v215, s5
v_bfe_u32 v216, v1, 3, 1
v_lshl_add_u32 v216, v117, 3, v216
v_mul_u32_u24 v216, {PART_STRIDE}, v216
v_lshl_add_u32 v216, v39, 4, v216
s_mul_i32 s5, s3, {32*PART_STRIDE}
s_lshl_b32 s6, s48, 7
s_add_u32 s5, s5, s6
s_add_u32 s5, s5, {PART_OFF}
v_add_u32 v216, s5, v216
v_add_u32 v217, {2*PART_STRIDE}, v216
v_add_u32 v218, {4*PART_STRIDE}, v216
v_add_u32 v219, {6*PART_STRIDE}, v216
v_mul_u32_u24 v220, {XRS}, v116
v_lshl_add_u32 v220, v117, 4, v220
s_mul_i32 s5, s49, 320
s_add_u32 s5, s5, {XRB}
v_add_u32 v220, s5, v220
v_lshlrev_b32 v221, 2, v116
v_lshlrev_b32 v222, 4, v117
v_add_u32 v223, {HMAX}, v221
v_add_u32 v224, {HMAX}, v222
v_add_u32 v221, {LIST}, v221
v_add_u32 v222, {LIST}, v222
v_lshrrev_b32 v225, 5, v0
v_lshlrev_b32 v225, 2, v225
v_add_u32 v225, {HMAX}, v225
v_mov_b32 v19, {CNT}
s_mul_i32 s55, s3, {XRS}
s_add_u32 s55, s55, {XRB}
s_add_u32 s47, s3, 8
s_waitcnt vmcnt(2)
""")
for ks in range(5):
    for tl in range(2):
        for hf in range(2):
            A(f"ds_read_b64_tr_b16 {vr(120+20*tl+4*ks+2*hf,2)}, v7 offset:{2048*ks+256*hf+32*tl}")
for ks in range(5):
    A(f"s_waitcnt lgkmcnt({min(15,16-4*ks)})")
    A(f"v_mfma_f32_16x16x32_bf16 v[24:27], {vr(120+4*ks,4)}, v[112:115], {'0' if ks == 0 else 'v[24:27]'}")
    A(f"v_mfma_f32_16x16x32_bf16 v[28:31], {vr(140+4*ks,4)}, v[112:115], {'0' if ks == 0 else 'v[28:31]'}")
A("""
s_nop 7
ds_write_b128 v37, v[24:27]
ds_write_b128 v37, v[28:31] offset:1024
""")
stamp(4)
poll4(8, 36, 0)
stamp(5); fstamp(4, 1)
def rank16(key, lst, rk, t):
    prs = ["s[6:7]", "s[10:11]", "s[12:13]", "s[14:15]"]
    for i in range(4): A(f"v_cmp_gt_u32 {prs[i]}, v{lst+i}, v{key}")
    A(f"v_addc_co_u32_e64 v{rk}, vcc, 0, 0, {prs[0]}")
    for i in range(1, 4): A(f"v_addc_co_u32_e64 v{rk}, vcc, v{rk}, 0, {prs[i]}")
    A(f"v_mov_b32 v{t}, v{rk}\ns_nop 1\nv_permlane16_swap_b32 v{rk}, v{t}\nv_add_u32 v{rk}, v{rk}, v{t}")
    A(f"v_mov_b32 v{t}, v{rk}\ns_nop 1\nv_permlane32_swap_b32 v{rk}, v{t}\nv_add_u32 v{rk}, v{rk}, v{t}")
A("v_max3_u32 v16, v8, v10, v12\nv_max_u32 v16, v16, v14")
for mod in DPP6[:5]:
    A(f"s_nop 1\nv_max_u32_dpp v16, v16, v16 {mod.replace(' bound_ctrl:0','')}")
A("""
s_mov_b32 exec_lo, 0x80000000
s_mov_b32 exec_hi, 0x80000000
ds_write_b32 v225, v16
s_mov_b64 exec, -1
""")
A("s_cmp_ge_u32 s3, 5\ns_cbranch_scc1 L_nod")
for j in range(8):
    A(f"global_load_dwordx4 {vr(80+4*j,4)}, v{34 + j//4}, s[38:39] offset:{1280*(j%4)}{NTW}")
A.label("L_nod")
fstamp(4, 2)
A("""
s_waitcnt lgkmcnt(0)
s_barrier
""")
fstamp(4, 3)
A("""
ds_read_b32 v17, v223
ds_read_b128 v[20:23], v224
ds_read2st64_b32 v[196:197], v38 offset0:0 offset1:8
ds_read2st64_b32 v[198:199], v38 offset0:16 offset1:24
ds_read2st64_b32 v[200:201], v38 offset0:32 offset1:40
ds_read2st64_b32 v[202:203], v38 offset0:48 offset1:56
s_waitcnt lgkmcnt(4)
""")
rank16(17, 20, 18, 24)
A(f"""
v_cmp_eq_u32 vcc, 7, v18
s_ff1_i32_b64 s5, vcc
v_readlane_b32 s5, v17, s5
s_nop 1
v_cmp_le_u32 s[6:7], s5, v8
v_cmp_le_u32 s[10:11], s5, v10
v_cmp_le_u32 s[12:13], s5, v12
v_cmp_le_u32 s[14:15], s5, v14
v_addc_co_u32_e64 v21, vcc, 0, 0, s[6:7]
s_or_b64 s[50:51], s[6:7], s[10:11]
v_addc_co_u32_e64 v22, vcc, v21, 0, s[10:11]
s_or_b64 s[52:53], s[12:13], s[14:15]
v_addc_co_u32_e64 v23, vcc, v22, 0, s[12:13]
s_or_b64 exec, s[50:51], s[52:53]
v_addc_co_u32_e64 v24, vcc, v23, 0, s[14:15]
{FS(4,4)}
ds_add_rtn_u32 v25, v19, v24
s_waitcnt lgkmcnt(0)
v_lshl_add_u32 v25, v25, 2, v19
v_lshl_add_u32 v21, v21, 2, v25
v_lshl_add_u32 v22, v22, 2, v25
v_lshl_add_u32 v23, v23, 2, v25
s_mov_b64 exec, s[6:7]
ds_write_b32 v25, v8 offset:{LIST-CNT}
s_mov_b64 exec, s[10:11]
ds_write_b32 v21, v10 offset:{LIST-CNT}
s_mov_b64 exec, s[12:13]
ds_write_b32 v22, v12 offset:{LIST-CNT}
s_mov_b64 exec, s[14:15]
ds_write_b32 v23, v14 offset:{LIST-CNT}
s_mov_b64 exec, -1
s_mov_b32 m0, s55
{FS(4,5)}
s_waitcnt lgkmcnt(0)
s_barrier
{FS(4,6)}
ds_read_b32 v28, v19
ds_read_b32 v17, v221
ds_read_b128 v[20:23], v222
s_waitcnt lgkmcnt(1)
v_readfirstlane_b32 s51, v28
v_readlane_b32 s52, v17, s3
v_readlane_b32 s53, v17, s47
s_cmp_le_u32 s51, 16
s_cbranch_scc1 L_rk_done
""")
A(f"""
v_lshl_add_u32 v26, v1, 2, v19
v_mov_b32 v27, v1
s_lshl_b32 s5, s3, 6
s_add_u32 s58, s5, {SELW}
s_mov_b32 s50, 0
L_rk_outer:
ds_read_b32 v29, v26 offset:{LIST-CNT}
v_mov_b32 v30, 0
v_mov_b32 v31, v19
s_mov_b32 s52, 0
L_rk_inner:
ds_read_b128 v[8:11], v31 offset:{LIST-CNT}
v_add_u32 v31, 16, v31
s_add_u32 s52, s52, 4
s_waitcnt lgkmcnt(0)
""")
prs = ["s[6:7]", "s[10:11]", "s[12:13]", "s[14:15]"]
for i in range(4): A(f"v_cmp_gt_u32 {prs[i]}, v{8+i}, v29")
for i in range(4): A(f"v_addc_co_u32_e64 v30, vcc, v30, 0, {prs[i]}")
A(f"""
s_cmp_lt_u32 s52, s51
s_cbranch_scc1 L_rk_inner
v_cmp_gt_u32 s[6:7], 8, v30
v_cmp_gt_u32 s[10:11], s51, v27
v_lshl_add_u32 v30, v30, 2, s58
s_and_b64 exec, s[6:7], s[10:11]
ds_write_b32 v30, v29
s_mov_b64 exec, -1
v_add_u32 v26, 256, v26
v_add_u32 v27, 64, v27
s_add_u32 s50, s50, 64
s_cmp_lt_u32 s50, s51
s_cbranch_scc1 L_rk_outer
v_lshl_add_u32 v26, v116, 2, s58
v_lshl_add_u32 v27, v117, 4, s58
ds_read_b32 v17, v26
ds_read_b128 v[20:23], v27
s_waitcnt lgkmcnt(0)
v_readlane_b32 s52, v17, s3
v_readlane_b32 s53, v17, s47
L_rk_done:
s_and_b32 s52, s52, 0x7ff
s_and_b32 s53, s53, 0x7ff
s_sub_u32 s52, 2047, s52
s_sub_u32 s53, 2047, s53
s_mul_i32 s52, s52, 1280
s_mul_i32 s53, s53, 1280
s_add_u32 s56, s16, s52
s_addc_u32 s57, s17, 0
s_add_u32 s58, s16, s53
s_addc_u32 s59, s17, 0
global_load_lds_dwordx4 v118, s[56:57]
global_load_lds_dword v4, s[56:57] offset:1024
s_add_u32 m0, m0, {8*XRS}
v_and_b32 v14, 0x7ff, v17
global_load_lds_dwordx4 v118, s[58:59]
global_load_lds_dword v4, s[58:59] offset:1024
v_sub_u32 v14, {2047 + G1_OFF//8}, v14
v_lshlrev_b32 v14, 3, v14
s_mov_b64 exec, 0xffff
global_load_dwordx2 v[32:33], v14, s[42:43] sc1
s_mov_b64 exec, -1
s_waitcnt lgkmcnt(0)
""")
stamp(6); fstamp(4, 7); fstamp(5, 1)
rank16(17, 20, 18, 24)
A(f"""
v_lshlrev_b32 v18, 2, v18
s_mov_b64 exec, 0xffff
ds_permute_b32 v26, v18, v116
ds_permute_b32 v12, v18, v17
s_mov_b64 exec, -1
v_add_f32 v196, v196, v197
v_add_f32 v198, v198, v199
v_add_f32 v200, v200, v201
v_add_f32 v202, v202, v203
v_add_f32 v196, v196, v198
v_add_f32 v200, v200, v202
s_waitcnt lgkmcnt(0)
ds_bpermute_b32 v27, v205, v26
s_waitcnt vmcnt(5)
""")
for qq in range(8):
    for i in range(4):
        A(f"v_perm_b32 v{160+4*qq+i}, v{80+4*(2*i+1)+qq//2}, v{80+4*(2*i)+qq//2}, {'s60' if qq % 2 == 0 else 's61'}")
lG = A.newlabel("g1s"); lGo = A.newlabel("g1so")
A(f"""
s_waitcnt lgkmcnt(0)
v_lshl_add_u32 v38, v27, 4, v38
v_lshlrev_b32 v27, 2, v27
s_mov_b32 s60, 0xffffff00
s_mov_b32 s54, {SPIN_MAX}
{FS(5,2)}
s_waitcnt vmcnt(1)
s_barrier
{FS(5,3)}
""")
for ks in range(5): A(f"ds_read_b128 {vr(40+4*ks,4)}, v220 offset:{64*ks}")
A(f"""
s_xor_b32 s5, s3, 7
s_or_b32 s5, s48, s5
s_cmp_lg_u32 s5, 0
s_cbranch_scc1 L_nosel
v_mov_b32 v13, s4
v_lshlrev_b32 v8, 3, v1
v_add_u32 v8, {SEL_OFF}, v8
v_mov_b32 v9, 0
s_mov_b64 exec, 0xff
global_store_dwordx2 v8, v[12:13], s[42:43] sc1
s_mov_b64 exec, 1
global_store_dword v9, v13, s[42:43] sc1
s_mov_b64 exec, -1
L_nosel:
""")
for ks in range(5):
    A(f"s_waitcnt lgkmcnt({4-ks})")
    A(f"v_mfma_f32_16x16x32_bf16 v[24:27], {vr(120+4*ks,4)}, {vr(40+4*ks,4)}, {'0' if ks == 0 else 'v[24:27]'}".replace("v[24:27]", "v[60:63]"))
    A(f"v_mfma_f32_16x16x32_bf16 v[28:31], {vr(140+4*ks,4)}, {vr(40+4*ks,4)}, {'0' if ks == 0 else 'v[28:31]'}".replace("v[28:31]", "v[64:67]"))
stamp(7); fstamp(5, 4)
A(f"""
s_cmp_ge_u32 s3, 4
s_cbranch_scc1 {lGo}
s_mov_b64 exec, 0xffff
s_waitcnt vmcnt(0)
{lG}:
v_cmp_ne_u32 vcc, s4, v33
s_cbranch_vccz {lGo}
s_sub_u32 s54, s54, 1
s_cbranch_scc1 {lGo}
global_load_dwordx2 v[32:33], v14, s[42:43] sc1
s_waitcnt vmcnt(0)
s_branch {lG}
{lGo}:
s_mov_b64 exec, -1
s_nop 4
ds_write_b128 v37, v[60:63]
ds_write_b128 v37, v[64:67] offset:1024
ds_bpermute_b32 v32, v27, v32
{FS(5,5)}
s_waitcnt lgkmcnt(0)
s_barrier
{FS(5,6)}
s_cmp_ge_u32 s3, 4
s_cbranch_scc1 L_nored
ds_read2st64_b32 v[8:9], v38 offset0:0 offset1:8
ds_read2st64_b32 v[10:11], v38 offset0:16 offset1:24
ds_read2st64_b32 v[12:13], v38 offset0:32 offset1:40
ds_read2st64_b32 v[14:15], v38 offset0:48 offset1:56
v_and_b32 v33, 0xffff0000, v32
v_lshlrev_b32 v32, 16, v32
v_rcp_f32 v33, v33
s_waitcnt lgkmcnt(2)
v_add_f32 v8, v8, v9
v_add_f32 v10, v10, v11
v_fma_f32 v8, -v32, v196, v8
v_add_f32 v8, v8, v10
v_mul_f32 v8, v8, v33
v_mul_f32 v9, {NLOG2E:#x}, v8
v_exp_f32 v9, v9
s_waitcnt lgkmcnt(0)
v_add_f32 v12, v12, v13
v_add_f32 v9, 1.0, v9
v_add_f32 v14, v14, v15
v_rcp_f32 v9, v9
v_fma_f32 v12, -v32, v200, v12
v_add_f32 v12, v12, v14
v_mul_f32 v8, v8, v33
v_mul_f32 v12, v12, v9
v_mul_f32 v8, v8, v12
v_cvt_pk_bf16_f32 v8, v8, v8
ds_write_b16 v204, v8
L_nored:
{FS(5,7)}
s_waitcnt lgkmcnt(0)
s_barrier
""")
stamp(8); fstamp(5, 8)
A(f"""
s_cmp_ge_u32 s3, 5
s_cbranch_scc1 L_fin
ds_read_b128 v[8:11], v208
ds_read_b128 v[12:15], v207
s_waitcnt lgkmcnt(1)
""")
for qq in range(4): A(f"v_mfma_f32_16x16x32_bf16 {vr(56+4*qq,4)}, {vr(160+4*qq,4)}, v[8:11], 0")
A("s_waitcnt lgkmcnt(0)")
for qq in range(4): A(f"v_mfma_f32_16x16x32_bf16 {vr(56+4*qq,4)}, {vr(176+4*qq,4)}, v[12:15], {vr(56+4*qq,4)}")
A.nop(5)
for r in range(4):
    for qq in range(4): A(f"v_bfi_b32 v{72+4*r+qq}, s60, v{56+4*qq+r}, v{212+qq}")
    A(f"global_store_dwordx4 v{216+r}, {vr(72+4*r,4)}, s[42:43] sc1")
stamp(9); fstamp(5, 9)
if OPT["stamps"]:
    A("s_waitcnt vmcnt(0)")
    stamp(10); fstamp(5, 10)
A.label("L_fin")
finish(11)
A.label("L_end")
A("s_endpgm")
A.label("L_code_end")
A(".fill 64, 4, 0xBF800000")

tail = f"""
.section .rodata,"a"
.p2align 6
.amdhsa_kernel {NAME}_kernel
  .amdhsa_next_free_vgpr 256
  .amdhsa_next_free_sgpr 96
  .amdhsa_accum_offset 256
  .amdhsa_group_segment_fixed_size 0
  .amdhsa_kernarg_size 120
  .amdhsa_user_sgpr_count 2
  .amdhsa_user_sgpr_kernarg_segment_ptr 1
  .amdhsa_system_sgpr_workgroup_id_x 1
.end_amdhsa_kernel
"""
probs = check_hazards(A.lines)
for p in probs: print("HAZARD", p, file=sys.stderr)
open(sys.argv[1], "w").write(head + A.text() + tail)
print("written", sys.argv[1], len(A.lines), "lines", file=sys.stderr)
```

```python
import sys
from asmlib import *
NAME = "recurrent_scan__ssm_conv_s4d__moe_arch_mod__prompt"
OPT = dict(stamps=0, ntw=1, ntx=0, ntr=0, ga=7, fine=0, sfirst=0, grp=1, bal=0, xb=4, gbn=0, gan=4, pfbar=1, gul=1, gb1=0, xall=0, inj=0, g1pre=0, warm=0, allb=0, nfirst=0, ea=0, gb2=0, dbl=0, ord=0, nts=0, hint=0, rep8=1, dry=0, nopatch=0, nostore=0)
for a in sys.argv[2:]:
    k, v = a.split("="); OPT[k] = int(v)

G1_OFF, G2_OFF, SEL_OFF, PART_OFF, PART_STRIDE = 0x1000, 0x5000, 0xD000, 0x10000, 7168
HINT_OFF = 0xE000
STAMP_OFF = 0x200000
TROW = 2064
TBX, TBY = 0, 24 * TROW
UB = TBY + 32 * TROW
USTR = 4608
BOXB = UB + 4 * USTR
KB = BOXB + 1024
PD_O, T2_O, T3_O = 0, 5600, 6112
KSTR = 6432
FLG = KB + 4 * KSTR
MARK = FLG + 224
LDS_SIZE = MARK + 2048
UBY = lambda e: 80 * (e >> 3) + 8 * (e & 7)
RED = 81920
XRB, XRS = RED + 32768, 1296
HB = XRB + 8 * XRS
HMAX = HB + 512
PRM = UB + 512
CNT, ZBLK, SELW, LIST = KB, KB + 64, KB + 128, KB + 1024
SPIN_MAX = 1 << 20
DRY = 12288

LOG2E = 0x3FB8AA3B
NLOG2E = LOG2E ^ 0x80000000
INV2PI = 0x3E22F983
A = Asm()
NTW = " nt" if OPT["ntw"] else ""
NTX = " nt" if OPT["ntx"] else ""
NTR = " nt" if OPT["ntr"] else ""
NTS = ["", " nt", " sc0", " sc0 nt"][OPT["nts"]]
def fstamp(g, i):
    if OPT["fine"] == g: A(f"s_memtime s[{64+2*i}:{65+2*i}]")
def FS(g, i):
    return f"s_memtime s[{64+2*i}:{65+2*i}]" if OPT["fine"] == g else ""
def stamp(i):
    if OPT["fine"] and i not in (0, 13): return
    if OPT["stamps"] == 3: A(f"s_memtime s[{64+2*i}:{65+2*i}]")
    elif OPT["stamps"]: A(f"s_memrealtime s[{64+2*i}:{65+2*i}]")
def cstamp(i):
    if OPT["stamps"]: A(f"s_memtime s[{64+2*i}:{65+2*i}]")
def finish(n, dbgmap=None):
    if OPT["stamps"] == 2:
        if n == 13:
            l = A.newlabel("nd")
            stamp(13)
            A("s_load_dwordx2 s[6:7], s[0:1], 104")
            A(f"s_cmp_ge_u32 s2, 8\ns_cbranch_scc1 {l}\ns_cmp_lg_u32 s3, 7\ns_cbranch_scc1 {l}")
            A("s_waitcnt lgkmcnt(0)\ns_mov_b64 exec, 1\ns_lshl_b32 s5, s2, 3\nv_mov_b32 v2, s5")
            A("s_sub_u32 s5, s68, s64\ns_lshl_b32 s5, s5, 16\ns_and_b32 s10, s64, 0xffff\ns_or_b32 s5, s5, s10\nv_mov_b32 v4, s5")
            A("s_sub_u32 s5, s90, s64\ns_lshl_b32 s5, s5, 16\ns_sub_u32 s10, s72, s64\ns_or_b32 s5, s5, s10\nv_mov_b32 v5, s5")
            A("global_store_dwordx2 v2, v[4:5], s[6:7]")
            A.label(l)
    elif OPT["stamps"]:
        stamp(13); cstamp(15)
        A("s_waitcnt lgkmcnt(0)")
        A("s_mov_b64 exec, 1")
        A(f"s_lshl_b32 s5, s2, 3\ns_add_u32 s5, s5, s3\ns_lshl_b32 s5, s5, 6\ns_add_u32 s5, s5, {STAMP_OFF}")
        A("v_mov_b32 v2, s5")
        for i in list(range(n)) + [13, 14, 15]:
            A(f"v_mov_b32 v3, s{64+2*i}")
            A(f"global_store_dword v2, v3, s[42:43] offset:{4*i}")
    A("s_endpgm")

class LdsQ:
    def __init__(self): self.q = []; self.done = 0
    def issue(self, tag): self.q.append(tag)
    def wait(self, tag):
        idx = max(i for i, t in enumerate(self.q) if t == tag)
        if idx < self.done: return
        n = len(self.q) - 1 - idx
        A(f"s_waitcnt lgkmcnt({min(n,15)})")
        self.done = idx + 1 if n <= 15 else len(self.q) - 15
    def all(self):
        A("s_waitcnt lgkmcnt(0)"); self.done = len(self.q)
    def known_all(self): self.done = len(self.q)

def cmul(dst, p, w, t):
    A(f"v_pk_mul_f32 {vr(t,2)}, {vr(p,2)}, {vr(w,2)} op_sel:[0,0] op_sel_hi:[1,0]")
    A(f"v_pk_fma_f32 {vr(dst,2)}, {vr(p,2)}, {vr(w,2)}, {vr(t,2)} op_sel:[1,1,0] op_sel_hi:[0,1,1] neg_lo:[1,0,0]")
LANE63 = "s_mov_b32 exec_lo, 0\ns_mov_b32 exec_hi, 0x80000000"
DPP6 = ["row_shr:1 row_mask:0xf bank_mask:0xf bound_ctrl:0", "row_shr:2 row_mask:0xf bank_mask:0xf bound_ctrl:0",
        "row_shr:4 row_mask:0xf bank_mask:0xf bound_ctrl:0", "row_shr:8 row_mask:0xf bank_mask:0xf bound_ctrl:0",
        "row_bcast:15 row_mask:0xa bank_mask:0xf", "row_bcast:31 row_mask:0xc bank_mask:0xf"]

KD = lambda m: 8 + 4 * m
KS = 76
T2 = lambda d, hh: 80 + 8 * (d - 2) + 4 * hh
T3 = lambda d: 104 + 4 * (d - 4)
BOX = lambda i: 120 + 4 * i
ACC = lambda j: 140 + 4 * j
BR = lambda s: 172 + 4 * s
W1R = 204
BA = lambda i: 208 + 4 * i
SG = lambda i: 232 + 4 * i
vUB, vYW, vFL, vONE, vT0, vT1, vT2 = 244, 245, 246, 247, 248, 249, 250

hdr = open(f"cdna_kernels/{NAME}.s.ref").read().split("; @launch")[0]
head = hdr + f"""; @launch grid=(256,1,1) block=(512,1,1) lds={LDS_SIZE}
.amdgcn_target "amdgcn-amd-amdhsa--gfx950"
.text
.globl {NAME}_kernel
.p2align 8
.type {NAME}_kernel,@function
{NAME}_kernel:
"""

A("s_cmp_ge_u32 s2, 256\ns_cbranch_scc1 L_end")
A("s_load_dwordx16 s[16:31], s[0:1], 0")
A("s_load_dwordx8 s[32:39], s[0:1], 64")
A("s_load_dwordx2 s[40:41], s[0:1], 96")
A("s_load_dwordx2 s[42:43], s[0:1], 112")
stamp(0); cstamp(14)
A(f"""
s_getpc_b64 s[6:7]
L_pc:
s_lshr_b32 s8, s2, 3
v_lshrrev_b32 v2, 6, v0
s_lshl_b32 s5, s8, 10
v_lshl_add_u32 v5, v0, 1, s5
v_readfirstlane_b32 s3, v2
v_min_u32 v5, L_code_end-L_pc, v5
v_and_b32 v5, -4, v5
global_load_dword v252, v5, s[6:7]
v_and_b32 v1, 63, v0
v_lshlrev_b32 v3, 4, v1
v_lshlrev_b32 v4, 2, v1
v_mov_b32 v32, 0
s_and_b32 s45, s3, 3
s_and_b32 s9, s2, 7
s_lshl_b32 s10, s2, 3
s_add_u32 s10, s10, s3
s_mul_i32 s11, s10, 1280
s_lshr_b32 s46, s3, 2
s_mul_i32 s12, s9, 20
s_add_u32 s44, s12, s8
s_lshr_b32 s49, s3, 1
s_lshr_b32 s5, s12, 4
s_and_b32 s6, s3, 1
s_add_u32 s5, s5, s6
s_lshl_b32 s62, s5, 7
s_lshl_b32 s6, s8, 2
s_add_u32 s6, s6, s49
s_mul_i32 s6, s6, {20480 if OPT['xall'] else 10240}
s_add_u32 s5, s62, s6
v_mul_u32_u24 v93, 1280, v1
v_add_u32 v22, s5, v93
s_lshl_b32 s5, s49, 3
s_add_u32 s5, s5, s9
s_min_u32 s5, s5, 26
s_lshl_b32 s5, s5, 7
s_mul_i32 s6, s8, {20*3456}
s_add_u32 s5, s5, s6
v_mul_u32_u24 v23, 3456, v1
v_add_u32 v23, s5, v23
s_lshl_b32 s5, s45, 8
s_lshl_b32 s6, s46, 7
s_add_u32 s5, s5, s6
s_lshl_b32 s6, s44, 10
s_add_u32 s5, s5, s6
v_lshl_add_u32 v6, v1, 1, s5
s_lshr_b32 s5, s5, 8
s_lshl_b32 s5, s5, 1
v_mov_b32 v7, s5
s_waitcnt lgkmcnt(0)
s_add_u32 s6, s16, s11
s_addc_u32 s7, s17, 0
global_load_dwordx4 v[8:11], v3, s[6:7]{NTR}
global_load_dword v12, v4, s[6:7] offset:1024{NTR}
global_load_dwordx4 v[16:19], v3, s[32:33]
global_load_dword v20, v4, s[32:33] offset:1024
global_load_dword v29, v32, s[42:43]
s_bitcmp1_b32 s3, 0
s_cselect_b32 s56, s36, s34
s_cselect_b32 s57, s37, s35
""")
stamp(1)
def early_pf():
    A(f"""
s_mov_b64 exec, {'0xffff' if OPT['xall'] else '0xff'}
global_load_dword v251, v22, s[16:17]{NTX}
s_mov_b64 exec, -1
""")
    if not OPT["gul"]: gu_pf()
def gu_pf():
    A(f"""
s_mov_b64 exec, 0xfffff
global_load_dword v251, v23, s[56:57]{NTW}
s_mov_b64 exec, -1
""")
A(f"""
s_barrier
s_cmp_ge_u32 s2, 160
s_cbranch_scc1 L_nopar
global_load_ushort v40, v6, s[18:19]{NTW}
global_load_ushort v45, v7, s[26:27]
global_load_ushort v41, v6, s[20:21]{NTW}
global_load_ushort v42, v6, s[22:23]{NTW}
global_load_ushort v43, v6, s[24:25]{NTW}
L_nopar:
""")
if OPT["pfbar"]: A("s_barrier")
early_pf()
A("""
v_mov_b32 v33, 0
v_mov_b32 v34, 0
v_mov_b32 v35, 0
s_cbranch_scc1 L_notconv
""")
def row_loads():
    A(f"""
s_add_u32 s6, s16, s11
s_addc_u32 s7, s17, 0
global_load_dwordx4 v[8:11], v3, s[6:7]{NTR}
global_load_dword v12, v4, s[6:7] offset:1024{NTR}
global_load_dwordx4 v[16:19], v3, s[32:33]
global_load_dword v20, v4, s[32:33] offset:1024
""")
def stats_pre():
    A("s_mov_b32 s14, 0x9E3779B1\ns_mov_b32 s47, 0x3f803f80\ns_lshl_b32 s11, s10, 3\ns_sub_u32 s13, 2047, s10")
    A(f"v_mov_b32 v33, s11\nv_add_u32 v34, {G1_OFF}, v33\nv_lshlrev_b32 v35, 1, v33\nv_add_u32 v35, {G2_OFF}, v35\nv_mov_b32 v36, 0x3acccccd")
def make_tag():
    pass
def stats(younger, cnt=False):
    A(f"s_waitcnt vmcnt({younger})")
    stamp(2)
    A("s_setprio 2")
    for i in range(5):
        c = (lambda r: "0" if i == 0 else r)
        A(f"v_dot2_f32_bf16 v24, v{8+i}, s47, {c('v24')}")
        A(f"v_dot2_f32_bf16 v25, v{8+i}, v{8+i}, {c('v25')}")
        A(f"v_dot2_f32_bf16 v26, v{8+i}, v{16+i}, {c('v26')}")
        A(f"v_dot2_f32_bf16 v27, v{16+i}, s47, {c('v27')}")
    A(f"""
s_nop 0
v_permlane32_swap_b32 v24, v25
s_nop 0
v_permlane32_swap_b32 v26, v27
v_add_f32 v24, v24, v25
v_add_f32 v26, v26, v27
s_waitcnt vmcnt({younger-1})
v_mul_lo_u32 v29, v29, s14
v_permlane16_swap_b32 v24, v26
v_add_f32 v24, v24, v26
v_add_u32 v29, 0x7F4A7C15, v29
v_mov_b32 v31, v29
v_add_f32_dpp v24, v24, v24 row_shr:1 row_mask:0xf bank_mask:0xf bound_ctrl:0
v_readfirstlane_b32 s4, v29
s_nop 0
v_add_f32_dpp v24, v24, v24 row_shr:2 row_mask:0xf bank_mask:0xf bound_ctrl:0
s_nop 1
v_add_f32_dpp v24, v24, v24 row_shr:4 row_mask:0xf bank_mask:0xf bound_ctrl:0
s_nop 1
v_add_f32_dpp v24, v24, v24 row_shr:8 row_mask:0xf bank_mask:0xf bound_ctrl:0
s_mov_b64 exec, 1
v_readlane_b32 s6, v24, 15
v_readlane_b32 s7, v24, 47
v_readlane_b32 s14, v24, 31
v_readlane_b32 s15, v24, 63
v_mul_f32 v24, s6, v36
v_mul_f32 v25, s7, v36
v_mov_b32 v26, s14
v_fma_f32 v25, -v24, v24, v25
v_max_f32 v25, 0, v25
v_cvt_pk_bf16_f32 v28, v24, v25
v_and_b32 v25, 0xffff0000, v28
v_lshlrev_b32 v24, 16, v28
v_add_f32 v25, 0x3727c5ac, v25
v_cvt_pk_bf16_f32 v25, v25, v25
v_fma_f32 v26, -v24, s15, v26
v_and_b32 v25, 0xffff0000, v25
v_sqrt_f32 v25, v25
""")
    A("s_nop 0")
    A("""
v_cvt_pk_bf16_f32 v28, v24, v25
v_and_b32 v25, 0xffff0000, v28
v_rcp_f32 v25, v25
global_store_dwordx2 v34, v[28:29], s[42:43] sc1
v_mul_f32 v26, v26, v25
v_cvt_pk_bf16_f32 v26, v26, v26
v_ashrrev_i32 v27, 31, v26
v_or_b32 v27, 0x80000000, v27
v_xor_b32 v26, v26, v27
v_and_b32 v26, 0xffff0000, v26
v_or_b32 v30, s13, v26
global_store_dwordx4 v35, v[28:31], s[42:43] sc1
""")
    if cnt: A(f"ds_add_u32 v{vFL}, v{vONE} offset:32")
    A("s_mov_b64 exec, -1\ns_setprio 0")
    stamp(3)
A(f"""
s_and_b32 s6, s8, 15
s_lshl_b32 s6, s6, 1
s_and_b32 s7, s49, 1
s_add_u32 s6, s6, s7
s_add_u32 s6, s6, 32
s_mul_i32 s6, s6, 40960
s_add_u32 s5, s62, s6
v_add_u32 v93, s5, v93
v_lshlrev_b32 v7, 4, v0
v_add_u32 v7, {KB}, v7
ds_write_b128 v7, v[32:35]
ds_write_b128 v7, v[32:35] offset:8192
ds_write_b128 v7, v[32:35] offset:16384
v_min_u32 v7, {LDS_SIZE-16-24576}, v7
ds_write_b128 v7, v[32:35] offset:24576
s_mul_i32 s53, s45, {USTR}
s_add_u32 s53, s53, {UB}
v_lshl_add_u32 v7, v1, 3, s53
ds_write_b64 v7, v[32:33]
s_add_u32 s5, s45, 1
s_sub_u32 s13, s5, 32
s_lshl_b32 s5, s5, 1
v_add_u32 v36, s13, v1
v_add_u32 v37, 1, v36
v_mov_b32 v38, 0x3f800000
v_mov_b32 v39, 0x3f80
v_cmp_ge_u32 s[6:7], s5, v36
v_cmp_ge_u32 s[14:15], s5, v37
s_lshl_b32 s13, s45, 8
s_add_u32 s13, s13, {BOXB}
v_cndmask_b32 v38, 0, v38, s[6:7]
v_cndmask_b32 v39, 0, v39, s[14:15]
v_add_u32 v7, s13, v4
v_or_b32 v38, v38, v39
ds_write_b32 v7, v38
v_and_b32 v2, 15, v1
v_lshrrev_b32 v37, 4, v1
v_lshlrev_b32 v37, 3, v37
v_sub_u32 v37, v2, v37
v_lshlrev_b32 v37, 2, v37
v_add_u32 v37, {BOXB+96}, v37
s_mul_i32 s5, s45, {256*1280}
s_lshl_b32 s6, s44, 3
s_add_u32 s5, s5, s6
v_mul_u32_u24 v94, 5120, v1
v_add_u32 v94, s5, v94
s_lshl_b32 s55, s45, 1
s_sub_u32 s55, 7, s55
s_mul_i32 s5, s55, {256*1280}
v_add_u32 v95, s5, v94
s_lshl_b32 s5, s45, 9
s_lshl_b32 s6, s46, 8
s_add_u32 s50, s5, s6
s_add_u32 s51, s50, {TBY}
s_mov_b32 m0, s51
v_mov_b32 v84, 0x3f80
v_mov_b32 v44, {LOG2E:#x}
v_mov_b32 v{vFL}, {FLG}
v_mov_b32 v{vONE}, 1
s_lshr_b32 s63, s3, 2
""")
stats_pre()
A(f"""
s_lshl_b32 s5, s44, 3
s_waitcnt lgkmcnt(0)
s_barrier
s_load_dwordx2 s[60:61], s[28:29], s5
""")
if OPT["gul"] == 1: gu_pf()
fstamp(1, 1)
MK3 = 224
for dst, arr, offs in [(BOX(0), 0, 19), (BOX(1), 1, 15), (BOX(2), 0, 11), (BOX(3), 2, 15), (BOX(4), 3, 15), (KS, 0, 20), (MK3, 0, 22)]:
    o = arr * 64 + offs
    A(f"ds_read2_b32 {vr(dst,2)}, v37 offset0:{o} offset1:{o-2}")
    A(f"ds_read2_b32 {vr(dst+2,2)}, v37 offset0:{o-4} offset1:{o-6}")
def setup():
    A(f"""
s_waitcnt vmcnt({4 - (OPT['gul'] == 2)})
v_lshlrev_b32 v40, 16, v40
v_lshlrev_b32 v45, 16, v45
v_mul_f32 v40, v44, v40
v_mul_f32 v44, v45, v44
v_exp_f32 v40, v40
v_exp_f32 v44, v44
v_lshlrev_b32 v41, 16, v41
v_lshlrev_b32 v42, 16, v42
v_cvt_pk_bf16_f32 v40, v44, v40
v_lshlrev_b32 v43, 16, v43
v_lshlrev_b32 v44, 16, v40
v_and_b32 v40, 0xffff0000, v40
v_mul_f32 v41, v41, v44
v_mul_f32 v40, v40, v44
v_add_f32 v44, v44, v44
v_mul_f32 v40, {NLOG2E:#x}, v40
v_mul_f32 v41, {INV2PI:#x}, v41
v_mul_f32 v48, v42, v44
v_mul_f32 v49, v43, v44
v_mul_f32 v56, 0x41000000, v40
v_mul_f32 v58, 0x41000000, v41
v_mul_f32 v57, 0x43800000, v40
v_mul_f32 v59, 0x43800000, v41
v_fract_f32 v58, v58
v_fract_f32 v60, v41
v_fract_f32 v59, v59
v_exp_f32 v56, v56
v_cos_f32 v52, v58
v_sin_f32 v53, v58
v_exp_f32 v61, v40
v_cos_f32 v50, v60
v_sin_f32 v51, v60
v_exp_f32 v57, v57
v_cos_f32 v54, v59
v_sin_f32 v55, v59
v_mul_f32 v52, v52, v56
v_mul_f32_e64 v53, -v53, v56
v_mul_f32 v50, v50, v61
v_mul_f32 v51, v51, v61
v_mul_f32 v54, v54, v57
v_mul_f32 v55, v55, v57
""")
stats(8 - (OPT["gul"] == 2), cnt=True); fstamp(1, 2); setup()
fstamp(1, 3)
def gather(t, lo=0, hi=4):
    for r in range(lo, hi):
        A(f"global_load_dwordx2 v[{96+8*t+2*r}:{97+8*t+2*r}], v{94+t}, s[16:17] offset:{1280*r}")
def gather_at(pos):
    if OPT["ga"] == pos:
        l = A.newlabel("ng")
        A(f"s_cmp_lt_u32 s3, 4\ns_cbranch_scc1 {l}")
        gather(0, 0, OPT["gan"])
        A.label(l)
    if OPT["xb"] == pos:
        l = A.newlabel("nx")
        A(f"s_cmp_ge_u32 s3, 4\ns_cbranch_scc1 {l}")
        A(f"s_mov_b32 exec_hi, 0\nglobal_load_dword v251, v93, s[16:17]{NTX}\ns_mov_b64 exec, -1")
        A.label(l)
gather_at(0)
pend = []
GRP = OPT["grp"]
tt = [0]
def emit_row(reg, rows):
    t = 84 + (tt[0] % (2 * GRP)); tt[0] += 1
    if reg is not None: A(f"v_cvt_pk_bf16_f32 v{t}, v{reg}, v{reg+1}")
    for r in rows: pend.append(f"ds_write_addtid_b32 v{t} offset:{r*TROW}")
    if tt[0] % GRP == 0: flush_rows()
def flush_rows():
    for p in pend: A(p)
    pend.clear()
emit_row(None, [0]); emit_row(52, [1])
cur = 52
CHK = {5: 0, 9: 0, 13: 0, 17: 0, 22: 0, 29: 1} if OPT["ga"] == 7 else {}
for c in range(2, 32):
    dst = 64 + 2 * (c % 2)
    if c + 3 in CHK and not CHK[c + 3]: A(f"ds_read_b32 v{vT2}, v{vFL} offset:32")
    if c in CHK:
        l = A.newlabel("gc")
        A(f"s_cmp_eq_u32 s63, 0\ns_cbranch_scc1 {l}")
        if not CHK[c]:
            A(f"s_waitcnt lgkmcnt(3)\nv_readfirstlane_b32 s5, v{vT2}\ns_cmp_lt_u32 s5, 8\ns_cbranch_scc1 {l}")
        A("s_mov_b32 s63, 0")
        fstamp(7, 1)
        gather(0, 0, OPT["gan"])
        fstamp(7, 2)
        A.label(l)
    cmul(dst, cur, 52, dst); emit_row(dst, [c]); cur = dst
    if c == 15: gather_at(3)
flush_rows()
fstamp(1, 4)
A("s_mov_b32 m0, s50")
gather_at(1)
if OPT["gbn"]:
    A("s_cmp_lt_u32 s3, 4\ns_cbranch_scc1 L_ngb")
    gather(1, 0, OPT["gbn"])
    A.label("L_ngb")
cmul(56, 50, 50, 56)
emit_row(48, [0])
cur = 48
rows0 = {1: [1], 2: [2], 3: [3], 4: [4, 8], 5: [5], 6: [6], 7: [7], 8: [12]}
for p in range(1, 9):
    dst = 64 + 2 * (p % 2)
    cmul(dst, cur, 50, dst); emit_row(dst, rows0[p]); cur = dst
for dst, src, w, rows in [(68, 48, 54, [9]), (70, 68, 56, [10]), (68, 70, 56, [11, 13]), (70, 68, 56, [14]), (72, 70, 56, [15]),
                          (70, 68, 54, [16]), (74, 72, 54, [17]), (68, 70, 54, [20]), (72, 74, 54, [21]),
                          (74, 72, 54, [18]), (72, 74, 54, [19]), (74, 72, 54, [22]), (72, 74, 54, [23])]:
    cmul(dst, src, w, dst); emit_row(dst, rows)
flush_rows()
fstamp(1, 5)
gather_at(4)
A("s_cmp_ge_u32 s3, 4\ns_cbranch_scc1 L_helper")

q = LdsQ()
A(f"""
v_and_b32 v2, 31, v1
v_lshrrev_b32 v3, 5, v1
v_mul_u32_u24 v5, {TROW}, v2
v_subrev_u32 v6, {16*TROW}, v5
v_cmp_le_u32 vcc, 24, v2
s_lshl_b32 s5, s45, 9
v_lshl_add_u32 v7, v3, 4, s5
v_cndmask_b32 v6, v5, v6, vcc
v_add_u32 v5, v5, v7
v_add_u32 v6, v6, v7
v_add_u32 v5, {TBY}, v5
s_waitcnt lgkmcnt(0)
s_barrier
""")
stamp(4); fstamp(1, 6); fstamp(2, 1)
NB = 6
def kg_issue(s):
    b = 156 + 8 * (s % NB)
    A(f"ds_read_b128 {vr(b,4)}, v6 offset:{32*s}"); q.issue(("ka", s))
    A(f"ds_read_b128 {vr(b+4,4)}, v5 offset:{32*s}"); q.issue(("kb", s))
for s in range(NB): kg_issue(s)
filler = f"""
s_lshl_b32 s6, s45, 4
s_lshr_b64 s[60:61], s[60:61], s6
s_lshl_b32 s60, s60, 16
s_mul_i32 s52, s45, {KSTR}
s_add_u32 s52, s52, {KB}
v_mul_u32_u24 v208, 80, v2
v_lshl_add_u32 v208, v3, 5, v208
v_add_u32 v208, s52, v208
v_add_u32 v207, 2560, v208
v_lshl_add_u32 v206, v3, 4, v208
v_add_u32 v205, 2560, v206
v_lshlrev_b32 v209, 2, v2
v_lshl_add_u32 v209, v3, 7, v209
v_add_u32 v209, s52, v209
v_lshlrev_b32 v210, 1, v2
v_lshl_add_u32 v210, v3, 7, v210
v_add_u32 v210, s52, v210
v_mov_b32 v211, s52
v_mov_b32 v45, s60
v_cmp_eq_u32 vcc, 0, v1
v_and_b32 v232, 15, v1
v_lshrrev_b32 v233, 4, v1
v_cndmask_b32 v45, 0, v45, vcc
v_lshlrev_b32 v234, 3, v233
v_sub_u32 v234, v232, v234
v_add_u32 v240, 25, v234
v_add_u32 v234, 29, v234
v_lshrrev_b32 v241, 3, v234
v_lshl_add_u32 v234, v234, 3, s52
v_lshl_add_u32 v234, v241, 4, v234
v_lshrrev_b32 v241, 3, v240
v_lshl_add_u32 v240, v240, 3, s52
v_lshl_add_u32 v240, v241, 4, v240
v_lshlrev_b32 v235, 2, v233
v_sub_u32 v235, v232, v235
v_add_u32 v235, 12, v235
v_lshl_add_u32 v236, v235, 2, s52
v_lshl_add_u32 v235, v235, 3, s52
v_add_u32 v236, {T3_O}, v236
v_lshlrev_b32 v{vUB}, 5, v232
v_lshl_add_u32 v{vUB}, v233, 4, v{vUB}
v_add_u32 v{vUB}, s53, v{vUB}
v_lshrrev_b32 v{vT0}, 1, v232
v_add_u32 v{vT0}, v{vT0}, v233
v_and_b32 v{vT0}, 3, v{vT0}
v_and_b32 v{vT1}, 7, v232
v_lshlrev_b32 v{vT1}, 6, v{vT1}
v_lshl_add_u32 v{vT1}, v{vT0}, 4, v{vT1}
v_lshrrev_b32 v{vT0}, 3, v232
v_mul_u32_u24 v{vT0}, {TROW}, v{vT0}
v_add3_u32 v{vYW}, v{vT0}, v{vT1}, s5
""".strip().split("\n")
for i in range(4): filler.append(f"v_and_b32 v{KS+i}, v{KS+i}, v{BOX(0)+i}")
for r in [KS + i for i in range(4)] + [MK3 + i for i in range(4)]:
    filler.append(f"v_pk_lshlrev_b16 v{r}, 2, v{r} op_sel_hi:[0,1]")
    filler.append(f"v_pk_ashrrev_i16 v{r}, 15, v{r} op_sel_hi:[0,1]")
for _ in range(15): A(filler.pop(0))
for s in range(16):
    q.wait(("kb", s))
    b = 156 + 8 * (s % NB)
    A(f"v_mfma_f32_32x32x16_bf16 v[140:155], {vr(b,4)}, {vr(b+4,4)}, {'0' if s == 0 else 'v[140:155]'}")
    if s + NB < 16: kg_issue(s + NB)
    for _ in range(3 if s < 15 else 12):
        if filler: A(filler.pop(0))
        elif s == 15: A.nop(1)
while filler: A(filler.pop(0))
fstamp(2, 2)
K = lambda i: f"v{140+i}"
A(f"""
v_add_f32 {K(0)}, {K(0)}, v45
v_cvt_pk_bf16_f32 v215, {K(2)}, {K(1)}
v_cvt_pk_bf16_f32 v212, {K(3)}, {K(2)}
v_cvt_pk_bf16_f32 v214, {K(4)}, {K(3)}
v_cvt_pk_bf16_f32 v213, {K(1)}, {K(0)}
v_cvt_pk_bf16_f32 v217, {K(5)}, {K(5)}
v_cvt_pk_bf16_f32 v219, {K(6)}, {K(5)}
v_cvt_pk_bf16_f32 v216, {K(7)}, {K(6)}
v_cvt_pk_bf16_f32 v218, {K(7)}, {K(7)}
v_cvt_pk_bf16_f32 v222, {K(0)}, 0
v_cvt_pk_bf16_f32 v220, {K(8)}, {K(9)}
v_cvt_pk_bf16_f32 v221, {K(10)}, {K(11)}
v_cvt_pk_bf16_f32 v223, {K(9)}, {K(9)}
ds_write_b128 v208, v[212:215] offset:160
ds_write2_b32 v206, v213, v215 offset0:32 offset1:34
ds_write2_b32 v208, v212, v214 offset0:45 offset1:47
ds_write_b128 v207, v[216:219] offset:160
ds_write2_b32 v205, v217, v219 offset0:32 offset1:34
ds_write2_b32 v207, v216, v218 offset0:45 offset1:47
s_mov_b64 exec, 1
ds_write2_b32 v211, v222, v222 offset0:{UBY(13)//4} offset1:{UBY(15)//4+1}
s_mov_b64 exec, -1
ds_write_b32 v209, v220 offset:{T2_O+128}
ds_write_b16 v210, v221 offset:{T3_O+64}
ds_write_b16_d16_hi v210, v221 offset:{T3_O+64+64}
""")
fstamp(2, 3)
order = [16, 0, 8] + [x for i in range(1, 8) for x in (i, 8 + i)]
for m in order:
    A(f"ds_read_b64 {vr(KD(m),2)}, v234 offset:{320*m}")
    A(f"ds_read_b64 {vr(KD(m)+2,2)}, v240 offset:{320*m}")
for d in (2, 3, 4):
    for hh in (0, 1):
        o = 16 * d - 28 - 2 * hh
        A(f"ds_read_b64 {vr(T2(d,hh),2)}, v235 offset:{T2_O+8*o}")
        A(f"ds_read_b64 {vr(T2(d,hh)+2,2)}, v235 offset:{T2_O+8*(o-1)}")
for d in (4, 5, 6, 7):
    o = 16 * d - 60
    A(f"ds_read2_b32 {vr(T3(d),2)}, v236 offset0:{o} offset1:{o-1}")
    A(f"ds_read2_b32 {vr(T3(d)+2,2)}, v236 offset0:{o-2} offset1:{o-3}")
A("v_readlane_b32 s6, v218, 63\nv_readlane_b32 s7, v223, 63\ns_waitcnt lgkmcnt(15)")
for i in range(4): A(f"v_and_or_b32 v{KD(16)+i}, v{MK3+i}, s6, v{KD(16)+i}")
for i in range(4): A(f"v_and_b32 v{KS+i}, s7, v{KS+i}")
stamp(5); fstamp(2, 4)
if OPT['fine'] == 2: A('s_waitcnt lgkmcnt(0)')
fstamp(2, 5)
def wait_flag(addr, off, val, nm, tmp):
    l = A.newlabel(nm); lo = A.newlabel(nm + "o")
    A(f"s_mov_b32 s54, {SPIN_MAX}")
    A.label(l)
    A(f"ds_read_b32 v{tmp}, v{addr} offset:{off}")
    A("s_waitcnt lgkmcnt(0)")
    A(f"v_readfirstlane_b32 s5, v{tmp}")
    A(f"s_sub_u32 s54, s54, 1\ns_cbranch_scc1 {lo}")
    A(f"s_cmp_lt_u32 s5, {val}\ns_cbranch_scc1 {l}")
    A.label(lo)
wait_flag(vFL, 0, 1, "u0", vT2); q.known_all()
stamp(6)
ACC = lambda j: 140 + 4 * (j % 4)
SG2 = lambda b, hh: [156, 164, 232][b % 3] + 4 * hh
SG3 = lambda b: [240, 252, 204, 224][b]
WR = [196, 200]
NBR = 6
BA = lambda i: 208 + 4 * i if i < 4 else [None] * 4 and (228 if i == 4 else 4)
loads = []
for j in range(8):
    loads.append(("B", 8 * j))
    if j >= 2: loads += [("W0", j - 2), ("W1", j - 2)]
    for i in range(1, 8): loads.append(("B", 8 * j - i))
slot = {}
ring = 0
for k in loads:
    if k[0] == "B": slot[k] = BR(ring % NBR); ring += 1
    else: slot[k] = WR[int(k[0][1])]
touched = set()
prog = []
def MF(d, a, b, c, need=None):
    prog.append(dict(text=f"v_mfma_f32_16x16x32_bf16 {vr(d,4)}, {vr(a,4)}, {vr(b,4)}, {c}", need=need, valu=[], ds=[]))
def mf(j, a, b, need=None):
    c = vr(ACC(j), 4) if j in touched else "0"; touched.add(j)
    MF(ACC(j), a, b, c, need)
ydone = {}
for j in range(8):
    k0 = ("B", 8 * j)
    mf(j, KD(0), slot[k0], k0)
    if j + 1 <= 7: mf(j + 1, KD(8), slot[k0])
    cv = []; old = []; new = []
    if j >= 2:
        b = j - 2; w0, w1 = WR
        for i, bx in ((0, 0), (1, 1), (2, 2)) + (((4, 3),) if b <= 3 else ()):
            MF(BA(i), w0, BOX(bx), "0", ("W0", b))
        mf(j, KD(16), w0)
        for i, bx in ((3, 1),) + (((5, 4),) if b <= 3 else ()):
            MF(BA(i), w1, BOX(bx), "0", ("W1", b))
        for r in range(4): cv.append(f"v_cvt_pk_bf16_f32 v{SG2(b,r//2)+2*(r%2)}, v{BA(0)+r}, v{BA(1)+r}")
        for r in range(4): cv.append(f"v_cvt_pk_bf16_f32 v{SG2(b,r//2)+2*(r%2)+1}, v{BA(2)+r}, v{BA(3)+r}")
        if b <= 3:
            for r in range(4): cv.append(f"v_cvt_pk_bf16_f32 v{SG3(b)+r}, v{BA(4)+r}, v{BA(5)+r}")
        for d in (4, 3):
            if j - d >= 0: old += [(j, SG2(j - d, 0), T2(d, 0)), (j, SG2(j - d, 1), T2(d, 1))]
        for d in (7, 6, 5, 4):
            if j - d >= 0: old.append((j, SG3(j - d), T3(d)))
        new = [(j, SG2(b, 0), T2(2, 0)), (j, SG2(b, 1), T2(2, 1))]
        if b <= 3: mf(j + 2, KS, w0)
    for f in old: mf(*f)
    start = len(prog)
    for i in range(1, 8):
        k = ("B", 8 * j - i)
        mf(j, KD(i), slot[k], k)
        if i == 7:
            for f in new: mf(*f)
            ydone[j] = len(prog) - 1
        if j + 1 <= 7: mf(j + 1, KD(8 + i), slot[k])
    if cv:
        lastbox = max(i for i, e in enumerate(prog[:start]) if e["text"].rstrip().endswith(", 0") and f"v[{BA(3)}:" in e["text"] or f"v[{BA(5)}:" in e["text"].split(",")[0])
        pos = lastbox + 4
        per = 2 if j == 7 else 1
        while cv:
            for _ in range(per):
                if cv: prog[pos]["valu"].append(cv.pop(0))
            pos += 1
AHEAD = 4
first_use = {}
for i, e in enumerate(prog):
    if e["need"] and e["need"] not in first_use: first_use[e["need"]] = i
def ld_text(k):
    off = {"B": 480 + 64 * k[1], "W0": 480 + 512 * k[1], "W1": 464 + 512 * k[1]}[k[0]]
    return f"ds_read_b128 {vr(slot[k],4)}, v{vUB} offset:{off}"
last_use = {}
for i, e in enumerate(prog):
    for k in loads:
        pass
import re as _re
def uses(e, reg): return f"v[{reg}:{reg+3}]" in e["text"].split(",", 1)[1]
issue_at = {}
for n, k in enumerate(loads):
    if n <= AHEAD: continue
    p = first_use[loads[n - AHEAD - 1]]
    prev = [m for m in range(n) if slot[loads[m]] == slot[k]]
    if prev:
        lu = max(i for i in range(first_use[loads[prev[-1]]], first_use[k]) if uses(prog[i], slot[k]))
        p = max(p, lu)
    if n > AHEAD + 1: p = max(p, issue_at[loads[n - 1]])
    issue_at[k] = p
    prog[p]["ds"].append(("ld", k))
YD = 6
for j in range(7):
    prog[ydone[j] + YD]["ds"].append(("y", j)); prog[ydone[j] + YD + 1]["ds"].append(("yf", j))
for j in range(1, 8): prog[max(0, issue_at[("B", 8 * j)] - 6)]["ds"].insert(0, ("flag", j))
def ywrite(j):
    A(f"ds_write_b128 v{vYW}, {vr(ACC(j),4)} offset:{2*TROW*j}"); q.issue("yw")
def yflag(j):
    A(f"ds_write_b32 v{vT1}, v{vONE} offset:{48+16*j}"); q.issue("yf")
A(f"s_lshl_b32 s5, s45, 2\nv_add_u32 v{vT1}, s5, v{vFL}")
A(f"s_lshr_b32 s5, s44, 5\ns_lshl_b32 s5, s5, 8\ns_add_u32 s5, s5, {HINT_OFF}\nv_min_u32 v2, 53, v1\nv_lshl_add_u32 v2, v2, 2, s5")
A("s_waitcnt vmcnt(0)")
for k in loads[:AHEAD + 1]: A(ld_text(k)); q.issue(k)
slow = []
for i, e in enumerate(prog):
    if e["need"] and e["need"][0] == "B" and e["need"][1] % 8 == 0 and first_use[e["need"]] == i : fstamp(3, 1 + e["need"][1] // 8)
    if e["need"]: q.wait(e["need"])
    chk = [d for d in e["ds"] if d[0] == "ld" and d[1][0] == "B" and d[1][1] % 8 == 0 and d[1][1] > 0]
    if chk:
        q.wait(("flag", chk[0][1][1] // 8)); A(f"v_readfirstlane_b32 s5, v{vT2}")
    A(e["text"])
    for d in e["ds"]:
        if d[0] == "flag":
            A(f"ds_read_b32 v{vT2}, v{vFL} offset:{4*d[1]}"); q.issue(d)
        elif d[0] == "ld":
            if d in chk:
                jj = d[1][1] // 8
                A(f"s_cmp_eq_u32 s5, 0\ns_cbranch_scc1 L_uslow{jj}\nL_uok{jj}:")
                slow.append(jj)
            A(ld_text(d[1])); q.issue(d[1])
        elif d[0] == "y": ywrite(d[1])
        else: yflag(d[1])
    for v in e["valu"]: A(v)
if OPT["hint"]: A("global_load_dword v3, v2, s[42:43] sc1")
A.nop(8); ywrite(7); yflag(7)
stamp(7); fstamp(3, 9)
if OPT["nopatch"]: A("s_endpgm")
XST = 16 * TROW
A(f"""
s_mul_i32 s5, s44, {PART_STRIDE}
s_lshl_b32 s6, s45, 5
s_add_u32 s5, s5, s6
s_add_u32 s5, s5, {PART_OFF}
v_and_b32 v8, 31, v1
v_lshrrev_b32 v9, 5, v1
v_lshlrev_b32 v8, 7, v8
v_lshl_add_u32 v8, v9, 4, v8
v_add_u32 v8, s5, v8
s_and_b32 s5, s4, 0xff
v_mov_b32 v12, s5
v_mov_b32 v20, s5
s_bfe_u32 s5, s4, 0x80008
v_mov_b32 v13, s5
v_mov_b32 v21, s5
s_bfe_u32 s5, s4, 0x80010
v_mov_b32 v14, s5
v_mov_b32 v22, s5
s_lshr_b32 s5, s4, 24
v_mov_b32 v15, s5
v_mov_b32 v23, s5
v_add_u32 v10, 4096, v8
s_mov_b32 s56, 0x3fffff
s_mov_b32 s57, 0x3fffff
""")
def part_loads():
    A("global_load_dwordx4 v[16:19], v8, s[42:43] sc1\ns_mov_b64 exec, s[56:57]\nglobal_load_dwordx4 v[20:23], v10, s[42:43] sc1\ns_mov_b64 exec, -1")
if OPT["hint"]:
    lh = A.newlabel("hint"); lho = A.newlabel("hinto")
    A(f"""
s_mov_b32 s54, {SPIN_MAX}
s_waitcnt vmcnt(0)
{lh}:
v_cmp_ne_u32 vcc, s4, v3
s_cbranch_vccz {lho}
s_sub_u32 s54, s54, 1
s_cbranch_scc1 {lho}
global_load_dword v3, v2, s[42:43] sc1
s_waitcnt vmcnt(0)
s_branch {lh}
{lho}:
""")
part_loads()
lw = A.newlabel("st"); lwo = A.newlabel("sto")
A(f"""
s_lshl_b32 s5, s45, 3
v_lshl_add_u32 v24, v9, 2, s5
v_add_u32 v24, v24, v{vFL}
v_bfe_u32 v25, v1, 4, 1
s_mov_b32 s54, {SPIN_MAX}
{lw}:
ds_read_b128 v[28:31], v{vFL} offset:176
ds_read_b128 v[32:35], v{vFL} offset:{48+16*7}
ds_read_b32 v26, v24 offset:192
s_sub_u32 s54, s54, 1
s_cbranch_scc1 {lwo}
s_waitcnt lgkmcnt(0)
v_and_b32 v28, v28, v29
v_and_b32 v30, v30, v31
v_and_b32 v32, v32, v33
v_and_b32 v34, v34, v35
v_and_b32 v28, v28, v30
v_and_b32 v32, v32, v34
v_and_b32 v28, v28, v32
v_cmp_eq_u32 vcc, 0, v28
s_cbranch_vccnz {lw}
{lwo}:
v_and_b32 v27, 0x7ff, v26
v_sub_u32 v27, 2047, v27
v_mul_u32_u24 v28, {2*USTR}, v25
v_lshl_add_u32 v28, v27, 1, v28
v_add_u32 v28, {UB+512}, v28
v_lshlrev_b32 v29, 3, v27
v_lshl_add_u32 v29, v25, 2, v29
v_lshrrev_b32 v30, 7, v27
v_mul_u32_u24 v30, {TROW}, v30
v_bfe_u32 v31, v27, 4, 3
v_lshl_add_u32 v30, v31, 6, v30
v_lshrrev_b32 v31, 2, v27
v_lshrrev_b32 v32, 5, v27
v_add_u32 v31, v31, v32
v_and_b32 v31, 3, v31
v_lshl_add_u32 v30, v31, 4, v30
v_and_b32 v31, 3, v27
v_lshl_add_u32 v30, v31, 2, v30
v_lshl_add_u32 v30, v25, 10, v30
ds_read_u16 v36, v28
ds_read_u16 v37, v28 offset:{USTR}
ds_read_b32 v38, v29 offset:{XST}
ds_read_b32 v40, v30
ds_read_b32 v41, v30 offset:512
s_lshl_b32 s5, s44, 3
v_mul_u32_u24 v42, 1280, v27
v_lshl_add_u32 v42, v25, 2, v42
v_add_u32 v42, s5, v42
v_not_b32 v31, v26
v_ashrrev_i32 v31, 31, v31
v_or_b32 v31, 0x80000000, v31
v_xor_b32 v31, v26, v31
v_and_b32 v31, 0xffff0000, v31
v_mul_f32 v31, {NLOG2E:#x}, v31
v_exp_f32 v31, v31
s_waitcnt lgkmcnt(0)
v_add_f32 v31, 1.0, v31
v_rcp_f32 v43, v31
v_lshlrev_b32 v36, 16, v36
v_lshlrev_b32 v37, 16, v37
v_and_b32 v39, 0xffff0000, v38
v_lshlrev_b32 v38, 16, v38
s_mov_b32 s54, {SPIN_MAX}
""")
lP = A.newlabel("par"); lPo = A.newlabel("paro")
A.label(lP)
A("s_waitcnt vmcnt(0)")
for k in range(8): A(f"v_xor_b32 v{44+k}, v{16+k}, v{12+k%4}")
A(f"""
v_or3_b32 v52, v44, v45, v46
v_or3_b32 v53, v47, v48, v49
v_or3_b32 v52, v52, v50, v51
v_or_b32 v52, v52, v53
v_and_b32 v52, 0xff, v52
v_cmp_ne_u32 vcc, 0, v52
s_cbranch_vccz {lPo}
s_sub_u32 s54, s54, 1
s_cbranch_scc1 {lPo}
""")
part_loads()
A(f"s_branch {lP}")
A.label(lPo)
stamp(8)
for k in range(4): A(f"v_add_f32 v{44+k}, v{44+k}, v{48+k}")
A("s_nop 0\nv_permlane16_swap_b32 v44, v46\nv_permlane16_swap_b32 v45, v47\nv_add_f32 v44, v44, v46\nv_add_f32 v45, v45, v47")
for sh in (1, 2, 4, 8):
    A(f"s_nop 0\nv_add_f32_dpp v44, v44, v44 row_shr:{sh} row_mask:0xf bank_mask:0xf bound_ctrl:0\nv_add_f32_dpp v45, v45, v45 row_shr:{sh} row_mask:0xf bank_mask:0xf bound_ctrl:0")
A(f"""
v_fma_f32 v44, v44, v43, v36
v_fma_f32 v45, v45, v43, v37
v_mul_f32 v46, {NLOG2E:#x}, v44
v_mul_f32 v47, {NLOG2E:#x}, v45
v_exp_f32 v46, v46
v_exp_f32 v47, v47
v_mul_f32 v44, v44, v40
v_mul_f32 v45, v45, v41
v_add_f32 v46, 1.0, v46
v_add_f32 v47, 1.0, v47
v_rcp_f32 v46, v46
v_rcp_f32 v47, v47
s_mov_b32 exec_lo, 0x80008000
s_mov_b32 exec_hi, 0x80008000
v_fma_f32 v44, v44, v46, v38
v_fma_f32 v45, v45, v47, v39
v_cvt_pk_bf16_f32 v44, v44, v45
global_store_dword v42, v44, s[40:41]
""")
stamp(9)
if OPT["stamps"]:
    A("s_waitcnt vmcnt(0)")
    stamp(10)
finish(11)
for jj in slow:
    A.label(f"L_uslow{jj}")
    wait_flag(vFL, 4 * jj, 1, "us", vT2)
    A(f"s_branch L_uok{jj}")
A.label("L_helper")
XF = [112, 144]; GG = [128, 160]; XR = [96, 104]; ST = [8, 16]; UU = [24, 32]
A(f"""
s_lshl_b32 s5, s45, 11
s_add_u32 s5, s5, {G1_OFF}
v_lshl_add_u32 v92, v1, 5, s5
s_lshl_b32 s5, s55, 11
v_add_u32 v93, s5, v92
""")
G1A = "global_load_dwordx4 v[8:11], v92, s[42:43] sc1\nglobal_load_dwordx4 v[12:15], v92, s[42:43] offset:16 sc1"
if OPT["gb1"] or OPT["g1pre"]: A(G1A)
A("s_waitcnt lgkmcnt(0)\ns_barrier")
stamp(4); fstamp(6, 1); fstamp(7, 3)
gather(0, OPT["gan"], 4)
if OPT["gb1"]:
    assert OPT["gan"] == 4 and OPT["gbn"] == 0
    gather(1, 0, OPT["gb1"])
elif OPT["allb"]:
    gather(1, OPT["gbn"], 4)
    A(G1A)
    A("global_load_dwordx4 v[16:19], v93, s[42:43] sc1\nglobal_load_dwordx4 v[20:23], v93, s[42:43] offset:16 sc1")
elif not OPT["g1pre"]: A(G1A)
A(f"""
s_lshl_b32 s5, s45, 9
s_add_u32 s5, s5, {UB+512}
v_lshl_add_u32 v91, v1, 3, s5
v_lshrrev_b32 v2, 3, v1
v_add_u32 v2, v2, v1
v_and_b32 v2, 3, v2
v_and_b32 v3, 28, v1
v_add_u32 v2, v2, v3
v_lshlrev_b32 v2, 4, v2
v_lshrrev_b32 v3, 5, v1
v_mul_u32_u24 v3, {TROW}, v3
s_mul_i32 s5, s45, {2*TROW}
v_add3_u32 v90, v2, v3, s5
s_lshl_b32 s5, s45, 2
v_add_u32 v89, s5, v{vFL}
s_lshl_b32 s5, s45, 4
v_add_u32 v87, s5, v{vFL}
s_lshl_b32 s5, s45, 11
s_add_u32 s5, s5, {16*TROW}
v_lshl_add_u32 v86, v1, 5, s5
s_lshl_b32 s5, s55, 9
v_add_u32 v232, s5, v91
s_mul_i32 s5, s55, {2*TROW}
v_add_u32 v233, s5, v90
s_lshl_b32 s5, s55, 2
v_add_u32 v234, s5, v89
s_lshl_b32 s5, s55, 4
v_add_u32 v235, s5, v87
s_lshl_b32 s5, s55, 11
v_add_u32 v236, s5, v86
v_and_b32 v88, 7, v1
v_lshl_add_u32 v237, v88, 2, v{vFL}
v_lshlrev_b32 v88, 4, v88
v_add_u32 v88, {SEL_OFF}, v88
s_lshl_b32 s5, s9, {7 if OPT['rep8'] else 31}
s_and_b32 s5, s5, 0x380
v_add_u32 v88, s5, v88
s_lshl_b32 s5, s45, 8
s_add_u32 s5, s5, {MARK}
v_add_u32 v238, s5, v4
s_lshl_b32 s5, s55, 8
v_add_u32 v239, s5, v238
""")
def unpack_x(t):
    for r in range(4):
        for hw in range(2):
            src = XR[t] + 2 * r + hw
            A(f"v_lshlrev_b32 v{XF[t]+4*(2*hw)+r}, 16, v{src}")
            A(f"v_and_b32 v{XF[t]+4*(2*hw+1)+r}, 0xffff0000, v{src}")
def poll4(s, av, first_wait):
    l = A.newlabel("g"); lo = A.newlabel("go")
    A(f"s_mov_b32 s54, {SPIN_MAX}")
    A(f"s_waitcnt vmcnt({first_wait})")
    A.label(l)
    A(f"""
v_xor_b32 v2, s4, v{s+1}
v_xor_b32 v3, s4, v{s+3}
v_xor_b32 v5, s4, v{s+5}
v_xor_b32 v6, s4, v{s+7}
v_or3_b32 v2, v2, v3, v5
v_or_b32 v2, v2, v6
v_cmp_ne_u32 vcc, 0, v2
s_cbranch_vccz {lo}
s_sub_u32 s54, s54, 1
s_cbranch_scc1 {lo}
global_load_dwordx4 {vr(s,4)}, v{av}, s[42:43] sc1
global_load_dwordx4 {vr(s+4,4)}, v{av}, s[42:43] offset:16 sc1
s_waitcnt vmcnt(0)
s_branch {l}
""")
    A.label(lo)
def normalize(t):
    s = ST[t]
    for r in range(4): A(f"v_and_b32 v{180+r}, 0xffff0000, v{s+2*r}")
    for r in range(4): A(f"v_rcp_f32 v{180+r}, v{180+r}")
    for r in range(4): A(f"v_lshlrev_b32 v{176+r}, 16, v{s+2*r}")
    for r in range(4): A(f"v_mul_f32 v{176+r}, v{176+r}, v{180+r}")
    for ch in range(4):
        N = GG[t] + 4 * ch
        for r in range(4): A(f"v_fma_f32 v{N+r}, v{XF[t]+4*ch+r}, v{180+r}, -v{176+r}")
        for p in range(2): A(f"v_cvt_pk_bf16_f32 v{UU[t]+2*ch+p}, v{N+2*p}, v{N+2*p+1}")
    for ch in range(4): A(f"ds_write_b64 v{[91,232][t]}, {vr(UU[t]+2*ch,2)} offset:{USTR*ch}")
    A(f"ds_write_b32 v{[89,234][t]}, v{vONE}")
def pre(t, rows):
    for r in rows:
        N = lambda ch: GG[t] + 4 * ch + r
        E = 188
        for i in range(4): A(f"v_mul_f32 v{E+i}, {NLOG2E:#x}, v{N(i)}")
        for i in range(4): A(f"v_exp_f32 v{E+i}, v{E+i}")
        for i in range(4): A(f"v_add_f32 v{E+i}, 1.0, v{E+i}")
        for i in range(4): A(f"v_rcp_f32 v{E+i}, v{E+i}")
        for i in range(4): A(f"v_mul_f32 v{N(i)}, v{N(i)}, v{E+i}")
def precompute(t): pre(t, range(4))
def yflag_read(t): A(f"ds_read_b128 v[192:195], v{[87,235][t]} offset:48")
def yflag_test():
    A("v_and_b32 v192, v192, v193\nv_and_b32 v194, v194, v195\nv_and_b32 v192, v192, v194\ns_nop 0\nv_readfirstlane_b32 s5, v192\ns_cmp_lg_u32 s5, 0")
def ywait(t):
    l = A.newlabel("y"); lo = A.newlabel("yo")
    A(f"s_mov_b32 s54, {SPIN_MAX}")
    A.label(l)
    yflag_read(t)
    A(f"s_sub_u32 s54, s54, 1\ns_cbranch_scc1 {lo}\ns_waitcnt lgkmcnt(0)")
    yflag_test()
    A(f"s_cbranch_scc0 {l}")
    A.label(lo)
def yread(t):
    for ch in range(4): A(f"ds_read_b128 {vr(200+4*ch,4)}, v{[90,233][t]} offset:{512*ch}")
    A("s_waitcnt lgkmcnt(0)")
MSK = [18, 26]
def epi(t, rows):
    for r in rows:
        for ch in range(4): A(f"v_fma_f32 v{200+4*ch+r}, v{200+4*ch+r}, v{GG[t]+4*ch+r}, v{XF[t]+4*ch+r}")
        A(f"v_cvt_pk_bf16_f32 v{216+2*r+8*t}, v{200+r}, v{204+r}")
        A(f"v_cvt_pk_bf16_f32 v{217+2*r+8*t}, v{208+r}, v{212+r}")
        if t: A(f"s_mov_b64 exec, s[{MSK[t]+2*r}:{MSK[t]+2*r+1}]")
        if not OPT["nostore"]: A(f"global_store_dwordx2 v{94+t}, {vr(216+2*r+8*t,2)}, s[40:41] offset:{1280*r}{NTS}")
        if t: A("s_mov_b64 exec, -1")
def epilogue(t, mid=None):
    ywait(t)
    if mid: mid()
    yread(t); epi(t, range(4))
XST = 16 * TROW
def stash(t):
    A(f"ds_write_b128 v{[86,236][t]}, {vr(XR[t],4)}\nds_write_b128 v{[86,236][t]}, {vr(XR[t]+4,4)} offset:16")
if OPT["ord"]:
    A("global_load_dwordx4 v[16:19], v93, s[42:43] sc1\nglobal_load_dwordx4 v[20:23], v93, s[42:43] offset:16 sc1")
    fstamp(7, 4)
    A("s_waitcnt vmcnt(4)")
    fstamp(7, 5)
    gather(1)
    fstamp(7, 6)
    unpack_x(0)
    poll4(ST[0], 92, 6)
    stamp(5); fstamp(7, 7)
    if OPT["fine"] == 7: A(f"s_sub_u32 s84, {SPIN_MAX}, s54\ns_add_u32 s84, s84, s64")
    normalize(0)
    stamp(6)
    def NB(extra):
        fstamp(7, 8)
        A(f"s_waitcnt vmcnt({extra})")
        fstamp(7, 9)
        unpack_x(1)
        poll4(ST[1], 93, extra)
        normalize(1)
        stamp(7)
    A(f"s_cmp_ge_u32 s45, {OPT['ea']}\ns_cbranch_scc1 L_ord2")
    precompute(0); epilogue(0); NB(4)
    A("s_branch L_ord3\nL_ord2:")
    if OPT["ord"] == 2: pre(0, [0]); NB(0); pre(0, [1, 2, 3])
    else: NB(0); precompute(0)
    epilogue(0)
else:
    A(f"s_waitcnt vmcnt({2+OPT['gb1']})")
    fstamp(6, 2)
    gather(1, 0, OPT["gb2"])
    unpack_x(0)
    fstamp(6, 3)
    poll4(ST[0], 92, OPT["gb1"] + OPT["gb2"])
    stamp(5); fstamp(6, 4)
    G1B = "global_load_dwordx4 v[16:19], v93, s[42:43] sc1\nglobal_load_dwordx4 v[20:23], v93, s[42:43] offset:16 sc1"
    if not OPT["nfirst"]: gather(1, OPT["gb1"] + OPT["gb2"], 4); A(G1B)
    normalize(0)
    if OPT["nfirst"]: gather(1, OPT["gb1"] + OPT["gb2"], 4); A(G1B)
    stamp(6)
    precompute(0)
    def NB(extra):
        A(f"s_waitcnt vmcnt({2+extra})")
        unpack_x(1)
        poll4(ST[1], 93, extra)
        normalize(1)
        stamp(7)
    if OPT["ea"]:
        A(f"s_cmp_ge_u32 s45, {OPT['ea']}\ns_cbranch_scc1 L_ord2")
        epilogue(0); NB(4)
        A("s_branch L_ord3\nL_ord2:")
    NB(0); epilogue(0)
A.label("L_ord3")
A("global_load_dwordx4 v[40:43], v88, s[42:43] sc1")
stash(0); stash(1)
stamp(8)
precompute(1)
lS = A.newlabel("sel"); lSo = A.newlabel("selo")
A(f"""
s_mov_b32 s54, {SPIN_MAX}
s_waitcnt vmcnt(0)
{lS}:
v_cmp_ne_u32 vcc, s4, v43
s_cbranch_vccz {lSo}
s_sub_u32 s54, s54, 1
s_cbranch_scc1 {lSo}
global_load_dwordx4 v[40:43], v88, s[42:43] sc1
s_waitcnt vmcnt(0)
s_branch {lS}
{lSo}:
v_and_b32 v44, 0x7ff, v40
v_sub_u32 v44, {MARK+2047}, v44
ds_write_b8 v44, v{vONE}
ds_write_b32 v237, v40 offset:192
ds_write_b32 v89, v{vONE} offset:176
ds_read_b32 v46, v239
s_waitcnt lgkmcnt(0)
""")
for r in range(4): A(f"v_cmp_eq_u32_sdwa s[{MSK[1]+2*r}:{MSK[1]+2*r+1}], v46, 0 src0_sel:BYTE_{r} src1_sel:DWORD")
epilogue(1)
stamp(9)
if OPT["stamps"]:
    A("s_waitcnt vmcnt(0)")
    stamp(10)
finish(11)

A.label("L_notconv")
PAIRTAB = 0x77277170 if OPT["bal"] else 0x77777210
def pair_of(dst, ps):
    A(f"""
s_lshl_b32 s6, s9, 2
s_lshr_b32 s6, {PAIRTAB:#x}, s6
s_and_b32 s6, s6, 7
s_cmp_ge_u32 {ps}, 3
s_cselect_b32 s6, s6, s9
s_lshl_b32 {dst}, {ps}, 3
s_add_u32 {dst}, {dst}, s6
""")
A("s_sub_u32 s62, s8, 20")
A(f"""
v_lshlrev_b32 v7, 4, v0
v_add_u32 v7, {KB}, v7
ds_write_b128 v7, v[32:35]
ds_write_b128 v7, v[32:35] offset:8192
s_lshr_b32 s63, s62, 1
""")
if OPT["gul"] == 1: gu_pf()
GU12 = OPT["gul"] == 2
if GU12:
    A(f"""
s_lshl_b32 s5, s49, 3
s_add_u32 s5, s5, s9
s_min_u32 s5, s5, 26
s_lshl_b32 s5, s5, 7
s_mul_i32 s6, s62, 54
v_add_u32 v23, s6, v1
v_min_u32 v23, 639, v23
v_mul_u32_u24 v23, 3456, v23
v_add_u32 v23, s5, v23
s_mov_b64 s[52:53], s[56:57]
""")
pair_of("s48", "s63")
A(f"""
s_lshl_b32 s48, s48, 1
s_and_b32 s5, s62, 1
s_add_u32 s48, s48, s5
s_mul_i32 s5, s49, {160*3456}
s_lshl_b32 s6, s48, 6
s_add_u32 s5, s5, s6
s_add_u32 s56, s56, s5
s_addc_u32 s57, s57, 0
s_mul_i32 s50, s3, 10240
s_mov_b32 m0, s50
v_lshrrev_b32 v5, 2, v1
v_mul_u32_u24 v5, 3456, v5
v_and_b32 v6, 3, v1
v_lshl_add_u32 v5, v6, 4, v5
""")
stats_pre()
stats(3 - (OPT["gul"] == 2))
A("s_waitcnt lgkmcnt(0)")
A(f"""
s_barrier
{"s_cmp_eq_u32 s2, 255" if GU12 else ""}
{"s_cbranch_scc1 L_selector" if GU12 else ""}
{"s_mov_b32 exec_hi, 0x3fffff" if GU12 else ""}
{("global_load_dword v251, v23, s[52:53]" + NTW) if GU12 else ""}
s_mov_b64 exec, -1
s_cmp_lt_u32 s48, 54
s_cbranch_scc1 L_moe
s_cmp_lt_u32 s62, 8
s_cbranch_scc1 L_fin
s_sub_u32 s63, s62, 8
""")
A("s_cmp_eq_u32 s2, 255\ns_cbranch_scc1 L_selector")
pair_of("s5", "s63")
A(f"""
s_cmp_ge_u32 s5, 27
s_cbranch_scc1 L_fin
s_mul_i32 s5, s5, {64*1280}
s_add_u32 s5, s5, s50
v_lshl_add_u32 v5, v1, 7, s5
global_load_dword v251, v5, s[38:39]{NTW}
v_add_u32 v5, 8192, v5
s_mov_b64 exec, 0xffff
global_load_dword v251, v5, s[38:39]{NTW}
s_branch L_fin
L_moe:
""")
for i in range(10):
    A(f"global_load_lds_dwordx4 v5, s[56:57]{NTW}")
    if i < 9: A(f"s_add_u32 m0, m0, 1024\ns_add_u32 s56, s56, {16*3456}\ns_addc_u32 s57, s57, 0")
A(f"""
v_and_b32 v116, 15, v1
v_lshrrev_b32 v117, 4, v1
s_mul_i32 s5, s48, {32*1280}
s_lshl_b32 s6, s3, 8
s_add_u32 s5, s5, s6
v_mul_u32_u24 v34, {8*1280}, v117
v_lshl_add_u32 v34, v116, 4, v34
v_add_u32 v34, s5, v34
v_add_u32 v35, {4*1280}, v34
v_and_b32 v36, 7, v1
v_lshlrev_b32 v36, 4, v36
v_add_u32 v36, {SEL_OFF}, v36
s_lshl_b32 s5, s9, {7 if OPT['rep8'] else 31}
s_and_b32 s5, s5, 0x380
v_add_u32 v36, s5, v36
s_mov_b32 s60, 0x05040100
s_mov_b32 s61, 0x07060302
v_mov_b32 v112, 0x3f803f80
v_mov_b32 v113, 0x3f803f80
v_mov_b32 v114, 0x3f803f80
v_mov_b32 v115, 0x3f803f80
s_and_b32 s5, s3, 1
s_lshl_b32 s5, s5, 2
s_add_u32 s5, s5, s49
s_lshl_b32 s5, s5, 11
s_add_u32 s5, s5, {RED}
v_lshl_add_u32 v37, v1, 4, s5
v_lshrrev_b32 v38, 5, v0
v_lshlrev_b32 v38, 8, v38
v_and_b32 v39, 3, v1
v_lshl_add_u32 v38, v39, 2, v38
v_add_u32 v38, {RED}, v38
s_mov_b32 s62, 0x00ff00ff
s_mov_b32 s63, 0x00ff00ff
v_lshlrev_b32 v7, 9, v117
v_bfe_u32 v39, v1, 2, 2
v_lshl_add_u32 v7, v39, 6, v7
v_lshl_add_u32 v7, v6, 3, v7
v_add_u32 v7, s50, v7
v_lshlrev_b32 v118, 4, v1
v_bfe_u32 v204, v0, 2, 3
v_lshlrev_b32 v205, 2, v204
v_lshl_add_u32 v38, v204, 4, v38
v_lshlrev_b32 v204, 6, v204
v_bfe_u32 v39, v0, 5, 2
v_lshl_add_u32 v204, v39, 3, v204
v_and_b32 v39, 3, v0
v_lshl_add_u32 v204, v39, 1, v204
v_bfe_u32 v39, v0, 7, 1
v_lshl_add_u32 v204, v39, 5, v204
v_add_u32 v204, {HB}, v204
v_and_b32 v39, 7, v1
v_lshlrev_b32 v206, 6, v39
v_lshl_add_u32 v206, v117, 4, v206
v_add_u32 v206, {HB}, v206
v_mov_b32 v207, {ZBLK}
v_cndmask_b32 v208, v207, v206, s[62:63]
v_cndmask_b32 v207, v206, v207, s[62:63]
s_and_b32 s5, s4, 0xff
v_mov_b32 v212, s5
s_bfe_u32 s5, s4, 0x80008
v_mov_b32 v213, s5
s_bfe_u32 s5, s4, 0x80010
v_mov_b32 v214, s5
s_lshr_b32 s5, s4, 24
v_mov_b32 v215, s5
v_bfe_u32 v216, v1, 3, 1
v_lshl_add_u32 v216, v117, 3, v216
v_mul_u32_u24 v216, {PART_STRIDE}, v216
v_lshl_add_u32 v216, v39, 4, v216
s_mul_i32 s5, s3, {32*PART_STRIDE}
s_lshl_b32 s6, s48, 7
s_add_u32 s5, s5, s6
s_add_u32 s5, s5, {PART_OFF}
v_add_u32 v216, s5, v216
v_add_u32 v217, {2*PART_STRIDE}, v216
v_add_u32 v218, {4*PART_STRIDE}, v216
v_add_u32 v219, {6*PART_STRIDE}, v216
v_mul_u32_u24 v220, {XRS}, v39
v_lshl_add_u32 v220, v117, 4, v220
s_mul_i32 s5, s49, 320
s_add_u32 s5, s5, {XRB}
v_add_u32 v220, s5, v220
s_mul_i32 s55, s3, {XRS}
s_add_u32 s55, s55, {XRB}
s_waitcnt vmcnt(0)
s_cmp_ge_u32 s3, 5
s_cbranch_scc1 L_nod
""")
for j in range(8):
    A(f"global_load_dwordx4 {vr(80+4*j,4)}, v{34 + j//4}, s[38:39] offset:{1280*(j%4)}{NTW}")
A("L_nod:\nglobal_load_dwordx4 v[8:11], v36, s[42:43] sc1")
for ks in range(5):
    for tl in range(2):
        for hf in range(2):
            A(f"ds_read_b64_tr_b16 {vr(120+20*tl+4*ks+2*hf,2)}, v7 offset:{2048*ks+256*hf+32*tl}")
for ks in range(5):
    A(f"s_waitcnt lgkmcnt({min(15,16-4*ks)})")
    A(f"v_mfma_f32_16x16x32_bf16 v[24:27], {vr(120+4*ks,4)}, v[112:115], {'0' if ks == 0 else 'v[24:27]'}")
    A(f"v_mfma_f32_16x16x32_bf16 v[28:31], {vr(140+4*ks,4)}, v[112:115], {'0' if ks == 0 else 'v[28:31]'}")
A("""
s_nop 7
ds_write_b128 v37, v[24:27] offset:16384
ds_write_b128 v37, v[28:31] offset:17408
""")
A("s_waitcnt vmcnt(1)")
for qq in range(8):
    for i in range(4):
        A(f"v_perm_b32 v{160+4*qq+i}, v{80+4*(2*i+1)+qq//2}, v{80+4*(2*i)+qq//2}, {'s60' if qq % 2 == 0 else 's61'}")
stamp(4)
lS = A.newlabel("msel"); lSo = A.newlabel("mselo")
A(f"""
s_mov_b32 s54, {SPIN_MAX}
s_mov_b32 m0, s55
s_waitcnt vmcnt(0)
{lS}:
v_cmp_ne_u32 vcc, s4, v11
s_cbranch_vccz {lSo}
s_sub_u32 s54, s54, 1
s_cbranch_scc1 {lSo}
global_load_dwordx4 v[8:11], v36, s[42:43] sc1
s_waitcnt vmcnt(0)
s_branch {lS}
{lSo}:
v_readlane_b32 s52, v8, s3
s_and_b32 s52, s52, 0x7ff
s_sub_u32 s52, 2047, s52
s_mul_i32 s52, s52, 1280
s_add_u32 s56, s16, s52
s_addc_u32 s57, s17, 0
global_load_lds_dwordx4 v118, s[56:57]
global_load_lds_dword v4, s[56:57] offset:1024
""")
stamp(5)
A("s_waitcnt vmcnt(0)")
A("""
ds_bpermute_b32 v32, v205, v9
s_waitcnt lgkmcnt(0)
s_barrier
""")
stamp(6)
for ks in range(5): A(f"ds_read_b128 {vr(40+4*ks,4)}, v220 offset:{64*ks}")
A("""
ds_read2st64_b32 v[196:197], v38 offset0:64 offset1:72
ds_read2st64_b32 v[198:199], v38 offset0:80 offset1:88
ds_read2st64_b32 v[200:201], v38 offset0:96 offset1:104
ds_read2st64_b32 v[202:203], v38 offset0:112 offset1:120
""")
for ks in range(5):
    A(f"s_waitcnt lgkmcnt({8-ks})")
    A(f"v_mfma_f32_16x16x32_bf16 v[60:63], {vr(120+4*ks,4)}, {vr(40+4*ks,4)}, {'0' if ks == 0 else 'v[60:63]'}")
    A(f"v_mfma_f32_16x16x32_bf16 v[64:67], {vr(140+4*ks,4)}, {vr(40+4*ks,4)}, {'0' if ks == 0 else 'v[64:67]'}")
stamp(7)
A(f"""
v_and_b32 v33, 0xffff0000, v32
v_lshlrev_b32 v32, 16, v32
v_rcp_f32 v33, v33
s_waitcnt lgkmcnt(0)
v_add_f32 v196, v196, v197
v_add_f32 v198, v198, v199
v_add_f32 v200, v200, v201
v_add_f32 v202, v202, v203
ds_write_b128 v37, v[60:63]
ds_write_b128 v37, v[64:67] offset:1024
v_add_f32 v196, v196, v198
v_add_f32 v200, v200, v202
s_waitcnt lgkmcnt(0)
s_barrier
s_cmp_ge_u32 s3, 4
s_cbranch_scc1 L_nored
ds_read2st64_b32 v[8:9], v38 offset0:0 offset1:8
ds_read2st64_b32 v[10:11], v38 offset0:16 offset1:24
ds_read2st64_b32 v[12:13], v38 offset0:32 offset1:40
ds_read2st64_b32 v[14:15], v38 offset0:48 offset1:56
s_waitcnt lgkmcnt(2)
v_add_f32 v8, v8, v9
v_add_f32 v10, v10, v11
v_fma_f32 v8, -v32, v196, v8
v_add_f32 v8, v8, v10
v_mul_f32 v8, v8, v33
v_mul_f32 v9, {NLOG2E:#x}, v8
v_exp_f32 v9, v9
s_waitcnt lgkmcnt(0)
v_add_f32 v12, v12, v13
v_add_f32 v9, 1.0, v9
v_add_f32 v14, v14, v15
v_rcp_f32 v9, v9
v_fma_f32 v12, -v32, v200, v12
v_add_f32 v12, v12, v14
v_mul_f32 v8, v8, v33
v_mul_f32 v12, v12, v9
v_mul_f32 v8, v8, v12
v_cvt_pk_bf16_f32 v8, v8, v8
ds_write_b16 v204, v8
L_nored:
""")
A("""
s_mov_b32 s60, 0xffffff00
s_waitcnt lgkmcnt(0)
s_barrier
""")
stamp(8); fstamp(5, 8)
A(f"""
s_cmp_ge_u32 s3, 5
s_cbranch_scc1 L_fin
ds_read_b128 v[8:11], v208
ds_read_b128 v[12:15], v207
s_waitcnt lgkmcnt(1)
""")
for qq in range(4): A(f"v_mfma_f32_16x16x32_bf16 {vr(56+4*qq,4)}, {vr(160+4*qq,4)}, v[8:11], 0")
A("s_waitcnt lgkmcnt(0)")
for qq in range(4): A(f"v_mfma_f32_16x16x32_bf16 {vr(56+4*qq,4)}, {vr(176+4*qq,4)}, v[12:15], {vr(56+4*qq,4)}")
A.nop(5)
for r in range(4):
    for qq in range(4): A(f"v_bfi_b32 v{72+4*r+qq}, s60, v{56+4*qq+r}, v{212+qq}")
    A(f"global_store_dwordx4 v{216+r}, {vr(72+4*r,4)}, s[42:43] sc1")
if OPT["hint"]:
    A(f"s_lshl_b32 s5, s3, 8\ns_lshl_b32 s6, s48, 2\ns_add_u32 s5, s5, s6\ns_add_u32 s5, s5, {HINT_OFF}\nv_mov_b32 v8, s5\nv_mov_b32 v9, s4\ns_mov_b64 exec, 1\nglobal_store_dword v8, v9, s[42:43] sc1")
stamp(9); fstamp(5, 9)
if OPT["stamps"]:
    A("s_waitcnt vmcnt(0)")
    stamp(10); fstamp(5, 10)
finish(11)
A.label("L_selector")
def rank16(key, lst, rk, t):
    prs = ["s[6:7]", "s[10:11]", "s[12:13]", "s[14:15]"]
    for i in range(4): A(f"v_cmp_gt_u32 {prs[i]}, v{lst+i}, v{key}")
    A(f"v_addc_co_u32_e64 v{rk}, vcc, 0, 0, {prs[0]}")
    for i in range(1, 4): A(f"v_addc_co_u32_e64 v{rk}, vcc, v{rk}, 0, {prs[i]}")
    A(f"v_mov_b32 v{t}, v{rk}\ns_nop 1\nv_permlane16_swap_b32 v{rk}, v{t}\nv_add_u32 v{rk}, v{rk}, v{t}")
    A(f"v_mov_b32 v{t}, v{rk}\ns_nop 1\nv_permlane32_swap_b32 v{rk}, v{t}\nv_add_u32 v{rk}, v{rk}, v{t}")
MSDB = 0
KEY = [50, 54, 58, 62]
def g2_loads(base):
    for r in range(4): A(f"global_load_dwordx4 {vr(base+4*r,4)}, v36, s[42:43] offset:{1024*r} sc1")
def g2_bad(base):
    A(f"v_xor_b32 v2, s4, v{base+3}\nv_xor_b32 v3, s4, v{base+7}\nv_xor_b32 v5, s4, v{base+11}\nv_xor_b32 v6, s4, v{base+15}")
    A("v_or3_b32 v2, v2, v3, v5\nv_or_b32 v2, v2, v6\nv_cmp_ne_u32 vcc, 0, v2")
A(f"""
v_and_b32 v116, 15, v1
v_lshrrev_b32 v117, 4, v1
s_lshl_b32 s5, s3, 12
s_add_u32 s5, s5, {G2_OFF}
v_lshl_add_u32 v36, v1, 4, s5
v_lshlrev_b32 v221, 2, v116
v_lshlrev_b32 v222, 4, v117
v_add_u32 v223, {HMAX}, v221
v_add_u32 v224, {HMAX}, v222
v_add_u32 v221, {LIST+DRY}, v221
v_add_u32 v222, {LIST+DRY}, v222
v_lshrrev_b32 v225, 5, v0
v_lshlrev_b32 v225, 2, v225
v_add_u32 v225, {HMAX}, v225
v_mov_b32 v19, {CNT+DRY}
v_lshlrev_b32 v40, 8, v117
v_add_u32 v40, {SEL_OFF}, v40
v_mov_b32 v41, 0
v_mov_b32 v46, s4
v_mov_b32 v47, s4
s_lshl_b32 s5, s3, 10
s_sub_u32 s5, {MSDB + 4*(2047-192)}, s5
v_sub_u32 v37, s5, v4
v_bfrev_b32 v50, v0
v_mov_b32 v54, 0
v_mov_b32 v58, 0
v_mov_b32 v62, 0
s_mov_b32 s59, 0
{'s_branch L_s_top' if OPT['dry'] else ''}
L_s_real:
v_subrev_u32 v221, {DRY}, v221
v_subrev_u32 v222, {DRY}, v222
v_subrev_u32 v19, {DRY}, v19
s_mov_b32 s59, 1
s_mov_b32 s54, {SPIN_MAX}
""")
stamp(4)
if OPT["dbl"]:
    g2_loads(48)
    A("L_s_poll:")
    g2_loads(64)
    A("s_waitcnt vmcnt(4)")
    g2_bad(48)
    A("s_cbranch_vccz L_s_top\ns_sub_u32 s54, s54, 1\ns_cbranch_scc1 L_s_top")
    g2_loads(48)
    A("s_waitcnt vmcnt(4)")
    g2_bad(64)
    A("s_cbranch_vccnz L_s_poll")
    for i in range(0, 16, 2): A(f"v_mov_b32 v{48+i}, v{64+i}")
else:
    A("L_s_poll:")
    g2_loads(48)
    A("s_sub_u32 s54, s54, 1\ns_cbranch_scc1 L_s_top\ns_waitcnt vmcnt(0)")
    g2_bad(48)
    A("s_cbranch_vccnz L_s_poll")
A("L_s_top:")
stamp(5)
A(f"v_max3_u32 v16, v{KEY[0]}, v{KEY[1]}, v{KEY[2]}\nv_max_u32 v16, v16, v{KEY[3]}\ns_nop 1")
for i, mod in enumerate(DPP6[:5]):
    if i: A("s_nop 1")
    A(f"v_max_u32_dpp v16, v16, v16 {mod.replace(' bound_ctrl:0','')}")
A(f"""
s_mov_b32 exec_lo, 0x80000000
s_mov_b32 exec_hi, 0x80000000
ds_write_b32 v225, v16
s_mov_b64 exec, -1
s_waitcnt lgkmcnt(0)
s_barrier
ds_read_b32 v17, v223
ds_read_b128 v[20:23], v224
ds_write2st64_b32 v37, v60, v56 offset0:0 offset1:1
ds_write2st64_b32 v37, v52, v48 offset0:2 offset1:3
s_waitcnt lgkmcnt(2)
""")
rank16(17, 20, 18, 24)
A(f"""
v_cmp_eq_u32 vcc, 7, v18
s_ff1_i32_b64 s5, vcc
v_readlane_b32 s5, v17, s5
s_nop 1
v_cmp_le_u32 s[6:7], s5, v{KEY[0]}
v_cmp_le_u32 s[10:11], s5, v{KEY[1]}
v_cmp_le_u32 s[12:13], s5, v{KEY[2]}
v_cmp_le_u32 s[14:15], s5, v{KEY[3]}
v_addc_co_u32_e64 v21, vcc, 0, 0, s[6:7]
s_or_b64 s[50:51], s[6:7], s[10:11]
v_addc_co_u32_e64 v22, vcc, v21, 0, s[10:11]
s_or_b64 s[52:53], s[12:13], s[14:15]
v_addc_co_u32_e64 v23, vcc, v22, 0, s[12:13]
s_or_b64 exec, s[50:51], s[52:53]
v_addc_co_u32_e64 v24, vcc, v23, 0, s[14:15]
ds_add_rtn_u32 v25, v19, v24
s_waitcnt lgkmcnt(0)
v_lshl_add_u32 v25, v25, 2, v19
v_lshl_add_u32 v21, v21, 2, v25
v_lshl_add_u32 v22, v22, 2, v25
v_lshl_add_u32 v23, v23, 2, v25
s_mov_b64 exec, s[6:7]
ds_write_b32 v25, v{KEY[0]} offset:{LIST-CNT}
s_mov_b64 exec, s[10:11]
ds_write_b32 v21, v{KEY[1]} offset:{LIST-CNT}
s_mov_b64 exec, s[12:13]
ds_write_b32 v22, v{KEY[2]} offset:{LIST-CNT}
s_mov_b64 exec, s[14:15]
ds_write_b32 v23, v{KEY[3]} offset:{LIST-CNT}
s_mov_b64 exec, -1
s_waitcnt lgkmcnt(0)
s_barrier
{'' if OPT['dry'] else 's_cmp_lg_u32 s3, 0'}
{'' if OPT['dry'] else 's_cbranch_scc1 L_fin'}
ds_read_b32 v28, v19
ds_read_b32 v17, v221
ds_read_b128 v[20:23], v222
s_waitcnt lgkmcnt(1)
v_readfirstlane_b32 s51, v28
s_cmp_gt_u32 s51, 16
s_cbranch_scc1 L_rk_many
L_rk_done:
v_and_b32 v14, 0x7ff, v17
v_lshlrev_b32 v14, 2, v14
ds_read_b32 v45, v14 offset:{MSDB}
s_waitcnt lgkmcnt(1)
""")
stamp(6)
rank16(17, 20, 18, 24)
A(f"""
v_cmp_gt_u32 vcc, 8, v18
v_lshl_add_u32 v18, v18, 4, v40
v_mov_b32 v44, v17
s_cmp_eq_u32 s59, 0
s_cbranch_scc1 L_s_real
s_cmp_lg_u32 s3, 0
s_cbranch_scc1 L_fin
s_mov_b64 exec, vcc
s_waitcnt lgkmcnt(0)
global_store_dwordx4 v18, v[44:47], s[42:43] sc1
global_store_dwordx4 v18, v[44:47], s[42:43] offset:128 sc1
s_mov_b64 exec, 1
global_store_dword v41, v46, s[42:43] sc1
""")
stamp(7)
A("s_branch L_fin")
A(f"""
L_rk_many:
v_lshl_add_u32 v26, v1, 2, v19
v_mov_b32 v27, v1
s_lshl_b32 s5, s3, 6
s_add_u32 s58, s5, {SELW}
s_mov_b32 s50, 0
L_rk_outer:
ds_read_b32 v29, v26 offset:{LIST-CNT}
v_mov_b32 v30, 0
v_mov_b32 v31, v19
s_mov_b32 s52, 0
L_rk_inner:
ds_read_b128 v[8:11], v31 offset:{LIST-CNT}
v_add_u32 v31, 16, v31
s_add_u32 s52, s52, 4
s_waitcnt lgkmcnt(0)
""")
prs = ["s[6:7]", "s[10:11]", "s[12:13]", "s[14:15]"]
for i in range(4): A(f"v_cmp_gt_u32 {prs[i]}, v{8+i}, v29")
for i in range(4): A(f"v_addc_co_u32_e64 v30, vcc, v30, 0, {prs[i]}")
A(f"""
s_cmp_lt_u32 s52, s51
s_cbranch_scc1 L_rk_inner
v_cmp_gt_u32 s[6:7], 8, v30
v_cmp_gt_u32 s[10:11], s51, v27
v_lshl_add_u32 v30, v30, 2, s58
s_and_b64 exec, s[6:7], s[10:11]
ds_write_b32 v30, v29
s_mov_b64 exec, -1
v_add_u32 v26, 256, v26
v_add_u32 v27, 64, v27
s_add_u32 s50, s50, 64
s_cmp_lt_u32 s50, s51
s_cbranch_scc1 L_rk_outer
v_lshl_add_u32 v26, v116, 2, s58
v_lshl_add_u32 v27, v117, 4, s58
ds_read_b32 v17, v26
ds_read_b128 v[20:23], v27
s_waitcnt lgkmcnt(0)
s_branch L_rk_done
""")
A.label("L_fin")
finish(11)
A.label("L_end")
A("s_endpgm")
A.label("L_code_end")
A(".fill 64, 4, 0xBF800000")

tail = f"""
.section .rodata,"a"
.p2align 6
.amdhsa_kernel {NAME}_kernel
  .amdhsa_next_free_vgpr 256
  .amdhsa_next_free_sgpr 96
  .amdhsa_accum_offset 256
  .amdhsa_group_segment_fixed_size 0
  .amdhsa_kernarg_size 120
  .amdhsa_user_sgpr_count 2
  .amdhsa_user_sgpr_kernarg_segment_ptr 1
  .amdhsa_system_sgpr_workgroup_id_x 1
.end_amdhsa_kernel
"""
probs = check_hazards(A.lines)
for p in probs: print("HAZARD", p, file=sys.stderr)
open(sys.argv[1], "w").write(head + A.text() + tail)
print("written", sys.argv[1], len(A.lines), "lines", file=sys.stderr)
```

```python
import sys
from asmlib import *
NAME = "recurrent_scan__ssm_conv_s4d__moe_arch_mod__prompt"
OPT = dict(stamps=0, ntw=1, ntx=0, ntr=0, ga=7, fine=0, sfirst=0, grp=1, bal=0, xb=4, gbn=0, gan=4, pfbar=1, gul=1, gb1=0, xall=0, inj=0, g1pre=0, warm=0, allb=0, nfirst=0, ea=0, gb2=0, dbl=0, ord=0, nts=0, hint=0, rep8=1, dry=0, nopatch=0, nostore=0, hprio=0, slp=0, yd=6, chk=0, g1l=0, mprio=0, pre=3, eg=0, selp=1, rev=1, p1f=4, dfirst=2, dpf=1, pl=0, rt=1, prog0="apBbn0NE1MkG", prog1="apBbn0NE1MkG", prog2="apBbn0NS1MefG", prog3="apBbn0NS1MefG")
for a in sys.argv[2:]:
    k, v = a.split("="); OPT[k] = v if k.startswith("prog") else int(v)

G1_OFF, G2_OFF, SEL_OFF, PART_OFF, PART_STRIDE = 0x1000, 0x5000, 0xD000, 0x10000, 7168
HINT_OFF = 0xE000
STAMP_OFF = 0x200000
TROW = 2064
TBX, TBY = 0, 24 * TROW
UB = TBY + 32 * TROW
USTR = 4608
BOXB = UB + 4 * USTR
KB = BOXB + 1024
PD_O, T2_O, T3_O = 0, 5600, 6112
KSTR = 6432
FLG = KB + 4 * KSTR
MARK = FLG + 224
LDS_SIZE = MARK + 2048
UBY = lambda e: 80 * (e >> 3) + 8 * (e & 7)
RED = 81920
XRB, XRS = RED + 32768, 1296
HB = XRB + 9 * XRS
HMAX = HB + 512
PRM = UB + 512
CNT, ZBLK, SELW, LIST = KB, KB + 64, KB + 128, KB + 1024
SPIN_MAX = 1 << 20
DRY = 12288

LOG2E = 0x3FB8AA3B
NLOG2E = LOG2E ^ 0x80000000
INV2PI = 0x3E22F983
A = Asm()
NTW = " nt" if OPT["ntw"] else ""
NTX = " nt" if OPT["ntx"] else ""
NTR = " nt" if OPT["ntr"] else ""
NTS = ["", " nt", " sc0", " sc0 nt"][OPT["nts"]]
def fstamp(g, i):
    if OPT["fine"] == g: A(f"s_memtime s[{64+2*i}:{65+2*i}]")
def FS(g, i):
    return f"s_memtime s[{64+2*i}:{65+2*i}]" if OPT["fine"] == g else ""
def stamp(i):
    if OPT["fine"] and i not in (0, 13): return
    if OPT["stamps"] == 3: A(f"s_memtime s[{64+2*i}:{65+2*i}]")
    elif OPT["stamps"]: A(f"s_memrealtime s[{64+2*i}:{65+2*i}]")
def cstamp(i):
    if OPT["stamps"]: A(f"s_memtime s[{64+2*i}:{65+2*i}]")
def finish(n, dbgmap=None):
    if OPT["stamps"] == 2:
        if n == 13:
            l = A.newlabel("nd")
            stamp(13)
            A("s_load_dwordx2 s[6:7], s[0:1], 104")
            A(f"s_cmp_ge_u32 s2, 8\ns_cbranch_scc1 {l}\ns_cmp_lg_u32 s3, 7\ns_cbranch_scc1 {l}")
            A("s_waitcnt lgkmcnt(0)\ns_mov_b64 exec, 1\ns_lshl_b32 s5, s2, 3\nv_mov_b32 v2, s5")
            A("s_sub_u32 s5, s68, s64\ns_lshl_b32 s5, s5, 16\ns_and_b32 s10, s64, 0xffff\ns_or_b32 s5, s5, s10\nv_mov_b32 v4, s5")
            A("s_sub_u32 s5, s90, s64\ns_lshl_b32 s5, s5, 16\ns_sub_u32 s10, s72, s64\ns_or_b32 s5, s5, s10\nv_mov_b32 v5, s5")
            A("global_store_dwordx2 v2, v[4:5], s[6:7]")
            A.label(l)
    elif OPT["stamps"]:
        stamp(13); cstamp(15)
        A("s_waitcnt lgkmcnt(0)")
        A("s_mov_b64 exec, 1")
        A(f"s_lshl_b32 s5, s2, 3\ns_add_u32 s5, s5, s3\ns_lshl_b32 s5, s5, 6\ns_add_u32 s5, s5, {STAMP_OFF}")
        A("v_mov_b32 v2, s5")
        for i in list(range(n)) + [13, 14, 15]:
            A(f"v_mov_b32 v3, s{64+2*i}")
            A(f"global_store_dword v2, v3, s[42:43] offset:{4*i}")
    A("s_endpgm")

class LdsQ:
    def __init__(self): self.q = []; self.done = 0
    def issue(self, tag): self.q.append(tag)
    def wait(self, tag):
        idx = max(i for i, t in enumerate(self.q) if t == tag)
        if idx < self.done: return
        n = len(self.q) - 1 - idx
        A(f"s_waitcnt lgkmcnt({min(n,14)})")
        self.done = idx + 1 if n <= 14 else len(self.q) - 14
    def all(self):
        A("s_waitcnt lgkmcnt(0)"); self.done = len(self.q)
    def known_all(self): self.done = len(self.q)

def cmul(dst, p, w, t):
    A(f"v_pk_mul_f32 {vr(t,2)}, {vr(p,2)}, {vr(w,2)} op_sel:[0,0] op_sel_hi:[1,0]")
    A(f"v_pk_fma_f32 {vr(dst,2)}, {vr(p,2)}, {vr(w,2)}, {vr(t,2)} op_sel:[1,1,0] op_sel_hi:[0,1,1] neg_lo:[1,0,0]")
LANE63 = "s_mov_b32 exec_lo, 0\ns_mov_b32 exec_hi, 0x80000000"
DPP6 = ["row_shr:1 row_mask:0xf bank_mask:0xf bound_ctrl:0", "row_shr:2 row_mask:0xf bank_mask:0xf bound_ctrl:0",
        "row_shr:4 row_mask:0xf bank_mask:0xf bound_ctrl:0", "row_shr:8 row_mask:0xf bank_mask:0xf bound_ctrl:0",
        "row_bcast:15 row_mask:0xa bank_mask:0xf", "row_bcast:31 row_mask:0xc bank_mask:0xf"]

KD = lambda m: 8 + 4 * m
KS = 76
T2 = lambda d, hh: 80 + 8 * (d - 2) + 4 * hh
T3 = lambda d: 104 + 4 * (d - 4)
BOX = lambda i: 120 + 4 * i
ACC = lambda j: 140 + 4 * j
BR = lambda s: 172 + 4 * s
W1R = 204
BA = lambda i: 208 + 4 * i
SG = lambda i: 232 + 4 * i
vUB, vYW, vFL, vONE, vT0, vT1, vT2 = 244, 245, 246, 247, 248, 249, 250

hdr = open("stub_ref.txt").read().split("; @launch")[0]
head = hdr + f"""; @launch grid=(256,1,1) block=(512,1,1) lds={LDS_SIZE}
.amdgcn_target "amdgcn-amd-amdhsa--gfx950"
.text
.globl {NAME}_kernel
.p2align 8
.type {NAME}_kernel,@function
{NAME}_kernel:
"""

A("s_cmp_ge_u32 s2, 256\ns_cbranch_scc1 L_end")
A("s_load_dwordx16 s[16:31], s[0:1], 0")
A("s_load_dwordx8 s[32:39], s[0:1], 64")
A("s_load_dwordx2 s[40:41], s[0:1], 96")
A("s_load_dwordx2 s[42:43], s[0:1], 112")
stamp(0); cstamp(14)
EG = OPT["eg"]
EG1 = f"s_lshl_b32 s6, s8, 2\ns_add_u32 s6, s6, s49\ns_mul_i32 s6, s6, 1280\ns_add_u32 s6, s6, s62\nv_mul_u32_u24 v22, {128*1280}, v1\nv_add_u32 v22, s6, v22" if EG else ""
EG2 = f"s_bfm_b64 exec, {2*EG}, 0\nglobal_load_dword v251, v22, s[16:17]\ns_mov_b64 exec, -1" if EG else ""
A(f"""
s_getpc_b64 s[6:7]
L_pc:
s_lshr_b32 s8, s2, 3
v_lshrrev_b32 v2, 6, v0
s_lshl_b32 s5, s8, 10
v_lshl_add_u32 v5, v0, 1, s5
v_readfirstlane_b32 s3, v2
v_min_u32 v5, L_code_end-L_pc, v5
v_and_b32 v5, -4, v5
global_load_dword v252, v5, s[6:7]
v_and_b32 v1, 63, v0
v_lshlrev_b32 v3, 4, v1
v_lshlrev_b32 v4, 2, v1
v_mov_b32 v32, 0
s_and_b32 s45, s3, 3
s_and_b32 s9, s2, 7
s_lshl_b32 s10, s2, 3
s_add_u32 s10, s10, s3
s_mul_i32 s11, s10, 1280
s_lshr_b32 s46, s3, 2
s_mul_i32 s12, s9, 20
s_add_u32 s44, s12, s8
s_lshr_b32 s49, s3, 1
s_lshr_b32 s5, s12, 4
s_and_b32 s6, s3, 1
s_add_u32 s5, s5, s6
s_lshl_b32 s62, s5, 7
s_lshl_b32 s6, s8, 2
s_add_u32 s6, s6, s49
s_mul_i32 s6, s6, {20480 if OPT['xall'] else 10240}
s_add_u32 s5, s62, s6
v_mul_u32_u24 v93, 1280, v1
v_add_u32 v22, s5, v93
s_lshl_b32 s5, s49, 3
s_add_u32 s5, s5, s9
s_min_u32 s5, s5, 26
s_lshl_b32 s5, s5, 7
s_mul_i32 s6, s8, {20*3456}
s_add_u32 s5, s5, s6
v_mul_u32_u24 v23, 3456, v1
v_add_u32 v23, s5, v23
s_lshl_b32 s5, s45, 8
s_lshl_b32 s6, s46, 7
s_add_u32 s5, s5, s6
s_lshl_b32 s6, s44, 10
s_add_u32 s5, s5, s6
v_lshl_add_u32 v6, v1, 1, s5
s_lshr_b32 s5, s5, 8
s_lshl_b32 s5, s5, 1
v_mov_b32 v7, s5
{EG1}
s_waitcnt lgkmcnt(0)
{EG2}
s_add_u32 s6, s16, s11
s_addc_u32 s7, s17, 0
global_load_dwordx4 v[8:11], v3, s[6:7]{NTR}
global_load_dword v12, v4, s[6:7] offset:1024{NTR}
global_load_dwordx4 v[16:19], v3, s[32:33]
global_load_dword v20, v4, s[32:33] offset:1024
global_load_dword v29, v32, s[42:43]
s_bitcmp1_b32 s3, 0
s_cselect_b32 s56, s36, s34
s_cselect_b32 s57, s37, s35
""")
stamp(1)
def early_pf():
    A(f"""
s_bfm_b64 exec, {(16 if OPT['xall'] else 8) - 2*EG}, {2*EG}
global_load_dword v251, v22, s[16:17]{NTX}
s_mov_b64 exec, -1
""")
    if not OPT["gul"]: gu_pf()
def gu_pf():
    A(f"""
s_mov_b64 exec, 0xfffff
global_load_dword v251, v23, s[56:57]{NTW}
s_mov_b64 exec, -1
""")
A(f"""
s_barrier
s_cmp_ge_u32 s2, 160
s_cbranch_scc1 L_nopar
global_load_ushort v40, v6, s[18:19]{NTW}
global_load_ushort v45, v7, s[26:27]
global_load_ushort v41, v6, s[20:21]{NTW}
global_load_ushort v42, v6, s[22:23]{NTW}
global_load_ushort v43, v6, s[24:25]{NTW}
L_nopar:
""")
if OPT["pfbar"]: A("s_barrier")
early_pf()
A("""
v_mov_b32 v33, 0
v_mov_b32 v34, 0
v_mov_b32 v35, 0
s_cbranch_scc1 L_notconv
""")
def row_loads():
    A(f"""
s_add_u32 s6, s16, s11
s_addc_u32 s7, s17, 0
global_load_dwordx4 v[8:11], v3, s[6:7]{NTR}
global_load_dword v12, v4, s[6:7] offset:1024{NTR}
global_load_dwordx4 v[16:19], v3, s[32:33]
global_load_dword v20, v4, s[32:33] offset:1024
""")
G1ADDR = (f"s_and_b32 s5, s10, 0x700\ns_lshl_b32 s5, s5, 3\ns_and_b32 s6, s10, 2\ns_lshl_b32 s6, s6, 9\ns_add_u32 s5, s5, s6\ns_and_b32 s6, s10, 0xfc\ns_lshl_b32 s6, s6, 2\ns_add_u32 s5, s5, s6\n"
          f"s_and_b32 s6, s10, 1\ns_lshl_b32 s6, s6, 3\ns_add_u32 s5, s5, s6\ns_add_u32 s5, s5, {G1_OFF}\nv_mov_b32 v34, s5") if OPT["g1l"] else f"v_add_u32 v34, {G1_OFF}, v33"
G1S = 1024 if OPT["g1l"] else 16
def stats_pre():
    A("s_mov_b32 s14, 0x9E3779B1\ns_mov_b32 s47, 0x3f803f80\ns_lshl_b32 s11, s10, 3\ns_sub_u32 s13, 2047, s10")
    A(f"v_mov_b32 v33, s11\n{G1ADDR}\nv_lshlrev_b32 v35, 1, v33\nv_add_u32 v35, {G2_OFF}, v35\nv_mov_b32 v36, 0x3acccccd")
def make_tag():
    pass
def stats(younger, cnt=False):
    A(vmw(younger - 1) if cnt else f"s_waitcnt vmcnt({younger-1})")
    stamp(2)
    A("s_setprio 2")
    for i in range(5):
        c = (lambda r: "0" if i == 0 else r)
        A(f"v_dot2_f32_bf16 v24, v{8+i}, s47, {c('v24')}")
        A(f"v_dot2_f32_bf16 v25, v{8+i}, v{8+i}, {c('v25')}")
        A(f"v_dot2_f32_bf16 v26, v{8+i}, v{16+i}, {c('v26')}")
        A(f"v_dot2_f32_bf16 v27, v{16+i}, s47, {c('v27')}")
    A(f"""
s_nop 0
v_permlane32_swap_b32 v24, v25
s_nop 0
v_permlane32_swap_b32 v26, v27
v_add_f32 v24, v24, v25
v_add_f32 v26, v26, v27
s_nop 0
v_mul_lo_u32 v29, v29, s14
v_permlane16_swap_b32 v24, v26
v_add_f32 v24, v24, v26
v_add_u32 v29, 0x7F4A7C15, v29
v_mov_b32 v31, v29
v_add_f32_dpp v24, v24, v24 row_shr:1 row_mask:0xf bank_mask:0xf bound_ctrl:0
v_readfirstlane_b32 s4, v29
s_nop 0
v_add_f32_dpp v24, v24, v24 row_shr:2 row_mask:0xf bank_mask:0xf bound_ctrl:0
s_nop 1
v_add_f32_dpp v24, v24, v24 row_shr:4 row_mask:0xf bank_mask:0xf bound_ctrl:0
s_nop 1
v_add_f32_dpp v24, v24, v24 row_shr:8 row_mask:0xf bank_mask:0xf bound_ctrl:0
s_mov_b64 exec, 1
v_readlane_b32 s6, v24, 15
v_readlane_b32 s7, v24, 47
v_readlane_b32 s14, v24, 31
v_readlane_b32 s15, v24, 63
v_mul_f32 v24, s6, v36
v_mul_f32 v25, s7, v36
v_mov_b32 v26, s14
v_fma_f32 v25, -v24, v24, v25
v_max_f32 v25, 0, v25
v_cvt_pk_bf16_f32 v28, v24, v25
v_and_b32 v25, 0xffff0000, v28
v_lshlrev_b32 v24, 16, v28
v_add_f32 v25, 0x3727c5ac, v25
v_cvt_pk_bf16_f32 v25, v25, v25
v_fma_f32 v26, -v24, s15, v26
v_and_b32 v25, 0xffff0000, v25
v_sqrt_f32 v25, v25
""")
    A("s_nop 0")
    A("""
v_cvt_pk_bf16_f32 v28, v24, v25
v_and_b32 v25, 0xffff0000, v28
v_rcp_f32 v25, v25
global_store_dwordx2 v34, v[28:29], s[42:43] sc1
v_mul_f32 v26, v26, v25
v_cvt_pk_bf16_f32 v26, v26, v26
v_ashrrev_i32 v27, 31, v26
v_or_b32 v27, 0x80000000, v27
v_xor_b32 v26, v26, v27
v_and_b32 v26, 0xffff0000, v26
v_or_b32 v30, s13, v26
global_store_dwordx4 v35, v[28:31], s[42:43] sc1
""")
    if cnt: A(f"ds_add_u32 v{vFL}, v{vONE} offset:32")
    A("s_mov_b64 exec, -1\ns_setprio 0")
    stamp(3)
EG3 = (f"s_sub_u32 s5, s3, 4\ns_cmp_ge_u32 s5, {EG}\ns_cbranch_scc1 L_neg\ns_mov_b32 s48, 1\ns_mov_b32 s63, 0\n"
       + "".join(f"global_load_dwordx2 v[{96+2*r}:{97+2*r}], v94, s[16:17] offset:{1280*r}\n" for r in range(4)) + "L_neg:") if EG else ""
def vmw(n):
    if not EG: return f"s_waitcnt vmcnt({n})"
    l1 = A.newlabel("w"); l2 = A.newlabel("w")
    return f"s_cmp_eq_u32 s48, 0\ns_cbranch_scc1 {l1}\ns_waitcnt vmcnt({n+4})\ns_branch {l2}\n{l1}:\ns_waitcnt vmcnt({n})\n{l2}:"
A(f"""
s_and_b32 s6, s8, 15
s_lshl_b32 s6, s6, 1
s_and_b32 s7, s49, 1
s_add_u32 s6, s6, s7
s_add_u32 s6, s6, 32
s_mul_i32 s6, s6, 40960
s_add_u32 s5, s62, s6
v_add_u32 v93, s5, v93
v_lshlrev_b32 v7, 4, v0
v_add_u32 v7, {KB}, v7
ds_write_b128 v7, v[32:35]
ds_write_b128 v7, v[32:35] offset:8192
ds_write_b128 v7, v[32:35] offset:16384
v_min_u32 v7, {LDS_SIZE-16-24576}, v7
ds_write_b128 v7, v[32:35] offset:24576
s_mul_i32 s53, s45, {USTR}
s_add_u32 s53, s53, {UB}
v_lshl_add_u32 v7, v1, 3, s53
ds_write_b64 v7, v[32:33]
s_add_u32 s5, s45, 1
s_sub_u32 s13, s5, 32
s_lshl_b32 s5, s5, 1
v_add_u32 v36, s13, v1
v_add_u32 v37, 1, v36
v_mov_b32 v38, 0x3f800000
v_mov_b32 v39, 0x3f80
v_cmp_ge_u32 s[6:7], s5, v36
v_cmp_ge_u32 s[14:15], s5, v37
s_lshl_b32 s13, s45, 8
s_add_u32 s13, s13, {BOXB}
v_cndmask_b32 v38, 0, v38, s[6:7]
v_cndmask_b32 v39, 0, v39, s[14:15]
v_add_u32 v7, s13, v4
v_or_b32 v38, v38, v39
ds_write_b32 v7, v38
v_and_b32 v2, 15, v1
v_lshrrev_b32 v37, 4, v1
v_lshlrev_b32 v37, 3, v37
v_sub_u32 v37, v2, v37
v_lshlrev_b32 v37, 2, v37
v_add_u32 v37, {BOXB+96}, v37
s_mul_i32 s5, s45, {256*1280}
s_lshl_b32 s6, s44, 3
s_add_u32 s5, s5, s6
v_mul_u32_u24 v94, 5120, v1
v_add_u32 v94, s5, v94
{'s_lshl_b32 s55, s45, 1' if OPT['rev'] else 's_mov_b32 s55, 3'}
s_sub_u32 s55, 7, s55
s_mul_i32 s5, s55, {256*1280}
v_add_u32 v95, s5, v94
s_lshl_b32 s5, s45, 9
s_lshl_b32 s6, s46, 8
s_add_u32 s50, s5, s6
s_add_u32 s51, s50, {TBY}
s_mov_b32 m0, s51
v_mov_b32 v84, 0x3f80
v_mov_b32 v44, {LOG2E:#x}
v_mov_b32 v{vFL}, {FLG}
v_mov_b32 v{vONE}, 1
s_lshr_b32 s63, s3, 2
""")
stats_pre()
A(f"""
s_mov_b32 s48, 0
{EG3}
s_lshl_b32 s5, s44, 3
s_waitcnt lgkmcnt(0)
s_barrier
s_load_dwordx2 s[60:61], s[28:29], s5
""")
if OPT["gul"] == 1: gu_pf()
fstamp(1, 1)
MK3 = 224
for dst, arr, offs in [(BOX(0), 0, 19), (BOX(1), 1, 15), (BOX(2), 0, 11), (BOX(3), 2, 15), (BOX(4), 3, 15), (KS, 0, 20), (MK3, 0, 22)]:
    o = arr * 64 + offs
    A(f"ds_read2_b32 {vr(dst,2)}, v37 offset0:{o} offset1:{o-2}")
    A(f"ds_read2_b32 {vr(dst+2,2)}, v37 offset0:{o-4} offset1:{o-6}")
def setup():
    A(f"""
{vmw(4 - (OPT['gul'] == 2))}
v_lshlrev_b32 v40, 16, v40
v_lshlrev_b32 v45, 16, v45
v_mul_f32 v40, v44, v40
v_mul_f32 v44, v45, v44
v_exp_f32 v40, v40
v_exp_f32 v44, v44
v_lshlrev_b32 v41, 16, v41
v_lshlrev_b32 v42, 16, v42
v_cvt_pk_bf16_f32 v40, v44, v40
v_lshlrev_b32 v43, 16, v43
v_lshlrev_b32 v44, 16, v40
v_and_b32 v40, 0xffff0000, v40
v_mul_f32 v41, v41, v44
v_mul_f32 v40, v40, v44
v_add_f32 v44, v44, v44
v_mul_f32 v40, {NLOG2E:#x}, v40
v_mul_f32 v41, {INV2PI:#x}, v41
v_mul_f32 v48, v42, v44
v_mul_f32 v49, v43, v44
v_mul_f32 v56, 0x41000000, v40
v_mul_f32 v58, 0x41000000, v41
v_mul_f32 v57, 0x43800000, v40
v_mul_f32 v59, 0x43800000, v41
v_fract_f32 v58, v58
v_fract_f32 v60, v41
v_fract_f32 v59, v59
v_exp_f32 v56, v56
v_cos_f32 v52, v58
v_sin_f32 v53, v58
v_exp_f32 v61, v40
v_cos_f32 v50, v60
v_sin_f32 v51, v60
v_exp_f32 v57, v57
v_cos_f32 v54, v59
v_sin_f32 v55, v59
v_mul_f32 v52, v52, v56
v_mul_f32_e64 v53, -v53, v56
v_mul_f32 v50, v50, v61
v_mul_f32 v51, v51, v61
v_mul_f32 v54, v54, v57
v_mul_f32 v55, v55, v57
""")
stats(8 - (OPT["gul"] >= 2), cnt=True); fstamp(1, 2)
if OPT["gul"] == 3: gu_pf()
if OPT["hprio"]: A("s_cmp_lt_u32 s3, 4\ns_cbranch_scc1 L_hp\ns_setprio 1\nL_hp:")
setup()
fstamp(1, 3)
def gather(t, lo=0, hi=4):
    for r in range(lo, hi):
        A(f"global_load_dwordx2 v[{96+8*t+2*r}:{97+8*t+2*r}], v{94+t}, s[16:17] offset:{1280*r}")
def gather_at(pos):
    if OPT["ga"] == pos:
        l = A.newlabel("ng")
        A(f"s_cmp_lt_u32 s3, 4\ns_cbranch_scc1 {l}")
        gather(0, 0, OPT["gan"])
        A.label(l)
    if OPT["xb"] == pos:
        l = A.newlabel("nx")
        A(f"s_cmp_ge_u32 s3, 4\ns_cbranch_scc1 {l}")
        A(f"s_mov_b32 exec_hi, 0\nglobal_load_dword v251, v93, s[16:17]{NTX}\ns_mov_b64 exec, -1")
        A.label(l)
gather_at(0)
pend = []
GRP = OPT["grp"]
tt = [0]
def emit_row(reg, rows):
    t = 84 + (tt[0] % (2 * GRP)); tt[0] += 1
    if reg is not None: A(f"v_cvt_pk_bf16_f32 v{t}, v{reg}, v{reg+1}")
    for r in rows: pend.append(f"ds_write_addtid_b32 v{t} offset:{r*TROW}")
    if tt[0] % GRP == 0: flush_rows()
def flush_rows():
    for p in pend: A(p)
    pend.clear()
emit_row(None, [0]); emit_row(52, [1])
cur = 52
CHK = [{5: 0, 9: 0, 13: 0, 17: 0, 22: 0, 29: 1}, {5: 0, 12: 0, 20: 1}, {5: 0, 10: 0, 15: 1}, {8: 0, 16: 1}][OPT["chk"]]
for c in range(2, 32):
    dst = 64 + 2 * (c % 2)
    if c + 3 in CHK and not CHK[c + 3]: A(f"ds_read_b32 v{vT2}, v{vFL} offset:32")
    if c in CHK:
        l = A.newlabel("gc")
        A(f"s_cmp_eq_u32 s63, 0\ns_cbranch_scc1 {l}")
        if not CHK[c]:
            A(f"s_waitcnt lgkmcnt(3)\nv_readfirstlane_b32 s5, v{vT2}\ns_cmp_lt_u32 s5, 8\ns_cbranch_scc1 {l}")
        A("s_mov_b32 s63, 0")
        fstamp(7, 1)
        gather(0, 0, OPT["gan"])
        fstamp(7, 2)
        A.label(l)
    cmul(dst, cur, 52, dst); emit_row(dst, [c]); cur = dst
    if c == 15: gather_at(3)
flush_rows()
fstamp(1, 4)
A("s_mov_b32 m0, s50")
gather_at(1)
if OPT["gbn"]:
    A("s_cmp_lt_u32 s3, 4\ns_cbranch_scc1 L_ngb")
    gather(1, 0, OPT["gbn"])
    A.label("L_ngb")
cmul(56, 50, 50, 56)
emit_row(48, [0])
cur = 48
rows0 = {1: [1], 2: [2], 3: [3], 4: [4, 8], 5: [5], 6: [6], 7: [7], 8: [12]}
for p in range(1, 9):
    dst = 64 + 2 * (p % 2)
    cmul(dst, cur, 50, dst); emit_row(dst, rows0[p]); cur = dst
for dst, src, w, rows in [(68, 48, 54, [9]), (70, 68, 56, [10]), (68, 70, 56, [11, 13]), (70, 68, 56, [14]), (72, 70, 56, [15]),
                          (70, 68, 54, [16]), (74, 72, 54, [17]), (68, 70, 54, [20]), (72, 74, 54, [21]),
                          (74, 72, 54, [18]), (72, 74, 54, [19]), (74, 72, 54, [22]), (72, 74, 54, [23])]:
    cmul(dst, src, w, dst); emit_row(dst, rows)
flush_rows()
fstamp(1, 5)
gather_at(4)
A("s_cmp_ge_u32 s3, 4\ns_cbranch_scc1 L_helper")

q = LdsQ()
A(f"""
v_and_b32 v2, 31, v1
v_lshrrev_b32 v3, 5, v1
v_mul_u32_u24 v5, {TROW}, v2
v_subrev_u32 v6, {16*TROW}, v5
v_cmp_le_u32 vcc, 24, v2
s_lshl_b32 s5, s45, 9
v_lshl_add_u32 v7, v3, 4, s5
v_cndmask_b32 v6, v5, v6, vcc
v_add_u32 v5, v5, v7
v_add_u32 v6, v6, v7
v_add_u32 v5, {TBY}, v5
s_waitcnt lgkmcnt(0)
""")
NB = 6
def kg_issue(s):
    b = 156 + 8 * (s % NB)
    A(f"ds_read_b128 {vr(b,4)}, v6 offset:{32*s}"); q.issue(("ka", s))
    A(f"ds_read_b128 {vr(b+4,4)}, v5 offset:{32*s}"); q.issue(("kb", s))
filler = f"""
s_lshl_b32 s6, s45, 4
s_lshr_b64 s[60:61], s[60:61], s6
s_lshl_b32 s60, s60, 16
s_mul_i32 s52, s45, {KSTR}
s_add_u32 s52, s52, {KB}
v_mul_u32_u24 v208, 80, v2
v_lshl_add_u32 v208, v3, 5, v208
v_add_u32 v208, s52, v208
v_add_u32 v207, 2560, v208
v_lshl_add_u32 v206, v3, 4, v208
v_add_u32 v205, 2560, v206
v_lshlrev_b32 v209, 2, v2
v_lshl_add_u32 v209, v3, 7, v209
v_add_u32 v209, s52, v209
v_lshlrev_b32 v210, 1, v2
v_lshl_add_u32 v210, v3, 7, v210
v_add_u32 v210, s52, v210
v_mov_b32 v211, s52
v_mov_b32 v45, s60
v_cmp_eq_u32 vcc, 0, v1
v_and_b32 v232, 15, v1
v_lshrrev_b32 v233, 4, v1
v_cndmask_b32 v45, 0, v45, vcc
v_lshlrev_b32 v234, 3, v233
v_sub_u32 v234, v232, v234
v_add_u32 v240, 25, v234
v_add_u32 v234, 29, v234
v_lshrrev_b32 v241, 3, v234
v_lshl_add_u32 v234, v234, 3, s52
v_lshl_add_u32 v234, v241, 4, v234
v_lshrrev_b32 v241, 3, v240
v_lshl_add_u32 v240, v240, 3, s52
v_lshl_add_u32 v240, v241, 4, v240
v_lshlrev_b32 v235, 2, v233
v_sub_u32 v235, v232, v235
v_add_u32 v235, 12, v235
v_lshl_add_u32 v236, v235, 2, s52
v_lshl_add_u32 v235, v235, 3, s52
v_add_u32 v236, {T3_O}, v236
v_lshlrev_b32 v{vUB}, 5, v232
v_lshl_add_u32 v{vUB}, v233, 4, v{vUB}
v_add_u32 v{vUB}, s53, v{vUB}
v_lshrrev_b32 v{vT0}, 1, v232
v_add_u32 v{vT0}, v{vT0}, v233
v_and_b32 v{vT0}, 3, v{vT0}
v_and_b32 v{vT1}, 7, v232
v_lshlrev_b32 v{vT1}, 6, v{vT1}
v_lshl_add_u32 v{vT1}, v{vT0}, 4, v{vT1}
v_lshrrev_b32 v{vT0}, 3, v232
v_mul_u32_u24 v{vT0}, {TROW}, v{vT0}
v_add3_u32 v{vYW}, v{vT0}, v{vT1}, s5
""".strip().split("\n")
for i in range(4): filler.append(f"v_and_b32 v{KS+i}, v{KS+i}, v{BOX(0)+i}")
for r in [KS + i for i in range(4)] + [MK3 + i for i in range(4)]:
    filler.append(f"v_pk_lshlrev_b16 v{r}, 2, v{r} op_sel_hi:[0,1]")
    filler.append(f"v_pk_ashrrev_i16 v{r}, 15, v{r} op_sel_hi:[0,1]")
filler += [f"s_lshl_b32 s5, s45, 2", f"v_add_u32 v{vT1}, s5, v{vFL}"]
filler += f"""s_mul_i32 s5, s44, {PART_STRIDE}
s_lshl_b32 s6, s45, 5
s_add_u32 s5, s5, s6
s_add_u32 s5, s5, {PART_OFF}
v_lshlrev_b32 v2, 7, v2
v_lshl_add_u32 v2, v3, 4, v2
v_add_u32 v2, s5, v2
v_add_u32 v3, 4096, v2
s_and_b32 s18, s4, 0xff
s_bfe_u32 s19, s4, 0x80008
s_bfe_u32 s20, s4, 0x80010
s_lshr_b32 s21, s4, 24
s_mov_b32 s56, 0x3fffff
s_mov_b32 s57, 0x3fffff""".split("\n")
for f in filler: A(f)
A("s_barrier")
stamp(4); fstamp(1, 6); fstamp(2, 1)
if OPT["mprio"]: A(f"s_setprio {OPT['mprio']}")
for s in range(NB): kg_issue(s)
for s in range(16):
    q.wait(("kb", s))
    b = 156 + 8 * (s % NB)
    A(f"v_mfma_f32_32x32x16_bf16 v[140:155], {vr(b,4)}, {vr(b+4,4)}, {'0' if s == 0 else 'v[140:155]'}")
    if s + NB < 16: kg_issue(s + NB)
A(f"ds_read_b32 v{vT2}, v{vFL}"); q.issue(("flag", 0))
A.nop(11)
fstamp(2, 2)
K = lambda i: f"v{140+i}"
A(f"""
v_add_f32 {K(0)}, {K(0)}, v45
v_cvt_pk_bf16_f32 v215, {K(2)}, {K(1)}
v_cvt_pk_bf16_f32 v212, {K(3)}, {K(2)}
v_cvt_pk_bf16_f32 v214, {K(4)}, {K(3)}
v_cvt_pk_bf16_f32 v213, {K(1)}, {K(0)}
v_cvt_pk_bf16_f32 v222, {K(0)}, 0
v_cvt_pk_bf16_f32 v217, {K(5)}, {K(5)}
v_cvt_pk_bf16_f32 v219, {K(6)}, {K(5)}
v_cvt_pk_bf16_f32 v216, {K(7)}, {K(6)}
v_cvt_pk_bf16_f32 v218, {K(7)}, {K(7)}
v_cvt_pk_bf16_f32 v220, {K(8)}, {K(9)}
v_cvt_pk_bf16_f32 v221, {K(10)}, {K(11)}
v_cvt_pk_bf16_f32 v223, {K(9)}, {K(9)}
s_waitcnt lgkmcnt(0)
v_readfirstlane_b32 s5, v{vT2}
ds_write_b128 v208, v[212:215] offset:160
ds_write2_b32 v206, v213, v215 offset0:32 offset1:34
ds_write2_b32 v208, v212, v214 offset0:45 offset1:47
ds_write_b128 v207, v[216:219] offset:160
ds_write2_b32 v205, v217, v219 offset0:32 offset1:34
ds_write2_b32 v207, v216, v218 offset0:45 offset1:47
s_mov_b64 exec, 1
ds_write2_b32 v211, v222, v222 offset0:{UBY(13)//4} offset1:{UBY(15)//4+1}
s_mov_b64 exec, -1
""")
q.known_all()
for _ in range(7): q.issue("kw")
fstamp(2, 3)
kq = []
for m in [x for i in range(8) for x in (i, 8 + i)]:
    kq.append((("K", KD(m)), f"ds_read_b64 {vr(KD(m),2)}, v234 offset:{320*m}"))
    kq.append((("K", KD(m)), f"ds_read_b64 {vr(KD(m)+2,2)}, v240 offset:{320*m}"))
kq.append(("tw", f"ds_write_b32 v209, v220 offset:{T2_O+128}"))
kq.append(("tw", f"ds_write_b16 v210, v221 offset:{T3_O+64}"))
kq.append(("tw", f"ds_write_b16_d16_hi v210, v221 offset:{T3_O+64+64}"))
kq.append((("K", KD(16)), f"ds_read_b64 {vr(KD(16),2)}, v234 offset:{320*16}"))
kq.append((("K", KD(16)), f"ds_read_b64 {vr(KD(16)+2,2)}, v240 offset:{320*16}"))
for d in (2, 3, 4):
    for hh in (0, 1):
        o = 16 * d - 28 - 2 * hh
        kq.append((("K", T2(d, hh)), f"ds_read_b64 {vr(T2(d,hh),2)}, v235 offset:{T2_O+8*o}"))
        kq.append((("K", T2(d, hh)), f"ds_read_b64 {vr(T2(d,hh)+2,2)}, v235 offset:{T2_O+8*(o-1)}"))
for d in (4, 5, 6, 7):
    o = 16 * d - 60
    kq.append((("K", T3(d)), f"ds_read2_b32 {vr(T3(d),2)}, v236 offset0:{o} offset1:{o-1}"))
    kq.append((("K", T3(d)), f"ds_read2_b32 {vr(T3(d)+2,2)}, v236 offset0:{o-2} offset1:{o-3}"))
def kq_issue(n):
    for _ in range(n):
        if kq:
            t, x = kq.pop(0); A(x); q.issue(t)
kq_issue(4)
stamp(5); fstamp(2, 4)
def wait_flag(addr, off, val, nm, tmp):
    l = A.newlabel(nm); lo = A.newlabel(nm + "o")
    A(f"s_mov_b32 s54, {SPIN_MAX}")
    A.label(l)
    A(f"ds_read_b32 v{tmp}, v{addr} offset:{off}")
    A("s_waitcnt lgkmcnt(0)")
    A(f"v_readfirstlane_b32 s5, v{tmp}")
    A(f"s_sub_u32 s54, s54, 1\ns_cbranch_scc1 {lo}")
    A(f"s_cmp_lt_u32 s5, {val}\ns_cbranch_scc1 {l}")
    A.label(lo)
A("s_cmp_lg_u32 s5, 0\ns_cbranch_scc1 L_fast01")
ACC = lambda j: 140 + 4 * (j % 4)
SG2 = lambda b, hh: [156, 164, 232][b % 3] + 4 * hh
SG3 = lambda b: [240, 252, 204, 224][b]
WR = [196, 200]
NBR = 6
BA = lambda i: 208 + 4 * i if i < 4 else [None] * 4 and (228 if i == 4 else 4)
loads = []
for j in range(8):
    loads.append(("B", 8 * j))
    if j >= 2: loads += [("W0", j - 2), ("W1", j - 2)]
    for i in range(1, 8): loads.append(("B", 8 * j - i))
slot = {}
ring = 0
for k in loads:
    if k[0] == "B": slot[k] = BR(ring % NBR); ring += 1
    else: slot[k] = WR[int(k[0][1])]
touched = set()
prog = []
def MF(d, a, b, c, need=None):
    prog.append(dict(text=f"v_mfma_f32_16x16x32_bf16 {vr(d,4)}, {vr(a,4)}, {vr(b,4)}, {c}", need=need, valu=[], ds=[]))
def mf(j, a, b, need=None):
    c = vr(ACC(j), 4) if j in touched else "0"; touched.add(j)
    MF(ACC(j), a, b, c, need)
ydone = {}
for j in range(8):
    k0 = ("B", 8 * j)
    mf(j, KD(0), slot[k0], k0)
    if j + 1 <= 7: mf(j + 1, KD(8), slot[k0])
    cv = []; old = []; new = []
    if j >= 2:
        b = j - 2; w0, w1 = WR
        for i, bx in ((0, 0), (1, 1), (2, 2)) + (((4, 3),) if b <= 3 else ()):
            MF(BA(i), w0, BOX(bx), "0", ("W0", b))
        mf(j, KD(16), w0)
        for i, bx in ((3, 1),) + (((5, 4),) if b <= 3 else ()):
            MF(BA(i), w1, BOX(bx), "0", ("W1", b))
        for r in range(4): cv.append(f"v_cvt_pk_bf16_f32 v{SG2(b,r//2)+2*(r%2)}, v{BA(0)+r}, v{BA(1)+r}")
        for r in range(4): cv.append(f"v_cvt_pk_bf16_f32 v{SG2(b,r//2)+2*(r%2)+1}, v{BA(2)+r}, v{BA(3)+r}")
        if b <= 3:
            for r in range(4): cv.append(f"v_cvt_pk_bf16_f32 v{SG3(b)+r}, v{BA(4)+r}, v{BA(5)+r}")
        for d in (4, 3):
            if j - d >= 0: old += [(j, SG2(j - d, 0), T2(d, 0)), (j, SG2(j - d, 1), T2(d, 1))]
        for d in (7, 6, 5, 4):
            if j - d >= 0: old.append((j, SG3(j - d), T3(d)))
        new = [(j, SG2(b, 0), T2(2, 0)), (j, SG2(b, 1), T2(2, 1))]
        if b <= 3: mf(j + 2, KS, w0)
    for f in old: mf(*f)
    start = len(prog)
    for i in range(1, 8):
        k = ("B", 8 * j - i)
        mf(j, KD(i), slot[k], k)
        if i == 7:
            for f in new: mf(*f)
            ydone[j] = len(prog) - 1
        if j + 1 <= 7: mf(j + 1, KD(8 + i), slot[k])
    if cv:
        lastbox = max(i for i, e in enumerate(prog[:start]) if e["text"].rstrip().endswith(", 0") and f"v[{BA(3)}:" in e["text"] or f"v[{BA(5)}:" in e["text"].split(",")[0])
        pos = lastbox + 4
        per = 2 if j == 7 else 1
        while cv:
            for _ in range(per):
                if cv: prog[pos]["valu"].append(cv.pop(0))
            pos += 1
AHEAD = 4
first_use = {}
for i, e in enumerate(prog):
    if e["need"] and e["need"] not in first_use: first_use[e["need"]] = i
def ld_text(k):
    off = {"B": 480 + 64 * k[1], "W0": 480 + 512 * k[1], "W1": 464 + 512 * k[1]}[k[0]]
    return f"ds_read_b128 {vr(slot[k],4)}, v{vUB} offset:{off}"
last_use = {}
for i, e in enumerate(prog):
    for k in loads:
        pass
import re as _re
def uses(e, reg): return f"v[{reg}:{reg+3}]" in e["text"].split(",", 1)[1]
issue_at = {}
for n, k in enumerate(loads):
    if n <= AHEAD: continue
    p = first_use[loads[n - AHEAD - 1]]
    prev = [m for m in range(n) if slot[loads[m]] == slot[k]]
    if prev:
        lu = max(i for i in range(first_use[loads[prev[-1]]], first_use[k]) if uses(prog[i], slot[k]))
        p = max(p, lu)
    if n > AHEAD + 1: p = max(p, issue_at[loads[n - 1]])
    issue_at[k] = p
    prog[p]["ds"].append(("ld", k))
YD = OPT["yd"]
for j in range(7):
    prog[ydone[j] + YD]["ds"].append(("y", j)); prog[ydone[j] + YD + 1]["ds"].append(("yf", j))
for j in range(1, 8): prog[max(0, issue_at[("B", 8 * j)] - 6)]["ds"].insert(0, ("flag", j))
def ywrite(j):
    A(f"ds_write_b128 v{vYW}, {vr(ACC(j),4)} offset:{2*TROW*j}"); q.issue("yw")
def yflag(j):
    A(f"ds_write_b32 v{vT1}, v{vONE} offset:{48+16*j}"); q.issue("yf")
fix = ["v_readlane_b32 s6, v218, 63", "v_readlane_b32 s7, v223, 63"] + [f"v_and_b32 v{KS+i}, s7, v{KS+i}" for i in range(4)]
for n, f in enumerate(fix): prog[18 + n + (n >= 2)]["valu"].append(f)
for n in range(4): prog[26 + n]["valu"].append(f"v_and_or_b32 v{KD(16)+n}, v{MK3+n}, s6, v{KD(16)+n}")
prog[26]["pre"] = ("K", KD(16))
prog[40]["vm"] = True
def part_loads():
    A("global_load_dwordx4 v[56:59], v2, s[42:43] sc1\ns_mov_b64 exec, s[56:57]\nglobal_load_dwordx4 v[60:63], v3, s[42:43] sc1\ns_mov_b64 exec, -1")
if OPT["pl"] > 0:
    p = len(prog) - OPT["pl"]
    assert p - 2 >= first_use[("B", 56)]
    for k in range(4): prog[p - 2 + k // 2]["valu"].append(f"v_mov_b32 v{60+k}, s{18+k}")
    prog[p]["pl"] = True
slow = []
def emit(lo, hi, sfx):
    if lo == 0:
        stamp(6)
        for n in range(AHEAD + 1):
            A(ld_text(loads[n])); q.issue(loads[n])
            if 0 < n < OPT["pre"]: kq_issue(4)
    for i in range(lo, hi):
        e = prog[i]
        if e["need"] and e["need"][0] == "B" and e["need"][1] % 8 == 0 and first_use[e["need"]] == i : fstamp(3, 1 + e["need"][1] // 8)
        if e["need"]: q.wait(e["need"])
        for kr in _re.findall(r"v\[(\d+):", e["text"])[1:3]:
            if ("K", int(kr)) in q.q: q.wait(("K", int(kr)))
            assert all(t != ("K", int(kr)) for t, _ in kq), e["text"]
        if e.get("pre"): q.wait(e["pre"])
        if e.get("vm"): A("s_waitcnt vmcnt(0)")
        chk = [d for d in e["ds"] if d[0] == "ld" and d[1][0] == "B" and d[1][1] % 8 == 0 and d[1][1] > 0]
        if chk:
            q.wait(("flag", chk[0][1][1] // 8)); A(f"v_readfirstlane_b32 s5, v{vT2}")
        A(e["text"])
        if e.get("pl"): part_loads()
        for d in e["ds"]:
            if d[0] == "flag":
                A(f"ds_read_b32 v{vT2}, v{vFL} offset:{4*d[1]}"); q.issue(d)
            elif d[0] == "ld":
                if d in chk:
                    jj = d[1][1] // 8
                    A(f"s_cmp_eq_u32 s5, 0\ns_cbranch_scc1 L_uslow{jj}{sfx}\nL_uok{jj}{sfx}:")
                    slow.append((jj, sfx))
                A(ld_text(d[1])); q.issue(d[1])
            elif d[0] == "y": ywrite(d[1])
            else: yflag(d[1])
        kq_issue(2 if i < 16 else (1 if e["ds"] else 2))
        for v in e["valu"]: A(v)
import copy
JOIN = 32
kq_save, q_save = list(kq), copy.deepcopy(q)
kq_issue(len(kq))
wait_flag(vFL, 0, 1, "u0", vT2); q.known_all()
emit(0, JOIN, "a")
A.label("L_join")
emit(JOIN, len(prog), "")
A.nop(8); ywrite(7); yflag(7)
stamp(7); fstamp(3, 9)
if OPT["nopatch"]: A("s_endpgm")
XST = 16 * TROW
if OPT["pl"] == 0:
    for k in range(4): A(f"v_mov_b32 v{60+k}, s{18+k}")
    part_loads()
A("v_lshrrev_b32 v9, 5, v1")
lw = A.newlabel("st"); lwo = A.newlabel("sto")
A(f"""
s_lshl_b32 s5, s45, 3
v_lshl_add_u32 v24, v9, 2, s5
v_add_u32 v24, v24, v{vFL}
v_bfe_u32 v25, v1, 4, 1
s_mov_b32 s54, {SPIN_MAX}
{lw}:
ds_read_b128 v[28:31], v{vFL} offset:176
ds_read_b128 v[32:35], v{vFL} offset:{48+16*7}
ds_read_b32 v26, v24 offset:192
s_sub_u32 s54, s54, 1
s_cbranch_scc1 {lwo}
s_waitcnt lgkmcnt(0)
v_and_b32 v28, v28, v29
v_and_b32 v30, v30, v31
v_and_b32 v32, v32, v33
v_and_b32 v34, v34, v35
v_and_b32 v28, v28, v30
v_and_b32 v32, v32, v34
v_and_b32 v28, v28, v32
v_cmp_eq_u32 vcc, 0, v28
s_cbranch_vccnz {lw}
{lwo}:
v_and_b32 v27, 0x7ff, v26
v_sub_u32 v27, 2047, v27
v_mul_u32_u24 v28, {2*USTR}, v25
v_lshl_add_u32 v28, v27, 1, v28
v_add_u32 v28, {UB+512}, v28
v_lshlrev_b32 v29, 3, v27
v_lshl_add_u32 v29, v25, 2, v29
v_lshrrev_b32 v30, 7, v27
v_mul_u32_u24 v30, {TROW}, v30
v_bfe_u32 v31, v27, 4, 3
v_lshl_add_u32 v30, v31, 6, v30
v_lshrrev_b32 v31, 2, v27
v_lshrrev_b32 v32, 5, v27
v_add_u32 v31, v31, v32
v_and_b32 v31, 3, v31
v_lshl_add_u32 v30, v31, 4, v30
v_and_b32 v31, 3, v27
v_lshl_add_u32 v30, v31, 2, v30
v_lshl_add_u32 v30, v25, 10, v30
ds_read_u16 v36, v28
ds_read_u16 v37, v28 offset:{USTR}
ds_read_b32 v38, v29 offset:{XST}
ds_read_b32 v40, v30
ds_read_b32 v41, v30 offset:512
s_lshl_b32 s5, s44, 3
v_mul_u32_u24 v42, 1280, v27
v_lshl_add_u32 v42, v25, 2, v42
v_add_u32 v42, s5, v42
v_not_b32 v31, v26
v_ashrrev_i32 v31, 31, v31
v_or_b32 v31, 0x80000000, v31
v_xor_b32 v31, v26, v31
v_and_b32 v31, 0xffff0000, v31
v_mul_f32 v31, {NLOG2E:#x}, v31
v_exp_f32 v31, v31
s_waitcnt lgkmcnt(0)
v_add_f32 v31, 1.0, v31
v_rcp_f32 v43, v31
v_lshlrev_b32 v36, 16, v36
v_lshlrev_b32 v37, 16, v37
v_and_b32 v39, 0xffff0000, v38
v_lshlrev_b32 v38, 16, v38
s_mov_b32 s54, {SPIN_MAX}
""")
lP = A.newlabel("par"); lPo = A.newlabel("paro")
if OPT["pl"] < 0:
    for k in range(4): A(f"v_mov_b32 v{60+k}, s{18+k}")
    part_loads()
A.label(lP)
A("s_waitcnt vmcnt(0)")
for k in range(8): A(f"v_xor_b32 v{44+k}, s{18+k%4}, v{56+k}")
A(f"""
v_or3_b32 v52, v44, v45, v46
v_or3_b32 v53, v47, v48, v49
v_or3_b32 v52, v52, v50, v51
v_or_b32 v52, v52, v53
v_and_b32 v52, 0xff, v52
v_cmp_ne_u32 vcc, 0, v52
s_cbranch_vccz {lPo}
s_sub_u32 s54, s54, 1
s_cbranch_scc1 {lPo}
""")
if OPT["rt"]:
    A("s_and_b64 s[58:59], vcc, s[56:57]\ns_mov_b64 exec, vcc\nglobal_load_dwordx4 v[56:59], v2, s[42:43] sc1\ns_or_b64 exec, s[58:59], 1\nglobal_load_dwordx4 v[60:63], v3, s[42:43] sc1\ns_mov_b64 exec, -1")
else: part_loads()
A(f"s_branch {lP}")
A.label(lPo)
stamp(8)
for k in range(4): A(f"v_add_f32 v{44+k}, v{44+k}, v{48+k}")
A("s_nop 0\nv_permlane16_swap_b32 v44, v46\nv_permlane16_swap_b32 v45, v47\nv_add_f32 v44, v44, v46\nv_add_f32 v45, v45, v47")
for sh in (1, 2, 4, 8):
    A(f"s_nop 0\nv_add_f32_dpp v44, v44, v44 row_shr:{sh} row_mask:0xf bank_mask:0xf bound_ctrl:0\nv_add_f32_dpp v45, v45, v45 row_shr:{sh} row_mask:0xf bank_mask:0xf bound_ctrl:0")
A(f"""
v_fma_f32 v44, v44, v43, v36
v_fma_f32 v45, v45, v43, v37
v_mul_f32 v46, {NLOG2E:#x}, v44
v_mul_f32 v47, {NLOG2E:#x}, v45
v_exp_f32 v46, v46
v_exp_f32 v47, v47
v_mul_f32 v44, v44, v40
v_mul_f32 v45, v45, v41
v_add_f32 v46, 1.0, v46
v_add_f32 v47, 1.0, v47
v_rcp_f32 v46, v46
v_rcp_f32 v47, v47
s_mov_b32 exec_lo, 0x80008000
s_mov_b32 exec_hi, 0x80008000
v_fma_f32 v44, v44, v46, v38
v_fma_f32 v45, v45, v47, v39
v_cvt_pk_bf16_f32 v44, v44, v45
global_store_dword v42, v44, s[40:41]
""")
stamp(9)
if OPT["stamps"]:
    A("s_waitcnt vmcnt(0)")
    stamp(10)
finish(11)
A.label("L_fast01")
kq[:] = kq_save; q.q, q.done = q_save.q, q_save.done
emit(0, JOIN, "b")
assert not kq
q.wait(("K", T3(7)))
A("s_branch L_join")
for jj, sfx in slow:
    A.label(f"L_uslow{jj}{sfx}")
    wait_flag(vFL, 4 * jj, 1, "us", vT2)
    A(f"s_branch L_uok{jj}{sfx}")
A.label("L_helper")
A("s_setprio 0")
XF = [112, 144]; GG = [128, 160]; XR = [96, 104]; ST = [8, 16]; UU = [24, 32]
A(f"""
s_lshl_b32 s5, s45, 11
s_add_u32 s5, s5, {G1_OFF}
v_lshl_add_u32 v92, v1, {4 if OPT['g1l'] else 5}, s5
s_lshl_b32 s5, s55, 11
v_add_u32 v93, s5, v92
""")
G1A = f"global_load_dwordx4 v[8:11], v92, s[42:43] sc1\nglobal_load_dwordx4 v[12:15], v92, s[42:43] offset:{G1S} sc1"
if OPT["gb1"] or OPT["g1pre"]: A(G1A)
A("s_waitcnt lgkmcnt(0)\ns_barrier")
stamp(4); fstamp(6, 1); fstamp(7, 3)
gather(0, OPT["gan"], 4)
if OPT["gb1"]:
    assert OPT["gan"] == 4 and OPT["gbn"] == 0
    gather(1, 0, OPT["gb1"])
elif OPT["allb"]:
    gather(1, OPT["gbn"], 4)
    A(G1A)
    A("global_load_dwordx4 v[16:19], v93, s[42:43] sc1\nglobal_load_dwordx4 v[20:23], v93, s[42:43] offset:16 sc1")
elif not OPT["g1pre"]: A(G1A)
A(f"""
s_lshl_b32 s5, s45, 9
s_add_u32 s5, s5, {UB+512}
v_lshl_add_u32 v91, v1, 3, s5
v_lshrrev_b32 v2, 3, v1
v_add_u32 v2, v2, v1
v_and_b32 v2, 3, v2
v_and_b32 v3, 28, v1
v_add_u32 v2, v2, v3
v_lshlrev_b32 v2, 4, v2
v_lshrrev_b32 v3, 5, v1
v_mul_u32_u24 v3, {TROW}, v3
s_mul_i32 s5, s45, {2*TROW}
v_add3_u32 v90, v2, v3, s5
s_lshl_b32 s5, s45, 2
v_add_u32 v89, s5, v{vFL}
s_lshl_b32 s5, s45, 4
v_add_u32 v87, s5, v{vFL}
s_lshl_b32 s5, s45, 11
s_add_u32 s5, s5, {16*TROW}
v_lshl_add_u32 v86, v1, 5, s5
s_lshl_b32 s5, s55, 9
v_add_u32 v232, s5, v91
s_mul_i32 s5, s55, {2*TROW}
v_add_u32 v233, s5, v90
s_lshl_b32 s5, s55, 2
v_add_u32 v234, s5, v89
s_lshl_b32 s5, s55, 4
v_add_u32 v235, s5, v87
s_lshl_b32 s5, s55, 11
v_add_u32 v236, s5, v86
v_and_b32 v88, 7, v1
v_lshl_add_u32 v237, v88, 2, v{vFL}
v_lshlrev_b32 v88, 4, v88
v_add_u32 v88, {SEL_OFF}, v88
s_lshl_b32 s5, s9, {7 if OPT['rep8'] else 31}
s_and_b32 s5, s5, 0x380
v_add_u32 v88, s5, v88
s_lshl_b32 s5, s45, 8
s_add_u32 s5, s5, {MARK}
v_add_u32 v238, s5, v4
s_lshl_b32 s5, s55, 8
v_add_u32 v239, s5, v238
""")
def unpack_x(t):
    for r in range(4):
        for hw in range(2):
            src = XR[t] + 2 * r + hw
            A(f"v_lshlrev_b32 v{XF[t]+4*(2*hw)+r}, 16, v{src}")
            A(f"v_and_b32 v{XF[t]+4*(2*hw+1)+r}, 0xffff0000, v{src}")
def poll4(s, av, first_wait):
    l = A.newlabel("g"); lo = A.newlabel("go")
    A(f"s_mov_b32 s54, {SPIN_MAX}")
    A(f"s_waitcnt vmcnt({first_wait})")
    A.label(l)
    A(f"""
v_xor_b32 v2, s4, v{s+1}
v_xor_b32 v3, s4, v{s+3}
v_xor_b32 v5, s4, v{s+5}
v_xor_b32 v6, s4, v{s+7}
v_or3_b32 v2, v2, v3, v5
v_or_b32 v2, v2, v6
v_cmp_ne_u32 vcc, 0, v2
s_cbranch_vccz {lo}
s_sub_u32 s54, s54, 1
s_cbranch_scc1 {lo}
global_load_dwordx4 {vr(s,4)}, v{av}, s[42:43] sc1
global_load_dwordx4 {vr(s+4,4)}, v{av}, s[42:43] offset:{G1S} sc1
s_waitcnt vmcnt(0)
s_branch {l}
""")
    A.label(lo)
def normalize(t):
    s = ST[t]
    for r in range(4): A(f"v_and_b32 v{180+r}, 0xffff0000, v{s+2*r}")
    for r in range(4): A(f"v_rcp_f32 v{180+r}, v{180+r}")
    for r in range(4): A(f"v_lshlrev_b32 v{176+r}, 16, v{s+2*r}")
    for r in range(4): A(f"v_mul_f32 v{176+r}, v{176+r}, v{180+r}")
    for ch in range(4):
        N = GG[t] + 4 * ch
        for r in range(4): A(f"v_fma_f32 v{N+r}, v{XF[t]+4*ch+r}, v{180+r}, -v{176+r}")
        for p in range(2): A(f"v_cvt_pk_bf16_f32 v{UU[t]+2*ch+p}, v{N+2*p}, v{N+2*p+1}")
    for ch in range(4): A(f"ds_write_b64 v{[91,232][t]}, {vr(UU[t]+2*ch,2)} offset:{USTR*ch}")
    A(f"ds_write_b32 v{[89,234][t]}, v{vONE}")
def pre(t, rows):
    for r in rows:
        N = lambda ch: GG[t] + 4 * ch + r
        E = 188
        for i in range(4): A(f"v_mul_f32 v{E+i}, {NLOG2E:#x}, v{N(i)}")
        for i in range(4): A(f"v_exp_f32 v{E+i}, v{E+i}")
        for i in range(4): A(f"v_add_f32 v{E+i}, 1.0, v{E+i}")
        for i in range(4): A(f"v_rcp_f32 v{E+i}, v{E+i}")
        for i in range(4): A(f"v_mul_f32 v{N(i)}, v{N(i)}, v{E+i}")
def precompute(t): pre(t, range(4))
def yflag_read(t): A(f"ds_read_b128 v[192:195], v{[87,235][t]} offset:48")
def yflag_test():
    A("v_and_b32 v192, v192, v193\nv_and_b32 v194, v194, v195\nv_and_b32 v192, v192, v194\ns_nop 0\nv_readfirstlane_b32 s5, v192\ns_cmp_lg_u32 s5, 0")
def ywait(t):
    l = A.newlabel("y"); lo = A.newlabel("yo")
    A(f"s_mov_b32 s54, {SPIN_MAX}")
    A.label(l)
    yflag_read(t)
    A(f"s_sub_u32 s54, s54, 1\ns_cbranch_scc1 {lo}\ns_waitcnt lgkmcnt(0)")
    yflag_test()
    if OPT["slp"]: A(f"s_cbranch_scc1 {lo}\ns_sleep {OPT['slp']}\ns_branch {l}")
    else: A(f"s_cbranch_scc0 {l}")
    A.label(lo)
def yread(t):
    for ch in range(4): A(f"ds_read_b128 {vr(200+4*ch,4)}, v{[90,233][t]} offset:{512*ch}")
    A("s_waitcnt lgkmcnt(0)")
MSK = [18, 26]
def epi(t, rows, masked):
    for r in rows:
        for ch in range(4): A(f"v_fma_f32 v{200+4*ch+r}, v{200+4*ch+r}, v{GG[t]+4*ch+r}, v{XF[t]+4*ch+r}")
        A(f"v_cvt_pk_bf16_f32 v{216+2*r+8*t}, v{200+r}, v{204+r}")
        A(f"v_cvt_pk_bf16_f32 v{217+2*r+8*t}, v{208+r}, v{212+r}")
        if masked: A(f"s_mov_b64 exec, s[{MSK[t]+2*r}:{MSK[t]+2*r+1}]")
        if not OPT["nostore"]: A(f"global_store_dwordx2 v{94+t}, {vr(216+2*r+8*t,2)}, s[40:41] offset:{1280*r}{NTS}")
        if masked: A("s_mov_b64 exec, -1")
XST = 16 * TROW
def stash(t):
    A(f"ds_write_b128 v{[86,236][t]}, {vr(XR[t],4)}\nds_write_b128 v{[86,236][t]}, {vr(XR[t]+4,4)} offset:16")
def run_step(pr, pos, vq):
    def after(tag): return len(vq) - 1 - max(i for i, t in enumerate(vq) if t == tag)
    for c in pr[pos]:
        if c == "a": A(f"s_waitcnt vmcnt({after('xa')})"); unpack_x(0)
        elif c == "w": A(f"s_waitcnt vmcnt({after('xa')})")
        elif c == "u": unpack_x(0)
        elif c == "p": poll4(ST[0], 92, after("ga")); stamp(5)
        elif c == "B": gather(1); vq += ["xb"] * 4
        elif c == "b":
            A(f"global_load_dwordx4 v[16:19], v93, s[42:43] sc1\nglobal_load_dwordx4 v[20:23], v93, s[42:43] offset:{G1S} sc1"); vq += ["gb"] * 2
        elif c == "n": normalize(0); stamp(6)
        elif c == "0": precompute(0)
        elif c == "h": pre(0, [0, 1])
        elif c == "H": pre(0, [2, 3])
        elif c == "1": precompute(1)
        elif c == "N":
            A(f"s_waitcnt vmcnt({after('xb')})"); unpack_x(1); poll4(ST[1], 93, after("gb")); normalize(1); stamp(7)
        elif c == "S": A(SELLD); vq.append("sel")
        elif c in "Ee":
            ywait(0)
            if "sel" not in vq: A(SELLD); vq.append("sel")
            yread(0); epi(0, range(4), c == "e"); vq += ["sa"] * 4; stamp(8)
        elif c == "M":
            lS = A.newlabel("sel"); lSo = A.newlabel("selo")
            both = "e" in pr
            A(f"""
s_mov_b32 s54, {SPIN_MAX}
s_waitcnt vmcnt({after('sel')})
{lS}:
v_cmp_ne_u32 vcc, s4, v43
s_cbranch_vccz {lSo}
s_sub_u32 s54, s54, 1
s_cbranch_scc1 {lSo}
{SELLD}
s_waitcnt vmcnt(0)
s_branch {lS}
{lSo}:
v_and_b32 v44, 0x7ff, v40
v_sub_u32 v44, {MARK+2047}, v44
ds_write_b8 v44, v{vONE}
ds_write_b32 v237, v40 offset:192
{'ds_read_b32 v45, v238' if both else ''}
ds_read_b32 v46, v239
s_waitcnt lgkmcnt(0)
""")
            for t in ((0, 1) if both else (1,)):
                for r in range(4): A(f"v_cmp_eq_u32_sdwa s[{MSK[t]+2*r}:{MSK[t]+2*r+1}], v{45+t}, 0 src0_sel:BYTE_{r} src1_sel:DWORD")
        elif c == "k": A(f"s_waitcnt vmcnt({after('sa')})\nds_write_b32 v89, v{vONE} offset:176")
        elif c == "f": A(f"ds_write_b32 v89, v{vONE} offset:176")
        elif c == "G":
            ywait(1); yread(1); epi(1, range(4), True); vq += ["sb"] * 4; stamp(9)
        done = pr[:pr.index(c) + 1]
        if c in "EeN" and ("E" in done or "e" in done) and "N" in done: stash(0); stash(1)
SELLD = "global_load_dwordx4 v[40:43], v88, s[42:43] sc1"
progs = [OPT[f"prog{h}"] for h in range(4)]
def emit_tree(hs, pos, vq):
    while True:
        nxt = {}
        for h in hs: nxt.setdefault(progs[h][pos:pos+1] + ("e" if progs[h][pos:pos+1] == "M" and "e" in progs[h] else ""), []).append(h)
        if len(nxt) == 1:
            c = list(nxt)[0]
            if c == "": A("s_branch L_progend"); return
            run_step(progs[hs[0]], pos, vq); pos += 1
            continue
        groups = list(nxt.values()); labels = [A.newlabel("pg") for _ in groups]
        for g, l in list(zip(groups, labels))[1:]:
            for h in g: A(f"s_cmp_eq_u32 s45, {h}\ns_cbranch_scc1 {l}")
        for i, (g, l) in enumerate(zip(groups, labels)):
            if i: A.label(l)
            emit_tree(g, pos, list(vq))
        return
emit_tree([0, 1, 2, 3], 0, ["xa"] * 4 + ["ga"] * 2)
A.label("L_progend")
if OPT["stamps"]:
    A("s_waitcnt vmcnt(0)")
    stamp(10)
finish(11)

A.label("L_notconv")
PAIRTAB = 0x77277170 if OPT["bal"] else 0x77777210
def pair_of(dst, ps):
    A(f"""
s_lshl_b32 s6, s9, 2
s_lshr_b32 s6, {PAIRTAB:#x}, s6
s_and_b32 s6, s6, 7
s_cmp_ge_u32 {ps}, 3
s_cselect_b32 s6, s6, s9
s_lshl_b32 {dst}, {ps}, 3
s_add_u32 {dst}, {dst}, s6
""")
A("s_sub_u32 s62, s8, 20")
A(f"""
v_lshlrev_b32 v7, 4, v0
v_add_u32 v7, {KB}, v7
ds_write_b128 v7, v[32:35]
ds_write_b128 v7, v[32:35] offset:8192
s_lshr_b32 s63, s62, 1
""")
if OPT["gul"] == 1: gu_pf()
GU12 = OPT["gul"] == 2
if GU12:
    A(f"""
s_lshl_b32 s5, s49, 3
s_add_u32 s5, s5, s9
s_min_u32 s5, s5, 26
s_lshl_b32 s5, s5, 7
s_mul_i32 s6, s62, 54
v_add_u32 v23, s6, v1
v_min_u32 v23, 639, v23
v_mul_u32_u24 v23, 3456, v23
v_add_u32 v23, s5, v23
s_mov_b64 s[52:53], s[56:57]
""")
A("s_mov_b64 s[52:53], s[56:57]")
pair_of("s48", "s63")
A(f"""
s_lshl_b32 s48, s48, 1
s_and_b32 s5, s62, 1
s_add_u32 s48, s48, s5
s_mul_i32 s5, s49, {160*3456}
s_lshl_b32 s6, s48, 6
s_add_u32 s5, s5, s6
s_add_u32 s56, s56, s5
s_addc_u32 s57, s57, 0
s_mul_i32 s50, s3, 10240
s_mov_b32 m0, s50
v_lshrrev_b32 v5, 2, v1
v_mul_u32_u24 v5, 3456, v5
v_and_b32 v6, 3, v1
v_lshl_add_u32 v5, v6, 4, v5
""")
stats_pre()
stats(3 - (OPT["gul"] >= 2))
if OPT["gul"] == 3: A(f"s_mov_b64 exec, 0xfffff\nglobal_load_dword v251, v23, s[52:53]{NTW}\ns_mov_b64 exec, -1")
A("s_waitcnt lgkmcnt(0)")
A(f"""
s_barrier
{"s_cmp_eq_u32 s2, 255" if GU12 else ""}
{"s_cbranch_scc1 L_selector" if GU12 else ""}
{"s_mov_b32 exec_hi, 0x3fffff" if GU12 else ""}
{("global_load_dword v251, v23, s[52:53]" + NTW) if GU12 else ""}
s_mov_b64 exec, -1
s_cmp_lt_u32 s48, 54
s_cbranch_scc1 L_moe
s_cmp_lt_u32 s62, 8
s_cbranch_scc1 L_fin
s_sub_u32 s63, s62, 8
""")
A("s_cmp_eq_u32 s2, 255\ns_cbranch_scc1 L_selector")
pair_of("s5", "s63")
A(f"""
s_cmp_ge_u32 s5, {27 if OPT['dpf'] else 0}
s_cbranch_scc1 L_fin
s_mul_i32 s5, s5, {64*1280}
s_add_u32 s5, s5, s50
v_lshl_add_u32 v5, v1, 7, s5
global_load_dword v251, v5, s[38:39]{NTW}
v_add_u32 v5, 8192, v5
s_mov_b64 exec, 0xffff
global_load_dword v251, v5, s[38:39]{NTW}
s_branch L_fin
L_moe:
""")
A(f"""
v_and_b32 v116, 15, v1
v_lshrrev_b32 v117, 4, v1
s_mul_i32 s5, s48, {32*1280}
s_lshl_b32 s6, s3, 8
s_add_u32 s5, s5, s6
v_mul_u32_u24 v34, {8*1280}, v117
v_lshl_add_u32 v34, v116, 4, v34
v_add_u32 v34, s5, v34
v_add_u32 v35, {4*1280}, v34
""")
if OPT["dfirst"] == 1:
    A("s_cmp_ge_u32 s3, 5\ns_cbranch_scc1 L_nod0")
    for j in range(8):
        A(f"global_load_dwordx4 {vr(80+4*j,4)}, v{34 + j//4}, s[38:39] offset:{1280*(j%4)}{NTW}")
    A.label("L_nod0")
for i in range(10):
    A(f"global_load_lds_dwordx4 v5, s[56:57]{NTW}")
    if i < 9: A(f"s_add_u32 m0, m0, 1024\ns_add_u32 s56, s56, {16*3456}\ns_addc_u32 s57, s57, 0")
A(f"""
v_and_b32 v39, 7, v1
s_lshl_b32 s5, s9, 7
s_add_u32 s5, s5, {SEL_OFF}
v_lshl_add_u32 v36, v39, 4, s5
s_mov_b32 s60, 0x05040100
s_mov_b32 s61, 0x07060302
v_mov_b32 v112, 0x3f803f80
v_mov_b32 v113, 0x3f803f80
v_mov_b32 v114, 0x3f803f80
v_mov_b32 v115, 0x3f803f80
s_mov_b32 s62, 0x00ff00ff
s_mov_b32 s63, 0x00ff00ff
v_lshlrev_b32 v7, 9, v117
v_bfe_u32 v38, v1, 2, 2
v_lshl_add_u32 v7, v38, 6, v7
v_and_b32 v38, 1, v1
v_lshl_add_u32 v7, v38, 3, v7
v_bfe_u32 v38, v1, 1, 1
v_mul_u32_u24 v38, 10240, v38
s_lshl_b32 s5, s45, 4
v_add3_u32 v7, v7, v38, s5
v_add_u32 v37, 40960, v7
v_lshlrev_b32 v118, 4, v1
v_lshlrev_b32 v204, 6, v39
v_and_b32 v38, 1, v117
v_lshl_add_u32 v204, v38, 3, v204
v_lshrrev_b32 v38, 1, v117
v_lshl_add_u32 v204, v38, 2, v204
s_add_u32 s5, s5, {HB}
v_add_u32 v204, s5, v204
v_lshlrev_b32 v206, 6, v39
v_lshl_add_u32 v206, v117, 4, v206
v_add_u32 v206, {HB}, v206
v_mov_b32 v207, {ZBLK}
v_cndmask_b32 v208, v207, v206, s[62:63]
v_cndmask_b32 v207, v206, v207, s[62:63]
s_and_b32 s5, s4, 0xff
v_mov_b32 v212, s5
s_bfe_u32 s5, s4, 0x80008
v_mov_b32 v213, s5
s_bfe_u32 s5, s4, 0x80010
v_mov_b32 v214, s5
s_lshr_b32 s5, s4, 24
v_mov_b32 v215, s5
v_bfe_u32 v216, v1, 3, 1
v_lshl_add_u32 v216, v117, 3, v216
v_mul_u32_u24 v216, {PART_STRIDE}, v216
v_lshl_add_u32 v216, v39, 4, v216
s_mul_i32 s5, s3, {32*PART_STRIDE}
s_lshl_b32 s6, s48, 7
s_add_u32 s5, s5, s6
s_add_u32 s5, s5, {PART_OFF}
v_add_u32 v216, s5, v216
v_add_u32 v217, {2*PART_STRIDE}, v216
v_add_u32 v218, {4*PART_STRIDE}, v216
v_add_u32 v219, {6*PART_STRIDE}, v216
v_min_u32 v220, 8, v116
v_mul_u32_u24 v220, {XRS}, v220
v_lshl_add_u32 v220, v117, 4, v220
v_add_u32 v220, {XRB}, v220
s_mul_i32 s55, s45, {XRS}
s_add_u32 s55, s55, {XRB}
s_add_u32 s47, s45, 4
v_min_u32 v38, 79, v0
v_lshlrev_b32 v38, 4, v38
v_add_u32 v38, {XRB + 8*XRS}, v38
ds_write_b128 v38, v[112:115]
s_waitcnt vmcnt(0)
s_cmp_ge_u32 s3, 5
s_cbranch_scc1 L_nod
""")
if OPT["dfirst"] == 0:
    for j in range(8):
        A(f"global_load_dwordx4 {vr(80+4*j,4)}, v{34 + j//4}, s[38:39] offset:{1280*(j%4)}{NTW}")
A("L_nod:\nglobal_load_dwordx4 v[8:11], v36, s[42:43] sc1\ns_barrier")
if OPT["dfirst"] == 2:
    A("s_cmp_ge_u32 s3, 5\ns_cbranch_scc1 L_nod0")
    for j in range(8):
        A(f"global_load_dwordx4 {vr(80+4*j,4)}, v{34 + j//4}, s[38:39] offset:{1280*(j%4)}{NTW}")
    A.label("L_nod0")
A("s_cmp_ge_u32 s3, 4\ns_cbranch_scc1 L_nocs")
for ks in range(20):
    for hf in range(2):
        A(f"ds_read_b64_tr_b16 {vr(120+4*ks+2*hf,2)}, v{7 if ks < 10 else 37} offset:{(ks//5 % 2)*20480 + (ks%5)*2048 + 256*hf}")
A.label("L_nocs")
stamp(4)
lS = A.newlabel("msel"); lSo = A.newlabel("mselo")
A(f"""
s_mov_b32 s54, {SPIN_MAX}
s_mov_b32 m0, s55
s_waitcnt vmcnt(0)
{lS}:
v_cmp_ne_u32 vcc, s4, v11
s_cbranch_vccz {lSo}
s_sub_u32 s54, s54, 1
s_cbranch_scc1 {lSo}
global_load_dwordx4 v[8:11], v36, s[42:43] sc1
s_waitcnt vmcnt(0)
s_branch {lS}
{lSo}:
s_cmp_lt_u32 s3, 4
s_cbranch_scc1 L_norow
v_readlane_b32 s52, v8, s45
v_readlane_b32 s53, v8, s47
s_and_b32 s52, s52, 0x7ff
s_and_b32 s53, s53, 0x7ff
s_sub_u32 s52, 2047, s52
s_sub_u32 s53, 2047, s53
s_mul_i32 s52, s52, 1280
s_mul_i32 s53, s53, 1280
s_add_u32 s56, s16, s52
s_addc_u32 s57, s17, 0
s_add_u32 s58, s16, s53
s_addc_u32 s59, s17, 0
global_load_lds_dwordx4 v118, s[56:57]
global_load_lds_dword v4, s[56:57] offset:1024
s_add_u32 m0, m0, {4*XRS}
s_nop 0
global_load_lds_dwordx4 v118, s[58:59]
global_load_lds_dword v4, s[58:59] offset:1024
L_norow:
""")
stamp(5)
for qq in range(8):
    for i in range(4):
        A(f"v_perm_b32 v{224+4*qq+i}, v{80+4*(2*i+1)+qq//2}, v{80+4*(2*i)+qq//2}, {'s60' if qq % 2 == 0 else 's61'}")
A(f"""
s_mov_b32 s60, 0xffffff00
v_and_b32 v33, 0xffff0000, v9
v_lshlrev_b32 v32, 16, v9
v_rcp_f32 v33, v33
v_xor_b32 v32, 0x80000000, v32
v_mul_f32 v30, {NLOG2E:#x}, v33
v_mul_f32 v31, v33, v33
s_waitcnt vmcnt(0) lgkmcnt(0)
s_barrier
""")
stamp(6)
A("s_cmp_ge_u32 s3, 4\ns_cbranch_scc1 L_nored")
mq = LdsQ()
XB = [40, 44, 48, 52, 56, 12, 16, 20]
def xr(ks): A(f"ds_read_b128 {vr(XB[ks % 8],4)}, v220 offset:{64*ks}"); mq.issue(ks)
for ks in range(7): xr(ks)
for ks in range(20):
    mq.wait(ks)
    A(f"v_mfma_f32_16x16x32_bf16 v[60:63], {vr(120+4*ks,4)}, {vr(XB[ks % 8],4)}, {'0' if ks == 0 else 'v[60:63]'}")
    if ks + 7 < 20: xr(ks + 7)
stamp(7)
A(f"""
s_nop 7
v_fmac_f32_dpp v60, v60, v32 row_ror:8 row_mask:0xf bank_mask:0xf
v_fmac_f32_dpp v62, v62, v32 row_ror:8 row_mask:0xf bank_mask:0xf
v_fmac_f32_dpp v61, v61, v32 row_ror:8 row_mask:0xf bank_mask:0xf
v_fmac_f32_dpp v63, v63, v32 row_ror:8 row_mask:0xf bank_mask:0xf
v_permlane32_swap_b32 v60, v62
s_nop 0
v_permlane32_swap_b32 v61, v63
v_mul_f32 v8, v60, v30
v_mul_f32 v9, v61, v30
v_exp_f32 v8, v8
v_exp_f32 v9, v9
v_mul_f32 v60, v60, v62
v_mul_f32 v61, v61, v63
v_add_f32 v8, 1.0, v8
v_add_f32 v9, 1.0, v9
v_rcp_f32 v8, v8
v_rcp_f32 v9, v9
v_mul_f32 v60, v60, v31
v_mul_f32 v61, v61, v31
v_mul_f32 v60, v60, v8
v_mul_f32 v61, v61, v9
s_mov_b64 exec, s[62:63]
v_cvt_pk_bf16_f32 v8, v60, v61
ds_write_b32 v204, v8
s_mov_b64 exec, -1
L_nored:
s_waitcnt lgkmcnt(0)
s_barrier
""")
stamp(8)
A(f"""
s_cmp_ge_u32 s3, 5
s_cbranch_scc1 L_fin
ds_read_b128 v[8:11], v208
ds_read_b128 v[12:15], v207
s_waitcnt lgkmcnt(1)
""")
for qq in range(4): A(f"v_mfma_f32_16x16x32_bf16 {vr(56+4*qq,4)}, {vr(224+4*qq,4)}, v[8:11], 0")
A("s_waitcnt lgkmcnt(0)")
for qq in range(4): A(f"v_mfma_f32_16x16x32_bf16 {vr(56+4*qq,4)}, {vr(240+4*qq,4)}, v[12:15], {vr(56+4*qq,4)}")
A.nop(5)
for r in range(4):
    for qq in range(4): A(f"v_bfi_b32 v{72+4*r+qq}, s60, v{56+4*qq+r}, v{212+qq}")
    A(f"global_store_dwordx4 v{216+r}, {vr(72+4*r,4)}, s[42:43] sc1")
stamp(9)
if OPT["stamps"]:
    A("s_waitcnt vmcnt(0)")
    stamp(10)
finish(11)
A.label("L_selector")
def rank16(key, lst, rk, t):
    prs = ["s[6:7]", "s[10:11]", "s[12:13]", "s[14:15]"]
    for i in range(4): A(f"v_cmp_gt_u32 {prs[i]}, v{lst+i}, v{key}")
    A(f"v_addc_co_u32_e64 v{rk}, vcc, 0, 0, {prs[0]}")
    for i in range(1, 4): A(f"v_addc_co_u32_e64 v{rk}, vcc, v{rk}, 0, {prs[i]}")
    A(f"v_mov_b32 v{t}, v{rk}\ns_nop 1\nv_permlane16_swap_b32 v{rk}, v{t}\nv_add_u32 v{rk}, v{rk}, v{t}")
    A(f"v_mov_b32 v{t}, v{rk}\ns_nop 1\nv_permlane32_swap_b32 v{rk}, v{t}\nv_add_u32 v{rk}, v{rk}, v{t}")
MSDB = 0
KEY = [50, 54, 58, 62]
def g2_loads(base):
    for r in range(4): A(f"global_load_dwordx4 {vr(base+4*r,4)}, v36, s[42:43] offset:{1024*r} sc1")
def g2_bad(base):
    A(f"v_xor_b32 v2, s4, v{base+3}\nv_xor_b32 v3, s4, v{base+7}\nv_xor_b32 v5, s4, v{base+11}\nv_xor_b32 v6, s4, v{base+15}")
    A("v_or3_b32 v2, v2, v3, v5\nv_or_b32 v2, v2, v6\nv_cmp_ne_u32 vcc, 0, v2")
A(f"""
v_and_b32 v116, 15, v1
v_lshrrev_b32 v117, 4, v1
s_lshl_b32 s5, s3, 12
s_add_u32 s5, s5, {G2_OFF}
v_lshl_add_u32 v36, v1, 4, s5
v_lshlrev_b32 v221, 2, v116
v_lshlrev_b32 v222, 4, v117
v_add_u32 v223, {HMAX}, v221
v_add_u32 v224, {HMAX}, v222
v_add_u32 v221, {LIST+DRY}, v221
v_add_u32 v222, {LIST+DRY}, v222
v_lshrrev_b32 v225, 5, v0
v_lshlrev_b32 v225, 2, v225
v_add_u32 v225, {HMAX}, v225
v_mov_b32 v19, {CNT+DRY}
v_lshlrev_b32 v40, 8, v117
v_add_u32 v40, {SEL_OFF}, v40
v_mov_b32 v41, 0
v_mov_b32 v46, s4
v_mov_b32 v47, s4
s_lshl_b32 s5, s3, 10
s_sub_u32 s5, {MSDB + 4*(2047-192)}, s5
v_sub_u32 v37, s5, v4
v_bfrev_b32 v50, v0
v_mov_b32 v54, 0
v_mov_b32 v58, 0
v_mov_b32 v62, 0
s_mov_b32 s59, 0
{'s_branch L_s_top' if OPT['dry'] else ''}
L_s_real:
v_subrev_u32 v221, {DRY}, v221
v_subrev_u32 v222, {DRY}, v222
v_subrev_u32 v19, {DRY}, v19
s_mov_b32 s59, 1
s_mov_b32 s54, {SPIN_MAX}
""")
stamp(4)
if OPT["dbl"]:
    g2_loads(48)
    A("L_s_poll:")
    g2_loads(64)
    A("s_waitcnt vmcnt(4)")
    g2_bad(48)
    A("s_cbranch_vccz L_s_top\ns_sub_u32 s54, s54, 1\ns_cbranch_scc1 L_s_top")
    g2_loads(48)
    A("s_waitcnt vmcnt(4)")
    g2_bad(64)
    A("s_cbranch_vccnz L_s_poll")
    for i in range(0, 16, 2): A(f"v_mov_b32 v{48+i}, v{64+i}")
else:
    A("L_s_poll:")
    g2_loads(48)
    A("s_sub_u32 s54, s54, 1\ns_cbranch_scc1 L_s_top\ns_waitcnt vmcnt(0)")
    g2_bad(48)
    A("s_cbranch_vccnz L_s_poll")
A("L_s_top:")
stamp(5)
A(f"v_max3_u32 v16, v{KEY[0]}, v{KEY[1]}, v{KEY[2]}\nv_max_u32 v16, v16, v{KEY[3]}\ns_nop 1")
for i, mod in enumerate(DPP6[:5]):
    if i: A("s_nop 1")
    A(f"v_max_u32_dpp v16, v16, v16 {mod.replace(' bound_ctrl:0','')}")
A(f"""
s_mov_b32 exec_lo, 0x80000000
s_mov_b32 exec_hi, 0x80000000
ds_write_b32 v225, v16
s_mov_b64 exec, -1
s_waitcnt lgkmcnt(0)
s_barrier
ds_read_b32 v17, v223
ds_read_b128 v[20:23], v224
ds_write2st64_b32 v37, v60, v56 offset0:0 offset1:1
ds_write2st64_b32 v37, v52, v48 offset0:2 offset1:3
s_waitcnt lgkmcnt(2)
""")
rank16(17, 20, 18, 24)
A(f"""
v_cmp_eq_u32 vcc, 7, v18
s_ff1_i32_b64 s5, vcc
v_readlane_b32 s5, v17, s5
s_nop 1
v_cmp_le_u32 s[6:7], s5, v{KEY[0]}
v_cmp_le_u32 s[10:11], s5, v{KEY[1]}
v_cmp_le_u32 s[12:13], s5, v{KEY[2]}
v_cmp_le_u32 s[14:15], s5, v{KEY[3]}
v_addc_co_u32_e64 v21, vcc, 0, 0, s[6:7]
s_or_b64 s[50:51], s[6:7], s[10:11]
v_addc_co_u32_e64 v22, vcc, v21, 0, s[10:11]
s_or_b64 s[52:53], s[12:13], s[14:15]
v_addc_co_u32_e64 v23, vcc, v22, 0, s[12:13]
s_or_b64 exec, s[50:51], s[52:53]
v_addc_co_u32_e64 v24, vcc, v23, 0, s[14:15]
ds_add_rtn_u32 v25, v19, v24
s_waitcnt lgkmcnt(0)
v_lshl_add_u32 v25, v25, 2, v19
v_lshl_add_u32 v21, v21, 2, v25
v_lshl_add_u32 v22, v22, 2, v25
v_lshl_add_u32 v23, v23, 2, v25
s_mov_b64 exec, s[6:7]
ds_write_b32 v25, v{KEY[0]} offset:{LIST-CNT}
s_mov_b64 exec, s[10:11]
ds_write_b32 v21, v{KEY[1]} offset:{LIST-CNT}
s_mov_b64 exec, s[12:13]
ds_write_b32 v22, v{KEY[2]} offset:{LIST-CNT}
s_mov_b64 exec, s[14:15]
ds_write_b32 v23, v{KEY[3]} offset:{LIST-CNT}
s_mov_b64 exec, -1
s_waitcnt lgkmcnt(0)
s_barrier
{'' if OPT['dry'] else 's_cmp_lg_u32 s3, 0'}
{'' if OPT['dry'] else 's_cbranch_scc1 L_fin'}
ds_read_b32 v28, v19
ds_read_b32 v17, v221
ds_read_b128 v[20:23], v222
s_waitcnt lgkmcnt(1)
v_readfirstlane_b32 s51, v28
s_cmp_gt_u32 s51, 16
s_cbranch_scc1 L_rk_many
L_rk_done:
v_and_b32 v14, 0x7ff, v17
v_lshlrev_b32 v14, 2, v14
ds_read_b32 v45, v14 offset:{MSDB}
s_waitcnt lgkmcnt(1)
""")
stamp(6)
rank16(17, 20, 18, 24)
A(f"""
v_cmp_gt_u32 vcc, 8, v18
v_lshl_add_u32 v18, v18, 4, v40
v_mov_b32 v44, v17
s_cmp_eq_u32 s59, 0
s_cbranch_scc1 L_s_real
s_cmp_lg_u32 s3, 0
s_cbranch_scc1 L_fin
s_mov_b64 exec, vcc
s_waitcnt lgkmcnt(0)
global_store_dwordx4 v18, v[44:47], s[42:43] sc1
global_store_dwordx4 v18, v[44:47], s[42:43] offset:128 sc1
s_mov_b64 exec, 1
global_store_dword v41, v46, s[42:43] sc1
""")
stamp(7)
A("s_branch L_fin")
A(f"""
L_rk_many:
v_lshl_add_u32 v26, v1, 2, v19
v_mov_b32 v27, v1
s_lshl_b32 s5, s3, 6
s_add_u32 s58, s5, {SELW}
s_mov_b32 s50, 0
L_rk_outer:
ds_read_b32 v29, v26 offset:{LIST-CNT}
v_mov_b32 v30, 0
v_mov_b32 v31, v19
s_mov_b32 s52, 0
L_rk_inner:
ds_read_b128 v[8:11], v31 offset:{LIST-CNT}
v_add_u32 v31, 16, v31
s_add_u32 s52, s52, 4
s_waitcnt lgkmcnt(0)
""")
prs = ["s[6:7]", "s[10:11]", "s[12:13]", "s[14:15]"]
for i in range(4): A(f"v_cmp_gt_u32 {prs[i]}, v{8+i}, v29")
for i in range(4): A(f"v_addc_co_u32_e64 v30, vcc, v30, 0, {prs[i]}")
A(f"""
s_cmp_lt_u32 s52, s51
s_cbranch_scc1 L_rk_inner
v_cmp_gt_u32 s[6:7], 8, v30
v_cmp_gt_u32 s[10:11], s51, v27
v_lshl_add_u32 v30, v30, 2, s58
s_and_b64 exec, s[6:7], s[10:11]
ds_write_b32 v30, v29
s_mov_b64 exec, -1
v_add_u32 v26, 256, v26
v_add_u32 v27, 64, v27
s_add_u32 s50, s50, 64
s_cmp_lt_u32 s50, s51
s_cbranch_scc1 L_rk_outer
v_lshl_add_u32 v26, v116, 2, s58
v_lshl_add_u32 v27, v117, 4, s58
ds_read_b32 v17, v26
ds_read_b128 v[20:23], v27
s_waitcnt lgkmcnt(0)
s_branch L_rk_done
""")
A.label("L_fin")
finish(11)
A.label("L_end")
A("s_endpgm")
A.label("L_code_end")
A(".fill 64, 4, 0xBF800000")

tail = f"""
.section .rodata,"a"
.p2align 6
.amdhsa_kernel {NAME}_kernel
  .amdhsa_next_free_vgpr 256
  .amdhsa_next_free_sgpr 96
  .amdhsa_accum_offset 256
  .amdhsa_group_segment_fixed_size 0
  .amdhsa_kernarg_size 120
  .amdhsa_user_sgpr_count 2
  .amdhsa_user_sgpr_kernarg_segment_ptr 1
  .amdhsa_system_sgpr_workgroup_id_x 1
.end_amdhsa_kernel
"""
probs = check_hazards(A.lines)
for p in probs: print("HAZARD", p, file=sys.stderr)
open(sys.argv[1], "w").write(head + A.text() + tail)
print("written", sys.argv[1], len(A.lines), "lines", file=sys.stderr)
```

```python
import sys
from asmlib import *
NAME = "recurrent_scan__ssm_conv_s4d__moe_arch_mod__prompt"
OPT = dict(stamps=0, ntw=1, ntx=0, ntr=0, ga=7, fine=0, sfirst=0, grp=1, bal=0, xb=4, gbn=0, gan=4, pfbar=1, gul=1, gb1=0, xall=0, inj=0, g1pre=0, warm=0, allb=0, nfirst=0, ea=0, gb2=0, dbl=0, ord=0, nts=0, hint=0, rep8=1, dry=0, nopatch=0, nostore=0, hprio=0, slp=0, x1=0, x2=0, x3=0, x4=0, yd=6, chk=0, g1l=0, mprio=0, pre=3, eg=0, selp=1, rev=1, p1f=4, dfirst=2, dpf=1, pl=0, rt=1, prog0="apBbn0NE1MkG", prog1="apBbn0NE1MkG", prog2="apBbn0NS1MefG", prog3="apBbn0NS1MefG")
for a in sys.argv[2:]:
    k, v = a.split("="); OPT[k] = v if k.startswith("prog") else int(v)

G1_OFF, G2_OFF, SEL_OFF, PART_OFF, PART_STRIDE = 0x1000, 0x5000, 0xD000, 0x10000, 7168
HINT_OFF = 0xE000
STAMP_OFF = 0x200000
TROW = 2064
TBX, TBY = 0, 24 * TROW
UB = TBY + 32 * TROW
USTR = 4608
BOXB = UB + 4 * USTR
KB = BOXB + 1024
PD_O, T2_O, T3_O = 0, 5600, 6112
KSTR = 6432
FLG = KB + 4 * KSTR
MARK = FLG + 224
LDS_SIZE = MARK + 2048
UBY = lambda e: 80 * (e >> 3) + 8 * (e & 7)
RED = 81920
XRB, XRS = RED + 32768, 1296
HB = XRB + 9 * XRS
HMAX = HB + 512
PRM = UB + 512
CNT, ZBLK, SELW, LIST = KB, KB + 64, KB + 128, KB + 1024
SPIN_MAX = 1 << 20
DRY = 12288

LOG2E = 0x3FB8AA3B
NLOG2E = LOG2E ^ 0x80000000
INV2PI = 0x3E22F983
A = Asm()
NTW = " nt" if OPT["ntw"] else ""
NTX = " nt" if OPT["ntx"] else ""
NTR = " nt" if OPT["ntr"] else ""
NTS = ["", " nt", " sc0", " sc0 nt"][OPT["nts"]]
def fstamp(g, i):
    if OPT["fine"] == g: A(f"s_memtime s[{64+2*i}:{65+2*i}]")
def FS(g, i):
    return f"s_memtime s[{64+2*i}:{65+2*i}]" if OPT["fine"] == g else ""
def stamp(i):
    if OPT["fine"] and i not in (0, 13): return
    if OPT["stamps"] == 3: A(f"s_memtime s[{64+2*i}:{65+2*i}]")
    elif OPT["stamps"]: A(f"s_memrealtime s[{64+2*i}:{65+2*i}]")
def cstamp(i):
    if OPT["stamps"]: A(f"s_memtime s[{64+2*i}:{65+2*i}]")
def finish(n, dbgmap=None):
    if OPT["stamps"] == 2:
        if n == 13:
            l = A.newlabel("nd")
            stamp(13)
            A("s_load_dwordx2 s[6:7], s[0:1], 104")
            A(f"s_cmp_ge_u32 s2, 8\ns_cbranch_scc1 {l}\ns_cmp_lg_u32 s3, 7\ns_cbranch_scc1 {l}")
            A("s_waitcnt lgkmcnt(0)\ns_mov_b64 exec, 1\ns_lshl_b32 s5, s2, 3\nv_mov_b32 v2, s5")
            A("s_sub_u32 s5, s68, s64\ns_lshl_b32 s5, s5, 16\ns_and_b32 s10, s64, 0xffff\ns_or_b32 s5, s5, s10\nv_mov_b32 v4, s5")
            A("s_sub_u32 s5, s90, s64\ns_lshl_b32 s5, s5, 16\ns_sub_u32 s10, s72, s64\ns_or_b32 s5, s5, s10\nv_mov_b32 v5, s5")
            A("global_store_dwordx2 v2, v[4:5], s[6:7]")
            A.label(l)
    elif OPT["stamps"]:
        stamp(13); cstamp(15)
        A("s_waitcnt lgkmcnt(0)")
        A("s_mov_b64 exec, 1")
        A(f"s_lshl_b32 s5, s2, 3\ns_add_u32 s5, s5, s3\ns_lshl_b32 s5, s5, 6\ns_add_u32 s5, s5, {STAMP_OFF}")
        A("v_mov_b32 v2, s5")
        for i in list(range(n)) + [13, 14, 15]:
            A(f"v_mov_b32 v3, s{64+2*i}")
            A(f"global_store_dword v2, v3, s[42:43] offset:{4*i}")
    A("s_endpgm")

class LdsQ:
    def __init__(self): self.q = []; self.done = 0
    def issue(self, tag): self.q.append(tag)
    def wait(self, tag):
        idx = max(i for i, t in enumerate(self.q) if t == tag)
        if idx < self.done: return
        n = len(self.q) - 1 - idx
        A(f"s_waitcnt lgkmcnt({min(n,14)})")
        self.done = idx + 1 if n <= 14 else len(self.q) - 14
    def all(self):
        A("s_waitcnt lgkmcnt(0)"); self.done = len(self.q)
    def known_all(self): self.done = len(self.q)

def cmul(dst, p, w, t):
    A(f"v_pk_mul_f32 {vr(t,2)}, {vr(p,2)}, {vr(w,2)} op_sel:[0,0] op_sel_hi:[1,0]")
    A(f"v_pk_fma_f32 {vr(dst,2)}, {vr(p,2)}, {vr(w,2)}, {vr(t,2)} op_sel:[1,1,0] op_sel_hi:[0,1,1] neg_lo:[1,0,0]")
LANE63 = "s_mov_b32 exec_lo, 0\ns_mov_b32 exec_hi, 0x80000000"
DPP6 = ["row_shr:1 row_mask:0xf bank_mask:0xf bound_ctrl:0", "row_shr:2 row_mask:0xf bank_mask:0xf bound_ctrl:0",
        "row_shr:4 row_mask:0xf bank_mask:0xf bound_ctrl:0", "row_shr:8 row_mask:0xf bank_mask:0xf bound_ctrl:0",
        "row_bcast:15 row_mask:0xa bank_mask:0xf", "row_bcast:31 row_mask:0xc bank_mask:0xf"]

KD = lambda m: 8 + 4 * m
KS = 76
T2 = lambda d, hh: 80 + 8 * (d - 2) + 4 * hh
T3 = lambda d: 104 + 4 * (d - 4)
BOX = lambda i: 120 + 4 * i
ACC = lambda j: 140 + 4 * j
BR = lambda s: 172 + 4 * s
W1R = 204
BA = lambda i: 208 + 4 * i
SG = lambda i: 232 + 4 * i
vUB, vYW, vFL, vONE, vT0, vT1, vT2 = 244, 245, 246, 247, 248, 249, 250

hdr = open("stub_ref.txt").read().split("; @launch")[0]
head = hdr + f"""; @launch grid=(256,1,1) block=(512,1,1) lds={LDS_SIZE}
.amdgcn_target "amdgcn-amd-amdhsa--gfx950"
.text
.globl {NAME}_kernel
.p2align 8
.type {NAME}_kernel,@function
{NAME}_kernel:
"""

A("s_cmp_ge_u32 s2, 256\ns_cbranch_scc1 L_end")
A("s_load_dwordx16 s[16:31], s[0:1], 0")
A("s_load_dwordx8 s[32:39], s[0:1], 64")
A("s_load_dwordx2 s[40:41], s[0:1], 96")
A("s_load_dwordx2 s[42:43], s[0:1], 112")
stamp(0); cstamp(14)
EG = OPT["eg"]
EG1 = f"s_lshl_b32 s6, s8, 2\ns_add_u32 s6, s6, s49\ns_mul_i32 s6, s6, 1280\ns_add_u32 s6, s6, s62\nv_mul_u32_u24 v22, {128*1280}, v1\nv_add_u32 v22, s6, v22" if EG else ""
EG2 = f"s_bfm_b64 exec, {2*EG}, 0\nglobal_load_dword v251, v22, s[16:17]\ns_mov_b64 exec, -1" if EG else ""
A(f"""
s_getpc_b64 s[6:7]
L_pc:
s_lshr_b32 s8, s2, 3
v_lshrrev_b32 v2, 6, v0
s_lshl_b32 s5, s8, 10
v_lshl_add_u32 v5, v0, 1, s5
v_readfirstlane_b32 s3, v2
v_min_u32 v5, L_code_end-L_pc, v5
v_and_b32 v5, -4, v5
global_load_dword v252, v5, s[6:7]
v_and_b32 v1, 63, v0
v_lshlrev_b32 v3, 4, v1
v_lshlrev_b32 v4, 2, v1
v_mov_b32 v32, 0
s_and_b32 s45, s3, 3
s_and_b32 s9, s2, 7
s_lshl_b32 s10, s2, 3
s_add_u32 s10, s10, s3
s_mul_i32 s11, s10, 1280
s_lshr_b32 s46, s3, 2
s_mul_i32 s12, s9, 20
s_add_u32 s44, s12, s8
s_lshr_b32 s49, s3, 1
s_lshr_b32 s5, s12, 4
s_and_b32 s6, s3, 1
s_add_u32 s5, s5, s6
s_lshl_b32 s62, s5, 7
s_lshl_b32 s6, s8, 2
s_add_u32 s6, s6, s49
s_mul_i32 s6, s6, {20480 if OPT['xall'] else 10240}
s_add_u32 s5, s62, s6
v_mul_u32_u24 v93, 1280, v1
v_add_u32 v22, s5, v93
s_lshl_b32 s5, s49, 3
s_add_u32 s5, s5, s9
s_min_u32 s5, s5, 26
s_lshl_b32 s5, s5, 7
s_mul_i32 s6, s8, {20*3456}
s_add_u32 s5, s5, s6
v_mul_u32_u24 v23, 3456, v1
v_add_u32 v23, s5, v23
s_lshl_b32 s5, s45, 8
s_lshl_b32 s6, s46, 7
s_add_u32 s5, s5, s6
s_lshl_b32 s6, s44, 10
s_add_u32 s5, s5, s6
v_lshl_add_u32 v6, v1, 1, s5
s_lshr_b32 s5, s5, 8
s_lshl_b32 s5, s5, 1
v_mov_b32 v7, s5
{EG1}
s_waitcnt lgkmcnt(0)
{EG2}
s_add_u32 s6, s16, s11
s_addc_u32 s7, s17, 0
global_load_dwordx4 v[8:11], v3, s[6:7]{NTR}
global_load_dword v12, v4, s[6:7] offset:1024{NTR}
global_load_dwordx4 v[16:19], v3, s[32:33]
global_load_dword v20, v4, s[32:33] offset:1024
global_load_dword v29, v32, s[42:43]
s_bitcmp1_b32 s3, 0
s_cselect_b32 s56, s36, s34
s_cselect_b32 s57, s37, s35
""")
stamp(1)
if OPT["x1"]: A(f"s_sleep {OPT['x1']}")
def early_pf():
    A(f"""
s_bfm_b64 exec, {(16 if OPT['xall'] else 8) - 2*EG}, {2*EG}
global_load_dword v251, v22, s[16:17]{NTX}
s_mov_b64 exec, -1
""")
    if not OPT["gul"]: gu_pf()
def gu_pf():
    A(f"""
s_mov_b64 exec, 0xfffff
global_load_dword v251, v23, s[56:57]{NTW}
s_mov_b64 exec, -1
""")
A(f"""
s_barrier
s_cmp_ge_u32 s2, 160
s_cbranch_scc1 L_nopar
global_load_ushort v40, v6, s[18:19]{NTW}
global_load_ushort v45, v7, s[26:27]
global_load_ushort v41, v6, s[20:21]{NTW}
global_load_ushort v42, v6, s[22:23]{NTW}
global_load_ushort v43, v6, s[24:25]{NTW}
L_nopar:
""")
if OPT["pfbar"]: A("s_barrier")
early_pf()
A("""
v_mov_b32 v33, 0
v_mov_b32 v34, 0
v_mov_b32 v35, 0
s_cbranch_scc1 L_notconv
""")
def row_loads():
    A(f"""
s_add_u32 s6, s16, s11
s_addc_u32 s7, s17, 0
global_load_dwordx4 v[8:11], v3, s[6:7]{NTR}
global_load_dword v12, v4, s[6:7] offset:1024{NTR}
global_load_dwordx4 v[16:19], v3, s[32:33]
global_load_dword v20, v4, s[32:33] offset:1024
""")
G1ADDR = (f"s_and_b32 s5, s10, 0x700\ns_lshl_b32 s5, s5, 3\ns_and_b32 s6, s10, 2\ns_lshl_b32 s6, s6, 9\ns_add_u32 s5, s5, s6\ns_and_b32 s6, s10, 0xfc\ns_lshl_b32 s6, s6, 2\ns_add_u32 s5, s5, s6\n"
          f"s_and_b32 s6, s10, 1\ns_lshl_b32 s6, s6, 3\ns_add_u32 s5, s5, s6\ns_add_u32 s5, s5, {G1_OFF}\nv_mov_b32 v34, s5") if OPT["g1l"] else f"v_add_u32 v34, {G1_OFF}, v33"
G1S = 1024 if OPT["g1l"] else 16
def stats_pre():
    A("s_mov_b32 s14, 0x9E3779B1\ns_mov_b32 s47, 0x3f803f80\ns_lshl_b32 s11, s10, 3\ns_sub_u32 s13, 2047, s10")
    A(f"v_mov_b32 v33, s11\n{G1ADDR}\nv_lshlrev_b32 v35, 1, v33\nv_add_u32 v35, {G2_OFF}, v35\nv_mov_b32 v36, 0x3acccccd")
def make_tag():
    pass
def stats(younger, cnt=False):
    A(vmw(younger - 1) if cnt else f"s_waitcnt vmcnt({younger-1})")
    stamp(2)
    A("s_setprio 2")
    for i in range(5):
        c = (lambda r: "0" if i == 0 else r)
        A(f"v_dot2_f32_bf16 v24, v{8+i}, s47, {c('v24')}")
        A(f"v_dot2_f32_bf16 v25, v{8+i}, v{8+i}, {c('v25')}")
        A(f"v_dot2_f32_bf16 v26, v{8+i}, v{16+i}, {c('v26')}")
        A(f"v_dot2_f32_bf16 v27, v{16+i}, s47, {c('v27')}")
    A(f"""
s_nop 0
v_permlane32_swap_b32 v24, v25
s_nop 0
v_permlane32_swap_b32 v26, v27
v_add_f32 v24, v24, v25
v_add_f32 v26, v26, v27
s_nop 0
v_mul_lo_u32 v29, v29, s14
v_permlane16_swap_b32 v24, v26
v_add_f32 v24, v24, v26
v_add_u32 v29, 0x7F4A7C15, v29
v_mov_b32 v31, v29
v_add_f32_dpp v24, v24, v24 row_shr:1 row_mask:0xf bank_mask:0xf bound_ctrl:0
v_readfirstlane_b32 s4, v29
s_nop 0
v_add_f32_dpp v24, v24, v24 row_shr:2 row_mask:0xf bank_mask:0xf bound_ctrl:0
s_nop 1
v_add_f32_dpp v24, v24, v24 row_shr:4 row_mask:0xf bank_mask:0xf bound_ctrl:0
s_nop 1
v_add_f32_dpp v24, v24, v24 row_shr:8 row_mask:0xf bank_mask:0xf bound_ctrl:0
s_mov_b64 exec, 1
v_readlane_b32 s6, v24, 15
v_readlane_b32 s7, v24, 47
v_readlane_b32 s14, v24, 31
v_readlane_b32 s15, v24, 63
v_mul_f32 v24, s6, v36
v_mul_f32 v25, s7, v36
v_mov_b32 v26, s14
v_fma_f32 v25, -v24, v24, v25
v_max_f32 v25, 0, v25
v_cvt_pk_bf16_f32 v28, v24, v25
v_and_b32 v25, 0xffff0000, v28
v_lshlrev_b32 v24, 16, v28
v_add_f32 v25, 0x3727c5ac, v25
v_cvt_pk_bf16_f32 v25, v25, v25
v_fma_f32 v26, -v24, s15, v26
v_and_b32 v25, 0xffff0000, v25
v_sqrt_f32 v25, v25
""")
    A("s_nop 0")
    A("""
v_cvt_pk_bf16_f32 v28, v24, v25
v_and_b32 v25, 0xffff0000, v28
v_rcp_f32 v25, v25
global_store_dwordx2 v34, v[28:29], s[42:43] sc1
v_mul_f32 v26, v26, v25
v_cvt_pk_bf16_f32 v26, v26, v26
v_ashrrev_i32 v27, 31, v26
v_or_b32 v27, 0x80000000, v27
v_xor_b32 v26, v26, v27
v_and_b32 v26, 0xffff0000, v26
v_or_b32 v30, s13, v26
global_store_dwordx4 v35, v[28:31], s[42:43] sc1
""")
    if cnt: A(f"ds_add_u32 v{vFL}, v{vONE} offset:32")
    A("s_mov_b64 exec, -1\ns_setprio 0")
    stamp(3)
EG3 = (f"s_sub_u32 s5, s3, 4\ns_cmp_ge_u32 s5, {EG}\ns_cbranch_scc1 L_neg\ns_mov_b32 s48, 1\ns_mov_b32 s63, 0\n"
       + "".join(f"global_load_dwordx2 v[{96+2*r}:{97+2*r}], v94, s[16:17] offset:{1280*r}\n" for r in range(4)) + "L_neg:") if EG else ""
def vmw(n):
    if not EG: return f"s_waitcnt vmcnt({n})"
    l1 = A.newlabel("w"); l2 = A.newlabel("w")
    return f"s_cmp_eq_u32 s48, 0\ns_cbranch_scc1 {l1}\ns_waitcnt vmcnt({n+4})\ns_branch {l2}\n{l1}:\ns_waitcnt vmcnt({n})\n{l2}:"
A(f"""
s_and_b32 s6, s8, 15
s_lshl_b32 s6, s6, 1
s_and_b32 s7, s49, 1
s_add_u32 s6, s6, s7
s_add_u32 s6, s6, 32
s_mul_i32 s6, s6, 40960
s_add_u32 s5, s62, s6
v_add_u32 v93, s5, v93
v_lshlrev_b32 v7, 4, v0
v_add_u32 v7, {KB}, v7
ds_write_b128 v7, v[32:35]
ds_write_b128 v7, v[32:35] offset:8192
ds_write_b128 v7, v[32:35] offset:16384
v_min_u32 v7, {LDS_SIZE-16-24576}, v7
ds_write_b128 v7, v[32:35] offset:24576
s_mul_i32 s53, s45, {USTR}
s_add_u32 s53, s53, {UB}
v_lshl_add_u32 v7, v1, 3, s53
ds_write_b64 v7, v[32:33]
s_add_u32 s5, s45, 1
s_sub_u32 s13, s5, 32
s_lshl_b32 s5, s5, 1
v_add_u32 v36, s13, v1
v_add_u32 v37, 1, v36
v_mov_b32 v38, 0x3f800000
v_mov_b32 v39, 0x3f80
v_cmp_ge_u32 s[6:7], s5, v36
v_cmp_ge_u32 s[14:15], s5, v37
s_lshl_b32 s13, s45, 8
s_add_u32 s13, s13, {BOXB}
v_cndmask_b32 v38, 0, v38, s[6:7]
v_cndmask_b32 v39, 0, v39, s[14:15]
v_add_u32 v7, s13, v4
v_or_b32 v38, v38, v39
ds_write_b32 v7, v38
v_and_b32 v2, 15, v1
v_lshrrev_b32 v37, 4, v1
v_lshlrev_b32 v37, 3, v37
v_sub_u32 v37, v2, v37
v_lshlrev_b32 v37, 2, v37
v_add_u32 v37, {BOXB+96}, v37
s_mul_i32 s5, s45, {256*1280}
s_lshl_b32 s6, s44, 3
s_add_u32 s5, s5, s6
v_mul_u32_u24 v94, 5120, v1
v_add_u32 v94, s5, v94
{'s_lshl_b32 s55, s45, 1' if OPT['rev'] else 's_mov_b32 s55, 3'}
s_sub_u32 s55, 7, s55
s_mul_i32 s5, s55, {256*1280}
v_add_u32 v95, s5, v94
s_lshl_b32 s5, s45, 9
s_lshl_b32 s6, s46, 8
s_add_u32 s50, s5, s6
s_add_u32 s51, s50, {TBY}
s_mov_b32 m0, s51
v_mov_b32 v84, 0x3f80
v_mov_b32 v44, {LOG2E:#x}
v_mov_b32 v{vFL}, {FLG}
v_mov_b32 v{vONE}, 1
s_lshr_b32 s63, s3, 2
""")
stats_pre()
A(f"""
s_mov_b32 s48, 0
{EG3}
s_lshl_b32 s5, s44, 3
s_waitcnt lgkmcnt(0)
s_barrier
s_load_dwordx2 s[60:61], s[28:29], s5
""")
if OPT["gul"] == 1: gu_pf()
fstamp(1, 1)
MK3 = 224
for dst, arr, offs in [(BOX(0), 0, 19), (BOX(1), 1, 15), (BOX(2), 0, 11), (BOX(3), 2, 15), (BOX(4), 3, 15), (KS, 0, 20), (MK3, 0, 22)]:
    o = arr * 64 + offs
    A(f"ds_read2_b32 {vr(dst,2)}, v37 offset0:{o} offset1:{o-2}")
    A(f"ds_read2_b32 {vr(dst+2,2)}, v37 offset0:{o-4} offset1:{o-6}")
def setup():
    A(f"""
{vmw(4 - (OPT['gul'] == 2))}
v_lshlrev_b32 v40, 16, v40
v_lshlrev_b32 v45, 16, v45
v_mul_f32 v40, v44, v40
v_mul_f32 v44, v45, v44
v_exp_f32 v40, v40
v_exp_f32 v44, v44
v_lshlrev_b32 v41, 16, v41
v_lshlrev_b32 v42, 16, v42
v_cvt_pk_bf16_f32 v40, v44, v40
v_lshlrev_b32 v43, 16, v43
v_lshlrev_b32 v44, 16, v40
v_and_b32 v40, 0xffff0000, v40
v_mul_f32 v41, v41, v44
v_mul_f32 v40, v40, v44
v_add_f32 v44, v44, v44
v_mul_f32 v40, {NLOG2E:#x}, v40
v_mul_f32 v41, {INV2PI:#x}, v41
v_mul_f32 v48, v42, v44
v_mul_f32 v49, v43, v44
v_mul_f32 v56, 0x41000000, v40
v_mul_f32 v58, 0x41000000, v41
v_mul_f32 v57, 0x43800000, v40
v_mul_f32 v59, 0x43800000, v41
v_fract_f32 v58, v58
v_fract_f32 v60, v41
v_fract_f32 v59, v59
v_exp_f32 v56, v56
v_cos_f32 v52, v58
v_sin_f32 v53, v58
v_exp_f32 v61, v40
v_cos_f32 v50, v60
v_sin_f32 v51, v60
v_exp_f32 v57, v57
v_cos_f32 v54, v59
v_sin_f32 v55, v59
v_mul_f32 v52, v52, v56
v_mul_f32_e64 v53, -v53, v56
v_mul_f32 v50, v50, v61
v_mul_f32 v51, v51, v61
v_mul_f32 v54, v54, v57
v_mul_f32 v55, v55, v57
""")
stats(8 - (OPT["gul"] >= 2), cnt=True); fstamp(1, 2)
if OPT["gul"] == 3: gu_pf()
if OPT["hprio"]: A("s_cmp_lt_u32 s3, 4\ns_cbranch_scc1 L_hp\ns_setprio 1\nL_hp:")
setup()
fstamp(1, 3)
def gather(t, lo=0, hi=4):
    for r in range(lo, hi):
        A(f"global_load_dwordx2 v[{96+8*t+2*r}:{97+8*t+2*r}], v{94+t}, s[16:17] offset:{1280*r}")
def gather_at(pos):
    if OPT["ga"] == pos:
        l = A.newlabel("ng")
        A(f"s_cmp_lt_u32 s3, 4\ns_cbranch_scc1 {l}")
        gather(0, 0, OPT["gan"])
        A.label(l)
    if OPT["xb"] == pos:
        l = A.newlabel("nx")
        A(f"s_cmp_ge_u32 s3, 4\ns_cbranch_scc1 {l}")
        A(f"s_mov_b32 exec_hi, 0\nglobal_load_dword v251, v93, s[16:17]{NTX}\ns_mov_b64 exec, -1")
        A.label(l)
gather_at(0)
pend = []
GRP = OPT["grp"]
tt = [0]
def emit_row(reg, rows):
    t = 84 + (tt[0] % (2 * GRP)); tt[0] += 1
    if reg is not None: A(f"v_cvt_pk_bf16_f32 v{t}, v{reg}, v{reg+1}")
    for r in rows: pend.append(f"ds_write_addtid_b32 v{t} offset:{r*TROW}")
    if tt[0] % GRP == 0: flush_rows()
def flush_rows():
    for p in pend: A(p)
    pend.clear()
emit_row(None, [0]); emit_row(52, [1])
cur = 52
CHK = [{5: 0, 9: 0, 13: 0, 17: 0, 22: 0, 29: 1}, {5: 0, 12: 0, 20: 1}, {5: 0, 10: 0, 15: 1}, {8: 0, 16: 1}][OPT["chk"]]
for c in range(2, 32):
    dst = 64 + 2 * (c % 2)
    if c + 3 in CHK and not CHK[c + 3]: A(f"ds_read_b32 v{vT2}, v{vFL} offset:32")
    if c in CHK:
        l = A.newlabel("gc")
        A(f"s_cmp_eq_u32 s63, 0\ns_cbranch_scc1 {l}")
        if not CHK[c]:
            A(f"s_waitcnt lgkmcnt(3)\nv_readfirstlane_b32 s5, v{vT2}\ns_cmp_lt_u32 s5, 8\ns_cbranch_scc1 {l}")
        A("s_mov_b32 s63, 0")
        fstamp(7, 1)
        gather(0, 0, OPT["gan"])
        fstamp(7, 2)
        A.label(l)
    cmul(dst, cur, 52, dst); emit_row(dst, [c]); cur = dst
    if c == 15: gather_at(3)
flush_rows()
if OPT["x3"]: A("s_cmp_ge_u32 s3, 2\ns_cbranch_scc1 L_x3\ns_lshl_b32 s5, s3, 21\nv_mov_b32 v91, s5\ns_mov_b64 exec, 1\nglobal_load_dword v251, v91, s[40:41]\ns_mov_b64 exec, -1\nL_x3:")
if OPT["x4"]: A(f"s_sleep {OPT['x4']}")
fstamp(1, 4)
A("s_mov_b32 m0, s50")
gather_at(1)
if OPT["gbn"]:
    A("s_cmp_lt_u32 s3, 4\ns_cbranch_scc1 L_ngb")
    gather(1, 0, OPT["gbn"])
    A.label("L_ngb")
cmul(56, 50, 50, 56)
emit_row(48, [0])
cur = 48
rows0 = {1: [1], 2: [2], 3: [3], 4: [4, 8], 5: [5], 6: [6], 7: [7], 8: [12]}
for p in range(1, 9):
    dst = 64 + 2 * (p % 2)
    cmul(dst, cur, 50, dst); emit_row(dst, rows0[p]); cur = dst
for dst, src, w, rows in [(68, 48, 54, [9]), (70, 68, 56, [10]), (68, 70, 56, [11, 13]), (70, 68, 56, [14]), (72, 70, 56, [15]),
                          (70, 68, 54, [16]), (74, 72, 54, [17]), (68, 70, 54, [20]), (72, 74, 54, [21]),
                          (74, 72, 54, [18]), (72, 74, 54, [19]), (74, 72, 54, [22]), (72, 74, 54, [23])]:
    cmul(dst, src, w, dst); emit_row(dst, rows)
flush_rows()
fstamp(1, 5)
gather_at(4)
A("s_cmp_ge_u32 s3, 4\ns_cbranch_scc1 L_helper")

q = LdsQ()
A(f"""
v_and_b32 v2, 31, v1
v_lshrrev_b32 v3, 5, v1
v_mul_u32_u24 v5, {TROW}, v2
v_subrev_u32 v6, {16*TROW}, v5
v_cmp_le_u32 vcc, 24, v2
s_lshl_b32 s5, s45, 9
v_lshl_add_u32 v7, v3, 4, s5
v_cndmask_b32 v6, v5, v6, vcc
v_add_u32 v5, v5, v7
v_add_u32 v6, v6, v7
v_add_u32 v5, {TBY}, v5
s_waitcnt lgkmcnt(0)
""")
NB = 6
def kg_issue(s):
    b = 156 + 8 * (s % NB)
    A(f"ds_read_b128 {vr(b,4)}, v6 offset:{32*s}"); q.issue(("ka", s))
    A(f"ds_read_b128 {vr(b+4,4)}, v5 offset:{32*s}"); q.issue(("kb", s))
filler = f"""
s_lshl_b32 s6, s45, 4
s_lshr_b64 s[60:61], s[60:61], s6
s_lshl_b32 s60, s60, 16
s_mul_i32 s52, s45, {KSTR}
s_add_u32 s52, s52, {KB}
v_mul_u32_u24 v208, 80, v2
v_lshl_add_u32 v208, v3, 5, v208
v_add_u32 v208, s52, v208
v_add_u32 v207, 2560, v208
v_lshl_add_u32 v206, v3, 4, v208
v_add_u32 v205, 2560, v206
v_lshlrev_b32 v209, 2, v2
v_lshl_add_u32 v209, v3, 7, v209
v_add_u32 v209, s52, v209
v_lshlrev_b32 v210, 1, v2
v_lshl_add_u32 v210, v3, 7, v210
v_add_u32 v210, s52, v210
v_mov_b32 v211, s52
v_mov_b32 v45, s60
v_cmp_eq_u32 vcc, 0, v1
v_and_b32 v232, 15, v1
v_lshrrev_b32 v233, 4, v1
v_cndmask_b32 v45, 0, v45, vcc
v_lshlrev_b32 v234, 3, v233
v_sub_u32 v234, v232, v234
v_add_u32 v240, 25, v234
v_add_u32 v234, 29, v234
v_lshrrev_b32 v241, 3, v234
v_lshl_add_u32 v234, v234, 3, s52
v_lshl_add_u32 v234, v241, 4, v234
v_lshrrev_b32 v241, 3, v240
v_lshl_add_u32 v240, v240, 3, s52
v_lshl_add_u32 v240, v241, 4, v240
v_lshlrev_b32 v235, 2, v233
v_sub_u32 v235, v232, v235
v_add_u32 v235, 12, v235
v_lshl_add_u32 v236, v235, 2, s52
v_lshl_add_u32 v235, v235, 3, s52
v_add_u32 v236, {T3_O}, v236
v_lshlrev_b32 v{vUB}, 5, v232
v_lshl_add_u32 v{vUB}, v233, 4, v{vUB}
v_add_u32 v{vUB}, s53, v{vUB}
v_lshrrev_b32 v{vT0}, 1, v232
v_add_u32 v{vT0}, v{vT0}, v233
v_and_b32 v{vT0}, 3, v{vT0}
v_and_b32 v{vT1}, 7, v232
v_lshlrev_b32 v{vT1}, 6, v{vT1}
v_lshl_add_u32 v{vT1}, v{vT0}, 4, v{vT1}
v_lshrrev_b32 v{vT0}, 3, v232
v_mul_u32_u24 v{vT0}, {TROW}, v{vT0}
v_add3_u32 v{vYW}, v{vT0}, v{vT1}, s5
""".strip().split("\n")
for i in range(4): filler.append(f"v_and_b32 v{KS+i}, v{KS+i}, v{BOX(0)+i}")
for r in [KS + i for i in range(4)] + [MK3 + i for i in range(4)]:
    filler.append(f"v_pk_lshlrev_b16 v{r}, 2, v{r} op_sel_hi:[0,1]")
    filler.append(f"v_pk_ashrrev_i16 v{r}, 15, v{r} op_sel_hi:[0,1]")
filler += [f"s_lshl_b32 s5, s45, 2", f"v_add_u32 v{vT1}, s5, v{vFL}"]
filler += f"""s_mul_i32 s5, s44, {PART_STRIDE}
s_lshl_b32 s6, s45, 5
s_add_u32 s5, s5, s6
s_add_u32 s5, s5, {PART_OFF}
v_lshlrev_b32 v2, 7, v2
v_lshl_add_u32 v2, v3, 4, v2
v_add_u32 v2, s5, v2
v_add_u32 v3, 4096, v2
s_and_b32 s18, s4, 0xff
s_bfe_u32 s19, s4, 0x80008
s_bfe_u32 s20, s4, 0x80010
s_lshr_b32 s21, s4, 24
s_mov_b32 s56, 0x3fffff
s_mov_b32 s57, 0x3fffff""".split("\n")
for f in filler: A(f)
A("s_barrier")
stamp(4); fstamp(1, 6); fstamp(2, 1)
if OPT["mprio"]: A(f"s_setprio {OPT['mprio']}")
for s in range(NB): kg_issue(s)
for s in range(16):
    q.wait(("kb", s))
    b = 156 + 8 * (s % NB)
    A(f"v_mfma_f32_32x32x16_bf16 v[140:155], {vr(b,4)}, {vr(b+4,4)}, {'0' if s == 0 else 'v[140:155]'}")
    if s + NB < 16: kg_issue(s + NB)
A(f"ds_read_b32 v{vT2}, v{vFL}"); q.issue(("flag", 0))
A.nop(11)
fstamp(2, 2)
K = lambda i: f"v{140+i}"
A(f"""
v_add_f32 {K(0)}, {K(0)}, v45
v_cvt_pk_bf16_f32 v215, {K(2)}, {K(1)}
v_cvt_pk_bf16_f32 v212, {K(3)}, {K(2)}
v_cvt_pk_bf16_f32 v214, {K(4)}, {K(3)}
v_cvt_pk_bf16_f32 v213, {K(1)}, {K(0)}
v_cvt_pk_bf16_f32 v222, {K(0)}, 0
v_cvt_pk_bf16_f32 v217, {K(5)}, {K(5)}
v_cvt_pk_bf16_f32 v219, {K(6)}, {K(5)}
v_cvt_pk_bf16_f32 v216, {K(7)}, {K(6)}
v_cvt_pk_bf16_f32 v218, {K(7)}, {K(7)}
v_cvt_pk_bf16_f32 v220, {K(8)}, {K(9)}
v_cvt_pk_bf16_f32 v221, {K(10)}, {K(11)}
v_cvt_pk_bf16_f32 v223, {K(9)}, {K(9)}
s_waitcnt lgkmcnt(0)
v_readfirstlane_b32 s5, v{vT2}
ds_write_b128 v208, v[212:215] offset:160
ds_write2_b32 v206, v213, v215 offset0:32 offset1:34
ds_write2_b32 v208, v212, v214 offset0:45 offset1:47
ds_write_b128 v207, v[216:219] offset:160
ds_write2_b32 v205, v217, v219 offset0:32 offset1:34
ds_write2_b32 v207, v216, v218 offset0:45 offset1:47
s_mov_b64 exec, 1
ds_write2_b32 v211, v222, v222 offset0:{UBY(13)//4} offset1:{UBY(15)//4+1}
s_mov_b64 exec, -1
""")
q.known_all()
for _ in range(7): q.issue("kw")
fstamp(2, 3)
kq = []
for m in [x for i in range(8) for x in (i, 8 + i)]:
    kq.append((("K", KD(m)), f"ds_read_b64 {vr(KD(m),2)}, v234 offset:{320*m}"))
    kq.append((("K", KD(m)), f"ds_read_b64 {vr(KD(m)+2,2)}, v240 offset:{320*m}"))
kq.append(("tw", f"ds_write_b32 v209, v220 offset:{T2_O+128}"))
kq.append(("tw", f"ds_write_b16 v210, v221 offset:{T3_O+64}"))
kq.append(("tw", f"ds_write_b16_d16_hi v210, v221 offset:{T3_O+64+64}"))
kq.append((("K", KD(16)), f"ds_read_b64 {vr(KD(16),2)}, v234 offset:{320*16}"))
kq.append((("K", KD(16)), f"ds_read_b64 {vr(KD(16)+2,2)}, v240 offset:{320*16}"))
for d in (2, 3, 4):
    for hh in (0, 1):
        o = 16 * d - 28 - 2 * hh
        kq.append((("K", T2(d, hh)), f"ds_read_b64 {vr(T2(d,hh),2)}, v235 offset:{T2_O+8*o}"))
        kq.append((("K", T2(d, hh)), f"ds_read_b64 {vr(T2(d,hh)+2,2)}, v235 offset:{T2_O+8*(o-1)}"))
for d in (4, 5, 6, 7):
    o = 16 * d - 60
    kq.append((("K", T3(d)), f"ds_read2_b32 {vr(T3(d),2)}, v236 offset0:{o} offset1:{o-1}"))
    kq.append((("K", T3(d)), f"ds_read2_b32 {vr(T3(d)+2,2)}, v236 offset0:{o-2} offset1:{o-3}"))
def kq_issue(n):
    for _ in range(n):
        if kq:
            t, x = kq.pop(0); A(x); q.issue(t)
kq_issue(4)
stamp(5); fstamp(2, 4)
def wait_flag(addr, off, val, nm, tmp):
    l = A.newlabel(nm); lo = A.newlabel(nm + "o")
    A(f"s_mov_b32 s54, {SPIN_MAX}")
    A.label(l)
    A(f"ds_read_b32 v{tmp}, v{addr} offset:{off}")
    A("s_waitcnt lgkmcnt(0)")
    A(f"v_readfirstlane_b32 s5, v{tmp}")
    A(f"s_sub_u32 s54, s54, 1\ns_cbranch_scc1 {lo}")
    A(f"s_cmp_lt_u32 s5, {val}\ns_cbranch_scc1 {l}")
    A.label(lo)
A("s_cmp_lg_u32 s5, 0\ns_cbranch_scc1 L_fast01")
ACC = lambda j: 140 + 4 * (j % 4)
SG2 = lambda b, hh: [156, 164, 232][b % 3] + 4 * hh
SG3 = lambda b: [240, 252, 204, 224][b]
WR = [196, 200]
NBR = 6
BA = lambda i: 208 + 4 * i if i < 4 else [None] * 4 and (228 if i == 4 else 4)
loads = []
for j in range(8):
    loads.append(("B", 8 * j))
    if j >= 2: loads += [("W0", j - 2), ("W1", j - 2)]
    for i in range(1, 8): loads.append(("B", 8 * j - i))
slot = {}
ring = 0
for k in loads:
    if k[0] == "B": slot[k] = BR(ring % NBR); ring += 1
    else: slot[k] = WR[int(k[0][1])]
touched = set()
prog = []
def MF(d, a, b, c, need=None):
    prog.append(dict(text=f"v_mfma_f32_16x16x32_bf16 {vr(d,4)}, {vr(a,4)}, {vr(b,4)}, {c}", need=need, valu=[], ds=[]))
def mf(j, a, b, need=None):
    c = vr(ACC(j), 4) if j in touched else "0"; touched.add(j)
    MF(ACC(j), a, b, c, need)
ydone = {}
for j in range(8):
    k0 = ("B", 8 * j)
    mf(j, KD(0), slot[k0], k0)
    if j + 1 <= 7: mf(j + 1, KD(8), slot[k0])
    cv = []; old = []; new = []
    if j >= 2:
        b = j - 2; w0, w1 = WR
        for i, bx in ((0, 0), (1, 1), (2, 2)) + (((4, 3),) if b <= 3 else ()):
            MF(BA(i), w0, BOX(bx), "0", ("W0", b))
        mf(j, KD(16), w0)
        for i, bx in ((3, 1),) + (((5, 4),) if b <= 3 else ()):
            MF(BA(i), w1, BOX(bx), "0", ("W1", b))
        for r in range(4): cv.append(f"v_cvt_pk_bf16_f32 v{SG2(b,r//2)+2*(r%2)}, v{BA(0)+r}, v{BA(1)+r}")
        for r in range(4): cv.append(f"v_cvt_pk_bf16_f32 v{SG2(b,r//2)+2*(r%2)+1}, v{BA(2)+r}, v{BA(3)+r}")
        if b <= 3:
            for r in range(4): cv.append(f"v_cvt_pk_bf16_f32 v{SG3(b)+r}, v{BA(4)+r}, v{BA(5)+r}")
        for d in (4, 3):
            if j - d >= 0: old += [(j, SG2(j - d, 0), T2(d, 0)), (j, SG2(j - d, 1), T2(d, 1))]
        for d in (7, 6, 5, 4):
            if j - d >= 0: old.append((j, SG3(j - d), T3(d)))
        new = [(j, SG2(b, 0), T2(2, 0)), (j, SG2(b, 1), T2(2, 1))]
        if b <= 3: mf(j + 2, KS, w0)
    for f in old: mf(*f)
    start = len(prog)
    for i in range(1, 8):
        k = ("B", 8 * j - i)
        mf(j, KD(i), slot[k], k)
        if i == 7:
            for f in new: mf(*f)
            ydone[j] = len(prog) - 1
        if j + 1 <= 7: mf(j + 1, KD(8 + i), slot[k])
    if cv:
        lastbox = max(i for i, e in enumerate(prog[:start]) if e["text"].rstrip().endswith(", 0") and f"v[{BA(3)}:" in e["text"] or f"v[{BA(5)}:" in e["text"].split(",")[0])
        pos = lastbox + 4
        per = 2 if j == 7 else 1
        while cv:
            for _ in range(per):
                if cv: prog[pos]["valu"].append(cv.pop(0))
            pos += 1
AHEAD = 4
first_use = {}
for i, e in enumerate(prog):
    if e["need"] and e["need"] not in first_use: first_use[e["need"]] = i
def ld_text(k):
    off = {"B": 480 + 64 * k[1], "W0": 480 + 512 * k[1], "W1": 464 + 512 * k[1]}[k[0]]
    return f"ds_read_b128 {vr(slot[k],4)}, v{vUB} offset:{off}"
last_use = {}
for i, e in enumerate(prog):
    for k in loads:
        pass
import re as _re
def uses(e, reg): return f"v[{reg}:{reg+3}]" in e["text"].split(",", 1)[1]
issue_at = {}
for n, k in enumerate(loads):
    if n <= AHEAD: continue
    p = first_use[loads[n - AHEAD - 1]]
    prev = [m for m in range(n) if slot[loads[m]] == slot[k]]
    if prev:
        lu = max(i for i in range(first_use[loads[prev[-1]]], first_use[k]) if uses(prog[i], slot[k]))
        p = max(p, lu)
    if n > AHEAD + 1: p = max(p, issue_at[loads[n - 1]])
    issue_at[k] = p
    prog[p]["ds"].append(("ld", k))
YD = OPT["yd"]
for j in range(7):
    prog[ydone[j] + YD]["ds"].append(("y", j)); prog[ydone[j] + YD + 1]["ds"].append(("yf", j))
for j in range(1, 8): prog[max(0, issue_at[("B", 8 * j)] - 6)]["ds"].insert(0, ("flag", j))
def ywrite(j):
    A(f"ds_write_b128 v{vYW}, {vr(ACC(j),4)} offset:{2*TROW*j}"); q.issue("yw")
def yflag(j):
    A(f"ds_write_b32 v{vT1}, v{vONE} offset:{48+16*j}"); q.issue("yf")
fix = ["v_readlane_b32 s6, v218, 63", "v_readlane_b32 s7, v223, 63"] + [f"v_and_b32 v{KS+i}, s7, v{KS+i}" for i in range(4)]
for n, f in enumerate(fix): prog[18 + n + (n >= 2)]["valu"].append(f)
for n in range(4): prog[26 + n]["valu"].append(f"v_and_or_b32 v{KD(16)+n}, v{MK3+n}, s6, v{KD(16)+n}")
prog[26]["pre"] = ("K", KD(16))
prog[40]["vm"] = True
def part_loads():
    A("global_load_dwordx4 v[56:59], v2, s[42:43] sc1\ns_mov_b64 exec, s[56:57]\nglobal_load_dwordx4 v[60:63], v3, s[42:43] sc1\ns_mov_b64 exec, -1")
if OPT["pl"] > 0:
    p = len(prog) - OPT["pl"]
    assert p - 2 >= first_use[("B", 56)]
    for k in range(4): prog[p - 2 + k // 2]["valu"].append(f"v_mov_b32 v{60+k}, s{18+k}")
    prog[p]["pl"] = True
slow = []
def emit(lo, hi, sfx):
    if lo == 0:
        stamp(6)
        for n in range(AHEAD + 1):
            A(ld_text(loads[n])); q.issue(loads[n])
            if 0 < n < OPT["pre"]: kq_issue(4)
    for i in range(lo, hi):
        e = prog[i]
        if e["need"] and e["need"][0] == "B" and e["need"][1] % 8 == 0 and first_use[e["need"]] == i : fstamp(3, 1 + e["need"][1] // 8)
        if e["need"]: q.wait(e["need"])
        for kr in _re.findall(r"v\[(\d+):", e["text"])[1:3]:
            if ("K", int(kr)) in q.q: q.wait(("K", int(kr)))
            assert all(t != ("K", int(kr)) for t, _ in kq), e["text"]
        if e.get("pre"): q.wait(e["pre"])
        if e.get("vm"): A("s_waitcnt vmcnt(0)")
        chk = [d for d in e["ds"] if d[0] == "ld" and d[1][0] == "B" and d[1][1] % 8 == 0 and d[1][1] > 0]
        if chk:
            q.wait(("flag", chk[0][1][1] // 8)); A(f"v_readfirstlane_b32 s5, v{vT2}")
        A(e["text"])
        if e.get("pl"): part_loads()
        for d in e["ds"]:
            if d[0] == "flag":
                A(f"ds_read_b32 v{vT2}, v{vFL} offset:{4*d[1]}"); q.issue(d)
            elif d[0] == "ld":
                if d in chk:
                    jj = d[1][1] // 8
                    A(f"s_cmp_eq_u32 s5, 0\ns_cbranch_scc1 L_uslow{jj}{sfx}\nL_uok{jj}{sfx}:")
                    slow.append((jj, sfx))
                A(ld_text(d[1])); q.issue(d[1])
            elif d[0] == "y": ywrite(d[1])
            else: yflag(d[1])
        kq_issue(2 if i < 16 else (1 if e["ds"] else 2))
        for v in e["valu"]: A(v)
import copy
JOIN = 32
kq_save, q_save = list(kq), copy.deepcopy(q)
kq_issue(len(kq))
wait_flag(vFL, 0, 1, "u0", vT2); q.known_all()
emit(0, JOIN, "a")
A.label("L_join")
emit(JOIN, len(prog), "")
A.nop(8); ywrite(7); yflag(7)
stamp(7); fstamp(3, 9)
if OPT["nopatch"]: A("s_endpgm")
XST = 16 * TROW
if OPT["pl"] == 0:
    for k in range(4): A(f"v_mov_b32 v{60+k}, s{18+k}")
    part_loads()
A("v_lshrrev_b32 v9, 5, v1")
lw = A.newlabel("st"); lwo = A.newlabel("sto")
A(f"""
s_lshl_b32 s5, s45, 3
v_lshl_add_u32 v24, v9, 2, s5
v_add_u32 v24, v24, v{vFL}
v_bfe_u32 v25, v1, 4, 1
s_mov_b32 s54, {SPIN_MAX}
{lw}:
ds_read_b128 v[28:31], v{vFL} offset:176
ds_read_b128 v[32:35], v{vFL} offset:{48+16*7}
ds_read_b32 v26, v24 offset:192
s_sub_u32 s54, s54, 1
s_cbranch_scc1 {lwo}
s_waitcnt lgkmcnt(0)
v_and_b32 v28, v28, v29
v_and_b32 v30, v30, v31
v_and_b32 v32, v32, v33
v_and_b32 v34, v34, v35
v_and_b32 v28, v28, v30
v_and_b32 v32, v32, v34
v_and_b32 v28, v28, v32
v_cmp_eq_u32 vcc, 0, v28
s_cbranch_vccnz {lw}
{lwo}:
v_and_b32 v27, 0x7ff, v26
v_sub_u32 v27, 2047, v27
v_mul_u32_u24 v28, {2*USTR}, v25
v_lshl_add_u32 v28, v27, 1, v28
v_add_u32 v28, {UB+512}, v28
v_lshlrev_b32 v29, 3, v27
v_lshl_add_u32 v29, v25, 2, v29
v_lshrrev_b32 v30, 7, v27
v_mul_u32_u24 v30, {TROW}, v30
v_bfe_u32 v31, v27, 4, 3
v_lshl_add_u32 v30, v31, 6, v30
v_lshrrev_b32 v31, 2, v27
v_lshrrev_b32 v32, 5, v27
v_add_u32 v31, v31, v32
v_and_b32 v31, 3, v31
v_lshl_add_u32 v30, v31, 4, v30
v_and_b32 v31, 3, v27
v_lshl_add_u32 v30, v31, 2, v30
v_lshl_add_u32 v30, v25, 10, v30
ds_read_u16 v36, v28
ds_read_u16 v37, v28 offset:{USTR}
ds_read_b32 v38, v29 offset:{XST}
ds_read_b32 v40, v30
ds_read_b32 v41, v30 offset:512
s_lshl_b32 s5, s44, 3
v_mul_u32_u24 v42, 1280, v27
v_lshl_add_u32 v42, v25, 2, v42
v_add_u32 v42, s5, v42
v_not_b32 v31, v26
v_ashrrev_i32 v31, 31, v31
v_or_b32 v31, 0x80000000, v31
v_xor_b32 v31, v26, v31
v_and_b32 v31, 0xffff0000, v31
v_mul_f32 v31, {NLOG2E:#x}, v31
v_exp_f32 v31, v31
s_waitcnt lgkmcnt(0)
v_add_f32 v31, 1.0, v31
v_rcp_f32 v43, v31
v_lshlrev_b32 v36, 16, v36
v_lshlrev_b32 v37, 16, v37
v_and_b32 v39, 0xffff0000, v38
v_lshlrev_b32 v38, 16, v38
s_mov_b32 s54, {SPIN_MAX}
""")
lP = A.newlabel("par"); lPo = A.newlabel("paro")
if OPT["pl"] < 0:
    for k in range(4): A(f"v_mov_b32 v{60+k}, s{18+k}")
    part_loads()
A.label(lP)
A("s_waitcnt vmcnt(0)")
for k in range(8): A(f"v_xor_b32 v{44+k}, s{18+k%4}, v{56+k}")
A(f"""
v_or3_b32 v52, v44, v45, v46
v_or3_b32 v53, v47, v48, v49
v_or3_b32 v52, v52, v50, v51
v_or_b32 v52, v52, v53
v_and_b32 v52, 0xff, v52
v_cmp_ne_u32 vcc, 0, v52
s_cbranch_vccz {lPo}
s_sub_u32 s54, s54, 1
s_cbranch_scc1 {lPo}
""")
if OPT["rt"]:
    A("s_and_b64 s[58:59], vcc, s[56:57]\ns_mov_b64 exec, vcc\nglobal_load_dwordx4 v[56:59], v2, s[42:43] sc1\ns_or_b64 exec, s[58:59], 1\nglobal_load_dwordx4 v[60:63], v3, s[42:43] sc1\ns_mov_b64 exec, -1")
else: part_loads()
A(f"s_branch {lP}")
A.label(lPo)
stamp(8)
for k in range(4): A(f"v_add_f32 v{44+k}, v{44+k}, v{48+k}")
A("s_nop 0\nv_permlane16_swap_b32 v44, v46\nv_permlane16_swap_b32 v45, v47\nv_add_f32 v44, v44, v46\nv_add_f32 v45, v45, v47")
for sh in (1, 2, 4, 8):
    A(f"s_nop 0\nv_add_f32_dpp v44, v44, v44 row_shr:{sh} row_mask:0xf bank_mask:0xf bound_ctrl:0\nv_add_f32_dpp v45, v45, v45 row_shr:{sh} row_mask:0xf bank_mask:0xf bound_ctrl:0")
A(f"""
v_fma_f32 v44, v44, v43, v36
v_fma_f32 v45, v45, v43, v37
v_mul_f32 v46, {NLOG2E:#x}, v44
v_mul_f32 v47, {NLOG2E:#x}, v45
v_exp_f32 v46, v46
v_exp_f32 v47, v47
v_mul_f32 v44, v44, v40
v_mul_f32 v45, v45, v41
v_add_f32 v46, 1.0, v46
v_add_f32 v47, 1.0, v47
v_rcp_f32 v46, v46
v_rcp_f32 v47, v47
s_mov_b32 exec_lo, 0x80008000
s_mov_b32 exec_hi, 0x80008000
v_fma_f32 v44, v44, v46, v38
v_fma_f32 v45, v45, v47, v39
v_cvt_pk_bf16_f32 v44, v44, v45
global_store_dword v42, v44, s[40:41]
""")
stamp(9)
if OPT["stamps"]:
    A("s_waitcnt vmcnt(0)")
    stamp(10)
finish(11)
A.label("L_fast01")
kq[:] = kq_save; q.q, q.done = q_save.q, q_save.done
emit(0, JOIN, "b")
assert not kq
q.wait(("K", T3(7)))
A("s_branch L_join")
for jj, sfx in slow:
    A.label(f"L_uslow{jj}{sfx}")
    wait_flag(vFL, 4 * jj, 1, "us", vT2)
    A(f"s_branch L_uok{jj}{sfx}")
A.label("L_helper")
A("s_setprio 0")
XF = [112, 144]; GG = [128, 160]; XR = [96, 104]; ST = [8, 16]; UU = [24, 32]
A(f"""
s_lshl_b32 s5, s45, 11
s_add_u32 s5, s5, {G1_OFF}
v_lshl_add_u32 v92, v1, {4 if OPT['g1l'] else 5}, s5
s_lshl_b32 s5, s55, 11
v_add_u32 v93, s5, v92
""")
G1A = f"global_load_dwordx4 v[8:11], v92, s[42:43] sc1\nglobal_load_dwordx4 v[12:15], v92, s[42:43] offset:{G1S} sc1"
if OPT["gb1"] or OPT["g1pre"]: A(G1A)
A("s_waitcnt lgkmcnt(0)\ns_barrier")
stamp(4); fstamp(6, 1); fstamp(7, 3)
gather(0, OPT["gan"], 4)
if OPT["gb1"]:
    assert OPT["gan"] == 4 and OPT["gbn"] == 0
    gather(1, 0, OPT["gb1"])
elif OPT["allb"]:
    gather(1, OPT["gbn"], 4)
    A(G1A)
    A("global_load_dwordx4 v[16:19], v93, s[42:43] sc1\nglobal_load_dwordx4 v[20:23], v93, s[42:43] offset:16 sc1")
elif not OPT["g1pre"]: A(G1A)
A(f"""
s_lshl_b32 s5, s45, 9
s_add_u32 s5, s5, {UB+512}
v_lshl_add_u32 v91, v1, 3, s5
v_lshrrev_b32 v2, 3, v1
v_add_u32 v2, v2, v1
v_and_b32 v2, 3, v2
v_and_b32 v3, 28, v1
v_add_u32 v2, v2, v3
v_lshlrev_b32 v2, 4, v2
v_lshrrev_b32 v3, 5, v1
v_mul_u32_u24 v3, {TROW}, v3
s_mul_i32 s5, s45, {2*TROW}
v_add3_u32 v90, v2, v3, s5
s_lshl_b32 s5, s45, 2
v_add_u32 v89, s5, v{vFL}
s_lshl_b32 s5, s45, 4
v_add_u32 v87, s5, v{vFL}
s_lshl_b32 s5, s45, 11
s_add_u32 s5, s5, {16*TROW}
v_lshl_add_u32 v86, v1, 5, s5
s_lshl_b32 s5, s55, 9
v_add_u32 v232, s5, v91
s_mul_i32 s5, s55, {2*TROW}
v_add_u32 v233, s5, v90
s_lshl_b32 s5, s55, 2
v_add_u32 v234, s5, v89
s_lshl_b32 s5, s55, 4
v_add_u32 v235, s5, v87
s_lshl_b32 s5, s55, 11
v_add_u32 v236, s5, v86
v_and_b32 v88, 7, v1
v_lshl_add_u32 v237, v88, 2, v{vFL}
v_lshlrev_b32 v88, 4, v88
v_add_u32 v88, {SEL_OFF}, v88
s_lshl_b32 s5, s9, {7 if OPT['rep8'] else 31}
s_and_b32 s5, s5, 0x380
v_add_u32 v88, s5, v88
s_lshl_b32 s5, s45, 8
s_add_u32 s5, s5, {MARK}
v_add_u32 v238, s5, v4
s_lshl_b32 s5, s55, 8
v_add_u32 v239, s5, v238
""")
def unpack_x(t):
    for r in range(4):
        for hw in range(2):
            src = XR[t] + 2 * r + hw
            A(f"v_lshlrev_b32 v{XF[t]+4*(2*hw)+r}, 16, v{src}")
            A(f"v_and_b32 v{XF[t]+4*(2*hw+1)+r}, 0xffff0000, v{src}")
def poll4(s, av, first_wait):
    l = A.newlabel("g"); lo = A.newlabel("go")
    A(f"s_mov_b32 s54, {SPIN_MAX}")
    A(f"s_waitcnt vmcnt({first_wait})")
    A.label(l)
    A(f"""
v_xor_b32 v2, s4, v{s+1}
v_xor_b32 v3, s4, v{s+3}
v_xor_b32 v5, s4, v{s+5}
v_xor_b32 v6, s4, v{s+7}
v_or3_b32 v2, v2, v3, v5
v_or_b32 v2, v2, v6
v_cmp_ne_u32 vcc, 0, v2
s_cbranch_vccz {lo}
s_sub_u32 s54, s54, 1
s_cbranch_scc1 {lo}
global_load_dwordx4 {vr(s,4)}, v{av}, s[42:43] sc1
global_load_dwordx4 {vr(s+4,4)}, v{av}, s[42:43] offset:{G1S} sc1
s_waitcnt vmcnt(0)
s_branch {l}
""")
    A.label(lo)
def normalize(t):
    s = ST[t]
    for r in range(4): A(f"v_and_b32 v{180+r}, 0xffff0000, v{s+2*r}")
    for r in range(4): A(f"v_rcp_f32 v{180+r}, v{180+r}")
    for r in range(4): A(f"v_lshlrev_b32 v{176+r}, 16, v{s+2*r}")
    for r in range(4): A(f"v_mul_f32 v{176+r}, v{176+r}, v{180+r}")
    for ch in range(4):
        N = GG[t] + 4 * ch
        for r in range(4): A(f"v_fma_f32 v{N+r}, v{XF[t]+4*ch+r}, v{180+r}, -v{176+r}")
        for p in range(2): A(f"v_cvt_pk_bf16_f32 v{UU[t]+2*ch+p}, v{N+2*p}, v{N+2*p+1}")
    for ch in range(4): A(f"ds_write_b64 v{[91,232][t]}, {vr(UU[t]+2*ch,2)} offset:{USTR*ch}")
    A(f"ds_write_b32 v{[89,234][t]}, v{vONE}")
def pre(t, rows):
    for r in rows:
        N = lambda ch: GG[t] + 4 * ch + r
        E = 188
        for i in range(4): A(f"v_mul_f32 v{E+i}, {NLOG2E:#x}, v{N(i)}")
        for i in range(4): A(f"v_exp_f32 v{E+i}, v{E+i}")
        for i in range(4): A(f"v_add_f32 v{E+i}, 1.0, v{E+i}")
        for i in range(4): A(f"v_rcp_f32 v{E+i}, v{E+i}")
        for i in range(4): A(f"v_mul_f32 v{N(i)}, v{N(i)}, v{E+i}")
def precompute(t): pre(t, range(4))
def yflag_read(t): A(f"ds_read_b128 v[192:195], v{[87,235][t]} offset:48")
def yflag_test():
    A("v_and_b32 v192, v192, v193\nv_and_b32 v194, v194, v195\nv_and_b32 v192, v192, v194\ns_nop 0\nv_readfirstlane_b32 s5, v192\ns_cmp_lg_u32 s5, 0")
def ywait(t):
    l = A.newlabel("y"); lo = A.newlabel("yo")
    A(f"s_mov_b32 s54, {SPIN_MAX}")
    A.label(l)
    yflag_read(t)
    A(f"s_sub_u32 s54, s54, 1\ns_cbranch_scc1 {lo}\ns_waitcnt lgkmcnt(0)")
    yflag_test()
    if OPT["slp"]: A(f"s_cbranch_scc1 {lo}\ns_sleep {OPT['slp']}\ns_branch {l}")
    else: A(f"s_cbranch_scc0 {l}")
    A.label(lo)
def yread(t):
    for ch in range(4): A(f"ds_read_b128 {vr(200+4*ch,4)}, v{[90,233][t]} offset:{512*ch}")
    A("s_waitcnt lgkmcnt(0)")
MSK = [18, 26]
def epi(t, rows, masked):
    for r in rows:
        for ch in range(4): A(f"v_fma_f32 v{200+4*ch+r}, v{200+4*ch+r}, v{GG[t]+4*ch+r}, v{XF[t]+4*ch+r}")
        A(f"v_cvt_pk_bf16_f32 v{216+2*r+8*t}, v{200+r}, v{204+r}")
        A(f"v_cvt_pk_bf16_f32 v{217+2*r+8*t}, v{208+r}, v{212+r}")
        if masked: A(f"s_mov_b64 exec, s[{MSK[t]+2*r}:{MSK[t]+2*r+1}]")
        if not OPT["nostore"]: A(f"global_store_dwordx2 v{94+t}, {vr(216+2*r+8*t,2)}, s[40:41] offset:{1280*r}{NTS}")
        if masked: A("s_mov_b64 exec, -1")
XST = 16 * TROW
def stash(t):
    A(f"ds_write_b128 v{[86,236][t]}, {vr(XR[t],4)}\nds_write_b128 v{[86,236][t]}, {vr(XR[t]+4,4)} offset:16")
def run_step(pr, pos, vq):
    def after(tag): return len(vq) - 1 - max(i for i, t in enumerate(vq) if t == tag)
    for c in pr[pos]:
        if c == "a": A(f"s_waitcnt vmcnt({after('xa')})"); unpack_x(0)
        elif c == "w": A(f"s_waitcnt vmcnt({after('xa')})")
        elif c == "u": unpack_x(0)
        elif c == "p": poll4(ST[0], 92, after("ga")); stamp(5)
        elif c == "B": gather(1); vq += ["xb"] * 4
        elif c == "b":
            A(f"global_load_dwordx4 v[16:19], v93, s[42:43] sc1\nglobal_load_dwordx4 v[20:23], v93, s[42:43] offset:{G1S} sc1"); vq += ["gb"] * 2
        elif c == "n": normalize(0); stamp(6)
        elif c == "0": precompute(0)
        elif c == "h": pre(0, [0, 1])
        elif c == "H": pre(0, [2, 3])
        elif c == "1": precompute(1)
        elif c == "N":
            A(f"s_waitcnt vmcnt({after('xb')})"); unpack_x(1); poll4(ST[1], 93, after("gb")); normalize(1); stamp(7)
        elif c == "S": A(SELLD); vq.append("sel")
        elif c in "Ee":
            ywait(0)
            if "sel" not in vq: A(SELLD); vq.append("sel")
            yread(0); epi(0, range(4), c == "e"); vq += ["sa"] * 4; stamp(8)
        elif c == "M":
            lS = A.newlabel("sel"); lSo = A.newlabel("selo")
            both = "e" in pr
            A(f"""
s_mov_b32 s54, {SPIN_MAX}
s_waitcnt vmcnt({after('sel')})
{lS}:
v_cmp_ne_u32 vcc, s4, v43
s_cbranch_vccz {lSo}
s_sub_u32 s54, s54, 1
s_cbranch_scc1 {lSo}
{SELLD}
s_waitcnt vmcnt(0)
s_branch {lS}
{lSo}:
v_and_b32 v44, 0x7ff, v40
v_sub_u32 v44, {MARK+2047}, v44
ds_write_b8 v44, v{vONE}
ds_write_b32 v237, v40 offset:192
{'ds_read_b32 v45, v238' if both else ''}
ds_read_b32 v46, v239
s_waitcnt lgkmcnt(0)
""")
            for t in ((0, 1) if both else (1,)):
                for r in range(4): A(f"v_cmp_eq_u32_sdwa s[{MSK[t]+2*r}:{MSK[t]+2*r+1}], v{45+t}, 0 src0_sel:BYTE_{r} src1_sel:DWORD")
        elif c == "k": A(f"s_waitcnt vmcnt({after('sa')})\nds_write_b32 v89, v{vONE} offset:176")
        elif c == "f": A(f"ds_write_b32 v89, v{vONE} offset:176")
        elif c == "G":
            ywait(1); yread(1); epi(1, range(4), True); vq += ["sb"] * 4; stamp(9)
        done = pr[:pr.index(c) + 1]
        if c in "EeN" and ("E" in done or "e" in done) and "N" in done: stash(0); stash(1)
SELLD = "global_load_dwordx4 v[40:43], v88, s[42:43] sc1"
progs = [OPT[f"prog{h}"] for h in range(4)]
def emit_tree(hs, pos, vq):
    while True:
        nxt = {}
        for h in hs: nxt.setdefault(progs[h][pos:pos+1] + ("e" if progs[h][pos:pos+1] == "M" and "e" in progs[h] else ""), []).append(h)
        if len(nxt) == 1:
            c = list(nxt)[0]
            if c == "": A("s_branch L_progend"); return
            run_step(progs[hs[0]], pos, vq); pos += 1
            continue
        groups = list(nxt.values()); labels = [A.newlabel("pg") for _ in groups]
        for g, l in list(zip(groups, labels))[1:]:
            for h in g: A(f"s_cmp_eq_u32 s45, {h}\ns_cbranch_scc1 {l}")
        for i, (g, l) in enumerate(zip(groups, labels)):
            if i: A.label(l)
            emit_tree(g, pos, list(vq))
        return
emit_tree([0, 1, 2, 3], 0, ["xa"] * 4 + ["ga"] * 2)
A.label("L_progend")
if OPT["stamps"]:
    A("s_waitcnt vmcnt(0)")
    stamp(10)
finish(11)

A.label("L_notconv")
PAIRTAB = 0x77277170 if OPT["bal"] else 0x77777210
def pair_of(dst, ps):
    A(f"""
s_lshl_b32 s6, s9, 2
s_lshr_b32 s6, {PAIRTAB:#x}, s6
s_and_b32 s6, s6, 7
s_cmp_ge_u32 {ps}, 3
s_cselect_b32 s6, s6, s9
s_lshl_b32 {dst}, {ps}, 3
s_add_u32 {dst}, {dst}, s6
""")
A("s_sub_u32 s62, s8, 20")
A(f"""
v_lshlrev_b32 v7, 4, v0
v_add_u32 v7, {KB}, v7
ds_write_b128 v7, v[32:35]
ds_write_b128 v7, v[32:35] offset:8192
s_lshr_b32 s63, s62, 1
""")
if OPT["gul"] == 1: gu_pf()
GU12 = OPT["gul"] == 2
if GU12:
    A(f"""
s_lshl_b32 s5, s49, 3
s_add_u32 s5, s5, s9
s_min_u32 s5, s5, 26
s_lshl_b32 s5, s5, 7
s_mul_i32 s6, s62, 54
v_add_u32 v23, s6, v1
v_min_u32 v23, 639, v23
v_mul_u32_u24 v23, 3456, v23
v_add_u32 v23, s5, v23
s_mov_b64 s[52:53], s[56:57]
""")
A("s_mov_b64 s[52:53], s[56:57]")
pair_of("s48", "s63")
A(f"""
s_lshl_b32 s48, s48, 1
s_and_b32 s5, s62, 1
s_add_u32 s48, s48, s5
s_mul_i32 s5, s49, {160*3456}
s_lshl_b32 s6, s48, 6
s_add_u32 s5, s5, s6
s_add_u32 s56, s56, s5
s_addc_u32 s57, s57, 0
s_mul_i32 s50, s3, 10240
s_mov_b32 m0, s50
v_lshrrev_b32 v5, 2, v1
v_mul_u32_u24 v5, 3456, v5
v_and_b32 v6, 3, v1
v_lshl_add_u32 v5, v6, 4, v5
""")
stats_pre()
stats(3 - (OPT["gul"] >= 2))
if OPT["gul"] == 3: A(f"s_mov_b64 exec, 0xfffff\nglobal_load_dword v251, v23, s[52:53]{NTW}\ns_mov_b64 exec, -1")
A("s_waitcnt lgkmcnt(0)")
A(f"""
s_barrier
{"s_cmp_eq_u32 s2, 255" if GU12 else ""}
{"s_cbranch_scc1 L_selector" if GU12 else ""}
{"s_mov_b32 exec_hi, 0x3fffff" if GU12 else ""}
{("global_load_dword v251, v23, s[52:53]" + NTW) if GU12 else ""}
s_mov_b64 exec, -1
s_cmp_lt_u32 s48, 54
s_cbranch_scc1 L_moe
s_cmp_lt_u32 s62, 8
s_cbranch_scc1 L_fin
s_sub_u32 s63, s62, 8
""")
A("s_cmp_eq_u32 s2, 255\ns_cbranch_scc1 L_selector")
pair_of("s5", "s63")
A(f"""
s_cmp_ge_u32 s5, {27 if OPT['dpf'] else 0}
s_cbranch_scc1 L_fin
s_mul_i32 s5, s5, {64*1280}
s_add_u32 s5, s5, s50
v_lshl_add_u32 v5, v1, 7, s5
global_load_dword v251, v5, s[38:39]{NTW}
v_add_u32 v5, 8192, v5
s_mov_b64 exec, 0xffff
global_load_dword v251, v5, s[38:39]{NTW}
s_branch L_fin
L_moe:
""")
A(f"""
v_and_b32 v116, 15, v1
v_lshrrev_b32 v117, 4, v1
s_mul_i32 s5, s48, {32*1280}
s_lshl_b32 s6, s3, 8
s_add_u32 s5, s5, s6
v_mul_u32_u24 v34, {8*1280}, v117
v_lshl_add_u32 v34, v116, 4, v34
v_add_u32 v34, s5, v34
v_add_u32 v35, {4*1280}, v34
""")
if OPT["dfirst"] == 1:
    A("s_cmp_ge_u32 s3, 5\ns_cbranch_scc1 L_nod0")
    for j in range(8):
        A(f"global_load_dwordx4 {vr(80+4*j,4)}, v{34 + j//4}, s[38:39] offset:{1280*(j%4)}{NTW}")
    A.label("L_nod0")
for i in range(10):
    A(f"global_load_lds_dwordx4 v5, s[56:57]{NTW}")
    if i < 9: A(f"s_add_u32 m0, m0, 1024\ns_add_u32 s56, s56, {16*3456}\ns_addc_u32 s57, s57, 0")
A(f"""
v_and_b32 v39, 7, v1
s_lshl_b32 s5, s9, 7
s_add_u32 s5, s5, {SEL_OFF}
v_lshl_add_u32 v36, v39, 4, s5
s_mov_b32 s60, 0x05040100
s_mov_b32 s61, 0x07060302
v_mov_b32 v112, 0x3f803f80
v_mov_b32 v113, 0x3f803f80
v_mov_b32 v114, 0x3f803f80
v_mov_b32 v115, 0x3f803f80
s_mov_b32 s62, 0x00ff00ff
s_mov_b32 s63, 0x00ff00ff
v_lshlrev_b32 v7, 9, v117
v_bfe_u32 v38, v1, 2, 2
v_lshl_add_u32 v7, v38, 6, v7
v_and_b32 v38, 1, v1
v_lshl_add_u32 v7, v38, 3, v7
v_bfe_u32 v38, v1, 1, 1
v_mul_u32_u24 v38, 10240, v38
s_lshl_b32 s5, s45, 4
v_add3_u32 v7, v7, v38, s5
v_add_u32 v37, 40960, v7
v_lshlrev_b32 v118, 4, v1
v_lshlrev_b32 v204, 6, v39
v_and_b32 v38, 1, v117
v_lshl_add_u32 v204, v38, 3, v204
v_lshrrev_b32 v38, 1, v117
v_lshl_add_u32 v204, v38, 2, v204
s_add_u32 s5, s5, {HB}
v_add_u32 v204, s5, v204
v_lshlrev_b32 v206, 6, v39
v_lshl_add_u32 v206, v117, 4, v206
v_add_u32 v206, {HB}, v206
v_mov_b32 v207, {ZBLK}
v_cndmask_b32 v208, v207, v206, s[62:63]
v_cndmask_b32 v207, v206, v207, s[62:63]
s_and_b32 s5, s4, 0xff
v_mov_b32 v212, s5
s_bfe_u32 s5, s4, 0x80008
v_mov_b32 v213, s5
s_bfe_u32 s5, s4, 0x80010
v_mov_b32 v214, s5
s_lshr_b32 s5, s4, 24
v_mov_b32 v215, s5
v_bfe_u32 v216, v1, 3, 1
v_lshl_add_u32 v216, v117, 3, v216
v_mul_u32_u24 v216, {PART_STRIDE}, v216
v_lshl_add_u32 v216, v39, 4, v216
s_mul_i32 s5, s3, {32*PART_STRIDE}
s_lshl_b32 s6, s48, 7
s_add_u32 s5, s5, s6
s_add_u32 s5, s5, {PART_OFF}
v_add_u32 v216, s5, v216
v_add_u32 v217, {2*PART_STRIDE}, v216
v_add_u32 v218, {4*PART_STRIDE}, v216
v_add_u32 v219, {6*PART_STRIDE}, v216
v_min_u32 v220, 8, v116
v_mul_u32_u24 v220, {XRS}, v220
v_lshl_add_u32 v220, v117, 4, v220
v_add_u32 v220, {XRB}, v220
s_mul_i32 s55, s45, {XRS}
s_add_u32 s55, s55, {XRB}
s_add_u32 s47, s45, 4
v_min_u32 v38, 79, v0
v_lshlrev_b32 v38, 4, v38
v_add_u32 v38, {XRB + 8*XRS}, v38
ds_write_b128 v38, v[112:115]
s_waitcnt vmcnt(0)
s_cmp_ge_u32 s3, 5
s_cbranch_scc1 L_nod
""")
if OPT["dfirst"] == 0:
    for j in range(8):
        A(f"global_load_dwordx4 {vr(80+4*j,4)}, v{34 + j//4}, s[38:39] offset:{1280*(j%4)}{NTW}")
A("L_nod:\nglobal_load_dwordx4 v[8:11], v36, s[42:43] sc1\ns_barrier")
if OPT["dfirst"] == 2:
    A("s_cmp_ge_u32 s3, 5\ns_cbranch_scc1 L_nod0")
    for j in range(8):
        A(f"global_load_dwordx4 {vr(80+4*j,4)}, v{34 + j//4}, s[38:39] offset:{1280*(j%4)}{NTW}")
    A.label("L_nod0")
A("s_cmp_ge_u32 s3, 4\ns_cbranch_scc1 L_nocs")
for ks in range(20):
    for hf in range(2):
        A(f"ds_read_b64_tr_b16 {vr(120+4*ks+2*hf,2)}, v{7 if ks < 10 else 37} offset:{(ks//5 % 2)*20480 + (ks%5)*2048 + 256*hf}")
A.label("L_nocs")
stamp(4)
lS = A.newlabel("msel"); lSo = A.newlabel("mselo")
A(f"""
s_mov_b32 s54, {SPIN_MAX}
s_mov_b32 m0, s55
s_waitcnt vmcnt(0)
{lS}:
v_cmp_ne_u32 vcc, s4, v11
s_cbranch_vccz {lSo}
s_sub_u32 s54, s54, 1
s_cbranch_scc1 {lSo}
global_load_dwordx4 v[8:11], v36, s[42:43] sc1
s_waitcnt vmcnt(0)
s_branch {lS}
{lSo}:
s_cmp_lt_u32 s3, 4
s_cbranch_scc1 L_norow
v_readlane_b32 s52, v8, s45
v_readlane_b32 s53, v8, s47
s_and_b32 s52, s52, 0x7ff
s_and_b32 s53, s53, 0x7ff
s_sub_u32 s52, 2047, s52
s_sub_u32 s53, 2047, s53
s_mul_i32 s52, s52, 1280
s_mul_i32 s53, s53, 1280
s_add_u32 s56, s16, s52
s_addc_u32 s57, s17, 0
s_add_u32 s58, s16, s53
s_addc_u32 s59, s17, 0
global_load_lds_dwordx4 v118, s[56:57]
global_load_lds_dword v4, s[56:57] offset:1024
s_add_u32 m0, m0, {4*XRS}
s_nop 0
global_load_lds_dwordx4 v118, s[58:59]
global_load_lds_dword v4, s[58:59] offset:1024
L_norow:
""")
stamp(5)
for qq in range(8):
    for i in range(4):
        A(f"v_perm_b32 v{224+4*qq+i}, v{80+4*(2*i+1)+qq//2}, v{80+4*(2*i)+qq//2}, {'s60' if qq % 2 == 0 else 's61'}")
A(f"""
s_mov_b32 s60, 0xffffff00
v_and_b32 v33, 0xffff0000, v9
v_lshlrev_b32 v32, 16, v9
v_rcp_f32 v33, v33
v_xor_b32 v32, 0x80000000, v32
v_mul_f32 v30, {NLOG2E:#x}, v33
v_mul_f32 v31, v33, v33
s_waitcnt vmcnt(0) lgkmcnt(0)
s_barrier
""")
stamp(6)
A("s_cmp_ge_u32 s3, 4\ns_cbranch_scc1 L_nored")
mq = LdsQ()
XB = [40, 44, 48, 52, 56, 12, 16, 20]
def xr(ks): A(f"ds_read_b128 {vr(XB[ks % 8],4)}, v220 offset:{64*ks}"); mq.issue(ks)
for ks in range(7): xr(ks)
for ks in range(20):
    mq.wait(ks)
    A(f"v_mfma_f32_16x16x32_bf16 v[60:63], {vr(120+4*ks,4)}, {vr(XB[ks % 8],4)}, {'0' if ks == 0 else 'v[60:63]'}")
    if ks + 7 < 20: xr(ks + 7)
stamp(7)
A(f"""
s_nop 7
v_fmac_f32_dpp v60, v60, v32 row_ror:8 row_mask:0xf bank_mask:0xf
v_fmac_f32_dpp v62, v62, v32 row_ror:8 row_mask:0xf bank_mask:0xf
v_fmac_f32_dpp v61, v61, v32 row_ror:8 row_mask:0xf bank_mask:0xf
v_fmac_f32_dpp v63, v63, v32 row_ror:8 row_mask:0xf bank_mask:0xf
v_permlane32_swap_b32 v60, v62
s_nop 0
v_permlane32_swap_b32 v61, v63
v_mul_f32 v8, v60, v30
v_mul_f32 v9, v61, v30
v_exp_f32 v8, v8
v_exp_f32 v9, v9
v_mul_f32 v60, v60, v62
v_mul_f32 v61, v61, v63
v_add_f32 v8, 1.0, v8
v_add_f32 v9, 1.0, v9
v_rcp_f32 v8, v8
v_rcp_f32 v9, v9
v_mul_f32 v60, v60, v31
v_mul_f32 v61, v61, v31
v_mul_f32 v60, v60, v8
v_mul_f32 v61, v61, v9
s_mov_b64 exec, s[62:63]
v_cvt_pk_bf16_f32 v8, v60, v61
ds_write_b32 v204, v8
s_mov_b64 exec, -1
L_nored:
s_waitcnt lgkmcnt(0)
s_barrier
""")
stamp(8)
A(f"""
s_cmp_ge_u32 s3, 5
s_cbranch_scc1 L_fin
ds_read_b128 v[8:11], v208
ds_read_b128 v[12:15], v207
s_waitcnt lgkmcnt(1)
""")
for qq in range(4): A(f"v_mfma_f32_16x16x32_bf16 {vr(56+4*qq,4)}, {vr(224+4*qq,4)}, v[8:11], 0")
A("s_waitcnt lgkmcnt(0)")
for qq in range(4): A(f"v_mfma_f32_16x16x32_bf16 {vr(56+4*qq,4)}, {vr(240+4*qq,4)}, v[12:15], {vr(56+4*qq,4)}")
A.nop(5)
for r in range(4):
    for qq in range(4): A(f"v_bfi_b32 v{72+4*r+qq}, s60, v{56+4*qq+r}, v{212+qq}")
    A(f"global_store_dwordx4 v{216+r}, {vr(72+4*r,4)}, s[42:43] sc1")
stamp(9)
if OPT["stamps"]:
    A("s_waitcnt vmcnt(0)")
    stamp(10)
finish(11)
A.label("L_selector")
X2 = "".join(f"v_mov_b32 v90, {i*300032}\nglobal_load_dword v91, v90, s[30:31]\ns_waitcnt vmcnt(0)\n" for i in range(OPT["x2"]))
def rank16(key, lst, rk, t):
    prs = ["s[6:7]", "s[10:11]", "s[12:13]", "s[14:15]"]
    for i in range(4): A(f"v_cmp_gt_u32 {prs[i]}, v{lst+i}, v{key}")
    A(f"v_addc_co_u32_e64 v{rk}, vcc, 0, 0, {prs[0]}")
    for i in range(1, 4): A(f"v_addc_co_u32_e64 v{rk}, vcc, v{rk}, 0, {prs[i]}")
    A(f"v_mov_b32 v{t}, v{rk}\ns_nop 1\nv_permlane16_swap_b32 v{rk}, v{t}\nv_add_u32 v{rk}, v{rk}, v{t}")
    A(f"v_mov_b32 v{t}, v{rk}\ns_nop 1\nv_permlane32_swap_b32 v{rk}, v{t}\nv_add_u32 v{rk}, v{rk}, v{t}")
MSDB = 0
KEY = [50, 54, 58, 62]
def g2_loads(base):
    for r in range(4): A(f"global_load_dwordx4 {vr(base+4*r,4)}, v36, s[42:43] offset:{1024*r} sc1")
def g2_bad(base):
    A(f"v_xor_b32 v2, s4, v{base+3}\nv_xor_b32 v3, s4, v{base+7}\nv_xor_b32 v5, s4, v{base+11}\nv_xor_b32 v6, s4, v{base+15}")
    A("v_or3_b32 v2, v2, v3, v5\nv_or_b32 v2, v2, v6\nv_cmp_ne_u32 vcc, 0, v2")
A(f"""
v_and_b32 v116, 15, v1
v_lshrrev_b32 v117, 4, v1
s_lshl_b32 s5, s3, 12
s_add_u32 s5, s5, {G2_OFF}
v_lshl_add_u32 v36, v1, 4, s5
v_lshlrev_b32 v221, 2, v116
v_lshlrev_b32 v222, 4, v117
v_add_u32 v223, {HMAX}, v221
v_add_u32 v224, {HMAX}, v222
v_add_u32 v221, {LIST+DRY}, v221
v_add_u32 v222, {LIST+DRY}, v222
v_lshrrev_b32 v225, 5, v0
v_lshlrev_b32 v225, 2, v225
v_add_u32 v225, {HMAX}, v225
v_mov_b32 v19, {CNT+DRY}
v_lshlrev_b32 v40, 8, v117
v_add_u32 v40, {SEL_OFF}, v40
v_mov_b32 v41, 0
v_mov_b32 v46, s4
v_mov_b32 v47, s4
s_lshl_b32 s5, s3, 10
s_sub_u32 s5, {MSDB + 4*(2047-192)}, s5
v_sub_u32 v37, s5, v4
v_bfrev_b32 v50, v0
v_mov_b32 v54, 0
v_mov_b32 v58, 0
v_mov_b32 v62, 0
s_mov_b32 s59, 0
{'s_branch L_s_top' if OPT['dry'] else ''}
L_s_real:
v_subrev_u32 v221, {DRY}, v221
v_subrev_u32 v222, {DRY}, v222
v_subrev_u32 v19, {DRY}, v19
s_mov_b32 s59, 1
s_mov_b32 s54, {SPIN_MAX}
""")
stamp(4)
if OPT["dbl"]:
    g2_loads(48)
    A("L_s_poll:")
    g2_loads(64)
    A("s_waitcnt vmcnt(4)")
    g2_bad(48)
    A("s_cbranch_vccz L_s_top\ns_sub_u32 s54, s54, 1\ns_cbranch_scc1 L_s_top")
    g2_loads(48)
    A("s_waitcnt vmcnt(4)")
    g2_bad(64)
    A("s_cbranch_vccnz L_s_poll")
    for i in range(0, 16, 2): A(f"v_mov_b32 v{48+i}, v{64+i}")
else:
    A("L_s_poll:")
    g2_loads(48)
    A("s_sub_u32 s54, s54, 1\ns_cbranch_scc1 L_s_top\ns_waitcnt vmcnt(0)")
    g2_bad(48)
    A("s_cbranch_vccnz L_s_poll")
A("L_s_top:")
stamp(5)
A(f"v_max3_u32 v16, v{KEY[0]}, v{KEY[1]}, v{KEY[2]}\nv_max_u32 v16, v16, v{KEY[3]}\ns_nop 1")
for i, mod in enumerate(DPP6[:5]):
    if i: A("s_nop 1")
    A(f"v_max_u32_dpp v16, v16, v16 {mod.replace(' bound_ctrl:0','')}")
A(f"""
s_mov_b32 exec_lo, 0x80000000
s_mov_b32 exec_hi, 0x80000000
ds_write_b32 v225, v16
s_mov_b64 exec, -1
s_waitcnt lgkmcnt(0)
s_barrier
ds_read_b32 v17, v223
ds_read_b128 v[20:23], v224
ds_write2st64_b32 v37, v60, v56 offset0:0 offset1:1
ds_write2st64_b32 v37, v52, v48 offset0:2 offset1:3
s_waitcnt lgkmcnt(2)
""")
rank16(17, 20, 18, 24)
A(f"""
v_cmp_eq_u32 vcc, 7, v18
s_ff1_i32_b64 s5, vcc
v_readlane_b32 s5, v17, s5
s_nop 1
v_cmp_le_u32 s[6:7], s5, v{KEY[0]}
v_cmp_le_u32 s[10:11], s5, v{KEY[1]}
v_cmp_le_u32 s[12:13], s5, v{KEY[2]}
v_cmp_le_u32 s[14:15], s5, v{KEY[3]}
v_addc_co_u32_e64 v21, vcc, 0, 0, s[6:7]
s_or_b64 s[50:51], s[6:7], s[10:11]
v_addc_co_u32_e64 v22, vcc, v21, 0, s[10:11]
s_or_b64 s[52:53], s[12:13], s[14:15]
v_addc_co_u32_e64 v23, vcc, v22, 0, s[12:13]
s_or_b64 exec, s[50:51], s[52:53]
v_addc_co_u32_e64 v24, vcc, v23, 0, s[14:15]
ds_add_rtn_u32 v25, v19, v24
s_waitcnt lgkmcnt(0)
v_lshl_add_u32 v25, v25, 2, v19
v_lshl_add_u32 v21, v21, 2, v25
v_lshl_add_u32 v22, v22, 2, v25
v_lshl_add_u32 v23, v23, 2, v25
s_mov_b64 exec, s[6:7]
ds_write_b32 v25, v{KEY[0]} offset:{LIST-CNT}
s_mov_b64 exec, s[10:11]
ds_write_b32 v21, v{KEY[1]} offset:{LIST-CNT}
s_mov_b64 exec, s[12:13]
ds_write_b32 v22, v{KEY[2]} offset:{LIST-CNT}
s_mov_b64 exec, s[14:15]
ds_write_b32 v23, v{KEY[3]} offset:{LIST-CNT}
s_mov_b64 exec, -1
s_waitcnt lgkmcnt(0)
s_barrier
{'' if OPT['dry'] else 's_cmp_lg_u32 s3, 0'}
{'' if OPT['dry'] else 's_cbranch_scc1 L_fin'}
ds_read_b32 v28, v19
ds_read_b32 v17, v221
ds_read_b128 v[20:23], v222
s_waitcnt lgkmcnt(1)
v_readfirstlane_b32 s51, v28
s_cmp_gt_u32 s51, 16
s_cbranch_scc1 L_rk_many
L_rk_done:
v_and_b32 v14, 0x7ff, v17
v_lshlrev_b32 v14, 2, v14
ds_read_b32 v45, v14 offset:{MSDB}
s_waitcnt lgkmcnt(1)
""")
stamp(6)
rank16(17, 20, 18, 24)
A(f"""
v_cmp_gt_u32 vcc, 8, v18
v_lshl_add_u32 v18, v18, 4, v40
v_mov_b32 v44, v17
s_cmp_eq_u32 s59, 0
s_cbranch_scc1 L_s_real
s_cmp_lg_u32 s3, 0
s_cbranch_scc1 L_fin
{X2}
s_mov_b64 exec, vcc
s_waitcnt lgkmcnt(0)
global_store_dwordx4 v18, v[44:47], s[42:43] sc1
global_store_dwordx4 v18, v[44:47], s[42:43] offset:128 sc1
s_mov_b64 exec, 1
global_store_dword v41, v46, s[42:43] sc1
""")
stamp(7)
A("s_branch L_fin")
A(f"""
L_rk_many:
v_lshl_add_u32 v26, v1, 2, v19
v_mov_b32 v27, v1
s_lshl_b32 s5, s3, 6
s_add_u32 s58, s5, {SELW}
s_mov_b32 s50, 0
L_rk_outer:
ds_read_b32 v29, v26 offset:{LIST-CNT}
v_mov_b32 v30, 0
v_mov_b32 v31, v19
s_mov_b32 s52, 0
L_rk_inner:
ds_read_b128 v[8:11], v31 offset:{LIST-CNT}
v_add_u32 v31, 16, v31
s_add_u32 s52, s52, 4
s_waitcnt lgkmcnt(0)
""")
prs = ["s[6:7]", "s[10:11]", "s[12:13]", "s[14:15]"]
for i in range(4): A(f"v_cmp_gt_u32 {prs[i]}, v{8+i}, v29")
for i in range(4): A(f"v_addc_co_u32_e64 v30, vcc, v30, 0, {prs[i]}")
A(f"""
s_cmp_lt_u32 s52, s51
s_cbranch_scc1 L_rk_inner
v_cmp_gt_u32 s[6:7], 8, v30
v_cmp_gt_u32 s[10:11], s51, v27
v_lshl_add_u32 v30, v30, 2, s58
s_and_b64 exec, s[6:7], s[10:11]
ds_write_b32 v30, v29
s_mov_b64 exec, -1
v_add_u32 v26, 256, v26
v_add_u32 v27, 64, v27
s_add_u32 s50, s50, 64
s_cmp_lt_u32 s50, s51
s_cbranch_scc1 L_rk_outer
v_lshl_add_u32 v26, v116, 2, s58
v_lshl_add_u32 v27, v117, 4, s58
ds_read_b32 v17, v26
ds_read_b128 v[20:23], v27
s_waitcnt lgkmcnt(0)
s_branch L_rk_done
""")
A.label("L_fin")
finish(11)
A.label("L_end")
A("s_endpgm")
A.label("L_code_end")
A(".fill 64, 4, 0xBF800000")

tail = f"""
.section .rodata,"a"
.p2align 6
.amdhsa_kernel {NAME}_kernel
  .amdhsa_next_free_vgpr 256
  .amdhsa_next_free_sgpr 96
  .amdhsa_accum_offset 256
  .amdhsa_group_segment_fixed_size 0
  .amdhsa_kernarg_size 120
  .amdhsa_user_sgpr_count 2
  .amdhsa_user_sgpr_kernarg_segment_ptr 1
  .amdhsa_system_sgpr_workgroup_id_x 1
.end_amdhsa_kernel
"""
probs = check_hazards(A.lines)
for p in probs: print("HAZARD", p, file=sys.stderr)
open(sys.argv[1], "w").write(head + A.text() + tail)
print("written", sys.argv[1], len(A.lines), "lines", file=sys.stderr)
```

```python
import sys
from asmlib import *
NAME = "recurrent_scan__ssm_conv_s4d__moe_arch_mod__prompt"
OPT = dict(stamps=0, ntw=1, ntx=0, ntr=0, ga=7, fine=0, sfirst=0, grp=1, bal=0, xb=4, gbn=0, gan=4, pfbar=1, gul=1, gb1=0, xall=0, inj=0, g1pre=0, warm=0, allb=0, nfirst=0, ea=0, gb2=0, dbl=0, ord=0, nts=0, hint=0, rep8=1, dry=0, nopatch=0, nostore=0, hprio=0, slp=0, x1=0, x2=0, x3=0, x4=0, x5=0, x6=0, x7=0, x8=0, x9=0, yd=6, chk=0, g1l=0, mprio=0, pre=3, eg=0, selp=1, rev=1, p1f=4, dfirst=2, dpf=1, pl=0, rt=1, prog0="apBbn0NE1MkG", prog1="apBbn0NE1MkG", prog2="apBbn0NS1MefG", prog3="apBbn0NS1MefG")
for a in sys.argv[2:]:
    k, v = a.split("="); OPT[k] = v if k.startswith("prog") else int(v)

G1_OFF, G2_OFF, SEL_OFF, PART_OFF, PART_STRIDE = 0x1000, 0x5000, 0xD000, 0x10000, 7168
HINT_OFF = 0xE000
STAMP_OFF = 0x200000
TROW = 2064
TBX, TBY = 0, 24 * TROW
UB = TBY + 32 * TROW
USTR = 4608
BOXB = UB + 4 * USTR
KB = BOXB + 1024
PD_O, T2_O, T3_O = 0, 5600, 6112
KSTR = 6432
FLG = KB + 4 * KSTR
MARK = FLG + 224
LDS_SIZE = MARK + 2048
UBY = lambda e: 80 * (e >> 3) + 8 * (e & 7)
RED = 81920
XRB, XRS = RED + 32768, 1296
HB = XRB + 9 * XRS
HMAX = HB + 512
PRM = UB + 512
CNT, ZBLK, SELW, LIST = KB, KB + 64, KB + 128, KB + 1024
SPIN_MAX = 1 << 20
DRY = 12288

LOG2E = 0x3FB8AA3B
NLOG2E = LOG2E ^ 0x80000000
INV2PI = 0x3E22F983
A = Asm()
NTW = " nt" if OPT["ntw"] else ""
NTX = " nt" if OPT["ntx"] else ""
NTR = " nt" if OPT["ntr"] else ""
NTS = ["", " nt", " sc0", " sc0 nt"][OPT["nts"]]
def fstamp(g, i):
    if OPT["fine"] == g: A(f"s_memtime s[{64+2*i}:{65+2*i}]")
def FS(g, i):
    return f"s_memtime s[{64+2*i}:{65+2*i}]" if OPT["fine"] == g else ""
def stamp(i):
    if OPT["fine"] and i not in (0, 13): return
    if OPT["stamps"] == 3: A(f"s_memtime s[{64+2*i}:{65+2*i}]")
    elif OPT["stamps"]: A(f"s_memrealtime s[{64+2*i}:{65+2*i}]")
def cstamp(i):
    if OPT["stamps"]: A(f"s_memtime s[{64+2*i}:{65+2*i}]")
def finish(n, dbgmap=None):
    if OPT["stamps"] == 2:
        if n == 13:
            l = A.newlabel("nd")
            stamp(13)
            A("s_load_dwordx2 s[6:7], s[0:1], 104")
            A(f"s_cmp_ge_u32 s2, 8\ns_cbranch_scc1 {l}\ns_cmp_lg_u32 s3, 7\ns_cbranch_scc1 {l}")
            A("s_waitcnt lgkmcnt(0)\ns_mov_b64 exec, 1\ns_lshl_b32 s5, s2, 3\nv_mov_b32 v2, s5")
            A("s_sub_u32 s5, s68, s64\ns_lshl_b32 s5, s5, 16\ns_and_b32 s10, s64, 0xffff\ns_or_b32 s5, s5, s10\nv_mov_b32 v4, s5")
            A("s_sub_u32 s5, s90, s64\ns_lshl_b32 s5, s5, 16\ns_sub_u32 s10, s72, s64\ns_or_b32 s5, s5, s10\nv_mov_b32 v5, s5")
            A("global_store_dwordx2 v2, v[4:5], s[6:7]")
            A.label(l)
    elif OPT["stamps"]:
        stamp(13); cstamp(15)
        A("s_waitcnt lgkmcnt(0)")
        A("s_mov_b64 exec, 1")
        A(f"s_lshl_b32 s5, s2, 3\ns_add_u32 s5, s5, s3\ns_lshl_b32 s5, s5, 6\ns_add_u32 s5, s5, {STAMP_OFF}")
        A("v_mov_b32 v2, s5")
        for i in list(range(n)) + [13, 14, 15]:
            A(f"v_mov_b32 v3, s{64+2*i}")
            A(f"global_store_dword v2, v3, s[42:43] offset:{4*i}")
    A("s_endpgm")

class LdsQ:
    def __init__(self): self.q = []; self.done = 0
    def issue(self, tag): self.q.append(tag)
    def wait(self, tag):
        idx = max(i for i, t in enumerate(self.q) if t == tag)
        if idx < self.done: return
        n = len(self.q) - 1 - idx
        A(f"s_waitcnt lgkmcnt({min(n,14)})")
        self.done = idx + 1 if n <= 14 else len(self.q) - 14
    def all(self):
        A("s_waitcnt lgkmcnt(0)"); self.done = len(self.q)
    def known_all(self): self.done = len(self.q)

def cmul(dst, p, w, t):
    A(f"v_pk_mul_f32 {vr(t,2)}, {vr(p,2)}, {vr(w,2)} op_sel:[0,0] op_sel_hi:[1,0]")
    A(f"v_pk_fma_f32 {vr(dst,2)}, {vr(p,2)}, {vr(w,2)}, {vr(t,2)} op_sel:[1,1,0] op_sel_hi:[0,1,1] neg_lo:[1,0,0]")
LANE63 = "s_mov_b32 exec_lo, 0\ns_mov_b32 exec_hi, 0x80000000"
DPP6 = ["row_shr:1 row_mask:0xf bank_mask:0xf bound_ctrl:0", "row_shr:2 row_mask:0xf bank_mask:0xf bound_ctrl:0",
        "row_shr:4 row_mask:0xf bank_mask:0xf bound_ctrl:0", "row_shr:8 row_mask:0xf bank_mask:0xf bound_ctrl:0",
        "row_bcast:15 row_mask:0xa bank_mask:0xf", "row_bcast:31 row_mask:0xc bank_mask:0xf"]

KD = lambda m: 8 + 4 * m
KS = 76
T2 = lambda d, hh: 80 + 8 * (d - 2) + 4 * hh
T3 = lambda d: 104 + 4 * (d - 4)
BOX = lambda i: 120 + 4 * i
ACC = lambda j: 140 + 4 * j
BR = lambda s: 172 + 4 * s
W1R = 204
BA = lambda i: 208 + 4 * i
SG = lambda i: 232 + 4 * i
vUB, vYW, vFL, vONE, vT0, vT1, vT2 = 244, 245, 246, 247, 248, 249, 250

hdr = open("stub_ref.txt").read().split("; @launch")[0]
head = hdr + f"""; @launch grid=(256,1,1) block=(512,1,1) lds={LDS_SIZE}
.amdgcn_target "amdgcn-amd-amdhsa--gfx950"
.text
.globl {NAME}_kernel
.p2align 8
.type {NAME}_kernel,@function
{NAME}_kernel:
"""

A("s_cmp_ge_u32 s2, 256\ns_cbranch_scc1 L_end")
if OPT["x5"]: A("s_lshr_b32 s5, s2, 3\ns_and_b32 s5, s5, 7\ns_xor_b32 s2, s2, s5")
A("s_load_dwordx16 s[16:31], s[0:1], 0")
A("s_load_dwordx8 s[32:39], s[0:1], 64")
A("s_load_dwordx2 s[40:41], s[0:1], 96")
A("s_load_dwordx2 s[42:43], s[0:1], 112")
stamp(0); cstamp(14)
EG = OPT["eg"]
EG1 = f"s_lshl_b32 s6, s8, 2\ns_add_u32 s6, s6, s49\ns_mul_i32 s6, s6, 1280\ns_add_u32 s6, s6, s62\nv_mul_u32_u24 v22, {128*1280}, v1\nv_add_u32 v22, s6, v22" if EG else ""
EG2 = f"s_bfm_b64 exec, {2*EG}, 0\nglobal_load_dword v251, v22, s[16:17]\ns_mov_b64 exec, -1" if EG else ""
A(f"""
s_getpc_b64 s[6:7]
L_pc:
s_lshr_b32 s8, s2, 3
v_lshrrev_b32 v2, 6, v0
s_lshl_b32 s5, s8, 10
v_lshl_add_u32 v5, v0, 1, s5
v_readfirstlane_b32 s3, v2
v_min_u32 v5, L_code_end-L_pc, v5
v_and_b32 v5, -4, v5
global_load_dword v252, v5, s[6:7]
v_and_b32 v1, 63, v0
v_lshlrev_b32 v3, 4, v1
v_lshlrev_b32 v4, 2, v1
v_mov_b32 v32, 0
s_and_b32 s45, s3, 3
s_and_b32 s9, s2, 7
s_lshl_b32 s10, s2, 3
s_add_u32 s10, s10, s3
s_mul_i32 s11, s10, 1280
s_lshr_b32 s46, s3, 2
s_mul_i32 s12, s9, 20
s_add_u32 s44, s12, s8
s_lshr_b32 s49, s3, 1
s_lshr_b32 s5, s12, 4
s_and_b32 s6, s3, 1
s_add_u32 s5, s5, s6
s_lshl_b32 s62, s5, 7
s_lshl_b32 s6, s8, 2
s_add_u32 s6, s6, s49
s_mul_i32 s6, s6, {20480 if OPT['xall'] else 10240}
s_add_u32 s5, s62, s6
v_mul_u32_u24 v93, 1280, v1
v_add_u32 v22, s5, v93
s_lshl_b32 s5, s49, 3
s_add_u32 s5, s5, s9
s_min_u32 s5, s5, 26
s_lshl_b32 s5, s5, 7
s_mul_i32 s6, s8, {20*3456}
s_add_u32 s5, s5, s6
v_mul_u32_u24 v23, 3456, v1
v_add_u32 v23, s5, v23
s_lshl_b32 s5, s45, 8
s_lshl_b32 s6, s46, 7
s_add_u32 s5, s5, s6
s_lshl_b32 s6, s44, 10
s_add_u32 s5, s5, s6
v_lshl_add_u32 v6, v1, 1, s5
s_lshr_b32 s5, s5, 8
s_lshl_b32 s5, s5, 1
v_mov_b32 v7, s5
{EG1}
s_waitcnt lgkmcnt(0)
{EG2}
s_add_u32 s6, s16, s11
s_addc_u32 s7, s17, 0
global_load_dwordx4 v[8:11], v3, s[6:7]{NTR}
global_load_dword v12, v4, s[6:7] offset:1024{NTR}
global_load_dwordx4 v[16:19], v3, s[32:33]
global_load_dword v20, v4, s[32:33] offset:1024
global_load_dword v29, v32, s[42:43]
s_bitcmp1_b32 s3, 0
s_cselect_b32 s56, s36, s34
s_cselect_b32 s57, s37, s35
""")
stamp(1)
if OPT["x1"]: A(f"s_sleep {OPT['x1']}")
def early_pf():
    A(f"""
s_bfm_b64 exec, {(16 if OPT['xall'] else 8) - 2*EG}, {2*EG}
global_load_dword v251, v22, s[16:17]{NTX}
s_mov_b64 exec, -1
""")
    if not OPT["gul"]: gu_pf()
def gu_pf():
    A(f"""
s_mov_b64 exec, 0xfffff
global_load_dword v251, v23, s[56:57]{NTW}
s_mov_b64 exec, -1
""")
A(f"""
s_barrier
s_cmp_ge_u32 s2, 160
s_cbranch_scc1 L_nopar
global_load_ushort v40, v6, s[18:19]{NTW}
global_load_ushort v45, v7, s[26:27]
global_load_ushort v41, v6, s[20:21]{NTW}
global_load_ushort v42, v6, s[22:23]{NTW}
global_load_ushort v43, v6, s[24:25]{NTW}
L_nopar:
""")
if OPT["pfbar"]: A("s_barrier")
early_pf()
A("""
v_mov_b32 v33, 0
v_mov_b32 v34, 0
v_mov_b32 v35, 0
s_cbranch_scc1 L_notconv
""")
def row_loads():
    A(f"""
s_add_u32 s6, s16, s11
s_addc_u32 s7, s17, 0
global_load_dwordx4 v[8:11], v3, s[6:7]{NTR}
global_load_dword v12, v4, s[6:7] offset:1024{NTR}
global_load_dwordx4 v[16:19], v3, s[32:33]
global_load_dword v20, v4, s[32:33] offset:1024
""")
G1ADDR = (f"s_and_b32 s5, s10, 0x700\ns_lshl_b32 s5, s5, 3\ns_and_b32 s6, s10, 2\ns_lshl_b32 s6, s6, 9\ns_add_u32 s5, s5, s6\ns_and_b32 s6, s10, 0xfc\ns_lshl_b32 s6, s6, 2\ns_add_u32 s5, s5, s6\n"
          f"s_and_b32 s6, s10, 1\ns_lshl_b32 s6, s6, 3\ns_add_u32 s5, s5, s6\ns_add_u32 s5, s5, {G1_OFF}\nv_mov_b32 v34, s5") if OPT["g1l"] else f"v_add_u32 v34, {G1_OFF}, v33"
G1S = 1024 if OPT["g1l"] else 16
def stats_pre():
    A("s_mov_b32 s14, 0x9E3779B1\ns_mov_b32 s47, 0x3f803f80\ns_lshl_b32 s11, s10, 3\ns_sub_u32 s13, 2047, s10")
    A(f"v_mov_b32 v33, s11\n{G1ADDR}\nv_lshlrev_b32 v35, 1, v33\nv_add_u32 v35, {G2_OFF}, v35\nv_mov_b32 v36, 0x3acccccd")
def make_tag():
    pass
def stats(younger, cnt=False):
    A(vmw(younger - 1) if cnt else f"s_waitcnt vmcnt({younger-1})")
    stamp(2)
    A("s_setprio 2")
    for i in range(5):
        c = (lambda r: "0" if i == 0 else r)
        A(f"v_dot2_f32_bf16 v24, v{8+i}, s47, {c('v24')}")
        A(f"v_dot2_f32_bf16 v25, v{8+i}, v{8+i}, {c('v25')}")
        A(f"v_dot2_f32_bf16 v26, v{8+i}, v{16+i}, {c('v26')}")
        A(f"v_dot2_f32_bf16 v27, v{16+i}, s47, {c('v27')}")
    A(f"""
s_nop 0
v_permlane32_swap_b32 v24, v25
s_nop 0
v_permlane32_swap_b32 v26, v27
v_add_f32 v24, v24, v25
v_add_f32 v26, v26, v27
s_nop 0
v_mul_lo_u32 v29, v29, s14
v_permlane16_swap_b32 v24, v26
v_add_f32 v24, v24, v26
v_add_u32 v29, 0x7F4A7C15, v29
v_mov_b32 v31, v29
v_add_f32_dpp v24, v24, v24 row_shr:1 row_mask:0xf bank_mask:0xf bound_ctrl:0
v_readfirstlane_b32 s4, v29
s_nop 0
v_add_f32_dpp v24, v24, v24 row_shr:2 row_mask:0xf bank_mask:0xf bound_ctrl:0
s_nop 1
v_add_f32_dpp v24, v24, v24 row_shr:4 row_mask:0xf bank_mask:0xf bound_ctrl:0
s_nop 1
v_add_f32_dpp v24, v24, v24 row_shr:8 row_mask:0xf bank_mask:0xf bound_ctrl:0
s_mov_b64 exec, 1
v_readlane_b32 s6, v24, 15
v_readlane_b32 s7, v24, 47
v_readlane_b32 s14, v24, 31
v_readlane_b32 s15, v24, 63
v_mul_f32 v24, s6, v36
v_mul_f32 v25, s7, v36
v_mov_b32 v26, s14
v_fma_f32 v25, -v24, v24, v25
v_max_f32 v25, 0, v25
v_cvt_pk_bf16_f32 v28, v24, v25
v_and_b32 v25, 0xffff0000, v28
v_lshlrev_b32 v24, 16, v28
v_add_f32 v25, 0x3727c5ac, v25
v_cvt_pk_bf16_f32 v25, v25, v25
v_fma_f32 v26, -v24, s15, v26
v_and_b32 v25, 0xffff0000, v25
v_sqrt_f32 v25, v25
""")
    A("s_nop 0")
    A("""
v_cvt_pk_bf16_f32 v28, v24, v25
v_and_b32 v25, 0xffff0000, v28
v_rcp_f32 v25, v25
global_store_dwordx2 v34, v[28:29], s[42:43] sc1
v_mul_f32 v26, v26, v25
v_cvt_pk_bf16_f32 v26, v26, v26
v_ashrrev_i32 v27, 31, v26
v_or_b32 v27, 0x80000000, v27
v_xor_b32 v26, v26, v27
v_and_b32 v26, 0xffff0000, v26
v_or_b32 v30, s13, v26
global_store_dwordx4 v35, v[28:31], s[42:43] sc1
""")
    if cnt: A(f"ds_add_u32 v{vFL}, v{vONE} offset:32")
    A("s_mov_b64 exec, -1\ns_setprio 0")
    stamp(3)
EG3 = (f"s_sub_u32 s5, s3, 4\ns_cmp_ge_u32 s5, {EG}\ns_cbranch_scc1 L_neg\ns_mov_b32 s48, 1\ns_mov_b32 s63, 0\n"
       + "".join(f"global_load_dwordx2 v[{96+2*r}:{97+2*r}], v94, s[16:17] offset:{1280*r}\n" for r in range(4)) + "L_neg:") if EG else ""
def vmw(n):
    if not EG: return f"s_waitcnt vmcnt({n})"
    l1 = A.newlabel("w"); l2 = A.newlabel("w")
    return f"s_cmp_eq_u32 s48, 0\ns_cbranch_scc1 {l1}\ns_waitcnt vmcnt({n+4})\ns_branch {l2}\n{l1}:\ns_waitcnt vmcnt({n})\n{l2}:"
A(f"""
s_and_b32 s6, s8, 15
s_lshl_b32 s6, s6, 1
s_and_b32 s7, s49, 1
s_add_u32 s6, s6, s7
s_add_u32 s6, s6, 32
s_mul_i32 s6, s6, 40960
s_add_u32 s5, s62, s6
v_add_u32 v93, s5, v93
v_lshlrev_b32 v7, 4, v0
v_add_u32 v7, {KB}, v7
ds_write_b128 v7, v[32:35]
ds_write_b128 v7, v[32:35] offset:8192
ds_write_b128 v7, v[32:35] offset:16384
v_min_u32 v7, {LDS_SIZE-16-24576}, v7
ds_write_b128 v7, v[32:35] offset:24576
s_mul_i32 s53, s45, {USTR}
s_add_u32 s53, s53, {UB}
v_lshl_add_u32 v7, v1, 3, s53
ds_write_b64 v7, v[32:33]
s_add_u32 s5, s45, 1
s_sub_u32 s13, s5, 32
s_lshl_b32 s5, s5, 1
v_add_u32 v36, s13, v1
v_add_u32 v37, 1, v36
v_mov_b32 v38, 0x3f800000
v_mov_b32 v39, 0x3f80
v_cmp_ge_u32 s[6:7], s5, v36
v_cmp_ge_u32 s[14:15], s5, v37
s_lshl_b32 s13, s45, 8
s_add_u32 s13, s13, {BOXB}
v_cndmask_b32 v38, 0, v38, s[6:7]
v_cndmask_b32 v39, 0, v39, s[14:15]
v_add_u32 v7, s13, v4
v_or_b32 v38, v38, v39
ds_write_b32 v7, v38
v_and_b32 v2, 15, v1
v_lshrrev_b32 v37, 4, v1
v_lshlrev_b32 v37, 3, v37
v_sub_u32 v37, v2, v37
v_lshlrev_b32 v37, 2, v37
v_add_u32 v37, {BOXB+96}, v37
s_mul_i32 s5, s45, {256*1280}
s_lshl_b32 s6, s44, 3
s_add_u32 s5, s5, s6
v_mul_u32_u24 v94, 5120, v1
v_add_u32 v94, s5, v94
{'s_lshl_b32 s55, s45, 1' if OPT['rev'] else 's_mov_b32 s55, 3'}
s_sub_u32 s55, 7, s55
s_mul_i32 s5, s55, {256*1280}
v_add_u32 v95, s5, v94
s_lshl_b32 s5, s45, 9
s_lshl_b32 s6, s46, 8
s_add_u32 s50, s5, s6
s_add_u32 s51, s50, {TBY}
s_mov_b32 m0, s51
v_mov_b32 v84, 0x3f80
v_mov_b32 v44, {LOG2E:#x}
v_mov_b32 v{vFL}, {FLG}
v_mov_b32 v{vONE}, 1
s_lshr_b32 s63, s3, 2
""")
stats_pre()
A(f"""
s_mov_b32 s48, 0
{EG3}
s_lshl_b32 s5, s44, 3
s_waitcnt lgkmcnt(0)
s_barrier
s_load_dwordx2 s[60:61], s[28:29], s5
""")
if OPT["gul"] == 1: gu_pf()
fstamp(1, 1)
MK3 = 224
for dst, arr, offs in [(BOX(0), 0, 19), (BOX(1), 1, 15), (BOX(2), 0, 11), (BOX(3), 2, 15), (BOX(4), 3, 15), (KS, 0, 20), (MK3, 0, 22)]:
    o = arr * 64 + offs
    A(f"ds_read2_b32 {vr(dst,2)}, v37 offset0:{o} offset1:{o-2}")
    A(f"ds_read2_b32 {vr(dst+2,2)}, v37 offset0:{o-4} offset1:{o-6}")
def setup():
    A(f"""
{vmw(4 - (OPT['gul'] == 2))}
v_lshlrev_b32 v40, 16, v40
v_lshlrev_b32 v45, 16, v45
v_mul_f32 v40, v44, v40
v_mul_f32 v44, v45, v44
v_exp_f32 v40, v40
v_exp_f32 v44, v44
v_lshlrev_b32 v41, 16, v41
v_lshlrev_b32 v42, 16, v42
v_cvt_pk_bf16_f32 v40, v44, v40
v_lshlrev_b32 v43, 16, v43
v_lshlrev_b32 v44, 16, v40
v_and_b32 v40, 0xffff0000, v40
v_mul_f32 v41, v41, v44
v_mul_f32 v40, v40, v44
v_add_f32 v44, v44, v44
v_mul_f32 v40, {NLOG2E:#x}, v40
v_mul_f32 v41, {INV2PI:#x}, v41
v_mul_f32 v48, v42, v44
v_mul_f32 v49, v43, v44
v_mul_f32 v56, 0x41000000, v40
v_mul_f32 v58, 0x41000000, v41
v_mul_f32 v57, 0x43800000, v40
v_mul_f32 v59, 0x43800000, v41
v_fract_f32 v58, v58
v_fract_f32 v60, v41
v_fract_f32 v59, v59
v_exp_f32 v56, v56
v_cos_f32 v52, v58
v_sin_f32 v53, v58
v_exp_f32 v61, v40
v_cos_f32 v50, v60
v_sin_f32 v51, v60
v_exp_f32 v57, v57
v_cos_f32 v54, v59
v_sin_f32 v55, v59
v_mul_f32 v52, v52, v56
v_mul_f32_e64 v53, -v53, v56
v_mul_f32 v50, v50, v61
v_mul_f32 v51, v51, v61
v_mul_f32 v54, v54, v57
v_mul_f32 v55, v55, v57
""")
stats(8 - (OPT["gul"] >= 2), cnt=True); fstamp(1, 2)
if OPT["gul"] == 3: gu_pf()
if OPT["hprio"]: A("s_cmp_lt_u32 s3, 4\ns_cbranch_scc1 L_hp\ns_setprio 1\nL_hp:")
setup()
fstamp(1, 3)
def gather(t, lo=0, hi=4):
    for r in range(lo, hi):
        A(f"global_load_dwordx2 v[{96+8*t+2*r}:{97+8*t+2*r}], v{94+t}, s[16:17] offset:{1280*r}")
def gather_at(pos):
    if OPT["ga"] == pos:
        l = A.newlabel("ng")
        A(f"s_cmp_lt_u32 s3, 4\ns_cbranch_scc1 {l}")
        gather(0, 0, OPT["gan"])
        A.label(l)
    if OPT["xb"] == pos:
        l = A.newlabel("nx")
        A(f"s_cmp_ge_u32 s3, 4\ns_cbranch_scc1 {l}")
        A(f"s_mov_b32 exec_hi, 0\nglobal_load_dword v251, v93, s[16:17]{NTX}\ns_mov_b64 exec, -1")
        A.label(l)
gather_at(0)
pend = []
GRP = OPT["grp"]
tt = [0]
def emit_row(reg, rows):
    t = 84 + (tt[0] % (2 * GRP)); tt[0] += 1
    if reg is not None: A(f"v_cvt_pk_bf16_f32 v{t}, v{reg}, v{reg+1}")
    for r in rows: pend.append(f"ds_write_addtid_b32 v{t} offset:{r*TROW}")
    if tt[0] % GRP == 0: flush_rows()
def flush_rows():
    for p in pend: A(p)
    pend.clear()
emit_row(None, [0]); emit_row(52, [1])
cur = 52
CHK = [{5: 0, 9: 0, 13: 0, 17: 0, 22: 0, 29: 1}, {5: 0, 12: 0, 20: 1}, {5: 0, 10: 0, 15: 1}, {8: 0, 16: 1}][OPT["chk"]]
for c in range(2, 32):
    dst = 64 + 2 * (c % 2)
    if c + 3 in CHK and not CHK[c + 3]: A(f"ds_read_b32 v{vT2}, v{vFL} offset:32")
    if c in CHK:
        l = A.newlabel("gc")
        A(f"s_cmp_eq_u32 s63, 0\ns_cbranch_scc1 {l}")
        if not CHK[c]:
            A(f"s_waitcnt lgkmcnt(3)\nv_readfirstlane_b32 s5, v{vT2}\ns_cmp_lt_u32 s5, 8\ns_cbranch_scc1 {l}")
        A("s_mov_b32 s63, 0")
        fstamp(7, 1)
        gather(0, 0, OPT["gan"])
        fstamp(7, 2)
        A.label(l)
    cmul(dst, cur, 52, dst); emit_row(dst, [c]); cur = dst
    if c == 15: gather_at(3)
flush_rows()
if OPT["x3"]: A("s_cmp_ge_u32 s3, 2\ns_cbranch_scc1 L_x3\ns_lshl_b32 s5, s3, 21\nv_mov_b32 v91, s5\ns_mov_b64 exec, 1\nglobal_load_dword v251, v91, s[40:41]\ns_mov_b64 exec, -1\nL_x3:")
if OPT["x4"]: A(f"s_sleep {OPT['x4']}")
fstamp(1, 4)
A("s_mov_b32 m0, s50")
gather_at(1)
if OPT["gbn"]:
    A("s_cmp_lt_u32 s3, 4\ns_cbranch_scc1 L_ngb")
    gather(1, 0, OPT["gbn"])
    A.label("L_ngb")
cmul(56, 50, 50, 56)
emit_row(48, [0])
cur = 48
rows0 = {1: [1], 2: [2], 3: [3], 4: [4, 8], 5: [5], 6: [6], 7: [7], 8: [12]}
for p in range(1, 9):
    dst = 64 + 2 * (p % 2)
    cmul(dst, cur, 50, dst); emit_row(dst, rows0[p]); cur = dst
for dst, src, w, rows in [(68, 48, 54, [9]), (70, 68, 56, [10]), (68, 70, 56, [11, 13]), (70, 68, 56, [14]), (72, 70, 56, [15]),
                          (70, 68, 54, [16]), (74, 72, 54, [17]), (68, 70, 54, [20]), (72, 74, 54, [21]),
                          (74, 72, 54, [18]), (72, 74, 54, [19]), (74, 72, 54, [22]), (72, 74, 54, [23])]:
    cmul(dst, src, w, dst); emit_row(dst, rows)
flush_rows()
fstamp(1, 5)
gather_at(4)
A("s_cmp_ge_u32 s3, 4\ns_cbranch_scc1 L_helper")

q = LdsQ()
A(f"""
v_and_b32 v2, 31, v1
v_lshrrev_b32 v3, 5, v1
v_mul_u32_u24 v5, {TROW}, v2
v_subrev_u32 v6, {16*TROW}, v5
v_cmp_le_u32 vcc, 24, v2
s_lshl_b32 s5, s45, 9
v_lshl_add_u32 v7, v3, 4, s5
v_cndmask_b32 v6, v5, v6, vcc
v_add_u32 v5, v5, v7
v_add_u32 v6, v6, v7
v_add_u32 v5, {TBY}, v5
s_waitcnt lgkmcnt(0)
""")
NB = 6
def kg_issue(s):
    b = 156 + 8 * (s % NB)
    A(f"ds_read_b128 {vr(b,4)}, v6 offset:{32*s}"); q.issue(("ka", s))
    A(f"ds_read_b128 {vr(b+4,4)}, v5 offset:{32*s}"); q.issue(("kb", s))
filler = f"""
s_lshl_b32 s6, s45, 4
s_lshr_b64 s[60:61], s[60:61], s6
s_lshl_b32 s60, s60, 16
s_mul_i32 s52, s45, {KSTR}
s_add_u32 s52, s52, {KB}
v_mul_u32_u24 v208, 80, v2
v_lshl_add_u32 v208, v3, 5, v208
v_add_u32 v208, s52, v208
v_add_u32 v207, 2560, v208
v_lshl_add_u32 v206, v3, 4, v208
v_add_u32 v205, 2560, v206
v_lshlrev_b32 v209, 2, v2
v_lshl_add_u32 v209, v3, 7, v209
v_add_u32 v209, s52, v209
v_lshlrev_b32 v210, 1, v2
v_lshl_add_u32 v210, v3, 7, v210
v_add_u32 v210, s52, v210
v_mov_b32 v211, s52
v_mov_b32 v45, s60
v_cmp_eq_u32 vcc, 0, v1
v_and_b32 v232, 15, v1
v_lshrrev_b32 v233, 4, v1
v_cndmask_b32 v45, 0, v45, vcc
v_lshlrev_b32 v234, 3, v233
v_sub_u32 v234, v232, v234
v_add_u32 v240, 25, v234
v_add_u32 v234, 29, v234
v_lshrrev_b32 v241, 3, v234
v_lshl_add_u32 v234, v234, 3, s52
v_lshl_add_u32 v234, v241, 4, v234
v_lshrrev_b32 v241, 3, v240
v_lshl_add_u32 v240, v240, 3, s52
v_lshl_add_u32 v240, v241, 4, v240
v_lshlrev_b32 v235, 2, v233
v_sub_u32 v235, v232, v235
v_add_u32 v235, 12, v235
v_lshl_add_u32 v236, v235, 2, s52
v_lshl_add_u32 v235, v235, 3, s52
v_add_u32 v236, {T3_O}, v236
v_lshlrev_b32 v{vUB}, 5, v232
v_lshl_add_u32 v{vUB}, v233, 4, v{vUB}
v_add_u32 v{vUB}, s53, v{vUB}
v_lshrrev_b32 v{vT0}, 1, v232
v_add_u32 v{vT0}, v{vT0}, v233
v_and_b32 v{vT0}, 3, v{vT0}
v_and_b32 v{vT1}, 7, v232
v_lshlrev_b32 v{vT1}, 6, v{vT1}
v_lshl_add_u32 v{vT1}, v{vT0}, 4, v{vT1}
v_lshrrev_b32 v{vT0}, 3, v232
v_mul_u32_u24 v{vT0}, {TROW}, v{vT0}
v_add3_u32 v{vYW}, v{vT0}, v{vT1}, s5
""".strip().split("\n")
for i in range(4): filler.append(f"v_and_b32 v{KS+i}, v{KS+i}, v{BOX(0)+i}")
for r in [KS + i for i in range(4)] + [MK3 + i for i in range(4)]:
    filler.append(f"v_pk_lshlrev_b16 v{r}, 2, v{r} op_sel_hi:[0,1]")
    filler.append(f"v_pk_ashrrev_i16 v{r}, 15, v{r} op_sel_hi:[0,1]")
filler += [f"s_lshl_b32 s5, s45, 2", f"v_add_u32 v{vT1}, s5, v{vFL}"]
filler += f"""s_mul_i32 s5, s44, {PART_STRIDE}
s_lshl_b32 s6, s45, 5
s_add_u32 s5, s5, s6
s_add_u32 s5, s5, {PART_OFF}
v_lshlrev_b32 v2, 7, v2
v_lshl_add_u32 v2, v3, 4, v2
v_add_u32 v2, s5, v2
v_add_u32 v3, 4096, v2
s_and_b32 s18, s4, 0xff
s_bfe_u32 s19, s4, 0x80008
s_bfe_u32 s20, s4, 0x80010
s_lshr_b32 s21, s4, 24
s_mov_b32 s56, 0x3fffff
s_mov_b32 s57, 0x3fffff""".split("\n")
for f in filler: A(f)
A("s_barrier")
stamp(4); fstamp(1, 6); fstamp(2, 1)
if OPT["mprio"]: A(f"s_setprio {OPT['mprio']}")
for s in range(NB): kg_issue(s)
for s in range(16):
    q.wait(("kb", s))
    b = 156 + 8 * (s % NB)
    A(f"v_mfma_f32_32x32x16_bf16 v[140:155], {vr(b,4)}, {vr(b+4,4)}, {'0' if s == 0 else 'v[140:155]'}")
    if s + NB < 16: kg_issue(s + NB)
A(f"ds_read_b32 v{vT2}, v{vFL}"); q.issue(("flag", 0))
A.nop(11)
fstamp(2, 2)
K = lambda i: f"v{140+i}"
A(f"""
v_add_f32 {K(0)}, {K(0)}, v45
v_cvt_pk_bf16_f32 v215, {K(2)}, {K(1)}
v_cvt_pk_bf16_f32 v212, {K(3)}, {K(2)}
v_cvt_pk_bf16_f32 v214, {K(4)}, {K(3)}
v_cvt_pk_bf16_f32 v213, {K(1)}, {K(0)}
v_cvt_pk_bf16_f32 v222, {K(0)}, 0
v_cvt_pk_bf16_f32 v217, {K(5)}, {K(5)}
v_cvt_pk_bf16_f32 v219, {K(6)}, {K(5)}
v_cvt_pk_bf16_f32 v216, {K(7)}, {K(6)}
v_cvt_pk_bf16_f32 v218, {K(7)}, {K(7)}
v_cvt_pk_bf16_f32 v220, {K(8)}, {K(9)}
v_cvt_pk_bf16_f32 v221, {K(10)}, {K(11)}
v_cvt_pk_bf16_f32 v223, {K(9)}, {K(9)}
s_waitcnt lgkmcnt(0)
v_readfirstlane_b32 s5, v{vT2}
ds_write_b128 v208, v[212:215] offset:160
ds_write2_b32 v206, v213, v215 offset0:32 offset1:34
ds_write2_b32 v208, v212, v214 offset0:45 offset1:47
ds_write_b128 v207, v[216:219] offset:160
ds_write2_b32 v205, v217, v219 offset0:32 offset1:34
ds_write2_b32 v207, v216, v218 offset0:45 offset1:47
s_mov_b64 exec, 1
ds_write2_b32 v211, v222, v222 offset0:{UBY(13)//4} offset1:{UBY(15)//4+1}
s_mov_b64 exec, -1
""")
q.known_all()
for _ in range(7): q.issue("kw")
fstamp(2, 3)
kq = []
for m in [x for i in range(8) for x in (i, 8 + i)]:
    kq.append((("K", KD(m)), f"ds_read_b64 {vr(KD(m),2)}, v234 offset:{320*m}"))
    kq.append((("K", KD(m)), f"ds_read_b64 {vr(KD(m)+2,2)}, v240 offset:{320*m}"))
kq.append(("tw", f"ds_write_b32 v209, v220 offset:{T2_O+128}"))
kq.append(("tw", f"ds_write_b16 v210, v221 offset:{T3_O+64}"))
kq.append(("tw", f"ds_write_b16_d16_hi v210, v221 offset:{T3_O+64+64}"))
kq.append((("K", KD(16)), f"ds_read_b64 {vr(KD(16),2)}, v234 offset:{320*16}"))
kq.append((("K", KD(16)), f"ds_read_b64 {vr(KD(16)+2,2)}, v240 offset:{320*16}"))
for d in (2, 3, 4):
    for hh in (0, 1):
        o = 16 * d - 28 - 2 * hh
        kq.append((("K", T2(d, hh)), f"ds_read_b64 {vr(T2(d,hh),2)}, v235 offset:{T2_O+8*o}"))
        kq.append((("K", T2(d, hh)), f"ds_read_b64 {vr(T2(d,hh)+2,2)}, v235 offset:{T2_O+8*(o-1)}"))
for d in (4, 5, 6, 7):
    o = 16 * d - 60
    kq.append((("K", T3(d)), f"ds_read2_b32 {vr(T3(d),2)}, v236 offset0:{o} offset1:{o-1}"))
    kq.append((("K", T3(d)), f"ds_read2_b32 {vr(T3(d)+2,2)}, v236 offset0:{o-2} offset1:{o-3}"))
def kq_issue(n):
    for _ in range(n):
        if kq:
            t, x = kq.pop(0); A(x); q.issue(t)
kq_issue(4)
stamp(5); fstamp(2, 4)
def wait_flag(addr, off, val, nm, tmp):
    l = A.newlabel(nm); lo = A.newlabel(nm + "o")
    A(f"s_mov_b32 s54, {SPIN_MAX}")
    A.label(l)
    A(f"ds_read_b32 v{tmp}, v{addr} offset:{off}")
    A("s_waitcnt lgkmcnt(0)")
    A(f"v_readfirstlane_b32 s5, v{tmp}")
    A(f"s_sub_u32 s54, s54, 1\ns_cbranch_scc1 {lo}")
    A(f"s_cmp_lt_u32 s5, {val}\ns_cbranch_scc1 {l}")
    A.label(lo)
A("s_cmp_lg_u32 s5, 0\ns_cbranch_scc1 L_fast01")
ACC = lambda j: 140 + 4 * (j % 4)
SG2 = lambda b, hh: [156, 164, 232][b % 3] + 4 * hh
SG3 = lambda b: [240, 252, 204, 224][b]
WR = [196, 200]
NBR = 6
BA = lambda i: 208 + 4 * i if i < 4 else [None] * 4 and (228 if i == 4 else 4)
loads = []
for j in range(8):
    loads.append(("B", 8 * j))
    if j >= 2: loads += [("W0", j - 2), ("W1", j - 2)]
    for i in range(1, 8): loads.append(("B", 8 * j - i))
slot = {}
ring = 0
for k in loads:
    if k[0] == "B": slot[k] = BR(ring % NBR); ring += 1
    else: slot[k] = WR[int(k[0][1])]
touched = set()
prog = []
def MF(d, a, b, c, need=None):
    prog.append(dict(text=f"v_mfma_f32_16x16x32_bf16 {vr(d,4)}, {vr(a,4)}, {vr(b,4)}, {c}", need=need, valu=[], ds=[]))
def mf(j, a, b, need=None):
    c = vr(ACC(j), 4) if j in touched else "0"; touched.add(j)
    MF(ACC(j), a, b, c, need)
ydone = {}
for j in range(8):
    k0 = ("B", 8 * j)
    mf(j, KD(0), slot[k0], k0)
    if j + 1 <= 7: mf(j + 1, KD(8), slot[k0])
    cv = []; old = []; new = []
    if j >= 2:
        b = j - 2; w0, w1 = WR
        for i, bx in ((0, 0), (1, 1), (2, 2)) + (((4, 3),) if b <= 3 else ()):
            MF(BA(i), w0, BOX(bx), "0", ("W0", b))
        mf(j, KD(16), w0)
        for i, bx in ((3, 1),) + (((5, 4),) if b <= 3 else ()):
            MF(BA(i), w1, BOX(bx), "0", ("W1", b))
        for r in range(4): cv.append(f"v_cvt_pk_bf16_f32 v{SG2(b,r//2)+2*(r%2)}, v{BA(0)+r}, v{BA(1)+r}")
        for r in range(4): cv.append(f"v_cvt_pk_bf16_f32 v{SG2(b,r//2)+2*(r%2)+1}, v{BA(2)+r}, v{BA(3)+r}")
        if b <= 3:
            for r in range(4): cv.append(f"v_cvt_pk_bf16_f32 v{SG3(b)+r}, v{BA(4)+r}, v{BA(5)+r}")
        for d in (4, 3):
            if j - d >= 0: old += [(j, SG2(j - d, 0), T2(d, 0)), (j, SG2(j - d, 1), T2(d, 1))]
        for d in (7, 6, 5, 4):
            if j - d >= 0: old.append((j, SG3(j - d), T3(d)))
        new = [(j, SG2(b, 0), T2(2, 0)), (j, SG2(b, 1), T2(2, 1))]
        if b <= 3: mf(j + 2, KS, w0)
    for f in old: mf(*f)
    start = len(prog)
    for i in range(1, 8):
        k = ("B", 8 * j - i)
        mf(j, KD(i), slot[k], k)
        if i == 7:
            for f in new: mf(*f)
            ydone[j] = len(prog) - 1
        if j + 1 <= 7: mf(j + 1, KD(8 + i), slot[k])
    if cv:
        lastbox = max(i for i, e in enumerate(prog[:start]) if e["text"].rstrip().endswith(", 0") and f"v[{BA(3)}:" in e["text"] or f"v[{BA(5)}:" in e["text"].split(",")[0])
        pos = lastbox + 4
        per = 2 if j == 7 else 1
        while cv:
            for _ in range(per):
                if cv: prog[pos]["valu"].append(cv.pop(0))
            pos += 1
AHEAD = 4
first_use = {}
for i, e in enumerate(prog):
    if e["need"] and e["need"] not in first_use: first_use[e["need"]] = i
def ld_text(k):
    off = {"B": 480 + 64 * k[1], "W0": 480 + 512 * k[1], "W1": 464 + 512 * k[1]}[k[0]]
    return f"ds_read_b128 {vr(slot[k],4)}, v{vUB} offset:{off}"
last_use = {}
for i, e in enumerate(prog):
    for k in loads:
        pass
import re as _re
def uses(e, reg): return f"v[{reg}:{reg+3}]" in e["text"].split(",", 1)[1]
issue_at = {}
for n, k in enumerate(loads):
    if n <= AHEAD: continue
    p = first_use[loads[n - AHEAD - 1]]
    prev = [m for m in range(n) if slot[loads[m]] == slot[k]]
    if prev:
        lu = max(i for i in range(first_use[loads[prev[-1]]], first_use[k]) if uses(prog[i], slot[k]))
        p = max(p, lu)
    if n > AHEAD + 1: p = max(p, issue_at[loads[n - 1]])
    issue_at[k] = p
    prog[p]["ds"].append(("ld", k))
YD = OPT["yd"]
for j in range(7):
    prog[ydone[j] + YD]["ds"].append(("y", j)); prog[ydone[j] + YD + 1]["ds"].append(("yf", j))
for j in range(1, 8): prog[max(0, issue_at[("B", 8 * j)] - 6)]["ds"].insert(0, ("flag", j))
def ywrite(j):
    A(f"ds_write_b128 v{vYW}, {vr(ACC(j),4)} offset:{2*TROW*j}"); q.issue("yw")
def yflag(j):
    A(f"ds_write_b32 v{vT1}, v{vONE} offset:{48+16*j}"); q.issue("yf")
fix = ["v_readlane_b32 s6, v218, 63", "v_readlane_b32 s7, v223, 63"] + [f"v_and_b32 v{KS+i}, s7, v{KS+i}" for i in range(4)]
for n, f in enumerate(fix): prog[18 + n + (n >= 2)]["valu"].append(f)
for n in range(4): prog[26 + n]["valu"].append(f"v_and_or_b32 v{KD(16)+n}, v{MK3+n}, s6, v{KD(16)+n}")
prog[26]["pre"] = ("K", KD(16))
prog[40]["vm"] = True
def part_loads():
    A("global_load_dwordx4 v[56:59], v2, s[42:43] sc1\ns_mov_b64 exec, s[56:57]\nglobal_load_dwordx4 v[60:63], v3, s[42:43] sc1\ns_mov_b64 exec, -1")
if OPT["pl"] > 0:
    p = len(prog) - OPT["pl"]
    assert p - 2 >= first_use[("B", 56)]
    for k in range(4): prog[p - 2 + k // 2]["valu"].append(f"v_mov_b32 v{60+k}, s{18+k}")
    prog[p]["pl"] = True
slow = []
def emit(lo, hi, sfx):
    if lo == 0:
        stamp(6)
        for n in range(AHEAD + 1):
            A(ld_text(loads[n])); q.issue(loads[n])
            if 0 < n < OPT["pre"]: kq_issue(4)
    for i in range(lo, hi):
        e = prog[i]
        if e["need"] and e["need"][0] == "B" and e["need"][1] % 8 == 0 and first_use[e["need"]] == i : fstamp(3, 1 + e["need"][1] // 8)
        if e["need"]: q.wait(e["need"])
        for kr in _re.findall(r"v\[(\d+):", e["text"])[1:3]:
            if ("K", int(kr)) in q.q: q.wait(("K", int(kr)))
            assert all(t != ("K", int(kr)) for t, _ in kq), e["text"]
        if e.get("pre"): q.wait(e["pre"])
        if e.get("vm"): A("s_waitcnt vmcnt(0)")
        chk = [d for d in e["ds"] if d[0] == "ld" and d[1][0] == "B" and d[1][1] % 8 == 0 and d[1][1] > 0]
        if chk:
            q.wait(("flag", chk[0][1][1] // 8)); A(f"v_readfirstlane_b32 s5, v{vT2}")
        A(e["text"])
        if e.get("pl"): part_loads()
        for d in e["ds"]:
            if d[0] == "flag":
                A(f"ds_read_b32 v{vT2}, v{vFL} offset:{4*d[1]}"); q.issue(d)
            elif d[0] == "ld":
                if d in chk:
                    jj = d[1][1] // 8
                    A(f"s_cmp_eq_u32 s5, 0\ns_cbranch_scc1 L_uslow{jj}{sfx}\nL_uok{jj}{sfx}:")
                    slow.append((jj, sfx))
                A(ld_text(d[1])); q.issue(d[1])
            elif d[0] == "y": ywrite(d[1])
            else: yflag(d[1])
        kq_issue(2 if i < 16 else (1 if e["ds"] else 2))
        for v in e["valu"]: A(v)
import copy
JOIN = 32
kq_save, q_save = list(kq), copy.deepcopy(q)
kq_issue(len(kq))
wait_flag(vFL, 0, 1, "u0", vT2); q.known_all()
emit(0, JOIN, "a")
A.label("L_join")
if OPT["x8"]: A(f"s_sleep {OPT['x8']}")
emit(JOIN, len(prog), "")
A.nop(8); ywrite(7); yflag(7)
stamp(7); fstamp(3, 9)
if OPT["nopatch"]: A("s_endpgm")
XST = 16 * TROW
if OPT["pl"] == 0:
    for k in range(4): A(f"v_mov_b32 v{60+k}, s{18+k}")
    part_loads()
A("v_lshrrev_b32 v9, 5, v1")
lw = A.newlabel("st"); lwo = A.newlabel("sto")
A(f"""
s_lshl_b32 s5, s45, 3
v_lshl_add_u32 v24, v9, 2, s5
v_add_u32 v24, v24, v{vFL}
v_bfe_u32 v25, v1, 4, 1
s_mov_b32 s54, {SPIN_MAX}
{lw}:
ds_read_b128 v[28:31], v{vFL} offset:176
ds_read_b128 v[32:35], v{vFL} offset:{48+16*7}
ds_read_b32 v26, v24 offset:192
s_sub_u32 s54, s54, 1
s_cbranch_scc1 {lwo}
s_waitcnt lgkmcnt(0)
v_and_b32 v28, v28, v29
v_and_b32 v30, v30, v31
v_and_b32 v32, v32, v33
v_and_b32 v34, v34, v35
v_and_b32 v28, v28, v30
v_and_b32 v32, v32, v34
v_and_b32 v28, v28, v32
v_cmp_eq_u32 vcc, 0, v28
s_cbranch_vccnz {lw}
{lwo}:
v_and_b32 v27, 0x7ff, v26
v_sub_u32 v27, 2047, v27
v_mul_u32_u24 v28, {2*USTR}, v25
v_lshl_add_u32 v28, v27, 1, v28
v_add_u32 v28, {UB+512}, v28
v_lshlrev_b32 v29, 3, v27
v_lshl_add_u32 v29, v25, 2, v29
v_lshrrev_b32 v30, 7, v27
v_mul_u32_u24 v30, {TROW}, v30
v_bfe_u32 v31, v27, 4, 3
v_lshl_add_u32 v30, v31, 6, v30
v_lshrrev_b32 v31, 2, v27
v_lshrrev_b32 v32, 5, v27
v_add_u32 v31, v31, v32
v_and_b32 v31, 3, v31
v_lshl_add_u32 v30, v31, 4, v30
v_and_b32 v31, 3, v27
v_lshl_add_u32 v30, v31, 2, v30
v_lshl_add_u32 v30, v25, 10, v30
ds_read_u16 v36, v28
ds_read_u16 v37, v28 offset:{USTR}
ds_read_b32 v38, v29 offset:{XST}
ds_read_b32 v40, v30
ds_read_b32 v41, v30 offset:512
s_lshl_b32 s5, s44, 3
v_mul_u32_u24 v42, 1280, v27
v_lshl_add_u32 v42, v25, 2, v42
v_add_u32 v42, s5, v42
v_not_b32 v31, v26
v_ashrrev_i32 v31, 31, v31
v_or_b32 v31, 0x80000000, v31
v_xor_b32 v31, v26, v31
v_and_b32 v31, 0xffff0000, v31
v_mul_f32 v31, {NLOG2E:#x}, v31
v_exp_f32 v31, v31
s_waitcnt lgkmcnt(0)
v_add_f32 v31, 1.0, v31
v_rcp_f32 v43, v31
v_lshlrev_b32 v36, 16, v36
v_lshlrev_b32 v37, 16, v37
v_and_b32 v39, 0xffff0000, v38
v_lshlrev_b32 v38, 16, v38
s_mov_b32 s54, {SPIN_MAX}
""")
lP = A.newlabel("par"); lPo = A.newlabel("paro")
if OPT["pl"] < 0:
    for k in range(4): A(f"v_mov_b32 v{60+k}, s{18+k}")
    part_loads()
A.label(lP)
A("s_waitcnt vmcnt(0)")
for k in range(8): A(f"v_xor_b32 v{44+k}, s{18+k%4}, v{56+k}")
A(f"""
v_or3_b32 v52, v44, v45, v46
v_or3_b32 v53, v47, v48, v49
v_or3_b32 v52, v52, v50, v51
v_or_b32 v52, v52, v53
v_and_b32 v52, 0xff, v52
v_cmp_ne_u32 vcc, 0, v52
s_cbranch_vccz {lPo}
s_sub_u32 s54, s54, 1
s_cbranch_scc1 {lPo}
""")
if OPT["rt"]:
    A("s_and_b64 s[58:59], vcc, s[56:57]\ns_mov_b64 exec, vcc\nglobal_load_dwordx4 v[56:59], v2, s[42:43] sc1\ns_or_b64 exec, s[58:59], 1\nglobal_load_dwordx4 v[60:63], v3, s[42:43] sc1\ns_mov_b64 exec, -1")
else: part_loads()
A(f"s_branch {lP}")
A.label(lPo)
stamp(8)
for k in range(4): A(f"v_add_f32 v{44+k}, v{44+k}, v{48+k}")
A("s_nop 0\nv_permlane16_swap_b32 v44, v46\nv_permlane16_swap_b32 v45, v47\nv_add_f32 v44, v44, v46\nv_add_f32 v45, v45, v47")
for sh in (1, 2, 4, 8):
    A(f"s_nop 0\nv_add_f32_dpp v44, v44, v44 row_shr:{sh} row_mask:0xf bank_mask:0xf bound_ctrl:0\nv_add_f32_dpp v45, v45, v45 row_shr:{sh} row_mask:0xf bank_mask:0xf bound_ctrl:0")
A(f"""
v_fma_f32 v44, v44, v43, v36
v_fma_f32 v45, v45, v43, v37
v_mul_f32 v46, {NLOG2E:#x}, v44
v_mul_f32 v47, {NLOG2E:#x}, v45
v_exp_f32 v46, v46
v_exp_f32 v47, v47
v_mul_f32 v44, v44, v40
v_mul_f32 v45, v45, v41
v_add_f32 v46, 1.0, v46
v_add_f32 v47, 1.0, v47
v_rcp_f32 v46, v46
v_rcp_f32 v47, v47
s_mov_b32 exec_lo, 0x80008000
s_mov_b32 exec_hi, 0x80008000
v_fma_f32 v44, v44, v46, v38
v_fma_f32 v45, v45, v47, v39
v_cvt_pk_bf16_f32 v44, v44, v45
global_store_dword v42, v44, s[40:41]
""")
stamp(9)
if OPT["stamps"]:
    A("s_waitcnt vmcnt(0)")
    stamp(10)
finish(11)
A.label("L_fast01")
kq[:] = kq_save; q.q, q.done = q_save.q, q_save.done
emit(0, JOIN, "b")
assert not kq
q.wait(("K", T3(7)))
A("s_branch L_join")
for jj, sfx in slow:
    A.label(f"L_uslow{jj}{sfx}")
    wait_flag(vFL, 4 * jj, 1, "us", vT2)
    A(f"s_branch L_uok{jj}{sfx}")
A.label("L_helper")
A("s_setprio 0")
XF = [112, 144]; GG = [128, 160]; XR = [96, 104]; ST = [8, 16]; UU = [24, 32]
A(f"""
s_lshl_b32 s5, s45, 11
s_add_u32 s5, s5, {G1_OFF}
v_lshl_add_u32 v92, v1, {4 if OPT['g1l'] else 5}, s5
s_lshl_b32 s5, s55, 11
v_add_u32 v93, s5, v92
""")
G1A = f"global_load_dwordx4 v[8:11], v92, s[42:43] sc1\nglobal_load_dwordx4 v[12:15], v92, s[42:43] offset:{G1S} sc1"
if OPT["gb1"] or OPT["g1pre"]: A(G1A)
A("s_waitcnt lgkmcnt(0)\ns_barrier")
stamp(4); fstamp(6, 1); fstamp(7, 3)
gather(0, OPT["gan"], 4)
if OPT["gb1"]:
    assert OPT["gan"] == 4 and OPT["gbn"] == 0
    gather(1, 0, OPT["gb1"])
elif OPT["allb"]:
    gather(1, OPT["gbn"], 4)
    A(G1A)
    A("global_load_dwordx4 v[16:19], v93, s[42:43] sc1\nglobal_load_dwordx4 v[20:23], v93, s[42:43] offset:16 sc1")
elif not OPT["g1pre"]: A(G1A)
A(f"""
s_lshl_b32 s5, s45, 9
s_add_u32 s5, s5, {UB+512}
v_lshl_add_u32 v91, v1, 3, s5
v_lshrrev_b32 v2, 3, v1
v_add_u32 v2, v2, v1
v_and_b32 v2, 3, v2
v_and_b32 v3, 28, v1
v_add_u32 v2, v2, v3
v_lshlrev_b32 v2, 4, v2
v_lshrrev_b32 v3, 5, v1
v_mul_u32_u24 v3, {TROW}, v3
s_mul_i32 s5, s45, {2*TROW}
v_add3_u32 v90, v2, v3, s5
s_lshl_b32 s5, s45, 2
v_add_u32 v89, s5, v{vFL}
s_lshl_b32 s5, s45, 4
v_add_u32 v87, s5, v{vFL}
s_lshl_b32 s5, s45, 11
s_add_u32 s5, s5, {16*TROW}
v_lshl_add_u32 v86, v1, 5, s5
s_lshl_b32 s5, s55, 9
v_add_u32 v232, s5, v91
s_mul_i32 s5, s55, {2*TROW}
v_add_u32 v233, s5, v90
s_lshl_b32 s5, s55, 2
v_add_u32 v234, s5, v89
s_lshl_b32 s5, s55, 4
v_add_u32 v235, s5, v87
s_lshl_b32 s5, s55, 11
v_add_u32 v236, s5, v86
v_and_b32 v88, 7, v1
v_lshl_add_u32 v237, v88, 2, v{vFL}
v_lshlrev_b32 v88, 4, v88
v_add_u32 v88, {SEL_OFF}, v88
s_lshl_b32 s5, s9, {7 if OPT['rep8'] else 31}
s_and_b32 s5, s5, 0x380
v_add_u32 v88, s5, v88
s_lshl_b32 s5, s45, 8
s_add_u32 s5, s5, {MARK}
v_add_u32 v238, s5, v4
s_lshl_b32 s5, s55, 8
v_add_u32 v239, s5, v238
""")
def unpack_x(t):
    for r in range(4):
        for hw in range(2):
            src = XR[t] + 2 * r + hw
            A(f"v_lshlrev_b32 v{XF[t]+4*(2*hw)+r}, 16, v{src}")
            A(f"v_and_b32 v{XF[t]+4*(2*hw+1)+r}, 0xffff0000, v{src}")
def poll4(s, av, first_wait):
    l = A.newlabel("g"); lo = A.newlabel("go")
    A(f"s_mov_b32 s54, {SPIN_MAX}")
    A(f"s_waitcnt vmcnt({first_wait})")
    A.label(l)
    A(f"""
v_xor_b32 v2, s4, v{s+1}
v_xor_b32 v3, s4, v{s+3}
v_xor_b32 v5, s4, v{s+5}
v_xor_b32 v6, s4, v{s+7}
v_or3_b32 v2, v2, v3, v5
v_or_b32 v2, v2, v6
v_cmp_ne_u32 vcc, 0, v2
s_cbranch_vccz {lo}
s_sub_u32 s54, s54, 1
s_cbranch_scc1 {lo}
global_load_dwordx4 {vr(s,4)}, v{av}, s[42:43] sc1
global_load_dwordx4 {vr(s+4,4)}, v{av}, s[42:43] offset:{G1S} sc1
s_waitcnt vmcnt(0)
s_branch {l}
""")
    A.label(lo)
def normalize(t):
    s = ST[t]
    for r in range(4): A(f"v_and_b32 v{180+r}, 0xffff0000, v{s+2*r}")
    for r in range(4): A(f"v_rcp_f32 v{180+r}, v{180+r}")
    for r in range(4): A(f"v_lshlrev_b32 v{176+r}, 16, v{s+2*r}")
    for r in range(4): A(f"v_mul_f32 v{176+r}, v{176+r}, v{180+r}")
    for ch in range(4):
        N = GG[t] + 4 * ch
        for r in range(4): A(f"v_fma_f32 v{N+r}, v{XF[t]+4*ch+r}, v{180+r}, -v{176+r}")
        for p in range(2): A(f"v_cvt_pk_bf16_f32 v{UU[t]+2*ch+p}, v{N+2*p}, v{N+2*p+1}")
    for ch in range(4): A(f"ds_write_b64 v{[91,232][t]}, {vr(UU[t]+2*ch,2)} offset:{USTR*ch}")
    A(f"ds_write_b32 v{[89,234][t]}, v{vONE}")
def pre(t, rows):
    for r in rows:
        N = lambda ch: GG[t] + 4 * ch + r
        E = 188
        for i in range(4): A(f"v_mul_f32 v{E+i}, {NLOG2E:#x}, v{N(i)}")
        for i in range(4): A(f"v_exp_f32 v{E+i}, v{E+i}")
        for i in range(4): A(f"v_add_f32 v{E+i}, 1.0, v{E+i}")
        for i in range(4): A(f"v_rcp_f32 v{E+i}, v{E+i}")
        for i in range(4): A(f"v_mul_f32 v{N(i)}, v{N(i)}, v{E+i}")
def precompute(t): pre(t, range(4))
def yflag_read(t): A(f"ds_read_b128 v[192:195], v{[87,235][t]} offset:48")
def yflag_test():
    A("v_and_b32 v192, v192, v193\nv_and_b32 v194, v194, v195\nv_and_b32 v192, v192, v194\ns_nop 0\nv_readfirstlane_b32 s5, v192\ns_cmp_lg_u32 s5, 0")
def ywait(t):
    l = A.newlabel("y"); lo = A.newlabel("yo")
    A(f"s_mov_b32 s54, {SPIN_MAX}")
    A.label(l)
    yflag_read(t)
    A(f"s_sub_u32 s54, s54, 1\ns_cbranch_scc1 {lo}\ns_waitcnt lgkmcnt(0)")
    yflag_test()
    if OPT["slp"]: A(f"s_cbranch_scc1 {lo}\ns_sleep {OPT['slp']}\ns_branch {l}")
    else: A(f"s_cbranch_scc0 {l}")
    A.label(lo)
def yread(t):
    for ch in range(4): A(f"ds_read_b128 {vr(200+4*ch,4)}, v{[90,233][t]} offset:{512*ch}")
    A("s_waitcnt lgkmcnt(0)")
MSK = [18, 26]
def epi(t, rows, masked):
    for r in rows:
        for ch in range(4): A(f"v_fma_f32 v{200+4*ch+r}, v{200+4*ch+r}, v{GG[t]+4*ch+r}, v{XF[t]+4*ch+r}")
        A(f"v_cvt_pk_bf16_f32 v{216+2*r+8*t}, v{200+r}, v{204+r}")
        A(f"v_cvt_pk_bf16_f32 v{217+2*r+8*t}, v{208+r}, v{212+r}")
        if masked: A(f"s_mov_b64 exec, s[{MSK[t]+2*r}:{MSK[t]+2*r+1}]")
        if not OPT["nostore"]: A(f"global_store_dwordx2 v{94+t}, {vr(216+2*r+8*t,2)}, s[40:41] offset:{1280*r}{NTS}")
        if masked: A("s_mov_b64 exec, -1")
XST = 16 * TROW
def stash(t):
    A(f"ds_write_b128 v{[86,236][t]}, {vr(XR[t],4)}\nds_write_b128 v{[86,236][t]}, {vr(XR[t]+4,4)} offset:16")
def run_step(pr, pos, vq):
    def after(tag): return len(vq) - 1 - max(i for i, t in enumerate(vq) if t == tag)
    for c in pr[pos]:
        if c == "a": A(f"s_waitcnt vmcnt({after('xa')})"); unpack_x(0)
        elif c == "w": A(f"s_waitcnt vmcnt({after('xa')})")
        elif c == "u": unpack_x(0)
        elif c == "p":
            poll4(ST[0], 92, after("ga")); stamp(5)
            if OPT["x9"]: A(f"s_sleep {OPT['x9']}")
        elif c == "B": gather(1); vq += ["xb"] * 4
        elif c == "b":
            A(f"global_load_dwordx4 v[16:19], v93, s[42:43] sc1\nglobal_load_dwordx4 v[20:23], v93, s[42:43] offset:{G1S} sc1"); vq += ["gb"] * 2
        elif c == "n": normalize(0); stamp(6)
        elif c == "0": precompute(0)
        elif c == "h": pre(0, [0, 1])
        elif c == "H": pre(0, [2, 3])
        elif c == "1": precompute(1)
        elif c == "N":
            A(f"s_waitcnt vmcnt({after('xb')})"); unpack_x(1); poll4(ST[1], 93, after("gb")); normalize(1); stamp(7)
        elif c == "S": A(SELLD); vq.append("sel")
        elif c in "Ee":
            ywait(0)
            if "sel" not in vq: A(SELLD); vq.append("sel")
            yread(0); epi(0, range(4), c == "e"); vq += ["sa"] * 4; stamp(8)
        elif c == "M":
            lS = A.newlabel("sel"); lSo = A.newlabel("selo")
            both = "e" in pr
            A(f"""
s_mov_b32 s54, {SPIN_MAX}
s_waitcnt vmcnt({after('sel')})
{lS}:
v_cmp_ne_u32 vcc, s4, v43
s_cbranch_vccz {lSo}
s_sub_u32 s54, s54, 1
s_cbranch_scc1 {lSo}
{SELLD}
s_waitcnt vmcnt(0)
s_branch {lS}
{lSo}:
v_and_b32 v44, 0x7ff, v40
v_sub_u32 v44, {MARK+2047}, v44
ds_write_b8 v44, v{vONE}
ds_write_b32 v237, v40 offset:192
{'ds_read_b32 v45, v238' if both else ''}
ds_read_b32 v46, v239
s_waitcnt lgkmcnt(0)
""")
            for t in ((0, 1) if both else (1,)):
                for r in range(4): A(f"v_cmp_eq_u32_sdwa s[{MSK[t]+2*r}:{MSK[t]+2*r+1}], v{45+t}, 0 src0_sel:BYTE_{r} src1_sel:DWORD")
        elif c == "k": A(f"s_waitcnt vmcnt({after('sa')})\nds_write_b32 v89, v{vONE} offset:176")
        elif c == "f": A(f"ds_write_b32 v89, v{vONE} offset:176")
        elif c == "G":
            ywait(1); yread(1); epi(1, range(4), True); vq += ["sb"] * 4; stamp(9)
        done = pr[:pr.index(c) + 1]
        if c in "EeN" and ("E" in done or "e" in done) and "N" in done: stash(0); stash(1)
SELLD = "global_load_dwordx4 v[40:43], v88, s[42:43] sc1"
progs = [OPT[f"prog{h}"] for h in range(4)]
def emit_tree(hs, pos, vq):
    while True:
        nxt = {}
        for h in hs: nxt.setdefault(progs[h][pos:pos+1] + ("e" if progs[h][pos:pos+1] == "M" and "e" in progs[h] else ""), []).append(h)
        if len(nxt) == 1:
            c = list(nxt)[0]
            if c == "": A("s_branch L_progend"); return
            run_step(progs[hs[0]], pos, vq); pos += 1
            continue
        groups = list(nxt.values()); labels = [A.newlabel("pg") for _ in groups]
        for g, l in list(zip(groups, labels))[1:]:
            for h in g: A(f"s_cmp_eq_u32 s45, {h}\ns_cbranch_scc1 {l}")
        for i, (g, l) in enumerate(zip(groups, labels)):
            if i: A.label(l)
            emit_tree(g, pos, list(vq))
        return
emit_tree([0, 1, 2, 3], 0, ["xa"] * 4 + ["ga"] * 2)
A.label("L_progend")
if OPT["stamps"]:
    A("s_waitcnt vmcnt(0)")
    stamp(10)
finish(11)

A.label("L_notconv")
PAIRTAB = 0x77277170 if OPT["bal"] else 0x77777210
def pair_of(dst, ps):
    A(f"""
s_lshl_b32 s6, s9, 2
s_lshr_b32 s6, {PAIRTAB:#x}, s6
s_and_b32 s6, s6, 7
s_cmp_ge_u32 {ps}, 3
s_cselect_b32 s6, s6, s9
s_lshl_b32 {dst}, {ps}, 3
s_add_u32 {dst}, {dst}, s6
""")
A("s_sub_u32 s62, s8, 20")
A(f"""
v_lshlrev_b32 v7, 4, v0
v_add_u32 v7, {KB}, v7
ds_write_b128 v7, v[32:35]
ds_write_b128 v7, v[32:35] offset:8192
s_lshr_b32 s63, s62, 1
""")
if OPT["gul"] == 1: gu_pf()
GU12 = OPT["gul"] == 2
if GU12:
    A(f"""
s_lshl_b32 s5, s49, 3
s_add_u32 s5, s5, s9
s_min_u32 s5, s5, 26
s_lshl_b32 s5, s5, 7
s_mul_i32 s6, s62, 54
v_add_u32 v23, s6, v1
v_min_u32 v23, 639, v23
v_mul_u32_u24 v23, 3456, v23
v_add_u32 v23, s5, v23
s_mov_b64 s[52:53], s[56:57]
""")
A("s_mov_b64 s[52:53], s[56:57]")
pair_of("s48", "s63")
A(f"""
s_lshl_b32 s48, s48, 1
s_and_b32 s5, s62, 1
s_add_u32 s48, s48, s5
s_mul_i32 s5, s49, {160*3456}
s_lshl_b32 s6, s48, 6
s_add_u32 s5, s5, s6
s_add_u32 s56, s56, s5
s_addc_u32 s57, s57, 0
s_mul_i32 s50, s3, 10240
s_mov_b32 m0, s50
v_lshrrev_b32 v5, 2, v1
v_mul_u32_u24 v5, 3456, v5
v_and_b32 v6, 3, v1
v_lshl_add_u32 v5, v6, 4, v5
""")
stats_pre()
stats(3 - (OPT["gul"] >= 2))
if OPT["gul"] == 3: A(f"s_mov_b64 exec, 0xfffff\nglobal_load_dword v251, v23, s[52:53]{NTW}\ns_mov_b64 exec, -1")
A("s_waitcnt lgkmcnt(0)")
A(f"""
s_barrier
{"s_cmp_eq_u32 s2, 255" if GU12 else ""}
{"s_cbranch_scc1 L_selector" if GU12 else ""}
{"s_mov_b32 exec_hi, 0x3fffff" if GU12 else ""}
{("global_load_dword v251, v23, s[52:53]" + NTW) if GU12 else ""}
s_mov_b64 exec, -1
s_cmp_lt_u32 s48, 54
s_cbranch_scc1 L_moe
s_cmp_lt_u32 s62, 8
s_cbranch_scc1 L_fin
s_sub_u32 s63, s62, 8
""")
A("s_cmp_eq_u32 s2, 255\ns_cbranch_scc1 L_selector")
pair_of("s5", "s63")
A(f"""
s_cmp_ge_u32 s5, {27 if OPT['dpf'] else 0}
s_cbranch_scc1 L_fin
s_mul_i32 s5, s5, {64*1280}
s_add_u32 s5, s5, s50
v_lshl_add_u32 v5, v1, 7, s5
global_load_dword v251, v5, s[38:39]{NTW}
v_add_u32 v5, 8192, v5
s_mov_b64 exec, 0xffff
global_load_dword v251, v5, s[38:39]{NTW}
s_branch L_fin
L_moe:
""")
A(f"""
v_and_b32 v116, 15, v1
v_lshrrev_b32 v117, 4, v1
s_mul_i32 s5, s48, {32*1280}
s_lshl_b32 s6, s3, 8
s_add_u32 s5, s5, s6
v_mul_u32_u24 v34, {8*1280}, v117
v_lshl_add_u32 v34, v116, 4, v34
v_add_u32 v34, s5, v34
v_add_u32 v35, {4*1280}, v34
""")
if OPT["dfirst"] == 1:
    A("s_cmp_ge_u32 s3, 5\ns_cbranch_scc1 L_nod0")
    for j in range(8):
        A(f"global_load_dwordx4 {vr(80+4*j,4)}, v{34 + j//4}, s[38:39] offset:{1280*(j%4)}{NTW}")
    A.label("L_nod0")
if OPT["x6"]: A(f"s_sleep {OPT['x6']}")
for i in range(10):
    A(f"global_load_lds_dwordx4 v5, s[56:57]{NTW}")
    if i < 9: A(f"s_add_u32 m0, m0, 1024\ns_add_u32 s56, s56, {16*3456}\ns_addc_u32 s57, s57, 0")
A(f"""
v_and_b32 v39, 7, v1
s_lshl_b32 s5, s9, 7
s_add_u32 s5, s5, {SEL_OFF}
v_lshl_add_u32 v36, v39, 4, s5
s_mov_b32 s60, 0x05040100
s_mov_b32 s61, 0x07060302
v_mov_b32 v112, 0x3f803f80
v_mov_b32 v113, 0x3f803f80
v_mov_b32 v114, 0x3f803f80
v_mov_b32 v115, 0x3f803f80
s_mov_b32 s62, 0x00ff00ff
s_mov_b32 s63, 0x00ff00ff
v_lshlrev_b32 v7, 9, v117
v_bfe_u32 v38, v1, 2, 2
v_lshl_add_u32 v7, v38, 6, v7
v_and_b32 v38, 1, v1
v_lshl_add_u32 v7, v38, 3, v7
v_bfe_u32 v38, v1, 1, 1
v_mul_u32_u24 v38, 10240, v38
s_lshl_b32 s5, s45, 4
v_add3_u32 v7, v7, v38, s5
v_add_u32 v37, 40960, v7
v_lshlrev_b32 v118, 4, v1
v_lshlrev_b32 v204, 6, v39
v_and_b32 v38, 1, v117
v_lshl_add_u32 v204, v38, 3, v204
v_lshrrev_b32 v38, 1, v117
v_lshl_add_u32 v204, v38, 2, v204
s_add_u32 s5, s5, {HB}
v_add_u32 v204, s5, v204
v_lshlrev_b32 v206, 6, v39
v_lshl_add_u32 v206, v117, 4, v206
v_add_u32 v206, {HB}, v206
v_mov_b32 v207, {ZBLK}
v_cndmask_b32 v208, v207, v206, s[62:63]
v_cndmask_b32 v207, v206, v207, s[62:63]
s_and_b32 s5, s4, 0xff
v_mov_b32 v212, s5
s_bfe_u32 s5, s4, 0x80008
v_mov_b32 v213, s5
s_bfe_u32 s5, s4, 0x80010
v_mov_b32 v214, s5
s_lshr_b32 s5, s4, 24
v_mov_b32 v215, s5
v_bfe_u32 v216, v1, 3, 1
v_lshl_add_u32 v216, v117, 3, v216
v_mul_u32_u24 v216, {PART_STRIDE}, v216
v_lshl_add_u32 v216, v39, 4, v216
s_mul_i32 s5, s3, {32*PART_STRIDE}
s_lshl_b32 s6, s48, 7
s_add_u32 s5, s5, s6
s_add_u32 s5, s5, {PART_OFF}
v_add_u32 v216, s5, v216
v_add_u32 v217, {2*PART_STRIDE}, v216
v_add_u32 v218, {4*PART_STRIDE}, v216
v_add_u32 v219, {6*PART_STRIDE}, v216
v_min_u32 v220, 8, v116
v_mul_u32_u24 v220, {XRS}, v220
v_lshl_add_u32 v220, v117, 4, v220
v_add_u32 v220, {XRB}, v220
s_mul_i32 s55, s45, {XRS}
s_add_u32 s55, s55, {XRB}
s_add_u32 s47, s45, 4
v_min_u32 v38, 79, v0
v_lshlrev_b32 v38, 4, v38
v_add_u32 v38, {XRB + 8*XRS}, v38
ds_write_b128 v38, v[112:115]
s_waitcnt vmcnt(0)
s_cmp_ge_u32 s3, 5
s_cbranch_scc1 L_nod
""")
if OPT["dfirst"] == 0:
    for j in range(8):
        A(f"global_load_dwordx4 {vr(80+4*j,4)}, v{34 + j//4}, s[38:39] offset:{1280*(j%4)}{NTW}")
A("L_nod:\nglobal_load_dwordx4 v[8:11], v36, s[42:43] sc1\ns_barrier")
if OPT["dfirst"] == 2:
    A("s_cmp_ge_u32 s3, 5\ns_cbranch_scc1 L_nod0")
    for j in range(8):
        A(f"global_load_dwordx4 {vr(80+4*j,4)}, v{34 + j//4}, s[38:39] offset:{1280*(j%4)}{NTW}")
    A.label("L_nod0")
A("s_cmp_ge_u32 s3, 4\ns_cbranch_scc1 L_nocs")
for ks in range(20):
    for hf in range(2):
        A(f"ds_read_b64_tr_b16 {vr(120+4*ks+2*hf,2)}, v{7 if ks < 10 else 37} offset:{(ks//5 % 2)*20480 + (ks%5)*2048 + 256*hf}")
A.label("L_nocs")
stamp(4)
lS = A.newlabel("msel"); lSo = A.newlabel("mselo")
A(f"""
s_mov_b32 s54, {SPIN_MAX}
s_mov_b32 m0, s55
s_waitcnt vmcnt(0)
{lS}:
v_cmp_ne_u32 vcc, s4, v11
s_cbranch_vccz {lSo}
s_sub_u32 s54, s54, 1
s_cbranch_scc1 {lSo}
global_load_dwordx4 v[8:11], v36, s[42:43] sc1
s_waitcnt vmcnt(0)
s_branch {lS}
{lSo}:
s_cmp_lt_u32 s3, 4
s_cbranch_scc1 L_norow
v_readlane_b32 s52, v8, s45
v_readlane_b32 s53, v8, s47
s_and_b32 s52, s52, 0x7ff
s_and_b32 s53, s53, 0x7ff
s_sub_u32 s52, 2047, s52
s_sub_u32 s53, 2047, s53
s_mul_i32 s52, s52, 1280
s_mul_i32 s53, s53, 1280
s_add_u32 s56, s16, s52
s_addc_u32 s57, s17, 0
s_add_u32 s58, s16, s53
s_addc_u32 s59, s17, 0
global_load_lds_dwordx4 v118, s[56:57]
global_load_lds_dword v4, s[56:57] offset:1024
s_add_u32 m0, m0, {4*XRS}
s_nop 0
global_load_lds_dwordx4 v118, s[58:59]
global_load_lds_dword v4, s[58:59] offset:1024
L_norow:
""")
stamp(5)
for qq in range(8):
    for i in range(4):
        A(f"v_perm_b32 v{224+4*qq+i}, v{80+4*(2*i+1)+qq//2}, v{80+4*(2*i)+qq//2}, {'s60' if qq % 2 == 0 else 's61'}")
A(f"""
s_mov_b32 s60, 0xffffff00
v_and_b32 v33, 0xffff0000, v9
v_lshlrev_b32 v32, 16, v9
v_rcp_f32 v33, v33
v_xor_b32 v32, 0x80000000, v32
v_mul_f32 v30, {NLOG2E:#x}, v33
v_mul_f32 v31, v33, v33
s_waitcnt vmcnt(0) lgkmcnt(0)
s_barrier
""")
stamp(6)
A("s_cmp_ge_u32 s3, 4\ns_cbranch_scc1 L_nored")
mq = LdsQ()
XB = [40, 44, 48, 52, 56, 12, 16, 20]
def xr(ks): A(f"ds_read_b128 {vr(XB[ks % 8],4)}, v220 offset:{64*ks}"); mq.issue(ks)
for ks in range(7): xr(ks)
for ks in range(20):
    mq.wait(ks)
    A(f"v_mfma_f32_16x16x32_bf16 v[60:63], {vr(120+4*ks,4)}, {vr(XB[ks % 8],4)}, {'0' if ks == 0 else 'v[60:63]'}")
    if ks + 7 < 20: xr(ks + 7)
stamp(7)
A(f"""
s_nop 7
v_fmac_f32_dpp v60, v60, v32 row_ror:8 row_mask:0xf bank_mask:0xf
v_fmac_f32_dpp v62, v62, v32 row_ror:8 row_mask:0xf bank_mask:0xf
v_fmac_f32_dpp v61, v61, v32 row_ror:8 row_mask:0xf bank_mask:0xf
v_fmac_f32_dpp v63, v63, v32 row_ror:8 row_mask:0xf bank_mask:0xf
v_permlane32_swap_b32 v60, v62
s_nop 0
v_permlane32_swap_b32 v61, v63
v_mul_f32 v8, v60, v30
v_mul_f32 v9, v61, v30
v_exp_f32 v8, v8
v_exp_f32 v9, v9
v_mul_f32 v60, v60, v62
v_mul_f32 v61, v61, v63
v_add_f32 v8, 1.0, v8
v_add_f32 v9, 1.0, v9
v_rcp_f32 v8, v8
v_rcp_f32 v9, v9
v_mul_f32 v60, v60, v31
v_mul_f32 v61, v61, v31
v_mul_f32 v60, v60, v8
v_mul_f32 v61, v61, v9
s_mov_b64 exec, s[62:63]
v_cvt_pk_bf16_f32 v8, v60, v61
ds_write_b32 v204, v8
s_mov_b64 exec, -1
L_nored:
s_waitcnt lgkmcnt(0)
s_barrier
""")
stamp(8)
if OPT["x7"]: A(f"s_sleep {OPT['x7']}")
A(f"""
s_cmp_ge_u32 s3, 5
s_cbranch_scc1 L_fin
ds_read_b128 v[8:11], v208
ds_read_b128 v[12:15], v207
s_waitcnt lgkmcnt(1)
""")
for qq in range(4): A(f"v_mfma_f32_16x16x32_bf16 {vr(56+4*qq,4)}, {vr(224+4*qq,4)}, v[8:11], 0")
A("s_waitcnt lgkmcnt(0)")
for qq in range(4): A(f"v_mfma_f32_16x16x32_bf16 {vr(56+4*qq,4)}, {vr(240+4*qq,4)}, v[12:15], {vr(56+4*qq,4)}")
A.nop(5)
for r in range(4):
    for qq in range(4): A(f"v_bfi_b32 v{72+4*r+qq}, s60, v{56+4*qq+r}, v{212+qq}")
    A(f"global_store_dwordx4 v{216+r}, {vr(72+4*r,4)}, s[42:43] sc1")
stamp(9)
if OPT["stamps"]:
    A("s_waitcnt vmcnt(0)")
    stamp(10)
finish(11)
A.label("L_selector")
X2 = "".join(f"v_mov_b32 v90, {i*300032}\nglobal_load_dword v91, v90, s[30:31]\ns_waitcnt vmcnt(0)\n" for i in range(OPT["x2"]))
def rank16(key, lst, rk, t):
    prs = ["s[6:7]", "s[10:11]", "s[12:13]", "s[14:15]"]
    for i in range(4): A(f"v_cmp_gt_u32 {prs[i]}, v{lst+i}, v{key}")
    A(f"v_addc_co_u32_e64 v{rk}, vcc, 0, 0, {prs[0]}")
    for i in range(1, 4): A(f"v_addc_co_u32_e64 v{rk}, vcc, v{rk}, 0, {prs[i]}")
    A(f"v_mov_b32 v{t}, v{rk}\ns_nop 1\nv_permlane16_swap_b32 v{rk}, v{t}\nv_add_u32 v{rk}, v{rk}, v{t}")
    A(f"v_mov_b32 v{t}, v{rk}\ns_nop 1\nv_permlane32_swap_b32 v{rk}, v{t}\nv_add_u32 v{rk}, v{rk}, v{t}")
MSDB = 0
KEY = [50, 54, 58, 62]
def g2_loads(base):
    for r in range(4): A(f"global_load_dwordx4 {vr(base+4*r,4)}, v36, s[42:43] offset:{1024*r} sc1")
def g2_bad(base):
    A(f"v_xor_b32 v2, s4, v{base+3}\nv_xor_b32 v3, s4, v{base+7}\nv_xor_b32 v5, s4, v{base+11}\nv_xor_b32 v6, s4, v{base+15}")
    A("v_or3_b32 v2, v2, v3, v5\nv_or_b32 v2, v2, v6\nv_cmp_ne_u32 vcc, 0, v2")
A(f"""
v_and_b32 v116, 15, v1
v_lshrrev_b32 v117, 4, v1
s_lshl_b32 s5, s3, 12
s_add_u32 s5, s5, {G2_OFF}
v_lshl_add_u32 v36, v1, 4, s5
v_lshlrev_b32 v221, 2, v116
v_lshlrev_b32 v222, 4, v117
v_add_u32 v223, {HMAX}, v221
v_add_u32 v224, {HMAX}, v222
v_add_u32 v221, {LIST+DRY}, v221
v_add_u32 v222, {LIST+DRY}, v222
v_lshrrev_b32 v225, 5, v0
v_lshlrev_b32 v225, 2, v225
v_add_u32 v225, {HMAX}, v225
v_mov_b32 v19, {CNT+DRY}
v_lshlrev_b32 v40, 8, v117
v_add_u32 v40, {SEL_OFF}, v40
v_mov_b32 v41, 0
v_mov_b32 v46, s4
v_mov_b32 v47, s4
s_lshl_b32 s5, s3, 10
s_sub_u32 s5, {MSDB + 4*(2047-192)}, s5
v_sub_u32 v37, s5, v4
v_bfrev_b32 v50, v0
v_mov_b32 v54, 0
v_mov_b32 v58, 0
v_mov_b32 v62, 0
s_mov_b32 s59, 0
{'s_branch L_s_top' if OPT['dry'] else ''}
L_s_real:
v_subrev_u32 v221, {DRY}, v221
v_subrev_u32 v222, {DRY}, v222
v_subrev_u32 v19, {DRY}, v19
s_mov_b32 s59, 1
s_mov_b32 s54, {SPIN_MAX}
""")
stamp(4)
if OPT["dbl"]:
    g2_loads(48)
    A("L_s_poll:")
    g2_loads(64)
    A("s_waitcnt vmcnt(4)")
    g2_bad(48)
    A("s_cbranch_vccz L_s_top\ns_sub_u32 s54, s54, 1\ns_cbranch_scc1 L_s_top")
    g2_loads(48)
    A("s_waitcnt vmcnt(4)")
    g2_bad(64)
    A("s_cbranch_vccnz L_s_poll")
    for i in range(0, 16, 2): A(f"v_mov_b32 v{48+i}, v{64+i}")
else:
    A("L_s_poll:")
    g2_loads(48)
    A("s_sub_u32 s54, s54, 1\ns_cbranch_scc1 L_s_top\ns_waitcnt vmcnt(0)")
    g2_bad(48)
    A("s_cbranch_vccnz L_s_poll")
A("L_s_top:")
stamp(5)
A(f"v_max3_u32 v16, v{KEY[0]}, v{KEY[1]}, v{KEY[2]}\nv_max_u32 v16, v16, v{KEY[3]}\ns_nop 1")
for i, mod in enumerate(DPP6[:5]):
    if i: A("s_nop 1")
    A(f"v_max_u32_dpp v16, v16, v16 {mod.replace(' bound_ctrl:0','')}")
A(f"""
s_mov_b32 exec_lo, 0x80000000
s_mov_b32 exec_hi, 0x80000000
ds_write_b32 v225, v16
s_mov_b64 exec, -1
s_waitcnt lgkmcnt(0)
s_barrier
ds_read_b32 v17, v223
ds_read_b128 v[20:23], v224
ds_write2st64_b32 v37, v60, v56 offset0:0 offset1:1
ds_write2st64_b32 v37, v52, v48 offset0:2 offset1:3
s_waitcnt lgkmcnt(2)
""")
rank16(17, 20, 18, 24)
A(f"""
v_cmp_eq_u32 vcc, 7, v18
s_ff1_i32_b64 s5, vcc
v_readlane_b32 s5, v17, s5
s_nop 1
v_cmp_le_u32 s[6:7], s5, v{KEY[0]}
v_cmp_le_u32 s[10:11], s5, v{KEY[1]}
v_cmp_le_u32 s[12:13], s5, v{KEY[2]}
v_cmp_le_u32 s[14:15], s5, v{KEY[3]}
v_addc_co_u32_e64 v21, vcc, 0, 0, s[6:7]
s_or_b64 s[50:51], s[6:7], s[10:11]
v_addc_co_u32_e64 v22, vcc, v21, 0, s[10:11]
s_or_b64 s[52:53], s[12:13], s[14:15]
v_addc_co_u32_e64 v23, vcc, v22, 0, s[12:13]
s_or_b64 exec, s[50:51], s[52:53]
v_addc_co_u32_e64 v24, vcc, v23, 0, s[14:15]
ds_add_rtn_u32 v25, v19, v24
s_waitcnt lgkmcnt(0)
v_lshl_add_u32 v25, v25, 2, v19
v_lshl_add_u32 v21, v21, 2, v25
v_lshl_add_u32 v22, v22, 2, v25
v_lshl_add_u32 v23, v23, 2, v25
s_mov_b64 exec, s[6:7]
ds_write_b32 v25, v{KEY[0]} offset:{LIST-CNT}
s_mov_b64 exec, s[10:11]
ds_write_b32 v21, v{KEY[1]} offset:{LIST-CNT}
s_mov_b64 exec, s[12:13]
ds_write_b32 v22, v{KEY[2]} offset:{LIST-CNT}
s_mov_b64 exec, s[14:15]
ds_write_b32 v23, v{KEY[3]} offset:{LIST-CNT}
s_mov_b64 exec, -1
s_waitcnt lgkmcnt(0)
s_barrier
{'' if OPT['dry'] else 's_cmp_lg_u32 s3, 0'}
{'' if OPT['dry'] else 's_cbranch_scc1 L_fin'}
ds_read_b32 v28, v19
ds_read_b32 v17, v221
ds_read_b128 v[20:23], v222
s_waitcnt lgkmcnt(1)
v_readfirstlane_b32 s51, v28
s_cmp_gt_u32 s51, 16
s_cbranch_scc1 L_rk_many
L_rk_done:
v_and_b32 v14, 0x7ff, v17
v_lshlrev_b32 v14, 2, v14
ds_read_b32 v45, v14 offset:{MSDB}
s_waitcnt lgkmcnt(1)
""")
stamp(6)
rank16(17, 20, 18, 24)
A(f"""
v_cmp_gt_u32 vcc, 8, v18
v_lshl_add_u32 v18, v18, 4, v40
v_mov_b32 v44, v17
s_cmp_eq_u32 s59, 0
s_cbranch_scc1 L_s_real
s_cmp_lg_u32 s3, 0
s_cbranch_scc1 L_fin
{X2}
s_mov_b64 exec, vcc
s_waitcnt lgkmcnt(0)
global_store_dwordx4 v18, v[44:47], s[42:43] sc1
global_store_dwordx4 v18, v[44:47], s[42:43] offset:128 sc1
s_mov_b64 exec, 1
global_store_dword v41, v46, s[42:43] sc1
""")
stamp(7)
A("s_branch L_fin")
A(f"""
L_rk_many:
v_lshl_add_u32 v26, v1, 2, v19
v_mov_b32 v27, v1
s_lshl_b32 s5, s3, 6
s_add_u32 s58, s5, {SELW}
s_mov_b32 s50, 0
L_rk_outer:
ds_read_b32 v29, v26 offset:{LIST-CNT}
v_mov_b32 v30, 0
v_mov_b32 v31, v19
s_mov_b32 s52, 0
L_rk_inner:
ds_read_b128 v[8:11], v31 offset:{LIST-CNT}
v_add_u32 v31, 16, v31
s_add_u32 s52, s52, 4
s_waitcnt lgkmcnt(0)
""")
prs = ["s[6:7]", "s[10:11]", "s[12:13]", "s[14:15]"]
for i in range(4): A(f"v_cmp_gt_u32 {prs[i]}, v{8+i}, v29")
for i in range(4): A(f"v_addc_co_u32_e64 v30, vcc, v30, 0, {prs[i]}")
A(f"""
s_cmp_lt_u32 s52, s51
s_cbranch_scc1 L_rk_inner
v_cmp_gt_u32 s[6:7], 8, v30
v_cmp_gt_u32 s[10:11], s51, v27
v_lshl_add_u32 v30, v30, 2, s58
s_and_b64 exec, s[6:7], s[10:11]
ds_write_b32 v30, v29
s_mov_b64 exec, -1
v_add_u32 v26, 256, v26
v_add_u32 v27, 64, v27
s_add_u32 s50, s50, 64
s_cmp_lt_u32 s50, s51
s_cbranch_scc1 L_rk_outer
v_lshl_add_u32 v26, v116, 2, s58
v_lshl_add_u32 v27, v117, 4, s58
ds_read_b32 v17, v26
ds_read_b128 v[20:23], v27
s_waitcnt lgkmcnt(0)
s_branch L_rk_done
""")
A.label("L_fin")
finish(11)
A.label("L_end")
A("s_endpgm")
A.label("L_code_end")
A(".fill 64, 4, 0xBF800000")

tail = f"""
.section .rodata,"a"
.p2align 6
.amdhsa_kernel {NAME}_kernel
  .amdhsa_next_free_vgpr 256
  .amdhsa_next_free_sgpr 96
  .amdhsa_accum_offset 256
  .amdhsa_group_segment_fixed_size 0
  .amdhsa_kernarg_size 120
  .amdhsa_user_sgpr_count 2
  .amdhsa_user_sgpr_kernarg_segment_ptr 1
  .amdhsa_system_sgpr_workgroup_id_x 1
.end_amdhsa_kernel
"""
probs = check_hazards(A.lines)
for p in probs: print("HAZARD", p, file=sys.stderr)
open(sys.argv[1], "w").write(head + A.text() + tail)
print("written", sys.argv[1], len(A.lines), "lines", file=sys.stderr)
```

```python
import sys
from asmlib import *
NAME = "recurrent_scan__ssm_conv_s4d__moe_arch_mod__prompt"
OPT = dict(stamps=0, ntw=0, ntp=0, ntd=0, ntx=0, ntr=0, ga=7, fine=0, sfirst=0, grp=1, bal=0, xb=4, gbn=0, gan=4, pfbar=1, gul=1, gb1=0, xall=0, inj=0, g1pre=0, warm=0, allb=0, nfirst=0, ea=0, gb2=0, dbl=0, ord=0, nts=0, hint=0, rep8=1, dry=0, nopatch=0, nostore=0, hprio=0, slp=0, x1=0, x2=0, x3=0, x4=0, x5=0, x6=0, x7=0, x8=0, x9=0, yd=6, chk=0, g1l=0, mprio=0, pre=3, eg=0, selp=1, rev=1, p1f=4, dfirst=2, dpf=1, pl=0, rt=1, prog0="apBbn0NE1MkG", prog1="apBbn0NE1MkG", prog2="apBbn0NS1MefG", prog3="apBbn0NS1MefG")
for a in sys.argv[2:]:
    k, v = a.split("="); OPT[k] = v if k.startswith("prog") else int(v)

G1_OFF, G2_OFF, SEL_OFF, PART_OFF, PART_STRIDE = 0x1000, 0x5000, 0xD000, 0x10000, 7168
HINT_OFF = 0xE000
STAMP_OFF = 0x200000
TROW = 2064
TBX, TBY = 0, 24 * TROW
UB = TBY + 32 * TROW
USTR = 4608
BOXB = UB + 4 * USTR
KB = BOXB + 1024
PD_O, T2_O, T3_O = 0, 5600, 6112
KSTR = 6432
FLG = KB + 4 * KSTR
MARK = FLG + 224
LDS_SIZE = MARK + 2048
UBY = lambda e: 80 * (e >> 3) + 8 * (e & 7)
RED = 81920
XRB, XRS = RED + 32768, 1296
HB = XRB + 9 * XRS
HMAX = HB + 512
PRM = UB + 512
CNT, ZBLK, SELW, LIST = KB, KB + 64, KB + 128, KB + 1024
SPIN_MAX = 1 << 20
DRY = 12288

LOG2E = 0x3FB8AA3B
NLOG2E = LOG2E ^ 0x80000000
INV2PI = 0x3E22F983
A = Asm()
NTW = " nt" if OPT["ntw"] else ""
NTP = ["", " nt", " sc1", " sc0 sc1"][OPT["ntp"]]
NTD = " nt" if OPT["ntd"] else ""
NTX = " nt" if OPT["ntx"] else ""
NTR = " nt" if OPT["ntr"] else ""
NTS = ["", " nt", " sc0", " sc0 nt"][OPT["nts"]]
def fstamp(g, i):
    if OPT["fine"] == g: A(f"s_memtime s[{64+2*i}:{65+2*i}]")
def FS(g, i):
    return f"s_memtime s[{64+2*i}:{65+2*i}]" if OPT["fine"] == g else ""
def stamp(i):
    if OPT["fine"] and i not in (0, 13): return
    if OPT["stamps"] == 3: A(f"s_memtime s[{64+2*i}:{65+2*i}]")
    elif OPT["stamps"]: A(f"s_memrealtime s[{64+2*i}:{65+2*i}]")
def cstamp(i):
    if OPT["stamps"]: A(f"s_memtime s[{64+2*i}:{65+2*i}]")
def finish(n, dbgmap=None):
    if OPT["stamps"] == 2:
        if n == 13:
            l = A.newlabel("nd")
            stamp(13)
            A("s_load_dwordx2 s[6:7], s[0:1], 104")
            A(f"s_cmp_ge_u32 s2, 8\ns_cbranch_scc1 {l}\ns_cmp_lg_u32 s3, 7\ns_cbranch_scc1 {l}")
            A("s_waitcnt lgkmcnt(0)\ns_mov_b64 exec, 1\ns_lshl_b32 s5, s2, 3\nv_mov_b32 v2, s5")
            A("s_sub_u32 s5, s68, s64\ns_lshl_b32 s5, s5, 16\ns_and_b32 s10, s64, 0xffff\ns_or_b32 s5, s5, s10\nv_mov_b32 v4, s5")
            A("s_sub_u32 s5, s90, s64\ns_lshl_b32 s5, s5, 16\ns_sub_u32 s10, s72, s64\ns_or_b32 s5, s5, s10\nv_mov_b32 v5, s5")
            A("global_store_dwordx2 v2, v[4:5], s[6:7]")
            A.label(l)
    elif OPT["stamps"]:
        stamp(13); cstamp(15)
        A("s_waitcnt lgkmcnt(0)")
        A("s_mov_b64 exec, 1")
        A(f"s_lshl_b32 s5, s2, 3\ns_add_u32 s5, s5, s3\ns_lshl_b32 s5, s5, 6\ns_add_u32 s5, s5, {STAMP_OFF}")
        A("v_mov_b32 v2, s5")
        for i in list(range(n)) + [13, 14, 15]:
            A(f"v_mov_b32 v3, s{64+2*i}")
            A(f"global_store_dword v2, v3, s[42:43] offset:{4*i}")
    A("s_endpgm")

class LdsQ:
    def __init__(self): self.q = []; self.done = 0
    def issue(self, tag): self.q.append(tag)
    def wait(self, tag):
        idx = max(i for i, t in enumerate(self.q) if t == tag)
        if idx < self.done: return
        n = len(self.q) - 1 - idx
        A(f"s_waitcnt lgkmcnt({min(n,14)})")
        self.done = idx + 1 if n <= 14 else len(self.q) - 14
    def all(self):
        A("s_waitcnt lgkmcnt(0)"); self.done = len(self.q)
    def known_all(self): self.done = len(self.q)

def cmul(dst, p, w, t):
    A(f"v_pk_mul_f32 {vr(t,2)}, {vr(p,2)}, {vr(w,2)} op_sel:[0,0] op_sel_hi:[1,0]")
    A(f"v_pk_fma_f32 {vr(dst,2)}, {vr(p,2)}, {vr(w,2)}, {vr(t,2)} op_sel:[1,1,0] op_sel_hi:[0,1,1] neg_lo:[1,0,0]")
LANE63 = "s_mov_b32 exec_lo, 0\ns_mov_b32 exec_hi, 0x80000000"
DPP6 = ["row_shr:1 row_mask:0xf bank_mask:0xf bound_ctrl:0", "row_shr:2 row_mask:0xf bank_mask:0xf bound_ctrl:0",
        "row_shr:4 row_mask:0xf bank_mask:0xf bound_ctrl:0", "row_shr:8 row_mask:0xf bank_mask:0xf bound_ctrl:0",
        "row_bcast:15 row_mask:0xa bank_mask:0xf", "row_bcast:31 row_mask:0xc bank_mask:0xf"]

KD = lambda m: 8 + 4 * m
KS = 76
T2 = lambda d, hh: 80 + 8 * (d - 2) + 4 * hh
T3 = lambda d: 104 + 4 * (d - 4)
BOX = lambda i: 120 + 4 * i
ACC = lambda j: 140 + 4 * j
BR = lambda s: 172 + 4 * s
W1R = 204
BA = lambda i: 208 + 4 * i
SG = lambda i: 232 + 4 * i
vUB, vYW, vFL, vONE, vT0, vT1, vT2 = 244, 245, 246, 247, 248, 249, 250

hdr = open("stub_ref.txt").read().split("; @launch")[0]
head = hdr + f"""; @launch grid=(256,1,1) block=(512,1,1) lds={LDS_SIZE}
.amdgcn_target "amdgcn-amd-amdhsa--gfx950"
.text
.globl {NAME}_kernel
.p2align 8
.type {NAME}_kernel,@function
{NAME}_kernel:
"""

A("s_cmp_ge_u32 s2, 256\ns_cbranch_scc1 L_end")
if OPT["x5"]: A("s_lshr_b32 s5, s2, 3\ns_and_b32 s5, s5, 7\ns_xor_b32 s2, s2, s5")
A("s_load_dwordx16 s[16:31], s[0:1], 0")
A("s_load_dwordx8 s[32:39], s[0:1], 64")
A("s_load_dwordx2 s[40:41], s[0:1], 96")
A("s_load_dwordx2 s[42:43], s[0:1], 112")
stamp(0); cstamp(14)
EG = OPT["eg"]
EG1 = f"s_lshl_b32 s6, s8, 2\ns_add_u32 s6, s6, s49\ns_mul_i32 s6, s6, 1280\ns_add_u32 s6, s6, s62\nv_mul_u32_u24 v22, {128*1280}, v1\nv_add_u32 v22, s6, v22" if EG else ""
EG2 = f"s_bfm_b64 exec, {2*EG}, 0\nglobal_load_dword v251, v22, s[16:17]\ns_mov_b64 exec, -1" if EG else ""
A(f"""
s_getpc_b64 s[6:7]
L_pc:
s_lshr_b32 s8, s2, 3
v_lshrrev_b32 v2, 6, v0
s_lshl_b32 s5, s8, 10
v_lshl_add_u32 v5, v0, 1, s5
v_readfirstlane_b32 s3, v2
v_min_u32 v5, L_code_end-L_pc, v5
v_and_b32 v5, -4, v5
global_load_dword v252, v5, s[6:7]
v_and_b32 v1, 63, v0
v_lshlrev_b32 v3, 4, v1
v_lshlrev_b32 v4, 2, v1
v_mov_b32 v32, 0
s_and_b32 s45, s3, 3
s_and_b32 s9, s2, 7
s_lshl_b32 s10, s2, 3
s_add_u32 s10, s10, s3
s_mul_i32 s11, s10, 1280
s_lshr_b32 s46, s3, 2
s_mul_i32 s12, s9, 20
s_add_u32 s44, s12, s8
s_lshr_b32 s49, s3, 1
s_lshr_b32 s5, s12, 4
s_and_b32 s6, s3, 1
s_add_u32 s5, s5, s6
s_lshl_b32 s62, s5, 7
s_lshl_b32 s6, s8, 2
s_add_u32 s6, s6, s49
s_mul_i32 s6, s6, {20480 if OPT['xall'] else 10240}
s_add_u32 s5, s62, s6
v_mul_u32_u24 v93, 1280, v1
v_add_u32 v22, s5, v93
s_lshl_b32 s5, s49, 3
s_add_u32 s5, s5, s9
s_min_u32 s5, s5, 26
s_lshl_b32 s5, s5, 7
s_mul_i32 s6, s8, {20*3456}
s_add_u32 s5, s5, s6
v_mul_u32_u24 v23, 3456, v1
v_add_u32 v23, s5, v23
s_lshl_b32 s5, s45, 8
s_lshl_b32 s6, s46, 7
s_add_u32 s5, s5, s6
s_lshl_b32 s6, s44, 10
s_add_u32 s5, s5, s6
v_lshl_add_u32 v6, v1, 1, s5
s_lshr_b32 s5, s5, 8
s_lshl_b32 s5, s5, 1
v_mov_b32 v7, s5
{EG1}
s_waitcnt lgkmcnt(0)
{EG2}
s_add_u32 s6, s16, s11
s_addc_u32 s7, s17, 0
global_load_dwordx4 v[8:11], v3, s[6:7]{NTR}
global_load_dword v12, v4, s[6:7] offset:1024{NTR}
global_load_dwordx4 v[16:19], v3, s[32:33]
global_load_dword v20, v4, s[32:33] offset:1024
global_load_dword v29, v32, s[42:43]
s_bitcmp1_b32 s3, 0
s_cselect_b32 s56, s36, s34
s_cselect_b32 s57, s37, s35
""")
stamp(1)
if OPT["x1"]: A(f"s_sleep {OPT['x1']}")
def early_pf():
    A(f"""
s_bfm_b64 exec, {(16 if OPT['xall'] else 8) - 2*EG}, {2*EG}
global_load_dword v251, v22, s[16:17]{NTX}
s_mov_b64 exec, -1
""")
    if not OPT["gul"]: gu_pf()
def gu_pf():
    A(f"""
s_mov_b64 exec, 0xfffff
global_load_dword v251, v23, s[56:57]{NTP}
s_mov_b64 exec, -1
""")
A(f"""
s_barrier
s_cmp_ge_u32 s2, 160
s_cbranch_scc1 L_nopar
global_load_ushort v40, v6, s[18:19]{NTW}
global_load_ushort v45, v7, s[26:27]
global_load_ushort v41, v6, s[20:21]{NTW}
global_load_ushort v42, v6, s[22:23]{NTW}
global_load_ushort v43, v6, s[24:25]{NTW}
L_nopar:
""")
if OPT["pfbar"]: A("s_barrier")
early_pf()
A("""
v_mov_b32 v33, 0
v_mov_b32 v34, 0
v_mov_b32 v35, 0
s_cbranch_scc1 L_notconv
""")
def row_loads():
    A(f"""
s_add_u32 s6, s16, s11
s_addc_u32 s7, s17, 0
global_load_dwordx4 v[8:11], v3, s[6:7]{NTR}
global_load_dword v12, v4, s[6:7] offset:1024{NTR}
global_load_dwordx4 v[16:19], v3, s[32:33]
global_load_dword v20, v4, s[32:33] offset:1024
""")
G1ADDR = (f"s_and_b32 s5, s10, 0x700\ns_lshl_b32 s5, s5, 3\ns_and_b32 s6, s10, 2\ns_lshl_b32 s6, s6, 9\ns_add_u32 s5, s5, s6\ns_and_b32 s6, s10, 0xfc\ns_lshl_b32 s6, s6, 2\ns_add_u32 s5, s5, s6\n"
          f"s_and_b32 s6, s10, 1\ns_lshl_b32 s6, s6, 3\ns_add_u32 s5, s5, s6\ns_add_u32 s5, s5, {G1_OFF}\nv_mov_b32 v34, s5") if OPT["g1l"] else f"v_add_u32 v34, {G1_OFF}, v33"
G1S = 1024 if OPT["g1l"] else 16
def stats_pre():
    A("s_mov_b32 s14, 0x9E3779B1\ns_mov_b32 s47, 0x3f803f80\ns_lshl_b32 s11, s10, 3\ns_sub_u32 s13, 2047, s10")
    A(f"v_mov_b32 v33, s11\n{G1ADDR}\nv_lshlrev_b32 v35, 1, v33\nv_add_u32 v35, {G2_OFF}, v35\nv_mov_b32 v36, 0x3acccccd")
def make_tag():
    pass
def stats(younger, cnt=False):
    A(vmw(younger - 1) if cnt else f"s_waitcnt vmcnt({younger-1})")
    stamp(2)
    A("s_setprio 2")
    for i in range(5):
        c = (lambda r: "0" if i == 0 else r)
        A(f"v_dot2_f32_bf16 v24, v{8+i}, s47, {c('v24')}")
        A(f"v_dot2_f32_bf16 v25, v{8+i}, v{8+i}, {c('v25')}")
        A(f"v_dot2_f32_bf16 v26, v{8+i}, v{16+i}, {c('v26')}")
        A(f"v_dot2_f32_bf16 v27, v{16+i}, s47, {c('v27')}")
    A(f"""
s_nop 0
v_permlane32_swap_b32 v24, v25
s_nop 0
v_permlane32_swap_b32 v26, v27
v_add_f32 v24, v24, v25
v_add_f32 v26, v26, v27
s_nop 0
v_mul_lo_u32 v29, v29, s14
v_permlane16_swap_b32 v24, v26
v_add_f32 v24, v24, v26
v_add_u32 v29, 0x7F4A7C15, v29
v_mov_b32 v31, v29
v_add_f32_dpp v24, v24, v24 row_shr:1 row_mask:0xf bank_mask:0xf bound_ctrl:0
v_readfirstlane_b32 s4, v29
s_nop 0
v_add_f32_dpp v24, v24, v24 row_shr:2 row_mask:0xf bank_mask:0xf bound_ctrl:0
s_nop 1
v_add_f32_dpp v24, v24, v24 row_shr:4 row_mask:0xf bank_mask:0xf bound_ctrl:0
s_nop 1
v_add_f32_dpp v24, v24, v24 row_shr:8 row_mask:0xf bank_mask:0xf bound_ctrl:0
s_mov_b64 exec, 1
v_readlane_b32 s6, v24, 15
v_readlane_b32 s7, v24, 47
v_readlane_b32 s14, v24, 31
v_readlane_b32 s15, v24, 63
v_mul_f32 v24, s6, v36
v_mul_f32 v25, s7, v36
v_mov_b32 v26, s14
v_fma_f32 v25, -v24, v24, v25
v_max_f32 v25, 0, v25
v_cvt_pk_bf16_f32 v28, v24, v25
v_and_b32 v25, 0xffff0000, v28
v_lshlrev_b32 v24, 16, v28
v_add_f32 v25, 0x3727c5ac, v25
v_cvt_pk_bf16_f32 v25, v25, v25
v_fma_f32 v26, -v24, s15, v26
v_and_b32 v25, 0xffff0000, v25
v_sqrt_f32 v25, v25
""")
    A("s_nop 0")
    A("""
v_cvt_pk_bf16_f32 v28, v24, v25
v_and_b32 v25, 0xffff0000, v28
v_rcp_f32 v25, v25
global_store_dwordx2 v34, v[28:29], s[42:43] sc1
v_mul_f32 v26, v26, v25
v_cvt_pk_bf16_f32 v26, v26, v26
v_ashrrev_i32 v27, 31, v26
v_or_b32 v27, 0x80000000, v27
v_xor_b32 v26, v26, v27
v_and_b32 v26, 0xffff0000, v26
v_or_b32 v30, s13, v26
global_store_dwordx4 v35, v[28:31], s[42:43] sc1
""")
    if cnt: A(f"ds_add_u32 v{vFL}, v{vONE} offset:32")
    A("s_mov_b64 exec, -1\ns_setprio 0")
    stamp(3)
EG3 = (f"s_sub_u32 s5, s3, 4\ns_cmp_ge_u32 s5, {EG}\ns_cbranch_scc1 L_neg\ns_mov_b32 s48, 1\ns_mov_b32 s63, 0\n"
       + "".join(f"global_load_dwordx2 v[{96+2*r}:{97+2*r}], v94, s[16:17] offset:{1280*r}\n" for r in range(4)) + "L_neg:") if EG else ""
def vmw(n):
    if not EG: return f"s_waitcnt vmcnt({n})"
    l1 = A.newlabel("w"); l2 = A.newlabel("w")
    return f"s_cmp_eq_u32 s48, 0\ns_cbranch_scc1 {l1}\ns_waitcnt vmcnt({n+4})\ns_branch {l2}\n{l1}:\ns_waitcnt vmcnt({n})\n{l2}:"
A(f"""
s_and_b32 s6, s8, 15
s_lshl_b32 s6, s6, 1
s_and_b32 s7, s49, 1
s_add_u32 s6, s6, s7
s_add_u32 s6, s6, 32
s_mul_i32 s6, s6, 40960
s_add_u32 s5, s62, s6
v_add_u32 v93, s5, v93
v_lshlrev_b32 v7, 4, v0
v_add_u32 v7, {KB}, v7
ds_write_b128 v7, v[32:35]
ds_write_b128 v7, v[32:35] offset:8192
ds_write_b128 v7, v[32:35] offset:16384
v_min_u32 v7, {LDS_SIZE-16-24576}, v7
ds_write_b128 v7, v[32:35] offset:24576
s_mul_i32 s53, s45, {USTR}
s_add_u32 s53, s53, {UB}
v_lshl_add_u32 v7, v1, 3, s53
ds_write_b64 v7, v[32:33]
s_add_u32 s5, s45, 1
s_sub_u32 s13, s5, 32
s_lshl_b32 s5, s5, 1
v_add_u32 v36, s13, v1
v_add_u32 v37, 1, v36
v_mov_b32 v38, 0x3f800000
v_mov_b32 v39, 0x3f80
v_cmp_ge_u32 s[6:7], s5, v36
v_cmp_ge_u32 s[14:15], s5, v37
s_lshl_b32 s13, s45, 8
s_add_u32 s13, s13, {BOXB}
v_cndmask_b32 v38, 0, v38, s[6:7]
v_cndmask_b32 v39, 0, v39, s[14:15]
v_add_u32 v7, s13, v4
v_or_b32 v38, v38, v39
ds_write_b32 v7, v38
v_and_b32 v2, 15, v1
v_lshrrev_b32 v37, 4, v1
v_lshlrev_b32 v37, 3, v37
v_sub_u32 v37, v2, v37
v_lshlrev_b32 v37, 2, v37
v_add_u32 v37, {BOXB+96}, v37
s_mul_i32 s5, s45, {256*1280}
s_lshl_b32 s6, s44, 3
s_add_u32 s5, s5, s6
v_mul_u32_u24 v94, 5120, v1
v_add_u32 v94, s5, v94
{'s_lshl_b32 s55, s45, 1' if OPT['rev'] else 's_mov_b32 s55, 3'}
s_sub_u32 s55, 7, s55
s_mul_i32 s5, s55, {256*1280}
v_add_u32 v95, s5, v94
s_lshl_b32 s5, s45, 9
s_lshl_b32 s6, s46, 8
s_add_u32 s50, s5, s6
s_add_u32 s51, s50, {TBY}
s_mov_b32 m0, s51
v_mov_b32 v84, 0x3f80
v_mov_b32 v44, {LOG2E:#x}
v_mov_b32 v{vFL}, {FLG}
v_mov_b32 v{vONE}, 1
s_lshr_b32 s63, s3, 2
""")
stats_pre()
A(f"""
s_mov_b32 s48, 0
{EG3}
s_lshl_b32 s5, s44, 3
s_waitcnt lgkmcnt(0)
s_barrier
s_load_dwordx2 s[60:61], s[28:29], s5
""")
if OPT["gul"] == 1: gu_pf()
fstamp(1, 1)
MK3 = 224
for dst, arr, offs in [(BOX(0), 0, 19), (BOX(1), 1, 15), (BOX(2), 0, 11), (BOX(3), 2, 15), (BOX(4), 3, 15), (KS, 0, 20), (MK3, 0, 22)]:
    o = arr * 64 + offs
    A(f"ds_read2_b32 {vr(dst,2)}, v37 offset0:{o} offset1:{o-2}")
    A(f"ds_read2_b32 {vr(dst+2,2)}, v37 offset0:{o-4} offset1:{o-6}")
def setup():
    A(f"""
{vmw(4 - (OPT['gul'] == 2))}
v_lshlrev_b32 v40, 16, v40
v_lshlrev_b32 v45, 16, v45
v_mul_f32 v40, v44, v40
v_mul_f32 v44, v45, v44
v_exp_f32 v40, v40
v_exp_f32 v44, v44
v_lshlrev_b32 v41, 16, v41
v_lshlrev_b32 v42, 16, v42
v_cvt_pk_bf16_f32 v40, v44, v40
v_lshlrev_b32 v43, 16, v43
v_lshlrev_b32 v44, 16, v40
v_and_b32 v40, 0xffff0000, v40
v_mul_f32 v41, v41, v44
v_mul_f32 v40, v40, v44
v_add_f32 v44, v44, v44
v_mul_f32 v40, {NLOG2E:#x}, v40
v_mul_f32 v41, {INV2PI:#x}, v41
v_mul_f32 v48, v42, v44
v_mul_f32 v49, v43, v44
v_mul_f32 v56, 0x41000000, v40
v_mul_f32 v58, 0x41000000, v41
v_mul_f32 v57, 0x43800000, v40
v_mul_f32 v59, 0x43800000, v41
v_fract_f32 v58, v58
v_fract_f32 v60, v41
v_fract_f32 v59, v59
v_exp_f32 v56, v56
v_cos_f32 v52, v58
v_sin_f32 v53, v58
v_exp_f32 v61, v40
v_cos_f32 v50, v60
v_sin_f32 v51, v60
v_exp_f32 v57, v57
v_cos_f32 v54, v59
v_sin_f32 v55, v59
v_mul_f32 v52, v52, v56
v_mul_f32_e64 v53, -v53, v56
v_mul_f32 v50, v50, v61
v_mul_f32 v51, v51, v61
v_mul_f32 v54, v54, v57
v_mul_f32 v55, v55, v57
""")
stats(8 - (OPT["gul"] >= 2), cnt=True); fstamp(1, 2)
if OPT["gul"] == 3: gu_pf()
if OPT["hprio"]: A("s_cmp_lt_u32 s3, 4\ns_cbranch_scc1 L_hp\ns_setprio 1\nL_hp:")
setup()
fstamp(1, 3)
def gather(t, lo=0, hi=4):
    for r in range(lo, hi):
        A(f"global_load_dwordx2 v[{96+8*t+2*r}:{97+8*t+2*r}], v{94+t}, s[16:17] offset:{1280*r}")
def gather_at(pos):
    if OPT["ga"] == pos:
        l = A.newlabel("ng")
        A(f"s_cmp_lt_u32 s3, 4\ns_cbranch_scc1 {l}")
        gather(0, 0, OPT["gan"])
        A.label(l)
    if OPT["xb"] == pos:
        l = A.newlabel("nx")
        A(f"s_cmp_ge_u32 s3, 4\ns_cbranch_scc1 {l}")
        A(f"s_mov_b32 exec_hi, 0\nglobal_load_dword v251, v93, s[16:17]{NTX}\ns_mov_b64 exec, -1")
        A.label(l)
gather_at(0)
pend = []
GRP = OPT["grp"]
tt = [0]
def emit_row(reg, rows):
    t = 84 + (tt[0] % (2 * GRP)); tt[0] += 1
    if reg is not None: A(f"v_cvt_pk_bf16_f32 v{t}, v{reg}, v{reg+1}")
    for r in rows: pend.append(f"ds_write_addtid_b32 v{t} offset:{r*TROW}")
    if tt[0] % GRP == 0: flush_rows()
def flush_rows():
    for p in pend: A(p)
    pend.clear()
emit_row(None, [0]); emit_row(52, [1])
cur = 52
CHK = [{5: 0, 9: 0, 13: 0, 17: 0, 22: 0, 29: 1}, {5: 0, 12: 0, 20: 1}, {5: 0, 10: 0, 15: 1}, {8: 0, 16: 1}][OPT["chk"]]
for c in range(2, 32):
    dst = 64 + 2 * (c % 2)
    if c + 3 in CHK and not CHK[c + 3]: A(f"ds_read_b32 v{vT2}, v{vFL} offset:32")
    if c in CHK:
        l = A.newlabel("gc")
        A(f"s_cmp_eq_u32 s63, 0\ns_cbranch_scc1 {l}")
        if not CHK[c]:
            A(f"s_waitcnt lgkmcnt(3)\nv_readfirstlane_b32 s5, v{vT2}\ns_cmp_lt_u32 s5, 8\ns_cbranch_scc1 {l}")
        A("s_mov_b32 s63, 0")
        fstamp(7, 1)
        gather(0, 0, OPT["gan"])
        fstamp(7, 2)
        A.label(l)
    cmul(dst, cur, 52, dst); emit_row(dst, [c]); cur = dst
    if c == 15: gather_at(3)
flush_rows()
if OPT["x3"]: A("s_cmp_ge_u32 s3, 2\ns_cbranch_scc1 L_x3\ns_lshl_b32 s5, s3, 21\nv_mov_b32 v91, s5\ns_mov_b64 exec, 1\nglobal_load_dword v251, v91, s[40:41]\ns_mov_b64 exec, -1\nL_x3:")
if OPT["x4"]: A(f"s_sleep {OPT['x4']}")
fstamp(1, 4)
A("s_mov_b32 m0, s50")
gather_at(1)
if OPT["gbn"]:
    A("s_cmp_lt_u32 s3, 4\ns_cbranch_scc1 L_ngb")
    gather(1, 0, OPT["gbn"])
    A.label("L_ngb")
cmul(56, 50, 50, 56)
emit_row(48, [0])
cur = 48
rows0 = {1: [1], 2: [2], 3: [3], 4: [4, 8], 5: [5], 6: [6], 7: [7], 8: [12]}
for p in range(1, 9):
    dst = 64 + 2 * (p % 2)
    cmul(dst, cur, 50, dst); emit_row(dst, rows0[p]); cur = dst
for dst, src, w, rows in [(68, 48, 54, [9]), (70, 68, 56, [10]), (68, 70, 56, [11, 13]), (70, 68, 56, [14]), (72, 70, 56, [15]),
                          (70, 68, 54, [16]), (74, 72, 54, [17]), (68, 70, 54, [20]), (72, 74, 54, [21]),
                          (74, 72, 54, [18]), (72, 74, 54, [19]), (74, 72, 54, [22]), (72, 74, 54, [23])]:
    cmul(dst, src, w, dst); emit_row(dst, rows)
flush_rows()
fstamp(1, 5)
gather_at(4)
A("s_cmp_ge_u32 s3, 4\ns_cbranch_scc1 L_helper")

q = LdsQ()
A(f"""
v_and_b32 v2, 31, v1
v_lshrrev_b32 v3, 5, v1
v_mul_u32_u24 v5, {TROW}, v2
v_subrev_u32 v6, {16*TROW}, v5
v_cmp_le_u32 vcc, 24, v2
s_lshl_b32 s5, s45, 9
v_lshl_add_u32 v7, v3, 4, s5
v_cndmask_b32 v6, v5, v6, vcc
v_add_u32 v5, v5, v7
v_add_u32 v6, v6, v7
v_add_u32 v5, {TBY}, v5
s_waitcnt lgkmcnt(0)
""")
NB = 6
def kg_issue(s):
    b = 156 + 8 * (s % NB)
    A(f"ds_read_b128 {vr(b,4)}, v6 offset:{32*s}"); q.issue(("ka", s))
    A(f"ds_read_b128 {vr(b+4,4)}, v5 offset:{32*s}"); q.issue(("kb", s))
filler = f"""
s_lshl_b32 s6, s45, 4
s_lshr_b64 s[60:61], s[60:61], s6
s_lshl_b32 s60, s60, 16
s_mul_i32 s52, s45, {KSTR}
s_add_u32 s52, s52, {KB}
v_mul_u32_u24 v208, 80, v2
v_lshl_add_u32 v208, v3, 5, v208
v_add_u32 v208, s52, v208
v_add_u32 v207, 2560, v208
v_lshl_add_u32 v206, v3, 4, v208
v_add_u32 v205, 2560, v206
v_lshlrev_b32 v209, 2, v2
v_lshl_add_u32 v209, v3, 7, v209
v_add_u32 v209, s52, v209
v_lshlrev_b32 v210, 1, v2
v_lshl_add_u32 v210, v3, 7, v210
v_add_u32 v210, s52, v210
v_mov_b32 v211, s52
v_mov_b32 v45, s60
v_cmp_eq_u32 vcc, 0, v1
v_and_b32 v232, 15, v1
v_lshrrev_b32 v233, 4, v1
v_cndmask_b32 v45, 0, v45, vcc
v_lshlrev_b32 v234, 3, v233
v_sub_u32 v234, v232, v234
v_add_u32 v240, 25, v234
v_add_u32 v234, 29, v234
v_lshrrev_b32 v241, 3, v234
v_lshl_add_u32 v234, v234, 3, s52
v_lshl_add_u32 v234, v241, 4, v234
v_lshrrev_b32 v241, 3, v240
v_lshl_add_u32 v240, v240, 3, s52
v_lshl_add_u32 v240, v241, 4, v240
v_lshlrev_b32 v235, 2, v233
v_sub_u32 v235, v232, v235
v_add_u32 v235, 12, v235
v_lshl_add_u32 v236, v235, 2, s52
v_lshl_add_u32 v235, v235, 3, s52
v_add_u32 v236, {T3_O}, v236
v_lshlrev_b32 v{vUB}, 5, v232
v_lshl_add_u32 v{vUB}, v233, 4, v{vUB}
v_add_u32 v{vUB}, s53, v{vUB}
v_lshrrev_b32 v{vT0}, 1, v232
v_add_u32 v{vT0}, v{vT0}, v233
v_and_b32 v{vT0}, 3, v{vT0}
v_and_b32 v{vT1}, 7, v232
v_lshlrev_b32 v{vT1}, 6, v{vT1}
v_lshl_add_u32 v{vT1}, v{vT0}, 4, v{vT1}
v_lshrrev_b32 v{vT0}, 3, v232
v_mul_u32_u24 v{vT0}, {TROW}, v{vT0}
v_add3_u32 v{vYW}, v{vT0}, v{vT1}, s5
""".strip().split("\n")
for i in range(4): filler.append(f"v_and_b32 v{KS+i}, v{KS+i}, v{BOX(0)+i}")
for r in [KS + i for i in range(4)] + [MK3 + i for i in range(4)]:
    filler.append(f"v_pk_lshlrev_b16 v{r}, 2, v{r} op_sel_hi:[0,1]")
    filler.append(f"v_pk_ashrrev_i16 v{r}, 15, v{r} op_sel_hi:[0,1]")
filler += [f"s_lshl_b32 s5, s45, 2", f"v_add_u32 v{vT1}, s5, v{vFL}"]
filler += f"""s_mul_i32 s5, s44, {PART_STRIDE}
s_lshl_b32 s6, s45, 5
s_add_u32 s5, s5, s6
s_add_u32 s5, s5, {PART_OFF}
v_lshlrev_b32 v2, 7, v2
v_lshl_add_u32 v2, v3, 4, v2
v_add_u32 v2, s5, v2
v_add_u32 v3, 4096, v2
s_and_b32 s18, s4, 0xff
s_bfe_u32 s19, s4, 0x80008
s_bfe_u32 s20, s4, 0x80010
s_lshr_b32 s21, s4, 24
s_mov_b32 s56, 0x3fffff
s_mov_b32 s57, 0x3fffff""".split("\n")
for f in filler: A(f)
A("s_barrier")
stamp(4); fstamp(1, 6); fstamp(2, 1)
if OPT["mprio"]: A(f"s_setprio {OPT['mprio']}")
for s in range(NB): kg_issue(s)
for s in range(16):
    q.wait(("kb", s))
    b = 156 + 8 * (s % NB)
    A(f"v_mfma_f32_32x32x16_bf16 v[140:155], {vr(b,4)}, {vr(b+4,4)}, {'0' if s == 0 else 'v[140:155]'}")
    if s + NB < 16: kg_issue(s + NB)
A(f"ds_read_b32 v{vT2}, v{vFL}"); q.issue(("flag", 0))
A.nop(11)
fstamp(2, 2)
K = lambda i: f"v{140+i}"
A(f"""
v_add_f32 {K(0)}, {K(0)}, v45
v_cvt_pk_bf16_f32 v215, {K(2)}, {K(1)}
v_cvt_pk_bf16_f32 v212, {K(3)}, {K(2)}
v_cvt_pk_bf16_f32 v214, {K(4)}, {K(3)}
v_cvt_pk_bf16_f32 v213, {K(1)}, {K(0)}
v_cvt_pk_bf16_f32 v222, {K(0)}, 0
v_cvt_pk_bf16_f32 v217, {K(5)}, {K(5)}
v_cvt_pk_bf16_f32 v219, {K(6)}, {K(5)}
v_cvt_pk_bf16_f32 v216, {K(7)}, {K(6)}
v_cvt_pk_bf16_f32 v218, {K(7)}, {K(7)}
v_cvt_pk_bf16_f32 v220, {K(8)}, {K(9)}
v_cvt_pk_bf16_f32 v221, {K(10)}, {K(11)}
v_cvt_pk_bf16_f32 v223, {K(9)}, {K(9)}
s_waitcnt lgkmcnt(0)
v_readfirstlane_b32 s5, v{vT2}
ds_write_b128 v208, v[212:215] offset:160
ds_write2_b32 v206, v213, v215 offset0:32 offset1:34
ds_write2_b32 v208, v212, v214 offset0:45 offset1:47
ds_write_b128 v207, v[216:219] offset:160
ds_write2_b32 v205, v217, v219 offset0:32 offset1:34
ds_write2_b32 v207, v216, v218 offset0:45 offset1:47
s_mov_b64 exec, 1
ds_write2_b32 v211, v222, v222 offset0:{UBY(13)//4} offset1:{UBY(15)//4+1}
s_mov_b64 exec, -1
""")
q.known_all()
for _ in range(7): q.issue("kw")
fstamp(2, 3)
kq = []
for m in [x for i in range(8) for x in (i, 8 + i)]:
    kq.append((("K", KD(m)), f"ds_read_b64 {vr(KD(m),2)}, v234 offset:{320*m}"))
    kq.append((("K", KD(m)), f"ds_read_b64 {vr(KD(m)+2,2)}, v240 offset:{320*m}"))
kq.append(("tw", f"ds_write_b32 v209, v220 offset:{T2_O+128}"))
kq.append(("tw", f"ds_write_b16 v210, v221 offset:{T3_O+64}"))
kq.append(("tw", f"ds_write_b16_d16_hi v210, v221 offset:{T3_O+64+64}"))
kq.append((("K", KD(16)), f"ds_read_b64 {vr(KD(16),2)}, v234 offset:{320*16}"))
kq.append((("K", KD(16)), f"ds_read_b64 {vr(KD(16)+2,2)}, v240 offset:{320*16}"))
for d in (2, 3, 4):
    for hh in (0, 1):
        o = 16 * d - 28 - 2 * hh
        kq.append((("K", T2(d, hh)), f"ds_read_b64 {vr(T2(d,hh),2)}, v235 offset:{T2_O+8*o}"))
        kq.append((("K", T2(d, hh)), f"ds_read_b64 {vr(T2(d,hh)+2,2)}, v235 offset:{T2_O+8*(o-1)}"))
for d in (4, 5, 6, 7):
    o = 16 * d - 60
    kq.append((("K", T3(d)), f"ds_read2_b32 {vr(T3(d),2)}, v236 offset0:{o} offset1:{o-1}"))
    kq.append((("K", T3(d)), f"ds_read2_b32 {vr(T3(d)+2,2)}, v236 offset0:{o-2} offset1:{o-3}"))
def kq_issue(n):
    for _ in range(n):
        if kq:
            t, x = kq.pop(0); A(x); q.issue(t)
kq_issue(4)
stamp(5); fstamp(2, 4)
def wait_flag(addr, off, val, nm, tmp):
    l = A.newlabel(nm); lo = A.newlabel(nm + "o")
    A(f"s_mov_b32 s54, {SPIN_MAX}")
    A.label(l)
    A(f"ds_read_b32 v{tmp}, v{addr} offset:{off}")
    A("s_waitcnt lgkmcnt(0)")
    A(f"v_readfirstlane_b32 s5, v{tmp}")
    A(f"s_sub_u32 s54, s54, 1\ns_cbranch_scc1 {lo}")
    A(f"s_cmp_lt_u32 s5, {val}\ns_cbranch_scc1 {l}")
    A.label(lo)
A("s_cmp_lg_u32 s5, 0\ns_cbranch_scc1 L_fast01")
ACC = lambda j: 140 + 4 * (j % 4)
SG2 = lambda b, hh: [156, 164, 232][b % 3] + 4 * hh
SG3 = lambda b: [240, 252, 204, 224][b]
WR = [196, 200]
NBR = 6
BA = lambda i: 208 + 4 * i if i < 4 else [None] * 4 and (228 if i == 4 else 4)
loads = []
for j in range(8):
    loads.append(("B", 8 * j))
    if j >= 2: loads += [("W0", j - 2), ("W1", j - 2)]
    for i in range(1, 8): loads.append(("B", 8 * j - i))
slot = {}
ring = 0
for k in loads:
    if k[0] == "B": slot[k] = BR(ring % NBR); ring += 1
    else: slot[k] = WR[int(k[0][1])]
touched = set()
prog = []
def MF(d, a, b, c, need=None):
    prog.append(dict(text=f"v_mfma_f32_16x16x32_bf16 {vr(d,4)}, {vr(a,4)}, {vr(b,4)}, {c}", need=need, valu=[], ds=[]))
def mf(j, a, b, need=None):
    c = vr(ACC(j), 4) if j in touched else "0"; touched.add(j)
    MF(ACC(j), a, b, c, need)
ydone = {}
for j in range(8):
    k0 = ("B", 8 * j)
    mf(j, KD(0), slot[k0], k0)
    if j + 1 <= 7: mf(j + 1, KD(8), slot[k0])
    cv = []; old = []; new = []
    if j >= 2:
        b = j - 2; w0, w1 = WR
        for i, bx in ((0, 0), (1, 1), (2, 2)) + (((4, 3),) if b <= 3 else ()):
            MF(BA(i), w0, BOX(bx), "0", ("W0", b))
        mf(j, KD(16), w0)
        for i, bx in ((3, 1),) + (((5, 4),) if b <= 3 else ()):
            MF(BA(i), w1, BOX(bx), "0", ("W1", b))
        for r in range(4): cv.append(f"v_cvt_pk_bf16_f32 v{SG2(b,r//2)+2*(r%2)}, v{BA(0)+r}, v{BA(1)+r}")
        for r in range(4): cv.append(f"v_cvt_pk_bf16_f32 v{SG2(b,r//2)+2*(r%2)+1}, v{BA(2)+r}, v{BA(3)+r}")
        if b <= 3:
            for r in range(4): cv.append(f"v_cvt_pk_bf16_f32 v{SG3(b)+r}, v{BA(4)+r}, v{BA(5)+r}")
        for d in (4, 3):
            if j - d >= 0: old += [(j, SG2(j - d, 0), T2(d, 0)), (j, SG2(j - d, 1), T2(d, 1))]
        for d in (7, 6, 5, 4):
            if j - d >= 0: old.append((j, SG3(j - d), T3(d)))
        new = [(j, SG2(b, 0), T2(2, 0)), (j, SG2(b, 1), T2(2, 1))]
        if b <= 3: mf(j + 2, KS, w0)
    for f in old: mf(*f)
    start = len(prog)
    for i in range(1, 8):
        k = ("B", 8 * j - i)
        mf(j, KD(i), slot[k], k)
        if i == 7:
            for f in new: mf(*f)
            ydone[j] = len(prog) - 1
        if j + 1 <= 7: mf(j + 1, KD(8 + i), slot[k])
    if cv:
        lastbox = max(i for i, e in enumerate(prog[:start]) if e["text"].rstrip().endswith(", 0") and f"v[{BA(3)}:" in e["text"] or f"v[{BA(5)}:" in e["text"].split(",")[0])
        pos = lastbox + 4
        per = 2 if j == 7 else 1
        while cv:
            for _ in range(per):
                if cv: prog[pos]["valu"].append(cv.pop(0))
            pos += 1
AHEAD = 4
first_use = {}
for i, e in enumerate(prog):
    if e["need"] and e["need"] not in first_use: first_use[e["need"]] = i
def ld_text(k):
    off = {"B": 480 + 64 * k[1], "W0": 480 + 512 * k[1], "W1": 464 + 512 * k[1]}[k[0]]
    return f"ds_read_b128 {vr(slot[k],4)}, v{vUB} offset:{off}"
last_use = {}
for i, e in enumerate(prog):
    for k in loads:
        pass
import re as _re
def uses(e, reg): return f"v[{reg}:{reg+3}]" in e["text"].split(",", 1)[1]
issue_at = {}
for n, k in enumerate(loads):
    if n <= AHEAD: continue
    p = first_use[loads[n - AHEAD - 1]]
    prev = [m for m in range(n) if slot[loads[m]] == slot[k]]
    if prev:
        lu = max(i for i in range(first_use[loads[prev[-1]]], first_use[k]) if uses(prog[i], slot[k]))
        p = max(p, lu)
    if n > AHEAD + 1: p = max(p, issue_at[loads[n - 1]])
    issue_at[k] = p
    prog[p]["ds"].append(("ld", k))
YD = OPT["yd"]
for j in range(7):
    prog[ydone[j] + YD]["ds"].append(("y", j)); prog[ydone[j] + YD + 1]["ds"].append(("yf", j))
for j in range(1, 8): prog[max(0, issue_at[("B", 8 * j)] - 6)]["ds"].insert(0, ("flag", j))
def ywrite(j):
    A(f"ds_write_b128 v{vYW}, {vr(ACC(j),4)} offset:{2*TROW*j}"); q.issue("yw")
def yflag(j):
    A(f"ds_write_b32 v{vT1}, v{vONE} offset:{48+16*j}"); q.issue("yf")
fix = ["v_readlane_b32 s6, v218, 63", "v_readlane_b32 s7, v223, 63"] + [f"v_and_b32 v{KS+i}, s7, v{KS+i}" for i in range(4)]
for n, f in enumerate(fix): prog[18 + n + (n >= 2)]["valu"].append(f)
for n in range(4): prog[26 + n]["valu"].append(f"v_and_or_b32 v{KD(16)+n}, v{MK3+n}, s6, v{KD(16)+n}")
prog[26]["pre"] = ("K", KD(16))
prog[40]["vm"] = True
def part_loads():
    A("global_load_dwordx4 v[56:59], v2, s[42:43] sc1\ns_mov_b64 exec, s[56:57]\nglobal_load_dwordx4 v[60:63], v3, s[42:43] sc1\ns_mov_b64 exec, -1")
if OPT["pl"] > 0:
    p = len(prog) - OPT["pl"]
    assert p - 2 >= first_use[("B", 56)]
    for k in range(4): prog[p - 2 + k // 2]["valu"].append(f"v_mov_b32 v{60+k}, s{18+k}")
    prog[p]["pl"] = True
slow = []
def emit(lo, hi, sfx):
    if lo == 0:
        stamp(6)
        for n in range(AHEAD + 1):
            A(ld_text(loads[n])); q.issue(loads[n])
            if 0 < n < OPT["pre"]: kq_issue(4)
    for i in range(lo, hi):
        e = prog[i]
        if e["need"] and e["need"][0] == "B" and e["need"][1] % 8 == 0 and first_use[e["need"]] == i : fstamp(3, 1 + e["need"][1] // 8)
        if e["need"]: q.wait(e["need"])
        for kr in _re.findall(r"v\[(\d+):", e["text"])[1:3]:
            if ("K", int(kr)) in q.q: q.wait(("K", int(kr)))
            assert all(t != ("K", int(kr)) for t, _ in kq), e["text"]
        if e.get("pre"): q.wait(e["pre"])
        if e.get("vm"): A("s_waitcnt vmcnt(0)")
        chk = [d for d in e["ds"] if d[0] == "ld" and d[1][0] == "B" and d[1][1] % 8 == 0 and d[1][1] > 0]
        if chk:
            q.wait(("flag", chk[0][1][1] // 8)); A(f"v_readfirstlane_b32 s5, v{vT2}")
        A(e["text"])
        if e.get("pl"): part_loads()
        for d in e["ds"]:
            if d[0] == "flag":
                A(f"ds_read_b32 v{vT2}, v{vFL} offset:{4*d[1]}"); q.issue(d)
            elif d[0] == "ld":
                if d in chk:
                    jj = d[1][1] // 8
                    A(f"s_cmp_eq_u32 s5, 0\ns_cbranch_scc1 L_uslow{jj}{sfx}\nL_uok{jj}{sfx}:")
                    slow.append((jj, sfx))
                A(ld_text(d[1])); q.issue(d[1])
            elif d[0] == "y": ywrite(d[1])
            else: yflag(d[1])
        kq_issue(2 if i < 16 else (1 if e["ds"] else 2))
        for v in e["valu"]: A(v)
import copy
JOIN = 32
kq_save, q_save = list(kq), copy.deepcopy(q)
kq_issue(len(kq))
wait_flag(vFL, 0, 1, "u0", vT2); q.known_all()
emit(0, JOIN, "a")
A.label("L_join")
if OPT["x8"]: A(f"s_sleep {OPT['x8']}")
emit(JOIN, len(prog), "")
A.nop(8); ywrite(7); yflag(7)
stamp(7); fstamp(3, 9)
if OPT["nopatch"]: A("s_endpgm")
XST = 16 * TROW
if OPT["pl"] == 0:
    for k in range(4): A(f"v_mov_b32 v{60+k}, s{18+k}")
    part_loads()
A("v_lshrrev_b32 v9, 5, v1")
lw = A.newlabel("st"); lwo = A.newlabel("sto")
A(f"""
s_lshl_b32 s5, s45, 3
v_lshl_add_u32 v24, v9, 2, s5
v_add_u32 v24, v24, v{vFL}
v_bfe_u32 v25, v1, 4, 1
s_mov_b32 s54, {SPIN_MAX}
{lw}:
ds_read_b128 v[28:31], v{vFL} offset:176
ds_read_b128 v[32:35], v{vFL} offset:{48+16*7}
ds_read_b32 v26, v24 offset:192
s_sub_u32 s54, s54, 1
s_cbranch_scc1 {lwo}
s_waitcnt lgkmcnt(0)
v_and_b32 v28, v28, v29
v_and_b32 v30, v30, v31
v_and_b32 v32, v32, v33
v_and_b32 v34, v34, v35
v_and_b32 v28, v28, v30
v_and_b32 v32, v32, v34
v_and_b32 v28, v28, v32
v_cmp_eq_u32 vcc, 0, v28
s_cbranch_vccnz {lw}
{lwo}:
v_and_b32 v27, 0x7ff, v26
v_sub_u32 v27, 2047, v27
v_mul_u32_u24 v28, {2*USTR}, v25
v_lshl_add_u32 v28, v27, 1, v28
v_add_u32 v28, {UB+512}, v28
v_lshlrev_b32 v29, 3, v27
v_lshl_add_u32 v29, v25, 2, v29
v_lshrrev_b32 v30, 7, v27
v_mul_u32_u24 v30, {TROW}, v30
v_bfe_u32 v31, v27, 4, 3
v_lshl_add_u32 v30, v31, 6, v30
v_lshrrev_b32 v31, 2, v27
v_lshrrev_b32 v32, 5, v27
v_add_u32 v31, v31, v32
v_and_b32 v31, 3, v31
v_lshl_add_u32 v30, v31, 4, v30
v_and_b32 v31, 3, v27
v_lshl_add_u32 v30, v31, 2, v30
v_lshl_add_u32 v30, v25, 10, v30
ds_read_u16 v36, v28
ds_read_u16 v37, v28 offset:{USTR}
ds_read_b32 v38, v29 offset:{XST}
ds_read_b32 v40, v30
ds_read_b32 v41, v30 offset:512
s_lshl_b32 s5, s44, 3
v_mul_u32_u24 v42, 1280, v27
v_lshl_add_u32 v42, v25, 2, v42
v_add_u32 v42, s5, v42
v_not_b32 v31, v26
v_ashrrev_i32 v31, 31, v31
v_or_b32 v31, 0x80000000, v31
v_xor_b32 v31, v26, v31
v_and_b32 v31, 0xffff0000, v31
v_mul_f32 v31, {NLOG2E:#x}, v31
v_exp_f32 v31, v31
s_waitcnt lgkmcnt(0)
v_add_f32 v31, 1.0, v31
v_rcp_f32 v43, v31
v_lshlrev_b32 v36, 16, v36
v_lshlrev_b32 v37, 16, v37
v_and_b32 v39, 0xffff0000, v38
v_lshlrev_b32 v38, 16, v38
s_mov_b32 s54, {SPIN_MAX}
""")
lP = A.newlabel("par"); lPo = A.newlabel("paro")
if OPT["pl"] < 0:
    for k in range(4): A(f"v_mov_b32 v{60+k}, s{18+k}")
    part_loads()
A.label(lP)
A("s_waitcnt vmcnt(0)")
for k in range(8): A(f"v_xor_b32 v{44+k}, s{18+k%4}, v{56+k}")
A(f"""
v_or3_b32 v52, v44, v45, v46
v_or3_b32 v53, v47, v48, v49
v_or3_b32 v52, v52, v50, v51
v_or_b32 v52, v52, v53
v_and_b32 v52, 0xff, v52
v_cmp_ne_u32 vcc, 0, v52
s_cbranch_vccz {lPo}
s_sub_u32 s54, s54, 1
s_cbranch_scc1 {lPo}
""")
if OPT["rt"]:
    A("s_and_b64 s[58:59], vcc, s[56:57]\ns_mov_b64 exec, vcc\nglobal_load_dwordx4 v[56:59], v2, s[42:43] sc1\ns_or_b64 exec, s[58:59], 1\nglobal_load_dwordx4 v[60:63], v3, s[42:43] sc1\ns_mov_b64 exec, -1")
else: part_loads()
A(f"s_branch {lP}")
A.label(lPo)
stamp(8)
for k in range(4): A(f"v_add_f32 v{44+k}, v{44+k}, v{48+k}")
A("s_nop 0\nv_permlane16_swap_b32 v44, v46\nv_permlane16_swap_b32 v45, v47\nv_add_f32 v44, v44, v46\nv_add_f32 v45, v45, v47")
for sh in (1, 2, 4, 8):
    A(f"s_nop 0\nv_add_f32_dpp v44, v44, v44 row_shr:{sh} row_mask:0xf bank_mask:0xf bound_ctrl:0\nv_add_f32_dpp v45, v45, v45 row_shr:{sh} row_mask:0xf bank_mask:0xf bound_ctrl:0")
A(f"""
v_fma_f32 v44, v44, v43, v36
v_fma_f32 v45, v45, v43, v37
v_mul_f32 v46, {NLOG2E:#x}, v44
v_mul_f32 v47, {NLOG2E:#x}, v45
v_exp_f32 v46, v46
v_exp_f32 v47, v47
v_mul_f32 v44, v44, v40
v_mul_f32 v45, v45, v41
v_add_f32 v46, 1.0, v46
v_add_f32 v47, 1.0, v47
v_rcp_f32 v46, v46
v_rcp_f32 v47, v47
s_mov_b32 exec_lo, 0x80008000
s_mov_b32 exec_hi, 0x80008000
v_fma_f32 v44, v44, v46, v38
v_fma_f32 v45, v45, v47, v39
v_cvt_pk_bf16_f32 v44, v44, v45
global_store_dword v42, v44, s[40:41]
""")
stamp(9)
if OPT["stamps"]:
    A("s_waitcnt vmcnt(0)")
    stamp(10)
finish(11)
A.label("L_fast01")
kq[:] = kq_save; q.q, q.done = q_save.q, q_save.done
emit(0, JOIN, "b")
assert not kq
q.wait(("K", T3(7)))
A("s_branch L_join")
for jj, sfx in slow:
    A.label(f"L_uslow{jj}{sfx}")
    wait_flag(vFL, 4 * jj, 1, "us", vT2)
    A(f"s_branch L_uok{jj}{sfx}")
A.label("L_helper")
A("s_setprio 0")
XF = [112, 144]; GG = [128, 160]; XR = [96, 104]; ST = [8, 16]; UU = [24, 32]
A(f"""
s_lshl_b32 s5, s45, 11
s_add_u32 s5, s5, {G1_OFF}
v_lshl_add_u32 v92, v1, {4 if OPT['g1l'] else 5}, s5
s_lshl_b32 s5, s55, 11
v_add_u32 v93, s5, v92
""")
G1A = f"global_load_dwordx4 v[8:11], v92, s[42:43] sc1\nglobal_load_dwordx4 v[12:15], v92, s[42:43] offset:{G1S} sc1"
if OPT["gb1"] or OPT["g1pre"]: A(G1A)
A("s_waitcnt lgkmcnt(0)\ns_barrier")
stamp(4); fstamp(6, 1); fstamp(7, 3)
gather(0, OPT["gan"], 4)
if OPT["gb1"]:
    assert OPT["gan"] == 4 and OPT["gbn"] == 0
    gather(1, 0, OPT["gb1"])
elif OPT["allb"]:
    gather(1, OPT["gbn"], 4)
    A(G1A)
    A("global_load_dwordx4 v[16:19], v93, s[42:43] sc1\nglobal_load_dwordx4 v[20:23], v93, s[42:43] offset:16 sc1")
elif not OPT["g1pre"]: A(G1A)
A(f"""
s_lshl_b32 s5, s45, 9
s_add_u32 s5, s5, {UB+512}
v_lshl_add_u32 v91, v1, 3, s5
v_lshrrev_b32 v2, 3, v1
v_add_u32 v2, v2, v1
v_and_b32 v2, 3, v2
v_and_b32 v3, 28, v1
v_add_u32 v2, v2, v3
v_lshlrev_b32 v2, 4, v2
v_lshrrev_b32 v3, 5, v1
v_mul_u32_u24 v3, {TROW}, v3
s_mul_i32 s5, s45, {2*TROW}
v_add3_u32 v90, v2, v3, s5
s_lshl_b32 s5, s45, 2
v_add_u32 v89, s5, v{vFL}
s_lshl_b32 s5, s45, 4
v_add_u32 v87, s5, v{vFL}
s_lshl_b32 s5, s45, 11
s_add_u32 s5, s5, {16*TROW}
v_lshl_add_u32 v86, v1, 5, s5
s_lshl_b32 s5, s55, 9
v_add_u32 v232, s5, v91
s_mul_i32 s5, s55, {2*TROW}
v_add_u32 v233, s5, v90
s_lshl_b32 s5, s55, 2
v_add_u32 v234, s5, v89
s_lshl_b32 s5, s55, 4
v_add_u32 v235, s5, v87
s_lshl_b32 s5, s55, 11
v_add_u32 v236, s5, v86
v_and_b32 v88, 7, v1
v_lshl_add_u32 v237, v88, 2, v{vFL}
v_lshlrev_b32 v88, 4, v88
v_add_u32 v88, {SEL_OFF}, v88
s_lshl_b32 s5, s9, {7 if OPT['rep8'] else 31}
s_and_b32 s5, s5, 0x380
v_add_u32 v88, s5, v88
s_lshl_b32 s5, s45, 8
s_add_u32 s5, s5, {MARK}
v_add_u32 v238, s5, v4
s_lshl_b32 s5, s55, 8
v_add_u32 v239, s5, v238
""")
def unpack_x(t):
    for r in range(4):
        for hw in range(2):
            src = XR[t] + 2 * r + hw
            A(f"v_lshlrev_b32 v{XF[t]+4*(2*hw)+r}, 16, v{src}")
            A(f"v_and_b32 v{XF[t]+4*(2*hw+1)+r}, 0xffff0000, v{src}")
def poll4(s, av, first_wait):
    l = A.newlabel("g"); lo = A.newlabel("go")
    A(f"s_mov_b32 s54, {SPIN_MAX}")
    A(f"s_waitcnt vmcnt({first_wait})")
    A.label(l)
    A(f"""
v_xor_b32 v2, s4, v{s+1}
v_xor_b32 v3, s4, v{s+3}
v_xor_b32 v5, s4, v{s+5}
v_xor_b32 v6, s4, v{s+7}
v_or3_b32 v2, v2, v3, v5
v_or_b32 v2, v2, v6
v_cmp_ne_u32 vcc, 0, v2
s_cbranch_vccz {lo}
s_sub_u32 s54, s54, 1
s_cbranch_scc1 {lo}
global_load_dwordx4 {vr(s,4)}, v{av}, s[42:43] sc1
global_load_dwordx4 {vr(s+4,4)}, v{av}, s[42:43] offset:{G1S} sc1
s_waitcnt vmcnt(0)
s_branch {l}
""")
    A.label(lo)
def normalize(t):
    s = ST[t]
    for r in range(4): A(f"v_and_b32 v{180+r}, 0xffff0000, v{s+2*r}")
    for r in range(4): A(f"v_rcp_f32 v{180+r}, v{180+r}")
    for r in range(4): A(f"v_lshlrev_b32 v{176+r}, 16, v{s+2*r}")
    for r in range(4): A(f"v_mul_f32 v{176+r}, v{176+r}, v{180+r}")
    for ch in range(4):
        N = GG[t] + 4 * ch
        for r in range(4): A(f"v_fma_f32 v{N+r}, v{XF[t]+4*ch+r}, v{180+r}, -v{176+r}")
        for p in range(2): A(f"v_cvt_pk_bf16_f32 v{UU[t]+2*ch+p}, v{N+2*p}, v{N+2*p+1}")
    for ch in range(4): A(f"ds_write_b64 v{[91,232][t]}, {vr(UU[t]+2*ch,2)} offset:{USTR*ch}")
    A(f"ds_write_b32 v{[89,234][t]}, v{vONE}")
def pre(t, rows):
    for r in rows:
        N = lambda ch: GG[t] + 4 * ch + r
        E = 188
        for i in range(4): A(f"v_mul_f32 v{E+i}, {NLOG2E:#x}, v{N(i)}")
        for i in range(4): A(f"v_exp_f32 v{E+i}, v{E+i}")
        for i in range(4): A(f"v_add_f32 v{E+i}, 1.0, v{E+i}")
        for i in range(4): A(f"v_rcp_f32 v{E+i}, v{E+i}")
        for i in range(4): A(f"v_mul_f32 v{N(i)}, v{N(i)}, v{E+i}")
def precompute(t): pre(t, range(4))
def yflag_read(t): A(f"ds_read_b128 v[192:195], v{[87,235][t]} offset:48")
def yflag_test():
    A("v_and_b32 v192, v192, v193\nv_and_b32 v194, v194, v195\nv_and_b32 v192, v192, v194\ns_nop 0\nv_readfirstlane_b32 s5, v192\ns_cmp_lg_u32 s5, 0")
def ywait(t):
    l = A.newlabel("y"); lo = A.newlabel("yo")
    A(f"s_mov_b32 s54, {SPIN_MAX}")
    A.label(l)
    yflag_read(t)
    A(f"s_sub_u32 s54, s54, 1\ns_cbranch_scc1 {lo}\ns_waitcnt lgkmcnt(0)")
    yflag_test()
    if OPT["slp"]: A(f"s_cbranch_scc1 {lo}\ns_sleep {OPT['slp']}\ns_branch {l}")
    else: A(f"s_cbranch_scc0 {l}")
    A.label(lo)
def yread(t):
    for ch in range(4): A(f"ds_read_b128 {vr(200+4*ch,4)}, v{[90,233][t]} offset:{512*ch}")
    A("s_waitcnt lgkmcnt(0)")
MSK = [18, 26]
def epi(t, rows, masked):
    for r in rows:
        for ch in range(4): A(f"v_fma_f32 v{200+4*ch+r}, v{200+4*ch+r}, v{GG[t]+4*ch+r}, v{XF[t]+4*ch+r}")
        A(f"v_cvt_pk_bf16_f32 v{216+2*r+8*t}, v{200+r}, v{204+r}")
        A(f"v_cvt_pk_bf16_f32 v{217+2*r+8*t}, v{208+r}, v{212+r}")
        if masked: A(f"s_mov_b64 exec, s[{MSK[t]+2*r}:{MSK[t]+2*r+1}]")
        if not OPT["nostore"]: A(f"global_store_dwordx2 v{94+t}, {vr(216+2*r+8*t,2)}, s[40:41] offset:{1280*r}{NTS}")
        if masked: A("s_mov_b64 exec, -1")
XST = 16 * TROW
def stash(t):
    A(f"ds_write_b128 v{[86,236][t]}, {vr(XR[t],4)}\nds_write_b128 v{[86,236][t]}, {vr(XR[t]+4,4)} offset:16")
def run_step(pr, pos, vq):
    def after(tag): return len(vq) - 1 - max(i for i, t in enumerate(vq) if t == tag)
    for c in pr[pos]:
        if c == "a": A(f"s_waitcnt vmcnt({after('xa')})"); unpack_x(0)
        elif c == "w": A(f"s_waitcnt vmcnt({after('xa')})")
        elif c == "u": unpack_x(0)
        elif c == "p":
            poll4(ST[0], 92, after("ga")); stamp(5)
            if OPT["x9"]: A(f"s_sleep {OPT['x9']}")
        elif c == "B": gather(1); vq += ["xb"] * 4
        elif c == "b":
            A(f"global_load_dwordx4 v[16:19], v93, s[42:43] sc1\nglobal_load_dwordx4 v[20:23], v93, s[42:43] offset:{G1S} sc1"); vq += ["gb"] * 2
        elif c == "n": normalize(0); stamp(6)
        elif c == "0": precompute(0)
        elif c == "h": pre(0, [0, 1])
        elif c == "H": pre(0, [2, 3])
        elif c == "1": precompute(1)
        elif c == "N":
            A(f"s_waitcnt vmcnt({after('xb')})"); unpack_x(1); poll4(ST[1], 93, after("gb")); normalize(1); stamp(7)
        elif c == "S": A(SELLD); vq.append("sel")
        elif c in "Ee":
            ywait(0)
            if "sel" not in vq: A(SELLD); vq.append("sel")
            yread(0); epi(0, range(4), c == "e"); vq += ["sa"] * 4; stamp(8)
        elif c == "M":
            lS = A.newlabel("sel"); lSo = A.newlabel("selo")
            both = "e" in pr
            A(f"""
s_mov_b32 s54, {SPIN_MAX}
s_waitcnt vmcnt({after('sel')})
{lS}:
v_cmp_ne_u32 vcc, s4, v43
s_cbranch_vccz {lSo}
s_sub_u32 s54, s54, 1
s_cbranch_scc1 {lSo}
{SELLD}
s_waitcnt vmcnt(0)
s_branch {lS}
{lSo}:
v_and_b32 v44, 0x7ff, v40
v_sub_u32 v44, {MARK+2047}, v44
ds_write_b8 v44, v{vONE}
ds_write_b32 v237, v40 offset:192
{'ds_read_b32 v45, v238' if both else ''}
ds_read_b32 v46, v239
s_waitcnt lgkmcnt(0)
""")
            for t in ((0, 1) if both else (1,)):
                for r in range(4): A(f"v_cmp_eq_u32_sdwa s[{MSK[t]+2*r}:{MSK[t]+2*r+1}], v{45+t}, 0 src0_sel:BYTE_{r} src1_sel:DWORD")
        elif c == "k": A(f"s_waitcnt vmcnt({after('sa')})\nds_write_b32 v89, v{vONE} offset:176")
        elif c == "f": A(f"ds_write_b32 v89, v{vONE} offset:176")
        elif c == "G":
            ywait(1); yread(1); epi(1, range(4), True); vq += ["sb"] * 4; stamp(9)
        done = pr[:pr.index(c) + 1]
        if c in "EeN" and ("E" in done or "e" in done) and "N" in done: stash(0); stash(1)
SELLD = "global_load_dwordx4 v[40:43], v88, s[42:43] sc1"
progs = [OPT[f"prog{h}"] for h in range(4)]
def emit_tree(hs, pos, vq):
    while True:
        nxt = {}
        for h in hs: nxt.setdefault(progs[h][pos:pos+1] + ("e" if progs[h][pos:pos+1] == "M" and "e" in progs[h] else ""), []).append(h)
        if len(nxt) == 1:
            c = list(nxt)[0]
            if c == "": A("s_branch L_progend"); return
            run_step(progs[hs[0]], pos, vq); pos += 1
            continue
        groups = list(nxt.values()); labels = [A.newlabel("pg") for _ in groups]
        for g, l in list(zip(groups, labels))[1:]:
            for h in g: A(f"s_cmp_eq_u32 s45, {h}\ns_cbranch_scc1 {l}")
        for i, (g, l) in enumerate(zip(groups, labels)):
            if i: A.label(l)
            emit_tree(g, pos, list(vq))
        return
emit_tree([0, 1, 2, 3], 0, ["xa"] * 4 + ["ga"] * 2)
A.label("L_progend")
if OPT["stamps"]:
    A("s_waitcnt vmcnt(0)")
    stamp(10)
finish(11)

A.label("L_notconv")
PAIRTAB = 0x77277170 if OPT["bal"] else 0x77777210
def pair_of(dst, ps):
    A(f"""
s_lshl_b32 s6, s9, 2
s_lshr_b32 s6, {PAIRTAB:#x}, s6
s_and_b32 s6, s6, 7
s_cmp_ge_u32 {ps}, 3
s_cselect_b32 s6, s6, s9
s_lshl_b32 {dst}, {ps}, 3
s_add_u32 {dst}, {dst}, s6
""")
A("s_sub_u32 s62, s8, 20")
A(f"""
v_lshlrev_b32 v7, 4, v0
v_add_u32 v7, {KB}, v7
ds_write_b128 v7, v[32:35]
ds_write_b128 v7, v[32:35] offset:8192
s_lshr_b32 s63, s62, 1
""")
if OPT["gul"] == 1: gu_pf()
GU12 = OPT["gul"] == 2
if GU12:
    A(f"""
s_lshl_b32 s5, s49, 3
s_add_u32 s5, s5, s9
s_min_u32 s5, s5, 26
s_lshl_b32 s5, s5, 7
s_mul_i32 s6, s62, 54
v_add_u32 v23, s6, v1
v_min_u32 v23, 639, v23
v_mul_u32_u24 v23, 3456, v23
v_add_u32 v23, s5, v23
s_mov_b64 s[52:53], s[56:57]
""")
A("s_mov_b64 s[52:53], s[56:57]")
pair_of("s48", "s63")
A(f"""
s_lshl_b32 s48, s48, 1
s_and_b32 s5, s62, 1
s_add_u32 s48, s48, s5
s_mul_i32 s5, s49, {160*3456}
s_lshl_b32 s6, s48, 6
s_add_u32 s5, s5, s6
s_add_u32 s56, s56, s5
s_addc_u32 s57, s57, 0
s_mul_i32 s50, s3, 10240
s_mov_b32 m0, s50
v_lshrrev_b32 v5, 2, v1
v_mul_u32_u24 v5, 3456, v5
v_and_b32 v6, 3, v1
v_lshl_add_u32 v5, v6, 4, v5
""")
stats_pre()
stats(3 - (OPT["gul"] >= 2))
if OPT["gul"] == 3: A(f"s_mov_b64 exec, 0xfffff\nglobal_load_dword v251, v23, s[52:53]{NTP}\ns_mov_b64 exec, -1")
A("s_waitcnt lgkmcnt(0)")
A(f"""
s_barrier
{"s_cmp_eq_u32 s2, 255" if GU12 else ""}
{"s_cbranch_scc1 L_selector" if GU12 else ""}
{"s_mov_b32 exec_hi, 0x3fffff" if GU12 else ""}
{("global_load_dword v251, v23, s[52:53]" + NTW) if GU12 else ""}
s_mov_b64 exec, -1
s_cmp_lt_u32 s48, 54
s_cbranch_scc1 L_moe
s_cmp_lt_u32 s62, 8
s_cbranch_scc1 L_fin
s_sub_u32 s63, s62, 8
""")
A("s_cmp_eq_u32 s2, 255\ns_cbranch_scc1 L_selector")
pair_of("s5", "s63")
A(f"""
s_cmp_ge_u32 s5, {27 if OPT['dpf'] else 0}
s_cbranch_scc1 L_fin
s_mul_i32 s5, s5, {64*1280}
s_add_u32 s5, s5, s50
v_lshl_add_u32 v5, v1, 7, s5
global_load_dword v251, v5, s[38:39]{NTP}
v_add_u32 v5, 8192, v5
s_mov_b64 exec, 0xffff
global_load_dword v251, v5, s[38:39]{NTP}
s_branch L_fin
L_moe:
""")
A(f"""
v_and_b32 v116, 15, v1
v_lshrrev_b32 v117, 4, v1
s_mul_i32 s5, s48, {32*1280}
s_lshl_b32 s6, s3, 8
s_add_u32 s5, s5, s6
v_mul_u32_u24 v34, {8*1280}, v117
v_lshl_add_u32 v34, v116, 4, v34
v_add_u32 v34, s5, v34
v_add_u32 v35, {4*1280}, v34
""")
if OPT["dfirst"] == 1:
    A("s_cmp_ge_u32 s3, 5\ns_cbranch_scc1 L_nod0")
    for j in range(8):
        A(f"global_load_dwordx4 {vr(80+4*j,4)}, v{34 + j//4}, s[38:39] offset:{1280*(j%4)}{NTD}")
    A.label("L_nod0")
if OPT["x6"]: A(f"s_sleep {OPT['x6']}")
for i in range(10):
    A(f"global_load_lds_dwordx4 v5, s[56:57]{NTD}")
    if i < 9: A(f"s_add_u32 m0, m0, 1024\ns_add_u32 s56, s56, {16*3456}\ns_addc_u32 s57, s57, 0")
A(f"""
v_and_b32 v39, 7, v1
s_lshl_b32 s5, s9, 7
s_add_u32 s5, s5, {SEL_OFF}
v_lshl_add_u32 v36, v39, 4, s5
s_mov_b32 s60, 0x05040100
s_mov_b32 s61, 0x07060302
v_mov_b32 v112, 0x3f803f80
v_mov_b32 v113, 0x3f803f80
v_mov_b32 v114, 0x3f803f80
v_mov_b32 v115, 0x3f803f80
s_mov_b32 s62, 0x00ff00ff
s_mov_b32 s63, 0x00ff00ff
v_lshlrev_b32 v7, 9, v117
v_bfe_u32 v38, v1, 2, 2
v_lshl_add_u32 v7, v38, 6, v7
v_and_b32 v38, 1, v1
v_lshl_add_u32 v7, v38, 3, v7
v_bfe_u32 v38, v1, 1, 1
v_mul_u32_u24 v38, 10240, v38
s_lshl_b32 s5, s45, 4
v_add3_u32 v7, v7, v38, s5
v_add_u32 v37, 40960, v7
v_lshlrev_b32 v118, 4, v1
v_lshlrev_b32 v204, 6, v39
v_and_b32 v38, 1, v117
v_lshl_add_u32 v204, v38, 3, v204
v_lshrrev_b32 v38, 1, v117
v_lshl_add_u32 v204, v38, 2, v204
s_add_u32 s5, s5, {HB}
v_add_u32 v204, s5, v204
v_lshlrev_b32 v206, 6, v39
v_lshl_add_u32 v206, v117, 4, v206
v_add_u32 v206, {HB}, v206
v_mov_b32 v207, {ZBLK}
v_cndmask_b32 v208, v207, v206, s[62:63]
v_cndmask_b32 v207, v206, v207, s[62:63]
s_and_b32 s5, s4, 0xff
v_mov_b32 v212, s5
s_bfe_u32 s5, s4, 0x80008
v_mov_b32 v213, s5
s_bfe_u32 s5, s4, 0x80010
v_mov_b32 v214, s5
s_lshr_b32 s5, s4, 24
v_mov_b32 v215, s5
v_bfe_u32 v216, v1, 3, 1
v_lshl_add_u32 v216, v117, 3, v216
v_mul_u32_u24 v216, {PART_STRIDE}, v216
v_lshl_add_u32 v216, v39, 4, v216
s_mul_i32 s5, s3, {32*PART_STRIDE}
s_lshl_b32 s6, s48, 7
s_add_u32 s5, s5, s6
s_add_u32 s5, s5, {PART_OFF}
v_add_u32 v216, s5, v216
v_add_u32 v217, {2*PART_STRIDE}, v216
v_add_u32 v218, {4*PART_STRIDE}, v216
v_add_u32 v219, {6*PART_STRIDE}, v216
v_min_u32 v220, 8, v116
v_mul_u32_u24 v220, {XRS}, v220
v_lshl_add_u32 v220, v117, 4, v220
v_add_u32 v220, {XRB}, v220
s_mul_i32 s55, s45, {XRS}
s_add_u32 s55, s55, {XRB}
s_add_u32 s47, s45, 4
v_min_u32 v38, 79, v0
v_lshlrev_b32 v38, 4, v38
v_add_u32 v38, {XRB + 8*XRS}, v38
ds_write_b128 v38, v[112:115]
s_waitcnt vmcnt(0)
s_cmp_ge_u32 s3, 5
s_cbranch_scc1 L_nod
""")
if OPT["dfirst"] == 0:
    for j in range(8):
        A(f"global_load_dwordx4 {vr(80+4*j,4)}, v{34 + j//4}, s[38:39] offset:{1280*(j%4)}{NTD}")
A("L_nod:\nglobal_load_dwordx4 v[8:11], v36, s[42:43] sc1\ns_barrier")
if OPT["dfirst"] == 2:
    A("s_cmp_ge_u32 s3, 5\ns_cbranch_scc1 L_nod0")
    for j in range(8):
        A(f"global_load_dwordx4 {vr(80+4*j,4)}, v{34 + j//4}, s[38:39] offset:{1280*(j%4)}{NTD}")
    A.label("L_nod0")
A("s_cmp_ge_u32 s3, 4\ns_cbranch_scc1 L_nocs")
for ks in range(20):
    for hf in range(2):
        A(f"ds_read_b64_tr_b16 {vr(120+4*ks+2*hf,2)}, v{7 if ks < 10 else 37} offset:{(ks//5 % 2)*20480 + (ks%5)*2048 + 256*hf}")
A.label("L_nocs")
stamp(4)
lS = A.newlabel("msel"); lSo = A.newlabel("mselo")
A(f"""
s_mov_b32 s54, {SPIN_MAX}
s_mov_b32 m0, s55
s_waitcnt vmcnt(0)
{lS}:
v_cmp_ne_u32 vcc, s4, v11
s_cbranch_vccz {lSo}
s_sub_u32 s54, s54, 1
s_cbranch_scc1 {lSo}
global_load_dwordx4 v[8:11], v36, s[42:43] sc1
s_waitcnt vmcnt(0)
s_branch {lS}
{lSo}:
s_cmp_lt_u32 s3, 4
s_cbranch_scc1 L_norow
v_readlane_b32 s52, v8, s45
v_readlane_b32 s53, v8, s47
s_and_b32 s52, s52, 0x7ff
s_and_b32 s53, s53, 0x7ff
s_sub_u32 s52, 2047, s52
s_sub_u32 s53, 2047, s53
s_mul_i32 s52, s52, 1280
s_mul_i32 s53, s53, 1280
s_add_u32 s56, s16, s52
s_addc_u32 s57, s17, 0
s_add_u32 s58, s16, s53
s_addc_u32 s59, s17, 0
global_load_lds_dwordx4 v118, s[56:57]
global_load_lds_dword v4, s[56:57] offset:1024
s_add_u32 m0, m0, {4*XRS}
s_nop 0
global_load_lds_dwordx4 v118, s[58:59]
global_load_lds_dword v4, s[58:59] offset:1024
L_norow:
""")
stamp(5)
for qq in range(8):
    for i in range(4):
        A(f"v_perm_b32 v{224+4*qq+i}, v{80+4*(2*i+1)+qq//2}, v{80+4*(2*i)+qq//2}, {'s60' if qq % 2 == 0 else 's61'}")
A(f"""
s_mov_b32 s60, 0xffffff00
v_and_b32 v33, 0xffff0000, v9
v_lshlrev_b32 v32, 16, v9
v_rcp_f32 v33, v33
v_xor_b32 v32, 0x80000000, v32
v_mul_f32 v30, {NLOG2E:#x}, v33
v_mul_f32 v31, v33, v33
s_waitcnt vmcnt(0) lgkmcnt(0)
s_barrier
""")
stamp(6)
A("s_cmp_ge_u32 s3, 4\ns_cbranch_scc1 L_nored")
mq = LdsQ()
XB = [40, 44, 48, 52, 56, 12, 16, 20]
def xr(ks): A(f"ds_read_b128 {vr(XB[ks % 8],4)}, v220 offset:{64*ks}"); mq.issue(ks)
for ks in range(7): xr(ks)
for ks in range(20):
    mq.wait(ks)
    A(f"v_mfma_f32_16x16x32_bf16 v[60:63], {vr(120+4*ks,4)}, {vr(XB[ks % 8],4)}, {'0' if ks == 0 else 'v[60:63]'}")
    if ks + 7 < 20: xr(ks + 7)
stamp(7)
A(f"""
s_nop 7
v_fmac_f32_dpp v60, v60, v32 row_ror:8 row_mask:0xf bank_mask:0xf
v_fmac_f32_dpp v62, v62, v32 row_ror:8 row_mask:0xf bank_mask:0xf
v_fmac_f32_dpp v61, v61, v32 row_ror:8 row_mask:0xf bank_mask:0xf
v_fmac_f32_dpp v63, v63, v32 row_ror:8 row_mask:0xf bank_mask:0xf
v_permlane32_swap_b32 v60, v62
s_nop 0
v_permlane32_swap_b32 v61, v63
v_mul_f32 v8, v60, v30
v_mul_f32 v9, v61, v30
v_exp_f32 v8, v8
v_exp_f32 v9, v9
v_mul_f32 v60, v60, v62
v_mul_f32 v61, v61, v63
v_add_f32 v8, 1.0, v8
v_add_f32 v9, 1.0, v9
v_rcp_f32 v8, v8
v_rcp_f32 v9, v9
v_mul_f32 v60, v60, v31
v_mul_f32 v61, v61, v31
v_mul_f32 v60, v60, v8
v_mul_f32 v61, v61, v9
s_mov_b64 exec, s[62:63]
v_cvt_pk_bf16_f32 v8, v60, v61
ds_write_b32 v204, v8
s_mov_b64 exec, -1
L_nored:
s_waitcnt lgkmcnt(0)
s_barrier
""")
stamp(8)
if OPT["x7"]: A(f"s_sleep {OPT['x7']}")
A(f"""
s_cmp_ge_u32 s3, 5
s_cbranch_scc1 L_fin
ds_read_b128 v[8:11], v208
ds_read_b128 v[12:15], v207
s_waitcnt lgkmcnt(1)
""")
for qq in range(4): A(f"v_mfma_f32_16x16x32_bf16 {vr(56+4*qq,4)}, {vr(224+4*qq,4)}, v[8:11], 0")
A("s_waitcnt lgkmcnt(0)")
for qq in range(4): A(f"v_mfma_f32_16x16x32_bf16 {vr(56+4*qq,4)}, {vr(240+4*qq,4)}, v[12:15], {vr(56+4*qq,4)}")
A.nop(5)
for r in range(4):
    for qq in range(4): A(f"v_bfi_b32 v{72+4*r+qq}, s60, v{56+4*qq+r}, v{212+qq}")
    A(f"global_store_dwordx4 v{216+r}, {vr(72+4*r,4)}, s[42:43] sc1")
stamp(9)
if OPT["stamps"]:
    A("s_waitcnt vmcnt(0)")
    stamp(10)
finish(11)
A.label("L_selector")
X2 = "".join(f"v_mov_b32 v90, {i*300032}\nglobal_load_dword v91, v90, s[30:31]\ns_waitcnt vmcnt(0)\n" for i in range(OPT["x2"]))
def rank16(key, lst, rk, t):
    prs = ["s[6:7]", "s[10:11]", "s[12:13]", "s[14:15]"]
    for i in range(4): A(f"v_cmp_gt_u32 {prs[i]}, v{lst+i}, v{key}")
    A(f"v_addc_co_u32_e64 v{rk}, vcc, 0, 0, {prs[0]}")
    for i in range(1, 4): A(f"v_addc_co_u32_e64 v{rk}, vcc, v{rk}, 0, {prs[i]}")
    A(f"v_mov_b32 v{t}, v{rk}\ns_nop 1\nv_permlane16_swap_b32 v{rk}, v{t}\nv_add_u32 v{rk}, v{rk}, v{t}")
    A(f"v_mov_b32 v{t}, v{rk}\ns_nop 1\nv_permlane32_swap_b32 v{rk}, v{t}\nv_add_u32 v{rk}, v{rk}, v{t}")
MSDB = 0
KEY = [50, 54, 58, 62]
def g2_loads(base):
    for r in range(4): A(f"global_load_dwordx4 {vr(base+4*r,4)}, v36, s[42:43] offset:{1024*r} sc1")
def g2_bad(base):
    A(f"v_xor_b32 v2, s4, v{base+3}\nv_xor_b32 v3, s4, v{base+7}\nv_xor_b32 v5, s4, v{base+11}\nv_xor_b32 v6, s4, v{base+15}")
    A("v_or3_b32 v2, v2, v3, v5\nv_or_b32 v2, v2, v6\nv_cmp_ne_u32 vcc, 0, v2")
A(f"""
v_and_b32 v116, 15, v1
v_lshrrev_b32 v117, 4, v1
s_lshl_b32 s5, s3, 12
s_add_u32 s5, s5, {G2_OFF}
v_lshl_add_u32 v36, v1, 4, s5
v_lshlrev_b32 v221, 2, v116
v_lshlrev_b32 v222, 4, v117
v_add_u32 v223, {HMAX}, v221
v_add_u32 v224, {HMAX}, v222
v_add_u32 v221, {LIST+DRY}, v221
v_add_u32 v222, {LIST+DRY}, v222
v_lshrrev_b32 v225, 5, v0
v_lshlrev_b32 v225, 2, v225
v_add_u32 v225, {HMAX}, v225
v_mov_b32 v19, {CNT+DRY}
v_lshlrev_b32 v40, 8, v117
v_add_u32 v40, {SEL_OFF}, v40
v_mov_b32 v41, 0
v_mov_b32 v46, s4
v_mov_b32 v47, s4
s_lshl_b32 s5, s3, 10
s_sub_u32 s5, {MSDB + 4*(2047-192)}, s5
v_sub_u32 v37, s5, v4
v_bfrev_b32 v50, v0
v_mov_b32 v54, 0
v_mov_b32 v58, 0
v_mov_b32 v62, 0
s_mov_b32 s59, 0
{'s_branch L_s_top' if OPT['dry'] else ''}
L_s_real:
v_subrev_u32 v221, {DRY}, v221
v_subrev_u32 v222, {DRY}, v222
v_subrev_u32 v19, {DRY}, v19
s_mov_b32 s59, 1
s_mov_b32 s54, {SPIN_MAX}
""")
stamp(4)
if OPT["dbl"]:
    g2_loads(48)
    A("L_s_poll:")
    g2_loads(64)
    A("s_waitcnt vmcnt(4)")
    g2_bad(48)
    A("s_cbranch_vccz L_s_top\ns_sub_u32 s54, s54, 1\ns_cbranch_scc1 L_s_top")
    g2_loads(48)
    A("s_waitcnt vmcnt(4)")
    g2_bad(64)
    A("s_cbranch_vccnz L_s_poll")
    for i in range(0, 16, 2): A(f"v_mov_b32 v{48+i}, v{64+i}")
else:
    A("L_s_poll:")
    g2_loads(48)
    A("s_sub_u32 s54, s54, 1\ns_cbranch_scc1 L_s_top\ns_waitcnt vmcnt(0)")
    g2_bad(48)
    A("s_cbranch_vccnz L_s_poll")
A("L_s_top:")
stamp(5)
A(f"v_max3_u32 v16, v{KEY[0]}, v{KEY[1]}, v{KEY[2]}\nv_max_u32 v16, v16, v{KEY[3]}\ns_nop 1")
for i, mod in enumerate(DPP6[:5]):
    if i: A("s_nop 1")
    A(f"v_max_u32_dpp v16, v16, v16 {mod.replace(' bound_ctrl:0','')}")
A(f"""
s_mov_b32 exec_lo, 0x80000000
s_mov_b32 exec_hi, 0x80000000
ds_write_b32 v225, v16
s_mov_b64 exec, -1
s_waitcnt lgkmcnt(0)
s_barrier
ds_read_b32 v17, v223
ds_read_b128 v[20:23], v224
ds_write2st64_b32 v37, v60, v56 offset0:0 offset1:1
ds_write2st64_b32 v37, v52, v48 offset0:2 offset1:3
s_waitcnt lgkmcnt(2)
""")
rank16(17, 20, 18, 24)
A(f"""
v_cmp_eq_u32 vcc, 7, v18
s_ff1_i32_b64 s5, vcc
v_readlane_b32 s5, v17, s5
s_nop 1
v_cmp_le_u32 s[6:7], s5, v{KEY[0]}
v_cmp_le_u32 s[10:11], s5, v{KEY[1]}
v_cmp_le_u32 s[12:13], s5, v{KEY[2]}
v_cmp_le_u32 s[14:15], s5, v{KEY[3]}
v_addc_co_u32_e64 v21, vcc, 0, 0, s[6:7]
s_or_b64 s[50:51], s[6:7], s[10:11]
v_addc_co_u32_e64 v22, vcc, v21, 0, s[10:11]
s_or_b64 s[52:53], s[12:13], s[14:15]
v_addc_co_u32_e64 v23, vcc, v22, 0, s[12:13]
s_or_b64 exec, s[50:51], s[52:53]
v_addc_co_u32_e64 v24, vcc, v23, 0, s[14:15]
ds_add_rtn_u32 v25, v19, v24
s_waitcnt lgkmcnt(0)
v_lshl_add_u32 v25, v25, 2, v19
v_lshl_add_u32 v21, v21, 2, v25
v_lshl_add_u32 v22, v22, 2, v25
v_lshl_add_u32 v23, v23, 2, v25
s_mov_b64 exec, s[6:7]
ds_write_b32 v25, v{KEY[0]} offset:{LIST-CNT}
s_mov_b64 exec, s[10:11]
ds_write_b32 v21, v{KEY[1]} offset:{LIST-CNT}
s_mov_b64 exec, s[12:13]
ds_write_b32 v22, v{KEY[2]} offset:{LIST-CNT}
s_mov_b64 exec, s[14:15]
ds_write_b32 v23, v{KEY[3]} offset:{LIST-CNT}
s_mov_b64 exec, -1
s_waitcnt lgkmcnt(0)
s_barrier
{'' if OPT['dry'] else 's_cmp_lg_u32 s3, 0'}
{'' if OPT['dry'] else 's_cbranch_scc1 L_fin'}
ds_read_b32 v28, v19
ds_read_b32 v17, v221
ds_read_b128 v[20:23], v222
s_waitcnt lgkmcnt(1)
v_readfirstlane_b32 s51, v28
s_cmp_gt_u32 s51, 16
s_cbranch_scc1 L_rk_many
L_rk_done:
v_and_b32 v14, 0x7ff, v17
v_lshlrev_b32 v14, 2, v14
ds_read_b32 v45, v14 offset:{MSDB}
s_waitcnt lgkmcnt(1)
""")
stamp(6)
rank16(17, 20, 18, 24)
A(f"""
v_cmp_gt_u32 vcc, 8, v18
v_lshl_add_u32 v18, v18, 4, v40
v_mov_b32 v44, v17
s_cmp_eq_u32 s59, 0
s_cbranch_scc1 L_s_real
s_cmp_lg_u32 s3, 0
s_cbranch_scc1 L_fin
{X2}
s_mov_b64 exec, vcc
s_waitcnt lgkmcnt(0)
global_store_dwordx4 v18, v[44:47], s[42:43] sc1
global_store_dwordx4 v18, v[44:47], s[42:43] offset:128 sc1
s_mov_b64 exec, 1
global_store_dword v41, v46, s[42:43] sc1
""")
stamp(7)
A("s_branch L_fin")
A(f"""
L_rk_many:
v_lshl_add_u32 v26, v1, 2, v19
v_mov_b32 v27, v1
s_lshl_b32 s5, s3, 6
s_add_u32 s58, s5, {SELW}
s_mov_b32 s50, 0
L_rk_outer:
ds_read_b32 v29, v26 offset:{LIST-CNT}
v_mov_b32 v30, 0
v_mov_b32 v31, v19
s_mov_b32 s52, 0
L_rk_inner:
ds_read_b128 v[8:11], v31 offset:{LIST-CNT}
v_add_u32 v31, 16, v31
s_add_u32 s52, s52, 4
s_waitcnt lgkmcnt(0)
""")
prs = ["s[6:7]", "s[10:11]", "s[12:13]", "s[14:15]"]
for i in range(4): A(f"v_cmp_gt_u32 {prs[i]}, v{8+i}, v29")
for i in range(4): A(f"v_addc_co_u32_e64 v30, vcc, v30, 0, {prs[i]}")
A(f"""
s_cmp_lt_u32 s52, s51
s_cbranch_scc1 L_rk_inner
v_cmp_gt_u32 s[6:7], 8, v30
v_cmp_gt_u32 s[10:11], s51, v27
v_lshl_add_u32 v30, v30, 2, s58
s_and_b64 exec, s[6:7], s[10:11]
ds_write_b32 v30, v29
s_mov_b64 exec, -1
v_add_u32 v26, 256, v26
v_add_u32 v27, 64, v27
s_add_u32 s50, s50, 64
s_cmp_lt_u32 s50, s51
s_cbranch_scc1 L_rk_outer
v_lshl_add_u32 v26, v116, 2, s58
v_lshl_add_u32 v27, v117, 4, s58
ds_read_b32 v17, v26
ds_read_b128 v[20:23], v27
s_waitcnt lgkmcnt(0)
s_branch L_rk_done
""")
A.label("L_fin")
finish(11)
A.label("L_end")
A("s_endpgm")
A.label("L_code_end")
A(".fill 64, 4, 0xBF800000")

tail = f"""
.section .rodata,"a"
.p2align 6
.amdhsa_kernel {NAME}_kernel
  .amdhsa_next_free_vgpr 256
  .amdhsa_next_free_sgpr 96
  .amdhsa_accum_offset 256
  .amdhsa_group_segment_fixed_size 0
  .amdhsa_kernarg_size 120
  .amdhsa_user_sgpr_count 2
  .amdhsa_user_sgpr_kernarg_segment_ptr 1
  .amdhsa_system_sgpr_workgroup_id_x 1
.end_amdhsa_kernel
"""
probs = check_hazards(A.lines)
for p in probs: print("HAZARD", p, file=sys.stderr)
open(sys.argv[1], "w").write(head + A.text() + tail)
print("written", sys.argv[1], len(A.lines), "lines", file=sys.stderr)
```

```python
import sys
from asmlib import *
NAME = "recurrent_scan__ssm_conv_s4d__moe_arch_mod__prompt"
OPT = dict(stamps=0, ntw=0, ntx=0, ntr=0, ga=7, fine=0, sfirst=0, grp=1, bal=0, xb=4, gbn=0, gan=4, pfbar=1, gul=2, gb1=0, xall=0, inj=0, g1pre=0, warm=0, allb=0, nfirst=0, ea=0, gb2=0, dbl=0, ord=0, nts=0, hint=0, rep8=1, dry=0, nopatch=0, nostore=0, hprio=0, slp=0, yd=6, chk=0, g1l=0, mprio=0, gupf=1, pre=3, eg=0, selp=1, rev=1, p1f=4, dfirst=2, dpf=1, pl=0, ip=0, c0=1, rt=1, prog0="apBbn0NE1MkG", prog1="apBbn0NE1MkG", prog2="apBbn0NS1MefG", prog3="apBbn0NS1MefG")
for a in sys.argv[2:]:
    k, v = a.split("="); OPT[k] = v if k.startswith("prog") else int(v)

G1_OFF, G2_OFF, SEL_OFF, PART_OFF, PART_STRIDE = 0x1000, 0x5000, 0xD000, 0x10000, 7168
HINT_OFF = 0xE000
STAMP_OFF = 0x200000
TROW = 2064
TBX, TBY = 0, 24 * TROW
UB = TBY + 32 * TROW
USTR = 4608
BOXB = UB + 4 * USTR
KB = BOXB + 1024
PD_O, T2_O, T3_O = 0, 5600, 6112
KSTR = 6432
FLG = KB + 4 * KSTR
MARK = FLG + 224
PUBC = MARK + 2048
LDS_SIZE = PUBC + 16
UBY = lambda e: 80 * (e >> 3) + 8 * (e & 7)
RED = 81920
XRB, XRS = RED + 32768, 1296
HB = XRB + 9 * XRS
HMAX = HB + 512
PRM = UB + 512
CNT, ZBLK, SELW, LIST = KB, KB + 64, KB + 128, KB + 1024
SPIN_MAX = 1 << 20
DRY = 12288

LOG2E = 0x3FB8AA3B
NLOG2E = LOG2E ^ 0x80000000
INV2PI = 0x3E22F983
A = Asm()
NTW = " nt" if OPT["ntw"] else ""
NTX = " nt" if OPT["ntx"] else ""
NTR = " nt" if OPT["ntr"] else ""
NTS = ["", " nt", " sc0", " sc0 nt"][OPT["nts"]]
def fstamp(g, i):
    if OPT["fine"] == g: A(f"s_memtime s[{64+2*i}:{65+2*i}]")
def FS(g, i):
    return f"s_memtime s[{64+2*i}:{65+2*i}]" if OPT["fine"] == g else ""
def stamp(i):
    if OPT["fine"] and i not in (0, 13): return
    if OPT["stamps"] == 3: A(f"s_memtime s[{64+2*i}:{65+2*i}]")
    elif OPT["stamps"]: A(f"s_memrealtime s[{64+2*i}:{65+2*i}]")
def cstamp(i):
    if OPT["stamps"]: A(f"s_memtime s[{64+2*i}:{65+2*i}]")
def finish(n, dbgmap=None):
    if OPT["stamps"] == 2:
        if n == 13:
            l = A.newlabel("nd")
            stamp(13)
            A("s_load_dwordx2 s[6:7], s[0:1], 104")
            A(f"s_cmp_ge_u32 s2, 8\ns_cbranch_scc1 {l}\ns_cmp_lg_u32 s3, 7\ns_cbranch_scc1 {l}")
            A("s_waitcnt lgkmcnt(0)\ns_mov_b64 exec, 1\ns_lshl_b32 s5, s2, 3\nv_mov_b32 v2, s5")
            A("s_sub_u32 s5, s68, s64\ns_lshl_b32 s5, s5, 16\ns_and_b32 s10, s64, 0xffff\ns_or_b32 s5, s5, s10\nv_mov_b32 v4, s5")
            A("s_sub_u32 s5, s90, s64\ns_lshl_b32 s5, s5, 16\ns_sub_u32 s10, s72, s64\ns_or_b32 s5, s5, s10\nv_mov_b32 v5, s5")
            A("global_store_dwordx2 v2, v[4:5], s[6:7]")
            A.label(l)
    elif OPT["stamps"]:
        stamp(13); cstamp(15)
        A("s_waitcnt lgkmcnt(0)")
        A("s_mov_b64 exec, 1")
        A(f"s_lshl_b32 s5, s2, 3\ns_add_u32 s5, s5, s3\ns_lshl_b32 s5, s5, 6\ns_add_u32 s5, s5, {STAMP_OFF}")
        A("v_mov_b32 v2, s5")
        for i in list(range(n)) + [13, 14, 15]:
            A(f"v_mov_b32 v3, s{64+2*i}")
            A(f"global_store_dword v2, v3, s[42:43] offset:{4*i}")
    A("s_endpgm")

class LdsQ:
    def __init__(self): self.q = []; self.done = 0
    def issue(self, tag): self.q.append(tag)
    def wait(self, tag):
        idx = max(i for i, t in enumerate(self.q) if t == tag)
        if idx < self.done: return
        n = len(self.q) - 1 - idx
        A(f"s_waitcnt lgkmcnt({min(n,14)})")
        self.done = idx + 1 if n <= 14 else len(self.q) - 14
    def all(self):
        A("s_waitcnt lgkmcnt(0)"); self.done = len(self.q)
    def known_all(self): self.done = len(self.q)

def cmul(dst, p, w, t):
    A(f"v_pk_mul_f32 {vr(t,2)}, {vr(p,2)}, {vr(w,2)} op_sel:[0,0] op_sel_hi:[1,0]")
    A(f"v_pk_fma_f32 {vr(dst,2)}, {vr(p,2)}, {vr(w,2)}, {vr(t,2)} op_sel:[1,1,0] op_sel_hi:[0,1,1] neg_lo:[1,0,0]")
LANE63 = "s_mov_b32 exec_lo, 0\ns_mov_b32 exec_hi, 0x80000000"
DPP6 = ["row_shr:1 row_mask:0xf bank_mask:0xf bound_ctrl:0", "row_shr:2 row_mask:0xf bank_mask:0xf bound_ctrl:0",
        "row_shr:4 row_mask:0xf bank_mask:0xf bound_ctrl:0", "row_shr:8 row_mask:0xf bank_mask:0xf bound_ctrl:0",
        "row_bcast:15 row_mask:0xa bank_mask:0xf", "row_bcast:31 row_mask:0xc bank_mask:0xf"]

KD = lambda m: 8 + 4 * m
KS = 76
T2 = lambda d, hh: 80 + 8 * (d - 2) + 4 * hh
T3 = lambda d: 104 + 4 * (d - 4)
BOX = lambda i: 120 + 4 * i
ACC = lambda j: 140 + 4 * j
BR = lambda s: 172 + 4 * s
W1R = 204
BA = lambda i: 208 + 4 * i
SG = lambda i: 232 + 4 * i
vUB, vYW, vFL, vONE, vT0, vT1, vT2 = 244, 245, 246, 247, 248, 249, 250

hdr = open("stub_ref.txt").read().split("; @launch")[0]
head = hdr + f"""; @launch grid=(256,1,1) block=(512,1,1) lds={LDS_SIZE}
.amdgcn_target "amdgcn-amd-amdhsa--gfx950"
.text
.globl {NAME}_kernel
.p2align 8
.type {NAME}_kernel,@function
{NAME}_kernel:
"""

A("s_cmp_ge_u32 s2, 256\ns_cbranch_scc1 L_end")
A("s_load_dwordx16 s[16:31], s[0:1], 0")
A("s_load_dwordx8 s[32:39], s[0:1], 64")
A("s_load_dwordx2 s[40:41], s[0:1], 96")
A("s_load_dwordx2 s[42:43], s[0:1], 112")
stamp(0); cstamp(14)
EG = OPT["eg"]
EG1 = f"s_lshl_b32 s6, s8, 2\ns_add_u32 s6, s6, s49\ns_mul_i32 s6, s6, 1280\ns_add_u32 s6, s6, s62\nv_mul_u32_u24 v22, {128*1280}, v1\nv_add_u32 v22, s6, v22" if EG else ""
EG2 = f"s_bfm_b64 exec, {2*EG}, 0\nglobal_load_dword v251, v22, s[16:17]\ns_mov_b64 exec, -1" if EG else ""
A(f"""
s_getpc_b64 s[6:7]
L_pc:
s_lshr_b32 s8, s2, 3
v_lshrrev_b32 v2, 6, v0
s_lshl_b32 s5, s8, 10
v_lshl_add_u32 v5, v0, 1, s5
v_readfirstlane_b32 s3, v2
v_min_u32 v5, L_code_end-L_pc, v5
v_and_b32 v5, -4, v5
global_load_dword v252, v5, s[6:7]
v_and_b32 v1, 63, v0
v_lshlrev_b32 v3, 4, v1
v_lshlrev_b32 v4, 2, v1
v_mov_b32 v32, 0
v_mov_b32 v{vFL}, {FLG}
v_mov_b32 v{vONE}, 1
ds_write_b32 v{vFL}, v32 offset:{PUBC-FLG}
s_and_b32 s45, s3, 3
s_and_b32 s9, s2, 7
s_lshl_b32 s10, s2, 3
s_add_u32 s10, s10, s3
s_mul_i32 s11, s10, 1280
s_lshr_b32 s46, s3, 2
s_mul_i32 s12, s9, 20
s_add_u32 s44, s12, s8
s_lshr_b32 s49, s3, 1
s_lshr_b32 s5, s12, 4
s_and_b32 s6, s3, 1
s_add_u32 s5, s5, s6
s_lshl_b32 s62, s5, 7
s_lshl_b32 s6, s8, 2
s_add_u32 s6, s6, s49
s_mul_i32 s6, s6, {20480 if OPT['xall'] else 10240}
s_add_u32 s5, s62, s6
v_mul_u32_u24 v93, 1280, v1
v_add_u32 v22, s5, v93
s_lshl_b32 s5, s49, 3
s_add_u32 s5, s5, s9
s_min_u32 s5, s5, 26
s_lshl_b32 s5, s5, 7
s_mul_i32 s6, s8, {20*3456}
s_add_u32 s5, s5, s6
v_mul_u32_u24 v23, 3456, v1
v_add_u32 v23, s5, v23
s_lshl_b32 s5, s45, 8
s_lshl_b32 s6, s46, 7
s_add_u32 s5, s5, s6
s_lshl_b32 s6, s44, 10
s_add_u32 s5, s5, s6
v_lshl_add_u32 v6, v1, 1, s5
s_lshr_b32 s5, s5, 8
s_lshl_b32 s5, s5, 1
v_mov_b32 v7, s5
{EG1}
s_waitcnt lgkmcnt(0)
{EG2}
s_add_u32 s6, s16, s11
s_addc_u32 s7, s17, 0
global_load_dwordx4 v[8:11], v3, s[6:7]{NTR}
global_load_dword v12, v4, s[6:7] offset:1024{NTR}
global_load_dwordx4 v[16:19], v3, s[32:33]
global_load_dword v20, v4, s[32:33] offset:1024
global_load_dword v29, v32, s[42:43]
s_bitcmp1_b32 s3, 0
s_cselect_b32 s56, s36, s34
s_cselect_b32 s57, s37, s35
""")
stamp(1)
def early_pf():
    A(f"""
s_bfm_b64 exec, {(16 if OPT['xall'] else 8) - 2*EG}, {2*EG}
global_load_dword v251, v22, s[16:17]{NTX}
s_mov_b64 exec, -1
""")
    if not OPT["gul"]: gu_pf()
def gu_pf():
    A(f"""
s_mov_b64 exec, 0xfffff
global_load_dword v251, v23, s[56:57]{NTW}
s_mov_b64 exec, -1
""")
A(f"""
s_barrier
s_cmp_ge_u32 s2, 160
s_cbranch_scc1 L_nopar
global_load_ushort v40, v6, s[18:19]{NTW}
global_load_ushort v45, v7, s[26:27]
global_load_ushort v41, v6, s[20:21]{NTW}
global_load_ushort v42, v6, s[22:23]{NTW}
global_load_ushort v43, v6, s[24:25]{NTW}
global_load_ushort v46, v7, s[28:29]
L_nopar:
""")
if OPT["pfbar"]: A("s_barrier")
early_pf()
A("""
v_mov_b32 v33, 0
v_mov_b32 v34, 0
v_mov_b32 v35, 0
s_cbranch_scc1 L_notconv
""")
def row_loads():
    A(f"""
s_add_u32 s6, s16, s11
s_addc_u32 s7, s17, 0
global_load_dwordx4 v[8:11], v3, s[6:7]{NTR}
global_load_dword v12, v4, s[6:7] offset:1024{NTR}
global_load_dwordx4 v[16:19], v3, s[32:33]
global_load_dword v20, v4, s[32:33] offset:1024
""")
G1ADDR = (f"s_and_b32 s5, s10, 0x700\ns_lshl_b32 s5, s5, 3\ns_and_b32 s6, s10, 2\ns_lshl_b32 s6, s6, 9\ns_add_u32 s5, s5, s6\ns_and_b32 s6, s10, 0xfc\ns_lshl_b32 s6, s6, 2\ns_add_u32 s5, s5, s6\n"
          f"s_and_b32 s6, s10, 1\ns_lshl_b32 s6, s6, 3\ns_add_u32 s5, s5, s6\ns_add_u32 s5, s5, {G1_OFF}\nv_mov_b32 v34, s5") if OPT["g1l"] else f"v_add_u32 v34, {G1_OFF}, v33"
G1S = 1024 if OPT["g1l"] else 16
def stats_pre():
    A("s_mov_b32 s14, 0x9E3779B1\ns_mov_b32 s47, 0x3f803f80\ns_lshl_b32 s11, s10, 3\ns_sub_u32 s13, 2047, s10")
    A(f"v_mov_b32 v33, s11\n{G1ADDR}\nv_lshlrev_b32 v35, 1, v33\nv_add_u32 v35, {G2_OFF}, v35\nv_mov_b32 v36, 0x3acccccd")
def make_tag():
    pass
def stats(younger, cnt=False):
    A(vmw(younger - 1) if cnt else f"s_waitcnt vmcnt({younger-1})")
    stamp(2)
    A("s_setprio 2")
    for i in range(5):
        c = (lambda r: "0" if i == 0 else r)
        A(f"v_dot2_f32_bf16 v24, v{8+i}, s47, {c('v24')}")
        A(f"v_dot2_f32_bf16 v25, v{8+i}, v{8+i}, {c('v25')}")
        A(f"v_dot2_f32_bf16 v26, v{8+i}, v{16+i}, {c('v26')}")
        A(f"v_dot2_f32_bf16 v27, v{16+i}, s47, {c('v27')}")
    A(f"""
s_nop 0
v_permlane32_swap_b32 v24, v25
s_nop 0
v_permlane32_swap_b32 v26, v27
v_add_f32 v24, v24, v25
v_add_f32 v26, v26, v27
s_nop 0
v_mul_lo_u32 v29, v29, s14
v_permlane16_swap_b32 v24, v26
v_add_f32 v24, v24, v26
v_add_u32 v29, 0x7F4A7C15, v29
v_mov_b32 v31, v29
v_add_f32_dpp v24, v24, v24 row_shr:1 row_mask:0xf bank_mask:0xf bound_ctrl:0
v_readfirstlane_b32 s4, v29
s_nop 0
v_add_f32_dpp v24, v24, v24 row_shr:2 row_mask:0xf bank_mask:0xf bound_ctrl:0
s_nop 1
v_add_f32_dpp v24, v24, v24 row_shr:4 row_mask:0xf bank_mask:0xf bound_ctrl:0
s_nop 1
v_add_f32_dpp v24, v24, v24 row_shr:8 row_mask:0xf bank_mask:0xf bound_ctrl:0
s_mov_b64 exec, 1
v_readlane_b32 s6, v24, 15
v_readlane_b32 s7, v24, 47
v_readlane_b32 s14, v24, 31
v_readlane_b32 s15, v24, 63
v_mul_f32 v24, s6, v36
v_mul_f32 v25, s7, v36
v_mov_b32 v26, s14
v_fma_f32 v25, -v24, v24, v25
v_max_f32 v25, 0, v25
v_cvt_pk_bf16_f32 v28, v24, v25
v_and_b32 v25, 0xffff0000, v28
v_lshlrev_b32 v24, 16, v28
v_add_f32 v25, 0x3727c5ac, v25
v_cvt_pk_bf16_f32 v25, v25, v25
v_fma_f32 v26, -v24, s15, v26
v_and_b32 v25, 0xffff0000, v25
v_sqrt_f32 v25, v25
""")
    A("s_nop 0")
    A("""
v_cvt_pk_bf16_f32 v28, v24, v25
v_and_b32 v25, 0xffff0000, v28
v_rcp_f32 v25, v25
global_store_dwordx2 v34, v[28:29], s[42:43] sc1
v_mul_f32 v26, v26, v25
v_cvt_pk_bf16_f32 v26, v26, v26
v_ashrrev_i32 v27, 31, v26
v_or_b32 v27, 0x80000000, v27
v_xor_b32 v26, v26, v27
v_and_b32 v26, 0xffff0000, v26
v_or_b32 v30, s13, v26
global_store_dwordx4 v35, v[28:31], s[42:43] sc1
""")
    if cnt: A(f"ds_add_u32 v{vFL}, v{vONE} offset:{PUBC-FLG}")
    A("s_mov_b64 exec, -1\ns_setprio 0")
    stamp(3)
EG3 = (f"s_sub_u32 s5, s3, 4\ns_cmp_ge_u32 s5, {EG}\ns_cbranch_scc1 L_neg\ns_mov_b32 s48, 1\ns_mov_b32 s63, 0\n"
       + "".join(f"global_load_dwordx2 v[{96+2*r}:{97+2*r}], v94, s[16:17] offset:{1280*r}\n" for r in range(4)) + "L_neg:") if EG else ""
def vmw(n):
    if not EG: return f"s_waitcnt vmcnt({n})"
    l1 = A.newlabel("w"); l2 = A.newlabel("w")
    return f"s_cmp_eq_u32 s48, 0\ns_cbranch_scc1 {l1}\ns_waitcnt vmcnt({n+4})\ns_branch {l2}\n{l1}:\ns_waitcnt vmcnt({n})\n{l2}:"
def conv_init():
    A(f"""
s_and_b32 s6, s8, 15
s_lshl_b32 s6, s6, 1
s_and_b32 s7, s49, 1
s_add_u32 s6, s6, s7
s_add_u32 s6, s6, 32
s_mul_i32 s6, s6, 40960
s_add_u32 s5, s62, s6
v_add_u32 v93, s5, v93
v_mov_b32 v33, 0
v_mov_b32 v34, 0
v_mov_b32 v35, 0
v_lshlrev_b32 v7, 4, v0
v_add_u32 v7, {KB}, v7
ds_write_b128 v7, v[32:35]
ds_write_b128 v7, v[32:35] offset:8192
ds_write_b128 v7, v[32:35] offset:16384
v_min_u32 v7, {PUBC-16-24576}, v7
ds_write_b128 v7, v[32:35] offset:24576
s_mul_i32 s53, s45, {USTR}
s_add_u32 s53, s53, {UB}
v_lshl_add_u32 v7, v1, 3, s53
ds_write_b64 v7, v[32:33]
s_add_u32 s5, s45, 1
s_sub_u32 s13, s5, 32
s_lshl_b32 s5, s5, 1
v_add_u32 v36, s13, v1
v_add_u32 v92, 1, v36
v_mov_b32 v38, 0x3f800000
v_mov_b32 v39, 0x3f80
v_cmp_ge_u32 s[6:7], s5, v36
v_cmp_ge_u32 s[14:15], s5, v92
s_lshl_b32 s13, s45, 8
s_add_u32 s13, s13, {BOXB}
v_cndmask_b32 v38, 0, v38, s[6:7]
v_cndmask_b32 v39, 0, v39, s[14:15]
v_add_u32 v7, s13, v4
v_or_b32 v38, v38, v39
ds_write_b32 v7, v38
v_and_b32 v2, 15, v1
v_lshrrev_b32 v92, 4, v1
v_lshlrev_b32 v92, 3, v92
v_sub_u32 v92, v2, v92
v_lshlrev_b32 v92, 2, v92
v_add_u32 v92, {BOXB+96}, v92
s_mul_i32 s5, s45, {256*1280}
s_lshl_b32 s6, s44, 3
s_add_u32 s5, s5, s6
v_mul_u32_u24 v94, 5120, v1
v_add_u32 v94, s5, v94
{'s_lshl_b32 s55, s45, 1' if OPT['rev'] else 's_mov_b32 s55, 3'}
s_sub_u32 s55, 7, s55
s_mul_i32 s5, s55, {256*1280}
v_add_u32 v95, s5, v94
s_lshl_b32 s5, s45, 9
s_lshl_b32 s6, s46, 8
s_add_u32 s50, s5, s6
s_add_u32 s51, s50, {TBY}
s_mov_b32 m0, s51
v_mov_b32 v84, 0x3f80
v_mov_b32 v44, {LOG2E:#x}
s_lshr_b32 s63, s3, 2
""")
if OPT["ip"] == 0:
    conv_init()
    if OPT["gul"] == 1: gu_pf()
stats_pre()
MK3 = 224
def setup():
    A(f"""
{vmw(4 - (OPT['gul'] == 2))}
v_lshlrev_b32 v40, 16, v40
v_lshlrev_b32 v45, 16, v45
v_mul_f32 v40, v44, v40
v_mul_f32 v44, v45, v44
v_exp_f32 v40, v40
v_exp_f32 v44, v44
v_lshlrev_b32 v41, 16, v41
v_lshlrev_b32 v42, 16, v42
v_cvt_pk_bf16_f32 v40, v44, v40
v_lshlrev_b32 v43, 16, v43
v_lshlrev_b32 v44, 16, v40
v_and_b32 v40, 0xffff0000, v40
v_mul_f32 v41, v41, v44
v_mul_f32 v40, v40, v44
v_add_f32 v44, v44, v44
v_mul_f32 v40, {NLOG2E:#x}, v40
v_mul_f32 v41, {INV2PI:#x}, v41
v_mul_f32 v48, v42, v44
v_mul_f32 v49, v43, v44
v_mul_f32 v56, 0x41000000, v40
v_mul_f32 v58, 0x41000000, v41
v_mul_f32 v57, 0x43800000, v40
v_mul_f32 v59, 0x43800000, v41
v_fract_f32 v58, v58
v_fract_f32 v60, v41
v_fract_f32 v59, v59
v_exp_f32 v56, v56
v_cos_f32 v52, v58
v_sin_f32 v53, v58
v_exp_f32 v61, v40
v_cos_f32 v50, v60
v_sin_f32 v51, v60
v_exp_f32 v57, v57
v_cos_f32 v54, v59
v_sin_f32 v55, v59
ds_read_b32 v{vT2}, v{vFL} offset:{PUBC-FLG}
v_mul_f32 v52, v52, v56
v_mul_f32_e64 v53, -v53, v56
v_mul_f32 v50, v50, v61
v_mul_f32 v51, v51, v61
v_mul_f32 v54, v54, v57
v_mul_f32 v55, v55, v57
""")
stats(9 - (OPT["gul"] >= 2), cnt=True); fstamp(1, 2)
if OPT["gul"] == 3: gu_pf()
if OPT["ip"] == 1: conv_init()
if OPT["hprio"]: A("s_cmp_lt_u32 s3, 4\ns_cbranch_scc1 L_hp\ns_setprio 1\nL_hp:")
setup()
fstamp(1, 3)
def gather(t, lo=0, hi=4):
    for r in range(lo, hi):
        A(f"global_load_dwordx2 v[{96+8*t+2*r}:{97+8*t+2*r}], v{94+t}, s[16:17] offset:{1280*r}")
def pubcheck(wait):
    l = A.newlabel("gc")
    A(f"s_cmp_eq_u32 s63, 0\ns_cbranch_scc1 {l}\ns_waitcnt lgkmcnt({wait})\nv_readfirstlane_b32 s5, v{vT2}\ns_cmp_lt_u32 s5, 8\ns_cbranch_scc1 {l}\ns_mov_b32 s63, 0")
    gather(0, 0, OPT["gan"])
    A.label(l)
if OPT["c0"]: pubcheck(0)
def gather_at(pos):
    if OPT["ga"] == pos:
        l = A.newlabel("ng")
        A(f"s_cmp_lt_u32 s3, 4\ns_cbranch_scc1 {l}")
        gather(0, 0, OPT["gan"])
        A.label(l)
    if OPT["xb"] == pos:
        l = A.newlabel("nx")
        A(f"s_cmp_ge_u32 s3, 4\ns_cbranch_scc1 {l}")
        A(f"s_mov_b32 exec_hi, 0\nglobal_load_dword v251, v93, s[16:17]{NTX}\ns_mov_b64 exec, -1")
        A.label(l)
gather_at(0)
pend = []
GRP = OPT["grp"]
tt = [0]
def emit_row(reg, rows):
    t = 84 + (tt[0] % (2 * GRP)); tt[0] += 1
    if reg is not None: A(f"v_cvt_pk_bf16_f32 v{t}, v{reg}, v{reg+1}")
    for r in rows: pend.append(f"ds_write_addtid_b32 v{t} offset:{r*TROW}")
    if tt[0] % GRP == 0: flush_rows()
def flush_rows():
    for p in pend: A(p)
    pend.clear()
emit_row(None, [0]); emit_row(52, [1])
cur = 52
CHK = [{5: 0, 9: 0, 13: 0, 17: 0, 22: 0, 29: 1}, {5: 0, 12: 0, 20: 1}, {8: 0, 16: 1}, {8: 1}, {2: 1}, {16: 1}, {31: 1}][OPT["chk"]]
for c in range(2, 32):
    dst = 64 + 2 * (c % 2)
    if c + 3 in CHK and not CHK[c + 3]: A(f"ds_read_b32 v{vT2}, v{vFL} offset:{PUBC-FLG}")
    if c in CHK:
        l = A.newlabel("gc")
        A(f"s_cmp_eq_u32 s63, 0\ns_cbranch_scc1 {l}")
        if not CHK[c]:
            A(f"s_waitcnt lgkmcnt(3)\nv_readfirstlane_b32 s5, v{vT2}\ns_cmp_lt_u32 s5, 8\ns_cbranch_scc1 {l}")
        A("s_mov_b32 s63, 0")
        fstamp(7, 1)
        gather(0, 0, OPT["gan"])
        fstamp(7, 2)
        A.label(l)
    cmul(dst, cur, 52, dst); emit_row(dst, [c]); cur = dst
    if c == 15: gather_at(3)
flush_rows()
fstamp(1, 4)
A("s_mov_b32 m0, s50")
gather_at(1)
if OPT["gbn"]:
    A("s_cmp_lt_u32 s3, 4\ns_cbranch_scc1 L_ngb")
    gather(1, 0, OPT["gbn"])
    A.label("L_ngb")
cmul(56, 50, 50, 56)
emit_row(48, [0])
cur = 48
rows0 = {1: [1], 2: [2], 3: [3], 4: [4, 8], 5: [5], 6: [6], 7: [7], 8: [12]}
for p in range(1, 9):
    dst = 64 + 2 * (p % 2)
    cmul(dst, cur, 50, dst); emit_row(dst, rows0[p]); cur = dst
for dst, src, w, rows in [(68, 48, 54, [9]), (70, 68, 56, [10]), (68, 70, 56, [11, 13]), (70, 68, 56, [14]), (72, 70, 56, [15]),
                          (70, 68, 54, [16]), (74, 72, 54, [17]), (68, 70, 54, [20]), (72, 74, 54, [21]),
                          (74, 72, 54, [18]), (72, 74, 54, [19]), (74, 72, 54, [22]), (72, 74, 54, [23])]:
    cmul(dst, src, w, dst); emit_row(dst, rows)
flush_rows()
fstamp(1, 5)
gather_at(4)
A("s_cmp_ge_u32 s3, 4\ns_cbranch_scc1 L_helper")

q = LdsQ()
A(f"""
v_and_b32 v2, 31, v1
v_lshrrev_b32 v3, 5, v1
v_mul_u32_u24 v5, {TROW}, v2
v_subrev_u32 v6, {16*TROW}, v5
v_cmp_le_u32 vcc, 24, v2
s_lshl_b32 s5, s45, 9
v_lshl_add_u32 v7, v3, 4, s5
v_cndmask_b32 v6, v5, v6, vcc
v_add_u32 v5, v5, v7
v_add_u32 v6, v6, v7
v_add_u32 v5, {TBY}, v5
s_waitcnt lgkmcnt(0)
""")
NB = 6
def kg_issue(s):
    b = 156 + 8 * (s % NB)
    A(f"ds_read_b128 {vr(b,4)}, v6 offset:{32*s}"); q.issue(("ka", s))
    A(f"ds_read_b128 {vr(b+4,4)}, v5 offset:{32*s}"); q.issue(("kb", s))
filler = f"""
s_mul_i32 s52, s45, {KSTR}
s_add_u32 s52, s52, {KB}
v_mul_u32_u24 v208, 80, v2
v_lshl_add_u32 v208, v3, 5, v208
v_add_u32 v208, s52, v208
v_add_u32 v207, 2560, v208
v_lshl_add_u32 v206, v3, 4, v208
v_add_u32 v205, 2560, v206
v_lshlrev_b32 v209, 2, v2
v_lshl_add_u32 v209, v3, 7, v209
v_add_u32 v209, s52, v209
v_lshlrev_b32 v210, 1, v2
v_lshl_add_u32 v210, v3, 7, v210
v_add_u32 v210, s52, v210
v_mov_b32 v211, s52
v_lshlrev_b32 v45, 16, v46
v_cmp_eq_u32 vcc, 0, v1
v_and_b32 v232, 15, v1
v_lshrrev_b32 v233, 4, v1
v_cndmask_b32 v45, 0, v45, vcc
v_lshlrev_b32 v234, 3, v233
v_sub_u32 v234, v232, v234
v_add_u32 v240, 25, v234
v_add_u32 v234, 29, v234
v_lshrrev_b32 v241, 3, v234
v_lshl_add_u32 v234, v234, 3, s52
v_lshl_add_u32 v234, v241, 4, v234
v_lshrrev_b32 v241, 3, v240
v_lshl_add_u32 v240, v240, 3, s52
v_lshl_add_u32 v240, v241, 4, v240
v_lshlrev_b32 v235, 2, v233
v_sub_u32 v235, v232, v235
v_add_u32 v235, 12, v235
v_lshl_add_u32 v236, v235, 2, s52
v_lshl_add_u32 v235, v235, 3, s52
v_add_u32 v236, {T3_O}, v236
v_lshlrev_b32 v{vUB}, 5, v232
v_lshl_add_u32 v{vUB}, v233, 4, v{vUB}
v_add_u32 v{vUB}, s53, v{vUB}
v_lshrrev_b32 v{vT0}, 1, v232
v_add_u32 v{vT0}, v{vT0}, v233
v_and_b32 v{vT0}, 3, v{vT0}
v_and_b32 v{vT1}, 7, v232
v_lshlrev_b32 v{vT1}, 6, v{vT1}
v_lshl_add_u32 v{vT1}, v{vT0}, 4, v{vT1}
v_lshrrev_b32 v{vT0}, 3, v232
v_mul_u32_u24 v{vT0}, {TROW}, v{vT0}
v_add3_u32 v{vYW}, v{vT0}, v{vT1}, s5
""".strip().split("\n")
late = [f"v_and_b32 v{KS+i}, v{KS+i}, v{BOX(0)+i}" for i in range(4)]
for r in [KS + i for i in range(4)] + [MK3 + i for i in range(4)]:
    late.append(f"v_pk_lshlrev_b16 v{r}, 2, v{r} op_sel_hi:[0,1]")
    late.append(f"v_pk_ashrrev_i16 v{r}, 15, v{r} op_sel_hi:[0,1]")
boxq = []
for dst, arr, offs in [(BOX(0), 0, 19), (KS, 0, 20), (MK3, 0, 22), (BOX(1), 1, 15), (BOX(2), 0, 11), (BOX(3), 2, 15), (BOX(4), 3, 15)]:
    o = arr * 64 + offs
    boxq.append(f"ds_read2_b32 {vr(dst,2)}, v92 offset0:{o} offset1:{o-2}")
    boxq.append(f"ds_read2_b32 {vr(dst+2,2)}, v92 offset0:{o-4} offset1:{o-6}")
filler += [f"s_lshl_b32 s5, s45, 2", f"v_add_u32 v{vT1}, s5, v{vFL}"]
filler += f"""s_mul_i32 s5, s44, {PART_STRIDE}
s_lshl_b32 s6, s45, 5
s_add_u32 s5, s5, s6
s_add_u32 s5, s5, {PART_OFF}
v_lshlrev_b32 v2, 7, v2
v_lshl_add_u32 v2, v3, 4, v2
v_add_u32 v2, s5, v2
v_add_u32 v3, 4096, v2
s_and_b32 s18, s4, 0xff
s_bfe_u32 s19, s4, 0x80008
s_bfe_u32 s20, s4, 0x80010
s_lshr_b32 s21, s4, 24
s_mov_b32 s56, 0x3fffff
s_mov_b32 s57, 0x3fffff""".split("\n")
for f in filler: A(f)
A("s_barrier")
stamp(4); fstamp(1, 6); fstamp(2, 1)
if OPT["mprio"]: A(f"s_setprio {OPT['mprio']}")
for s in range(NB): kg_issue(s)
for s in range(16):
    q.wait(("kb", s))
    b = 156 + 8 * (s % NB)
    A(f"v_mfma_f32_32x32x16_bf16 v[140:155], {vr(b,4)}, {vr(b+4,4)}, {'0' if s == 0 else 'v[140:155]'}")
    if s + NB < 16: kg_issue(s + NB)
    else:
        for _ in range(3):
            if boxq: A(boxq.pop(0)); q.issue("box")
assert not boxq
A(f"ds_read_b32 v{vT2}, v{vFL}"); q.issue(("flag", 0))
A.nop(11)
fstamp(2, 2)
K = lambda i: f"v{140+i}"
A(f"""
v_add_f32 {K(0)}, {K(0)}, v45
v_cvt_pk_bf16_f32 v215, {K(2)}, {K(1)}
v_cvt_pk_bf16_f32 v212, {K(3)}, {K(2)}
v_cvt_pk_bf16_f32 v214, {K(4)}, {K(3)}
v_cvt_pk_bf16_f32 v213, {K(1)}, {K(0)}
v_cvt_pk_bf16_f32 v222, {K(0)}, 0
v_cvt_pk_bf16_f32 v217, {K(5)}, {K(5)}
v_cvt_pk_bf16_f32 v219, {K(6)}, {K(5)}
v_cvt_pk_bf16_f32 v216, {K(7)}, {K(6)}
v_cvt_pk_bf16_f32 v218, {K(7)}, {K(7)}
v_cvt_pk_bf16_f32 v220, {K(8)}, {K(9)}
v_cvt_pk_bf16_f32 v221, {K(10)}, {K(11)}
v_cvt_pk_bf16_f32 v223, {K(9)}, {K(9)}
s_waitcnt lgkmcnt(0)
v_readfirstlane_b32 s5, v{vT2}
ds_write_b128 v208, v[212:215] offset:160
ds_write2_b32 v206, v213, v215 offset0:32 offset1:34
ds_write2_b32 v208, v212, v214 offset0:45 offset1:47
ds_write_b128 v207, v[216:219] offset:160
ds_write2_b32 v205, v217, v219 offset0:32 offset1:34
ds_write2_b32 v207, v216, v218 offset0:45 offset1:47
s_mov_b64 exec, 1
ds_write2_b32 v211, v222, v222 offset0:{UBY(13)//4} offset1:{UBY(15)//4+1}
s_mov_b64 exec, -1
""")
q.known_all()
for _ in range(7): q.issue("kw")
fstamp(2, 3)
kq = []
for m in [x for i in range(8) for x in (i, 8 + i)]:
    kq.append((("K", KD(m)), f"ds_read_b64 {vr(KD(m),2)}, v234 offset:{320*m}"))
    kq.append((("K", KD(m)), f"ds_read_b64 {vr(KD(m)+2,2)}, v240 offset:{320*m}"))
kq.append(("tw", f"ds_write_b32 v209, v220 offset:{T2_O+128}"))
kq.append(("tw", f"ds_write_b16 v210, v221 offset:{T3_O+64}"))
kq.append(("tw", f"ds_write_b16_d16_hi v210, v221 offset:{T3_O+64+64}"))
kq.append((("K", KD(16)), f"ds_read_b64 {vr(KD(16),2)}, v234 offset:{320*16}"))
kq.append((("K", KD(16)), f"ds_read_b64 {vr(KD(16)+2,2)}, v240 offset:{320*16}"))
for d in (2, 3, 4):
    for hh in (0, 1):
        o = 16 * d - 28 - 2 * hh
        kq.append((("K", T2(d, hh)), f"ds_read_b64 {vr(T2(d,hh),2)}, v235 offset:{T2_O+8*o}"))
        kq.append((("K", T2(d, hh)), f"ds_read_b64 {vr(T2(d,hh)+2,2)}, v235 offset:{T2_O+8*(o-1)}"))
for d in (4, 5, 6, 7):
    o = 16 * d - 60
    kq.append((("K", T3(d)), f"ds_read2_b32 {vr(T3(d),2)}, v236 offset0:{o} offset1:{o-1}"))
    kq.append((("K", T3(d)), f"ds_read2_b32 {vr(T3(d)+2,2)}, v236 offset0:{o-2} offset1:{o-3}"))
def kq_issue(n):
    for _ in range(n):
        if kq:
            t, x = kq.pop(0); A(x); q.issue(t)
kq_issue(4)
stamp(5); fstamp(2, 4)
def wait_flag(addr, off, val, nm, tmp):
    l = A.newlabel(nm); lo = A.newlabel(nm + "o")
    A(f"s_mov_b32 s54, {SPIN_MAX}")
    A.label(l)
    A(f"ds_read_b32 v{tmp}, v{addr} offset:{off}")
    A("s_waitcnt lgkmcnt(0)")
    A(f"v_readfirstlane_b32 s5, v{tmp}")
    A(f"s_sub_u32 s54, s54, 1\ns_cbranch_scc1 {lo}")
    A(f"s_cmp_lt_u32 s5, {val}\ns_cbranch_scc1 {l}")
    A.label(lo)
A("s_cmp_lg_u32 s5, 0\ns_cbranch_scc1 L_fast01")
ACC = lambda j: 140 + 4 * (j % 4)
SG2 = lambda b, hh: [156, 164, 232][b % 3] + 4 * hh
SG3 = lambda b: [240, 252, 204, 224][b]
WR = [196, 200]
NBR = 6
BA = lambda i: 208 + 4 * i if i < 4 else [None] * 4 and (228 if i == 4 else 4)
loads = []
for j in range(8):
    loads.append(("B", 8 * j))
    if j >= 2: loads += [("W0", j - 2), ("W1", j - 2)]
    for i in range(1, 8): loads.append(("B", 8 * j - i))
slot = {}
ring = 0
for k in loads:
    if k[0] == "B": slot[k] = BR(ring % NBR); ring += 1
    else: slot[k] = WR[int(k[0][1])]
touched = set()
prog = []
def MF(d, a, b, c, need=None):
    prog.append(dict(text=f"v_mfma_f32_16x16x32_bf16 {vr(d,4)}, {vr(a,4)}, {vr(b,4)}, {c}", need=need, valu=[], ds=[]))
def mf(j, a, b, need=None):
    c = vr(ACC(j), 4) if j in touched else "0"; touched.add(j)
    MF(ACC(j), a, b, c, need)
ydone = {}
for j in range(8):
    k0 = ("B", 8 * j)
    mf(j, KD(0), slot[k0], k0)
    if j + 1 <= 7: mf(j + 1, KD(8), slot[k0])
    cv = []; old = []; new = []
    if j >= 2:
        b = j - 2; w0, w1 = WR
        for i, bx in ((0, 0), (1, 1), (2, 2)) + (((4, 3),) if b <= 3 else ()):
            MF(BA(i), w0, BOX(bx), "0", ("W0", b))
        mf(j, KD(16), w0)
        for i, bx in ((3, 1),) + (((5, 4),) if b <= 3 else ()):
            MF(BA(i), w1, BOX(bx), "0", ("W1", b))
        for r in range(4): cv.append(f"v_cvt_pk_bf16_f32 v{SG2(b,r//2)+2*(r%2)}, v{BA(0)+r}, v{BA(1)+r}")
        for r in range(4): cv.append(f"v_cvt_pk_bf16_f32 v{SG2(b,r//2)+2*(r%2)+1}, v{BA(2)+r}, v{BA(3)+r}")
        if b <= 3:
            for r in range(4): cv.append(f"v_cvt_pk_bf16_f32 v{SG3(b)+r}, v{BA(4)+r}, v{BA(5)+r}")
        for d in (4, 3):
            if j - d >= 0: old += [(j, SG2(j - d, 0), T2(d, 0)), (j, SG2(j - d, 1), T2(d, 1))]
        for d in (7, 6, 5, 4):
            if j - d >= 0: old.append((j, SG3(j - d), T3(d)))
        new = [(j, SG2(b, 0), T2(2, 0)), (j, SG2(b, 1), T2(2, 1))]
        if b <= 3: mf(j + 2, KS, w0)
    for f in old: mf(*f)
    start = len(prog)
    for i in range(1, 8):
        k = ("B", 8 * j - i)
        mf(j, KD(i), slot[k], k)
        if i == 7:
            for f in new: mf(*f)
            ydone[j] = len(prog) - 1
        if j + 1 <= 7: mf(j + 1, KD(8 + i), slot[k])
    if cv:
        lastbox = max(i for i, e in enumerate(prog[:start]) if e["text"].rstrip().endswith(", 0") and f"v[{BA(3)}:" in e["text"] or f"v[{BA(5)}:" in e["text"].split(",")[0])
        pos = lastbox + 4
        per = 2 if j == 7 else 1
        while cv:
            for _ in range(per):
                if cv: prog[pos]["valu"].append(cv.pop(0))
            pos += 1
AHEAD = 4
first_use = {}
for i, e in enumerate(prog):
    if e["need"] and e["need"] not in first_use: first_use[e["need"]] = i
def ld_text(k):
    off = {"B": 480 + 64 * k[1], "W0": 480 + 512 * k[1], "W1": 464 + 512 * k[1]}[k[0]]
    return f"ds_read_b128 {vr(slot[k],4)}, v{vUB} offset:{off}"
last_use = {}
for i, e in enumerate(prog):
    for k in loads:
        pass
import re as _re
def uses(e, reg): return f"v[{reg}:{reg+3}]" in e["text"].split(",", 1)[1]
issue_at = {}
for n, k in enumerate(loads):
    if n <= AHEAD: continue
    p = first_use[loads[n - AHEAD - 1]]
    prev = [m for m in range(n) if slot[loads[m]] == slot[k]]
    if prev:
        lu = max(i for i in range(first_use[loads[prev[-1]]], first_use[k]) if uses(prog[i], slot[k]))
        p = max(p, lu)
    if n > AHEAD + 1: p = max(p, issue_at[loads[n - 1]])
    issue_at[k] = p
    prog[p]["ds"].append(("ld", k))
YD = OPT["yd"]
for j in range(7):
    prog[ydone[j] + YD]["ds"].append(("y", j)); prog[ydone[j] + YD + 1]["ds"].append(("yf", j))
for j in range(1, 8): prog[max(0, issue_at[("B", 8 * j)] - 6)]["ds"].insert(0, ("flag", j))
def ywrite(j):
    A(f"ds_write_b128 v{vYW}, {vr(ACC(j),4)} offset:{2*TROW*j}"); q.issue("yw")
def yflag(j):
    A(f"ds_write_b32 v{vT1}, v{vONE} offset:{48+16*j}"); q.issue("yf")
fix = ["v_readlane_b32 s6, v218, 63", "v_readlane_b32 s7, v223, 63"] + [f"v_and_b32 v{KS+i}, s7, v{KS+i}" for i in range(4)]
for n, f in enumerate(late): prog[n * 4 // 5]["valu"].append(f)
for n, f in enumerate(fix): prog[18 + n + (n >= 2)]["valu"].append(f)
for n in range(4): prog[26 + n]["valu"].append(f"v_and_or_b32 v{KD(16)+n}, v{MK3+n}, s6, v{KD(16)+n}")
prog[26]["pre"] = ("K", KD(16))
prog[40]["vm"] = True
def part_loads():
    A("global_load_dwordx4 v[56:59], v2, s[42:43] sc1\ns_mov_b64 exec, s[56:57]\nglobal_load_dwordx4 v[60:63], v3, s[42:43] sc1\ns_mov_b64 exec, -1")
if OPT["pl"] > 0:
    p = len(prog) - OPT["pl"]
    assert p - 2 >= first_use[("B", 56)]
    for k in range(4): prog[p - 2 + k // 2]["valu"].append(f"v_mov_b32 v{60+k}, s{18+k}")
    prog[p]["pl"] = True
slow = []
def emit(lo, hi, sfx):
    if lo == 0:
        stamp(6)
        for n in range(AHEAD + 1):
            A(ld_text(loads[n])); q.issue(loads[n])
            if 0 < n < OPT["pre"]: kq_issue(4)
    for i in range(lo, hi):
        e = prog[i]
        if e["need"] and e["need"][0] == "B" and e["need"][1] % 8 == 0 and first_use[e["need"]] == i : fstamp(3, 1 + e["need"][1] // 8)
        if e["need"]: q.wait(e["need"])
        for kr in _re.findall(r"v\[(\d+):", e["text"])[1:3]:
            if ("K", int(kr)) in q.q: q.wait(("K", int(kr)))
            assert all(t != ("K", int(kr)) for t, _ in kq), e["text"]
        if e.get("pre"): q.wait(e["pre"])
        if e.get("vm"): A("s_waitcnt vmcnt(0)")
        chk = [d for d in e["ds"] if d[0] == "ld" and d[1][0] == "B" and d[1][1] % 8 == 0 and d[1][1] > 0]
        if chk:
            q.wait(("flag", chk[0][1][1] // 8)); A(f"v_readfirstlane_b32 s5, v{vT2}")
        A(e["text"])
        if e.get("pl"): part_loads()
        for d in e["ds"]:
            if d[0] == "flag":
                A(f"ds_read_b32 v{vT2}, v{vFL} offset:{4*d[1]}"); q.issue(d)
            elif d[0] == "ld":
                if d in chk:
                    jj = d[1][1] // 8
                    A(f"s_cmp_eq_u32 s5, 0\ns_cbranch_scc1 L_uslow{jj}{sfx}\nL_uok{jj}{sfx}:")
                    slow.append((jj, sfx))
                A(ld_text(d[1])); q.issue(d[1])
            elif d[0] == "y": ywrite(d[1])
            else: yflag(d[1])
        kq_issue(2 if i < 16 else (1 if e["ds"] else 2))
        for v in e["valu"]: A(v)
import copy
JOIN = 32
kq_save, q_save = list(kq), copy.deepcopy(q)
kq_issue(len(kq))
wait_flag(vFL, 0, 1, "u0", vT2); q.known_all()
emit(0, JOIN, "a")
A.label("L_join")
emit(JOIN, len(prog), "")
A.nop(8); ywrite(7); yflag(7)
stamp(7); fstamp(3, 9)
if OPT["nopatch"]: A("s_endpgm")
XST = 16 * TROW
if OPT["pl"] == 0:
    for k in range(4): A(f"v_mov_b32 v{60+k}, s{18+k}")
    part_loads()
A("v_lshrrev_b32 v9, 5, v1")
lw = A.newlabel("st"); lwo = A.newlabel("sto")
A(f"""
s_lshl_b32 s5, s45, 3
v_lshl_add_u32 v24, v9, 2, s5
v_add_u32 v24, v24, v{vFL}
v_bfe_u32 v25, v1, 4, 1
s_mov_b32 s54, {SPIN_MAX}
{lw}:
ds_read_b128 v[28:31], v{vFL} offset:176
ds_read_b128 v[32:35], v{vFL} offset:{48+16*7}
ds_read_b32 v26, v24 offset:192
s_sub_u32 s54, s54, 1
s_cbranch_scc1 {lwo}
s_waitcnt lgkmcnt(0)
v_and_b32 v28, v28, v29
v_and_b32 v30, v30, v31
v_and_b32 v32, v32, v33
v_and_b32 v34, v34, v35
v_and_b32 v28, v28, v30
v_and_b32 v32, v32, v34
v_and_b32 v28, v28, v32
v_cmp_eq_u32 vcc, 0, v28
s_cbranch_vccnz {lw}
{lwo}:
v_and_b32 v27, 0x7ff, v26
v_sub_u32 v27, 2047, v27
v_mul_u32_u24 v28, {2*USTR}, v25
v_lshl_add_u32 v28, v27, 1, v28
v_add_u32 v28, {UB+512}, v28
v_lshlrev_b32 v29, 3, v27
v_lshl_add_u32 v29, v25, 2, v29
v_lshrrev_b32 v30, 7, v27
v_mul_u32_u24 v30, {TROW}, v30
v_bfe_u32 v31, v27, 4, 3
v_lshl_add_u32 v30, v31, 6, v30
v_lshrrev_b32 v31, 2, v27
v_lshrrev_b32 v32, 5, v27
v_add_u32 v31, v31, v32
v_and_b32 v31, 3, v31
v_lshl_add_u32 v30, v31, 4, v30
v_and_b32 v31, 3, v27
v_lshl_add_u32 v30, v31, 2, v30
v_lshl_add_u32 v30, v25, 10, v30
ds_read_u16 v36, v28
ds_read_u16 v37, v28 offset:{USTR}
ds_read_b32 v38, v29 offset:{XST}
ds_read_b32 v40, v30
ds_read_b32 v41, v30 offset:512
s_lshl_b32 s5, s44, 3
v_mul_u32_u24 v42, 1280, v27
v_lshl_add_u32 v42, v25, 2, v42
v_add_u32 v42, s5, v42
v_not_b32 v31, v26
v_ashrrev_i32 v31, 31, v31
v_or_b32 v31, 0x80000000, v31
v_xor_b32 v31, v26, v31
v_and_b32 v31, 0xffff0000, v31
v_mul_f32 v31, {NLOG2E:#x}, v31
v_exp_f32 v31, v31
s_waitcnt lgkmcnt(0)
v_add_f32 v31, 1.0, v31
v_rcp_f32 v43, v31
v_lshlrev_b32 v36, 16, v36
v_lshlrev_b32 v37, 16, v37
v_and_b32 v39, 0xffff0000, v38
v_lshlrev_b32 v38, 16, v38
s_mov_b32 s54, {SPIN_MAX}
""")
lP = A.newlabel("par"); lPo = A.newlabel("paro")
if OPT["pl"] < 0:
    for k in range(4): A(f"v_mov_b32 v{60+k}, s{18+k}")
    part_loads()
A.label(lP)
A("s_waitcnt vmcnt(0)")
for k in range(8): A(f"v_xor_b32 v{44+k}, s{18+k%4}, v{56+k}")
A(f"""
v_or3_b32 v52, v44, v45, v46
v_or3_b32 v53, v47, v48, v49
v_or3_b32 v52, v52, v50, v51
v_or_b32 v52, v52, v53
v_and_b32 v52, 0xff, v52
v_cmp_ne_u32 vcc, 0, v52
s_cbranch_vccz {lPo}
s_sub_u32 s54, s54, 1
s_cbranch_scc1 {lPo}
""")
if OPT["rt"]:
    A("s_and_b64 s[58:59], vcc, s[56:57]\ns_mov_b64 exec, vcc\nglobal_load_dwordx4 v[56:59], v2, s[42:43] sc1\ns_or_b64 exec, s[58:59], 1\nglobal_load_dwordx4 v[60:63], v3, s[42:43] sc1\ns_mov_b64 exec, -1")
else: part_loads()
A(f"s_branch {lP}")
A.label(lPo)
stamp(8)
for k in range(4): A(f"v_add_f32 v{44+k}, v{44+k}, v{48+k}")
A("s_nop 0\nv_permlane16_swap_b32 v44, v46\nv_permlane16_swap_b32 v45, v47\nv_add_f32 v44, v44, v46\nv_add_f32 v45, v45, v47")
for sh in (1, 2, 4, 8):
    A(f"s_nop 0\nv_add_f32_dpp v44, v44, v44 row_shr:{sh} row_mask:0xf bank_mask:0xf bound_ctrl:0\nv_add_f32_dpp v45, v45, v45 row_shr:{sh} row_mask:0xf bank_mask:0xf bound_ctrl:0")
A(f"""
v_fma_f32 v44, v44, v43, v36
v_fma_f32 v45, v45, v43, v37
v_mul_f32 v46, {NLOG2E:#x}, v44
v_mul_f32 v47, {NLOG2E:#x}, v45
v_exp_f32 v46, v46
v_exp_f32 v47, v47
v_mul_f32 v44, v44, v40
v_mul_f32 v45, v45, v41
v_add_f32 v46, 1.0, v46
v_add_f32 v47, 1.0, v47
v_rcp_f32 v46, v46
v_rcp_f32 v47, v47
s_mov_b32 exec_lo, 0x80008000
s_mov_b32 exec_hi, 0x80008000
v_fma_f32 v44, v44, v46, v38
v_fma_f32 v45, v45, v47, v39
v_cvt_pk_bf16_f32 v44, v44, v45
global_store_dword v42, v44, s[40:41]
""")
stamp(9)
if OPT["stamps"]:
    A("s_waitcnt vmcnt(0)")
    stamp(10)
finish(11)
A.label("L_fast01")
kq[:] = kq_save; q.q, q.done = q_save.q, q_save.done
emit(0, JOIN, "b")
assert not kq
q.wait(("K", T3(7)))
A("s_branch L_join")
for jj, sfx in slow:
    A.label(f"L_uslow{jj}{sfx}")
    wait_flag(vFL, 4 * jj, 1, "us", vT2)
    A(f"s_branch L_uok{jj}{sfx}")
A.label("L_helper")
A("s_setprio 0")
XF = [112, 144]; GG = [128, 160]; XR = [96, 104]; ST = [8, 16]; UU = [24, 32]
A(f"""
s_lshl_b32 s5, s45, 11
s_add_u32 s5, s5, {G1_OFF}
v_lshl_add_u32 v92, v1, {4 if OPT['g1l'] else 5}, s5
s_lshl_b32 s5, s55, 11
v_add_u32 v93, s5, v92
""")
G1A = f"global_load_dwordx4 v[8:11], v92, s[42:43] sc1\nglobal_load_dwordx4 v[12:15], v92, s[42:43] offset:{G1S} sc1"
if OPT["gb1"] or OPT["g1pre"]: A(G1A)
A("s_waitcnt lgkmcnt(0)\ns_barrier")
stamp(4); fstamp(6, 1); fstamp(7, 3)
gather(0, OPT["gan"], 4)
if OPT["gb1"]:
    assert OPT["gan"] == 4 and OPT["gbn"] == 0
    gather(1, 0, OPT["gb1"])
elif OPT["allb"]:
    gather(1, OPT["gbn"], 4)
    A(G1A)
    A("global_load_dwordx4 v[16:19], v93, s[42:43] sc1\nglobal_load_dwordx4 v[20:23], v93, s[42:43] offset:16 sc1")
elif not OPT["g1pre"]: A(G1A)
A(f"""
s_lshl_b32 s5, s45, 9
s_add_u32 s5, s5, {UB+512}
v_lshl_add_u32 v91, v1, 3, s5
v_lshrrev_b32 v2, 3, v1
v_add_u32 v2, v2, v1
v_and_b32 v2, 3, v2
v_and_b32 v3, 28, v1
v_add_u32 v2, v2, v3
v_lshlrev_b32 v2, 4, v2
v_lshrrev_b32 v3, 5, v1
v_mul_u32_u24 v3, {TROW}, v3
s_mul_i32 s5, s45, {2*TROW}
v_add3_u32 v90, v2, v3, s5
s_lshl_b32 s5, s45, 2
v_add_u32 v89, s5, v{vFL}
s_lshl_b32 s5, s45, 4
v_add_u32 v87, s5, v{vFL}
s_lshl_b32 s5, s45, 11
s_add_u32 s5, s5, {16*TROW}
v_lshl_add_u32 v86, v1, 5, s5
s_lshl_b32 s5, s55, 9
v_add_u32 v232, s5, v91
s_mul_i32 s5, s55, {2*TROW}
v_add_u32 v233, s5, v90
s_lshl_b32 s5, s55, 2
v_add_u32 v234, s5, v89
s_lshl_b32 s5, s55, 4
v_add_u32 v235, s5, v87
s_lshl_b32 s5, s55, 11
v_add_u32 v236, s5, v86
v_and_b32 v88, 7, v1
v_lshl_add_u32 v237, v88, 2, v{vFL}
v_lshlrev_b32 v88, 4, v88
v_add_u32 v88, {SEL_OFF}, v88
s_lshl_b32 s5, s9, {7 if OPT['rep8'] else 31}
s_and_b32 s5, s5, 0x380
v_add_u32 v88, s5, v88
s_lshl_b32 s5, s45, 8
s_add_u32 s5, s5, {MARK}
v_add_u32 v238, s5, v4
s_lshl_b32 s5, s55, 8
v_add_u32 v239, s5, v238
""")
def unpack_x(t):
    for r in range(4):
        for hw in range(2):
            src = XR[t] + 2 * r + hw
            A(f"v_lshlrev_b32 v{XF[t]+4*(2*hw)+r}, 16, v{src}")
            A(f"v_and_b32 v{XF[t]+4*(2*hw+1)+r}, 0xffff0000, v{src}")
def poll4(s, av, first_wait):
    l = A.newlabel("g"); lo = A.newlabel("go")
    A(f"s_mov_b32 s54, {SPIN_MAX}")
    A(f"s_waitcnt vmcnt({first_wait})")
    A.label(l)
    A(f"""
v_xor_b32 v2, s4, v{s+1}
v_xor_b32 v3, s4, v{s+3}
v_xor_b32 v5, s4, v{s+5}
v_xor_b32 v6, s4, v{s+7}
v_or3_b32 v2, v2, v3, v5
v_or_b32 v2, v2, v6
v_cmp_ne_u32 vcc, 0, v2
s_cbranch_vccz {lo}
s_sub_u32 s54, s54, 1
s_cbranch_scc1 {lo}
global_load_dwordx4 {vr(s,4)}, v{av}, s[42:43] sc1
global_load_dwordx4 {vr(s+4,4)}, v{av}, s[42:43] offset:{G1S} sc1
s_waitcnt vmcnt(0)
s_branch {l}
""")
    A.label(lo)
def normalize(t):
    s = ST[t]
    for r in range(4): A(f"v_and_b32 v{180+r}, 0xffff0000, v{s+2*r}")
    for r in range(4): A(f"v_rcp_f32 v{180+r}, v{180+r}")
    for r in range(4): A(f"v_lshlrev_b32 v{176+r}, 16, v{s+2*r}")
    for r in range(4): A(f"v_mul_f32 v{176+r}, v{176+r}, v{180+r}")
    for ch in range(4):
        N = GG[t] + 4 * ch
        for r in range(4): A(f"v_fma_f32 v{N+r}, v{XF[t]+4*ch+r}, v{180+r}, -v{176+r}")
        for p in range(2): A(f"v_cvt_pk_bf16_f32 v{UU[t]+2*ch+p}, v{N+2*p}, v{N+2*p+1}")
    for ch in range(4): A(f"ds_write_b64 v{[91,232][t]}, {vr(UU[t]+2*ch,2)} offset:{USTR*ch}")
    A(f"ds_write_b32 v{[89,234][t]}, v{vONE}")
def pre(t, rows):
    for r in rows:
        N = lambda ch: GG[t] + 4 * ch + r
        E = 188
        for i in range(4): A(f"v_mul_f32 v{E+i}, {NLOG2E:#x}, v{N(i)}")
        for i in range(4): A(f"v_exp_f32 v{E+i}, v{E+i}")
        for i in range(4): A(f"v_add_f32 v{E+i}, 1.0, v{E+i}")
        for i in range(4): A(f"v_rcp_f32 v{E+i}, v{E+i}")
        for i in range(4): A(f"v_mul_f32 v{N(i)}, v{N(i)}, v{E+i}")
def precompute(t): pre(t, range(4))
def yflag_read(t): A(f"ds_read_b128 v[192:195], v{[87,235][t]} offset:48")
def yflag_test():
    A("v_and_b32 v192, v192, v193\nv_and_b32 v194, v194, v195\nv_and_b32 v192, v192, v194\ns_nop 0\nv_readfirstlane_b32 s5, v192\ns_cmp_lg_u32 s5, 0")
def ywait(t):
    l = A.newlabel("y"); lo = A.newlabel("yo")
    A(f"s_mov_b32 s54, {SPIN_MAX}")
    A.label(l)
    yflag_read(t)
    A(f"s_sub_u32 s54, s54, 1\ns_cbranch_scc1 {lo}\ns_waitcnt lgkmcnt(0)")
    yflag_test()
    if OPT["slp"]: A(f"s_cbranch_scc1 {lo}\ns_sleep {OPT['slp']}\ns_branch {l}")
    else: A(f"s_cbranch_scc0 {l}")
    A.label(lo)
def yread(t):
    for ch in range(4): A(f"ds_read_b128 {vr(200+4*ch,4)}, v{[90,233][t]} offset:{512*ch}")
    A("s_waitcnt lgkmcnt(0)")
MSK = [18, 26]
def epi(t, rows, masked):
    for r in rows:
        for ch in range(4): A(f"v_fma_f32 v{200+4*ch+r}, v{200+4*ch+r}, v{GG[t]+4*ch+r}, v{XF[t]+4*ch+r}")
        A(f"v_cvt_pk_bf16_f32 v{216+2*r+8*t}, v{200+r}, v{204+r}")
        A(f"v_cvt_pk_bf16_f32 v{217+2*r+8*t}, v{208+r}, v{212+r}")
        if masked: A(f"s_mov_b64 exec, s[{MSK[t]+2*r}:{MSK[t]+2*r+1}]")
        if not OPT["nostore"]: A(f"global_store_dwordx2 v{94+t}, {vr(216+2*r+8*t,2)}, s[40:41] offset:{1280*r}{NTS}")
        if masked: A("s_mov_b64 exec, -1")
XST = 16 * TROW
def stash(t):
    A(f"ds_write_b128 v{[86,236][t]}, {vr(XR[t],4)}\nds_write_b128 v{[86,236][t]}, {vr(XR[t]+4,4)} offset:16")
def run_step(pr, pos, vq):
    def after(tag): return len(vq) - 1 - max(i for i, t in enumerate(vq) if t == tag)
    for c in pr[pos]:
        if c == "a": A(f"s_waitcnt vmcnt({after('xa')})"); unpack_x(0)
        elif c == "w": A(f"s_waitcnt vmcnt({after('xa')})")
        elif c == "u": unpack_x(0)
        elif c == "p": poll4(ST[0], 92, after("ga")); stamp(5)
        elif c == "B": gather(1); vq += ["xb"] * 4
        elif c == "b":
            A(f"global_load_dwordx4 v[16:19], v93, s[42:43] sc1\nglobal_load_dwordx4 v[20:23], v93, s[42:43] offset:{G1S} sc1"); vq += ["gb"] * 2
        elif c == "n": normalize(0); stamp(6)
        elif c == "0": precompute(0)
        elif c == "h": pre(0, [0, 1])
        elif c == "H": pre(0, [2, 3])
        elif c == "1": precompute(1)
        elif c == "N":
            A(f"s_waitcnt vmcnt({after('xb')})"); unpack_x(1); poll4(ST[1], 93, after("gb")); normalize(1); stamp(7)
        elif c == "S": A(SELLD); vq.append("sel")
        elif c in "Ee":
            ywait(0)
            if "sel" not in vq: A(SELLD); vq.append("sel")
            yread(0); epi(0, range(4), c == "e"); vq += ["sa"] * 4; stamp(8)
        elif c == "M":
            lS = A.newlabel("sel"); lSo = A.newlabel("selo")
            both = "e" in pr
            A(f"""
s_mov_b32 s54, {SPIN_MAX}
s_waitcnt vmcnt({after('sel')})
{lS}:
v_cmp_ne_u32 vcc, s4, v43
s_cbranch_vccz {lSo}
s_sub_u32 s54, s54, 1
s_cbranch_scc1 {lSo}
{SELLD}
s_waitcnt vmcnt(0)
s_branch {lS}
{lSo}:
v_and_b32 v44, 0x7ff, v40
v_sub_u32 v44, {MARK+2047}, v44
ds_write_b8 v44, v{vONE}
ds_write_b32 v237, v40 offset:192
{'ds_read_b32 v45, v238' if both else ''}
ds_read_b32 v46, v239
s_waitcnt lgkmcnt(0)
""")
            for t in ((0, 1) if both else (1,)):
                for r in range(4): A(f"v_cmp_eq_u32_sdwa s[{MSK[t]+2*r}:{MSK[t]+2*r+1}], v{45+t}, 0 src0_sel:BYTE_{r} src1_sel:DWORD")
        elif c == "k": A(f"s_waitcnt vmcnt({after('sa')})\nds_write_b32 v89, v{vONE} offset:176")
        elif c == "f": A(f"ds_write_b32 v89, v{vONE} offset:176")
        elif c == "G":
            ywait(1); yread(1); epi(1, range(4), True); vq += ["sb"] * 4; stamp(9)
        done = pr[:pr.index(c) + 1]
        if c in "EeN" and ("E" in done or "e" in done) and "N" in done: stash(0); stash(1)
SELLD = "global_load_dwordx4 v[40:43], v88, s[42:43] sc1"
progs = [OPT[f"prog{h}"] for h in range(4)]
def emit_tree(hs, pos, vq):
    while True:
        nxt = {}
        for h in hs: nxt.setdefault(progs[h][pos:pos+1] + ("e" if progs[h][pos:pos+1] == "M" and "e" in progs[h] else ""), []).append(h)
        if len(nxt) == 1:
            c = list(nxt)[0]
            if c == "": A("s_branch L_progend"); return
            run_step(progs[hs[0]], pos, vq); pos += 1
            continue
        groups = list(nxt.values()); labels = [A.newlabel("pg") for _ in groups]
        for g, l in list(zip(groups, labels))[1:]:
            for h in g: A(f"s_cmp_eq_u32 s45, {h}\ns_cbranch_scc1 {l}")
        for i, (g, l) in enumerate(zip(groups, labels)):
            if i: A.label(l)
            emit_tree(g, pos, list(vq))
        return
emit_tree([0, 1, 2, 3], 0, ["xa"] * 4 + ["ga"] * 2)
A.label("L_progend")
if OPT["stamps"]:
    A("s_waitcnt vmcnt(0)")
    stamp(10)
finish(11)

A.label("L_notconv")
PAIRTAB = 0x77277170 if OPT["bal"] else 0x77777210
def pair_of(dst, ps):
    A(f"""
s_lshl_b32 s6, s9, 2
s_lshr_b32 s6, {PAIRTAB:#x}, s6
s_and_b32 s6, s6, 7
s_cmp_ge_u32 {ps}, 3
s_cselect_b32 s6, s6, s9
s_lshl_b32 {dst}, {ps}, 3
s_add_u32 {dst}, {dst}, s6
""")
A("s_sub_u32 s62, s8, 20")
A(f"""
v_lshlrev_b32 v7, 4, v0
v_add_u32 v7, {KB}, v7
ds_write_b128 v7, v[32:35]
ds_write_b128 v7, v[32:35] offset:8192
s_lshr_b32 s63, s62, 1
""")
if OPT["gul"] == 1: gu_pf()
GU12 = OPT["gul"] == 2
if GU12:
    A(f"""
s_lshl_b32 s5, s49, 3
s_add_u32 s5, s5, s9
s_min_u32 s5, s5, 26
s_lshl_b32 s5, s5, 7
s_mul_i32 s6, s62, 54
v_add_u32 v23, s6, v1
v_min_u32 v23, 639, v23
v_mul_u32_u24 v23, 3456, v23
v_add_u32 v23, s5, v23
s_mov_b64 s[52:53], s[56:57]
""")
A("s_mov_b64 s[52:53], s[56:57]")
pair_of("s48", "s63")
A(f"""
s_lshl_b32 s48, s48, 1
s_and_b32 s5, s62, 1
s_add_u32 s48, s48, s5
s_mul_i32 s5, s49, {160*3456}
s_lshl_b32 s6, s48, 6
s_add_u32 s5, s5, s6
s_add_u32 s56, s56, s5
s_addc_u32 s57, s57, 0
s_mul_i32 s50, s3, 10240
s_mov_b32 m0, s50
v_lshrrev_b32 v5, 2, v1
v_mul_u32_u24 v5, 3456, v5
v_and_b32 v6, 3, v1
v_lshl_add_u32 v5, v6, 4, v5
""")
stats_pre()
stats(3 - (OPT["gul"] >= 2))
if OPT["gul"] == 3: A(f"s_mov_b64 exec, 0xfffff\nglobal_load_dword v251, v23, s[52:53]{NTW}\ns_mov_b64 exec, -1")
A("s_waitcnt lgkmcnt(0)")
A(f"""
s_barrier
{"s_cmp_eq_u32 s2, 255" if GU12 else ""}
{"s_cbranch_scc1 L_selector" if GU12 else ""}
{"s_mov_b32 exec_hi, 0x3fffff" if GU12 else ""}
{("global_load_dword v251, v23, s[52:53]" + NTW) if GU12 and OPT["gupf"] else ""}
s_mov_b64 exec, -1
s_cmp_lt_u32 s48, 54
s_cbranch_scc1 L_moe
s_cmp_lt_u32 s62, 8
s_cbranch_scc1 L_fin
s_sub_u32 s63, s62, 8
""")
A("s_cmp_eq_u32 s2, 255\ns_cbranch_scc1 L_selector")
pair_of("s5", "s63")
A(f"""
s_cmp_ge_u32 s5, {27 if OPT['dpf'] else 0}
s_cbranch_scc1 L_fin
s_mul_i32 s5, s5, {64*1280}
s_add_u32 s5, s5, s50
v_lshl_add_u32 v5, v1, 7, s5
global_load_dword v251, v5, s[38:39]{NTW}
v_add_u32 v5, 8192, v5
s_mov_b64 exec, 0xffff
global_load_dword v251, v5, s[38:39]{NTW}
s_branch L_fin
L_moe:
""")
A(f"""
v_and_b32 v116, 15, v1
v_lshrrev_b32 v117, 4, v1
s_mul_i32 s5, s48, {32*1280}
s_lshl_b32 s6, s3, 8
s_add_u32 s5, s5, s6
v_mul_u32_u24 v34, {8*1280}, v117
v_lshl_add_u32 v34, v116, 4, v34
v_add_u32 v34, s5, v34
v_add_u32 v35, {4*1280}, v34
""")
if OPT["dfirst"] == 1:
    A("s_cmp_ge_u32 s3, 5\ns_cbranch_scc1 L_nod0")
    for j in range(8):
        A(f"global_load_dwordx4 {vr(80+4*j,4)}, v{34 + j//4}, s[38:39] offset:{1280*(j%4)}{NTW}")
    A.label("L_nod0")
for i in range(10):
    A(f"global_load_lds_dwordx4 v5, s[56:57]{NTW}")
    if i < 9: A(f"s_add_u32 m0, m0, 1024\ns_add_u32 s56, s56, {16*3456}\ns_addc_u32 s57, s57, 0")
A(f"""
v_and_b32 v39, 7, v1
s_lshl_b32 s5, s9, 7
s_add_u32 s5, s5, {SEL_OFF}
v_lshl_add_u32 v36, v39, 4, s5
s_mov_b32 s60, 0x05040100
s_mov_b32 s61, 0x07060302
v_mov_b32 v112, 0x3f803f80
v_mov_b32 v113, 0x3f803f80
v_mov_b32 v114, 0x3f803f80
v_mov_b32 v115, 0x3f803f80
s_mov_b32 s62, 0x00ff00ff
s_mov_b32 s63, 0x00ff00ff
v_lshlrev_b32 v7, 9, v117
v_bfe_u32 v38, v1, 2, 2
v_lshl_add_u32 v7, v38, 6, v7
v_and_b32 v38, 1, v1
v_lshl_add_u32 v7, v38, 3, v7
v_bfe_u32 v38, v1, 1, 1
v_mul_u32_u24 v38, 10240, v38
s_lshl_b32 s5, s45, 4
v_add3_u32 v7, v7, v38, s5
v_add_u32 v37, 40960, v7
v_lshlrev_b32 v118, 4, v1
v_lshlrev_b32 v204, 6, v39
v_and_b32 v38, 1, v117
v_lshl_add_u32 v204, v38, 3, v204
v_lshrrev_b32 v38, 1, v117
v_lshl_add_u32 v204, v38, 2, v204
s_add_u32 s5, s5, {HB}
v_add_u32 v204, s5, v204
v_lshlrev_b32 v206, 6, v39
v_lshl_add_u32 v206, v117, 4, v206
v_add_u32 v206, {HB}, v206
v_mov_b32 v207, {ZBLK}
v_cndmask_b32 v208, v207, v206, s[62:63]
v_cndmask_b32 v207, v206, v207, s[62:63]
s_and_b32 s5, s4, 0xff
v_mov_b32 v212, s5
s_bfe_u32 s5, s4, 0x80008
v_mov_b32 v213, s5
s_bfe_u32 s5, s4, 0x80010
v_mov_b32 v214, s5
s_lshr_b32 s5, s4, 24
v_mov_b32 v215, s5
v_bfe_u32 v216, v1, 3, 1
v_lshl_add_u32 v216, v117, 3, v216
v_mul_u32_u24 v216, {PART_STRIDE}, v216
v_lshl_add_u32 v216, v39, 4, v216
s_mul_i32 s5, s3, {32*PART_STRIDE}
s_lshl_b32 s6, s48, 7
s_add_u32 s5, s5, s6
s_add_u32 s5, s5, {PART_OFF}
v_add_u32 v216, s5, v216
v_add_u32 v217, {2*PART_STRIDE}, v216
v_add_u32 v218, {4*PART_STRIDE}, v216
v_add_u32 v219, {6*PART_STRIDE}, v216
v_min_u32 v220, 8, v116
v_mul_u32_u24 v220, {XRS}, v220
v_lshl_add_u32 v220, v117, 4, v220
v_add_u32 v220, {XRB}, v220
s_mul_i32 s55, s45, {XRS}
s_add_u32 s55, s55, {XRB}
s_add_u32 s47, s45, 4
v_min_u32 v38, 79, v0
v_lshlrev_b32 v38, 4, v38
v_add_u32 v38, {XRB + 8*XRS}, v38
ds_write_b128 v38, v[112:115]
s_waitcnt vmcnt(0)
s_cmp_ge_u32 s3, 5
s_cbranch_scc1 L_nod
""")
if OPT["dfirst"] == 0:
    for j in range(8):
        A(f"global_load_dwordx4 {vr(80+4*j,4)}, v{34 + j//4}, s[38:39] offset:{1280*(j%4)}{NTW}")
A("L_nod:\nglobal_load_dwordx4 v[8:11], v36, s[42:43] sc1\ns_barrier")
if OPT["dfirst"] == 2:
    A("s_cmp_ge_u32 s3, 5\ns_cbranch_scc1 L_nod0")
    for j in range(8):
        A(f"global_load_dwordx4 {vr(80+4*j,4)}, v{34 + j//4}, s[38:39] offset:{1280*(j%4)}{NTW}")
    A.label("L_nod0")
A("s_cmp_ge_u32 s3, 4\ns_cbranch_scc1 L_nocs")
for ks in range(20):
    for hf in range(2):
        A(f"ds_read_b64_tr_b16 {vr(120+4*ks+2*hf,2)}, v{7 if ks < 10 else 37} offset:{(ks//5 % 2)*20480 + (ks%5)*2048 + 256*hf}")
A.label("L_nocs")
stamp(4)
lS = A.newlabel("msel"); lSo = A.newlabel("mselo")
A(f"""
s_mov_b32 s54, {SPIN_MAX}
s_mov_b32 m0, s55
s_waitcnt vmcnt(0)
{lS}:
v_cmp_ne_u32 vcc, s4, v11
s_cbranch_vccz {lSo}
s_sub_u32 s54, s54, 1
s_cbranch_scc1 {lSo}
global_load_dwordx4 v[8:11], v36, s[42:43] sc1
s_waitcnt vmcnt(0)
s_branch {lS}
{lSo}:
s_cmp_lt_u32 s3, 4
s_cbranch_scc1 L_norow
v_readlane_b32 s52, v8, s45
v_readlane_b32 s53, v8, s47
s_and_b32 s52, s52, 0x7ff
s_and_b32 s53, s53, 0x7ff
s_sub_u32 s52, 2047, s52
s_sub_u32 s53, 2047, s53
s_mul_i32 s52, s52, 1280
s_mul_i32 s53, s53, 1280
s_add_u32 s56, s16, s52
s_addc_u32 s57, s17, 0
s_add_u32 s58, s16, s53
s_addc_u32 s59, s17, 0
global_load_lds_dwordx4 v118, s[56:57]
global_load_lds_dword v4, s[56:57] offset:1024
s_add_u32 m0, m0, {4*XRS}
s_nop 0
global_load_lds_dwordx4 v118, s[58:59]
global_load_lds_dword v4, s[58:59] offset:1024
L_norow:
""")
stamp(5)
for qq in range(8):
    for i in range(4):
        A(f"v_perm_b32 v{224+4*qq+i}, v{80+4*(2*i+1)+qq//2}, v{80+4*(2*i)+qq//2}, {'s60' if qq % 2 == 0 else 's61'}")
A(f"""
s_mov_b32 s60, 0xffffff00
v_and_b32 v33, 0xffff0000, v9
v_lshlrev_b32 v32, 16, v9
v_rcp_f32 v33, v33
v_xor_b32 v32, 0x80000000, v32
v_mul_f32 v30, {NLOG2E:#x}, v33
v_mul_f32 v31, v33, v33
s_waitcnt vmcnt(0) lgkmcnt(0)
s_barrier
""")
stamp(6)
A("s_cmp_ge_u32 s3, 4\ns_cbranch_scc1 L_nored")
mq = LdsQ()
XB = [40, 44, 48, 52, 56, 12, 16, 20]
def xr(ks): A(f"ds_read_b128 {vr(XB[ks % 8],4)}, v220 offset:{64*ks}"); mq.issue(ks)
for ks in range(7): xr(ks)
for ks in range(20):
    mq.wait(ks)
    A(f"v_mfma_f32_16x16x32_bf16 v[60:63], {vr(120+4*ks,4)}, {vr(XB[ks % 8],4)}, {'0' if ks == 0 else 'v[60:63]'}")
    if ks + 7 < 20: xr(ks + 7)
stamp(7)
A(f"""
s_nop 7
v_fmac_f32_dpp v60, v60, v32 row_ror:8 row_mask:0xf bank_mask:0xf
v_fmac_f32_dpp v62, v62, v32 row_ror:8 row_mask:0xf bank_mask:0xf
v_fmac_f32_dpp v61, v61, v32 row_ror:8 row_mask:0xf bank_mask:0xf
v_fmac_f32_dpp v63, v63, v32 row_ror:8 row_mask:0xf bank_mask:0xf
v_permlane32_swap_b32 v60, v62
s_nop 0
v_permlane32_swap_b32 v61, v63
v_mul_f32 v8, v60, v30
v_mul_f32 v9, v61, v30
v_exp_f32 v8, v8
v_exp_f32 v9, v9
v_mul_f32 v60, v60, v62
v_mul_f32 v61, v61, v63
v_add_f32 v8, 1.0, v8
v_add_f32 v9, 1.0, v9
v_rcp_f32 v8, v8
v_rcp_f32 v9, v9
v_mul_f32 v60, v60, v31
v_mul_f32 v61, v61, v31
v_mul_f32 v60, v60, v8
v_mul_f32 v61, v61, v9
s_mov_b64 exec, s[62:63]
v_cvt_pk_bf16_f32 v8, v60, v61
ds_write_b32 v204, v8
s_mov_b64 exec, -1
L_nored:
s_waitcnt lgkmcnt(0)
s_barrier
""")
stamp(8)
A(f"""
s_cmp_ge_u32 s3, 5
s_cbranch_scc1 L_fin
ds_read_b128 v[8:11], v208
ds_read_b128 v[12:15], v207
s_waitcnt lgkmcnt(1)
""")
for qq in range(4): A(f"v_mfma_f32_16x16x32_bf16 {vr(56+4*qq,4)}, {vr(224+4*qq,4)}, v[8:11], 0")
A("s_waitcnt lgkmcnt(0)")
for qq in range(4): A(f"v_mfma_f32_16x16x32_bf16 {vr(56+4*qq,4)}, {vr(240+4*qq,4)}, v[12:15], {vr(56+4*qq,4)}")
A.nop(5)
for r in range(4):
    for qq in range(4): A(f"v_bfi_b32 v{72+4*r+qq}, s60, v{56+4*qq+r}, v{212+qq}")
    A(f"global_store_dwordx4 v{216+r}, {vr(72+4*r,4)}, s[42:43] sc1")
stamp(9)
if OPT["stamps"]:
    A("s_waitcnt vmcnt(0)")
    stamp(10)
finish(11)
A.label("L_selector")
def rank16(key, lst, rk, t):
    prs = ["s[6:7]", "s[10:11]", "s[12:13]", "s[14:15]"]
    for i in range(4): A(f"v_cmp_gt_u32 {prs[i]}, v{lst+i}, v{key}")
    A(f"v_addc_co_u32_e64 v{rk}, vcc, 0, 0, {prs[0]}")
    for i in range(1, 4): A(f"v_addc_co_u32_e64 v{rk}, vcc, v{rk}, 0, {prs[i]}")
    A(f"v_mov_b32 v{t}, v{rk}\ns_nop 1\nv_permlane16_swap_b32 v{rk}, v{t}\nv_add_u32 v{rk}, v{rk}, v{t}")
    A(f"v_mov_b32 v{t}, v{rk}\ns_nop 1\nv_permlane32_swap_b32 v{rk}, v{t}\nv_add_u32 v{rk}, v{rk}, v{t}")
MSDB = 0
KEY = [50, 54, 58, 62]
def g2_loads(base):
    for r in range(4): A(f"global_load_dwordx4 {vr(base+4*r,4)}, v36, s[42:43] offset:{1024*r} sc1")
def g2_bad(base):
    A(f"v_xor_b32 v2, s4, v{base+3}\nv_xor_b32 v3, s4, v{base+7}\nv_xor_b32 v5, s4, v{base+11}\nv_xor_b32 v6, s4, v{base+15}")
    A("v_or3_b32 v2, v2, v3, v5\nv_or_b32 v2, v2, v6\nv_cmp_ne_u32 vcc, 0, v2")
A(f"""
v_and_b32 v116, 15, v1
v_lshrrev_b32 v117, 4, v1
s_lshl_b32 s5, s3, 12
s_add_u32 s5, s5, {G2_OFF}
v_lshl_add_u32 v36, v1, 4, s5
v_lshlrev_b32 v221, 2, v116
v_lshlrev_b32 v222, 4, v117
v_add_u32 v223, {HMAX}, v221
v_add_u32 v224, {HMAX}, v222
v_add_u32 v221, {LIST+DRY}, v221
v_add_u32 v222, {LIST+DRY}, v222
v_lshrrev_b32 v225, 5, v0
v_lshlrev_b32 v225, 2, v225
v_add_u32 v225, {HMAX}, v225
v_mov_b32 v19, {CNT+DRY}
v_lshlrev_b32 v40, 8, v117
v_add_u32 v40, {SEL_OFF}, v40
v_mov_b32 v41, 0
v_mov_b32 v46, s4
v_mov_b32 v47, s4
s_lshl_b32 s5, s3, 10
s_sub_u32 s5, {MSDB + 4*(2047-192)}, s5
v_sub_u32 v37, s5, v4
v_bfrev_b32 v50, v0
v_mov_b32 v54, 0
v_mov_b32 v58, 0
v_mov_b32 v62, 0
s_mov_b32 s59, 0
{'s_branch L_s_top' if OPT['dry'] else ''}
L_s_real:
v_subrev_u32 v221, {DRY}, v221
v_subrev_u32 v222, {DRY}, v222
v_subrev_u32 v19, {DRY}, v19
s_mov_b32 s59, 1
s_mov_b32 s54, {SPIN_MAX}
""")
stamp(4)
if OPT["dbl"]:
    g2_loads(48)
    A("L_s_poll:")
    g2_loads(64)
    A("s_waitcnt vmcnt(4)")
    g2_bad(48)
    A("s_cbranch_vccz L_s_top\ns_sub_u32 s54, s54, 1\ns_cbranch_scc1 L_s_top")
    g2_loads(48)
    A("s_waitcnt vmcnt(4)")
    g2_bad(64)
    A("s_cbranch_vccnz L_s_poll")
    for i in range(0, 16, 2): A(f"v_mov_b32 v{48+i}, v{64+i}")
else:
    A("L_s_poll:")
    g2_loads(48)
    A("s_sub_u32 s54, s54, 1\ns_cbranch_scc1 L_s_top\ns_waitcnt vmcnt(0)")
    g2_bad(48)
    A("s_cbranch_vccnz L_s_poll")
A("L_s_top:")
stamp(5)
A(f"v_max3_u32 v16, v{KEY[0]}, v{KEY[1]}, v{KEY[2]}\nv_max_u32 v16, v16, v{KEY[3]}\ns_nop 1")
for i, mod in enumerate(DPP6[:5]):
    if i: A("s_nop 1")
    A(f"v_max_u32_dpp v16, v16, v16 {mod.replace(' bound_ctrl:0','')}")
A(f"""
s_mov_b32 exec_lo, 0x80000000
s_mov_b32 exec_hi, 0x80000000
ds_write_b32 v225, v16
s_mov_b64 exec, -1
s_waitcnt lgkmcnt(0)
s_barrier
ds_read_b32 v17, v223
ds_read_b128 v[20:23], v224
ds_write2st64_b32 v37, v60, v56 offset0:0 offset1:1
ds_write2st64_b32 v37, v52, v48 offset0:2 offset1:3
s_waitcnt lgkmcnt(2)
""")
rank16(17, 20, 18, 24)
A(f"""
v_cmp_eq_u32 vcc, 7, v18
s_ff1_i32_b64 s5, vcc
v_readlane_b32 s5, v17, s5
s_nop 1
v_cmp_le_u32 s[6:7], s5, v{KEY[0]}
v_cmp_le_u32 s[10:11], s5, v{KEY[1]}
v_cmp_le_u32 s[12:13], s5, v{KEY[2]}
v_cmp_le_u32 s[14:15], s5, v{KEY[3]}
v_addc_co_u32_e64 v21, vcc, 0, 0, s[6:7]
s_or_b64 s[50:51], s[6:7], s[10:11]
v_addc_co_u32_e64 v22, vcc, v21, 0, s[10:11]
s_or_b64 s[52:53], s[12:13], s[14:15]
v_addc_co_u32_e64 v23, vcc, v22, 0, s[12:13]
s_or_b64 exec, s[50:51], s[52:53]
v_addc_co_u32_e64 v24, vcc, v23, 0, s[14:15]
ds_add_rtn_u32 v25, v19, v24
s_waitcnt lgkmcnt(0)
v_lshl_add_u32 v25, v25, 2, v19
v_lshl_add_u32 v21, v21, 2, v25
v_lshl_add_u32 v22, v22, 2, v25
v_lshl_add_u32 v23, v23, 2, v25
s_mov_b64 exec, s[6:7]
ds_write_b32 v25, v{KEY[0]} offset:{LIST-CNT}
s_mov_b64 exec, s[10:11]
ds_write_b32 v21, v{KEY[1]} offset:{LIST-CNT}
s_mov_b64 exec, s[12:13]
ds_write_b32 v22, v{KEY[2]} offset:{LIST-CNT}
s_mov_b64 exec, s[14:15]
ds_write_b32 v23, v{KEY[3]} offset:{LIST-CNT}
s_mov_b64 exec, -1
s_waitcnt lgkmcnt(0)
s_barrier
{'' if OPT['dry'] else 's_cmp_lg_u32 s3, 0'}
{'' if OPT['dry'] else 's_cbranch_scc1 L_fin'}
ds_read_b32 v28, v19
ds_read_b32 v17, v221
ds_read_b128 v[20:23], v222
s_waitcnt lgkmcnt(1)
v_readfirstlane_b32 s51, v28
s_cmp_gt_u32 s51, 16
s_cbranch_scc1 L_rk_many
L_rk_done:
v_and_b32 v14, 0x7ff, v17
v_lshlrev_b32 v14, 2, v14
ds_read_b32 v45, v14 offset:{MSDB}
s_waitcnt lgkmcnt(1)
""")
stamp(6)
rank16(17, 20, 18, 24)
A(f"""
v_cmp_gt_u32 vcc, 8, v18
v_lshl_add_u32 v18, v18, 4, v40
v_mov_b32 v44, v17
s_cmp_eq_u32 s59, 0
s_cbranch_scc1 L_s_real
s_cmp_lg_u32 s3, 0
s_cbranch_scc1 L_fin
s_mov_b64 exec, vcc
s_waitcnt lgkmcnt(0)
global_store_dwordx4 v18, v[44:47], s[42:43] sc1
global_store_dwordx4 v18, v[44:47], s[42:43] offset:128 sc1
s_mov_b64 exec, 1
global_store_dword v41, v46, s[42:43] sc1
""")
stamp(7)
A("s_branch L_fin")
A(f"""
L_rk_many:
v_lshl_add_u32 v26, v1, 2, v19
v_mov_b32 v27, v1
s_lshl_b32 s5, s3, 6
s_add_u32 s58, s5, {SELW}
s_mov_b32 s50, 0
L_rk_outer:
ds_read_b32 v29, v26 offset:{LIST-CNT}
v_mov_b32 v30, 0
v_mov_b32 v31, v19
s_mov_b32 s52, 0
L_rk_inner:
ds_read_b128 v[8:11], v31 offset:{LIST-CNT}
v_add_u32 v31, 16, v31
s_add_u32 s52, s52, 4
s_waitcnt lgkmcnt(0)
""")
prs = ["s[6:7]", "s[10:11]", "s[12:13]", "s[14:15]"]
for i in range(4): A(f"v_cmp_gt_u32 {prs[i]}, v{8+i}, v29")
for i in range(4): A(f"v_addc_co_u32_e64 v30, vcc, v30, 0, {prs[i]}")
A(f"""
s_cmp_lt_u32 s52, s51
s_cbranch_scc1 L_rk_inner
v_cmp_gt_u32 s[6:7], 8, v30
v_cmp_gt_u32 s[10:11], s51, v27
v_lshl_add_u32 v30, v30, 2, s58
s_and_b64 exec, s[6:7], s[10:11]
ds_write_b32 v30, v29
s_mov_b64 exec, -1
v_add_u32 v26, 256, v26
v_add_u32 v27, 64, v27
s_add_u32 s50, s50, 64
s_cmp_lt_u32 s50, s51
s_cbranch_scc1 L_rk_outer
v_lshl_add_u32 v26, v116, 2, s58
v_lshl_add_u32 v27, v117, 4, s58
ds_read_b32 v17, v26
ds_read_b128 v[20:23], v27
s_waitcnt lgkmcnt(0)
s_branch L_rk_done
""")
A.label("L_fin")
finish(11)
A.label("L_end")
A("s_endpgm")
A.label("L_code_end")
A(".fill 64, 4, 0xBF800000")

tail = f"""
.section .rodata,"a"
.p2align 6
.amdhsa_kernel {NAME}_kernel
  .amdhsa_next_free_vgpr 256
  .amdhsa_next_free_sgpr 96
  .amdhsa_accum_offset 256
  .amdhsa_group_segment_fixed_size 0
  .amdhsa_kernarg_size 120
  .amdhsa_user_sgpr_count 2
  .amdhsa_user_sgpr_kernarg_segment_ptr 1
  .amdhsa_system_sgpr_workgroup_id_x 1
.end_amdhsa_kernel
"""
probs = check_hazards(A.lines)
for p in probs: print("HAZARD", p, file=sys.stderr)
open(sys.argv[1], "w").write(head + A.text() + tail)
print("written", sys.argv[1], len(A.lines), "lines", file=sys.stderr)
```

```python
import sys
from asmlib import *
NAME = "recurrent_scan__ssm_conv_s4d__moe_arch_mod__prompt"
OPT = dict(stamps=0, ntw=0, ntx=0, ntr=0, ga=7, fine=0, sfirst=0, grp=1, bal=0, xb=4, gbn=0, gan=4, pfbar=1, gul=3, gb1=0, xall=0, inj=0, g1pre=0, warm=0, allb=0, nfirst=0, ea=0, gb2=0, dbl=0, ord=0, nts=0, hint=0, rep8=1, dry=0, nopatch=0, nostore=0, hprio=0, slp=0, yd=6, chk=0, g1l=0, mprio=0, gupf=1, sd=0, rp=0, x2=0, pre=3, eg=0, selp=1, rev=1, p1f=4, dfirst=2, dpf=1, pl=0, ip=0, c0=1, rt=1, prog0="apBbn0NE1MkG", prog1="apBbn0NE1MkG", prog2="apBbn0NS1MefG", prog3="apBbn0NS1MefG")
for a in sys.argv[2:]:
    k, v = a.split("="); OPT[k] = v if k.startswith("prog") else int(v)

G1_OFF, G2_OFF, SEL_OFF, PART_OFF, PART_STRIDE = 0x1000, 0x5000, 0xD000, 0x10000, 7168
HINT_OFF = 0xE000
STAMP_OFF = 0x200000
TROW = 2064
TBX, TBY = 0, 24 * TROW
UB = TBY + 32 * TROW
USTR = 4608
BOXB = UB + 4 * USTR
KB = BOXB + 1024
PD_O, T2_O, T3_O = 0, 5600, 6112
KSTR = 6432
FLG = KB + 4 * KSTR
MARK = FLG + 224
PUBC = MARK + 2048
LDS_SIZE = PUBC + 16
UBY = lambda e: 80 * (e >> 3) + 8 * (e & 7)
RED = 81920
XRB, XRS = RED + 32768, 1296
HB = XRB + 9 * XRS
HMAX = HB + 512
PRM = UB + 512
CNT, ZBLK, SELW, LIST = KB, KB + 64, KB + 128, KB + 1024
SPIN_MAX = 1 << 20
DRY = 12288

LOG2E = 0x3FB8AA3B
NLOG2E = LOG2E ^ 0x80000000
INV2PI = 0x3E22F983
A = Asm()
NTW = " nt" if OPT["ntw"] else ""
NTX = " nt" if OPT["ntx"] else ""
NTR = " nt" if OPT["ntr"] else ""
NTS = ["", " nt", " sc0", " sc0 nt"][OPT["nts"]]
def fstamp(g, i):
    if OPT["fine"] == g: A(f"s_memtime s[{64+2*i}:{65+2*i}]")
def FS(g, i):
    return f"s_memtime s[{64+2*i}:{65+2*i}]" if OPT["fine"] == g else ""
def stamp(i):
    if OPT["fine"] and i not in (0, 13): return
    if OPT["stamps"] == 3: A(f"s_memtime s[{64+2*i}:{65+2*i}]")
    elif OPT["stamps"]: A(f"s_memrealtime s[{64+2*i}:{65+2*i}]")
def cstamp(i):
    if OPT["stamps"]: A(f"s_memtime s[{64+2*i}:{65+2*i}]")
def finish(n, dbgmap=None):
    if OPT["stamps"] == 2:
        if n == 13:
            l = A.newlabel("nd")
            stamp(13)
            A("s_load_dwordx2 s[6:7], s[0:1], 104")
            A(f"s_cmp_ge_u32 s2, 8\ns_cbranch_scc1 {l}\ns_cmp_lg_u32 s3, 7\ns_cbranch_scc1 {l}")
            A("s_waitcnt lgkmcnt(0)\ns_mov_b64 exec, 1\ns_lshl_b32 s5, s2, 3\nv_mov_b32 v2, s5")
            A("s_sub_u32 s5, s68, s64\ns_lshl_b32 s5, s5, 16\ns_and_b32 s10, s64, 0xffff\ns_or_b32 s5, s5, s10\nv_mov_b32 v4, s5")
            A("s_sub_u32 s5, s90, s64\ns_lshl_b32 s5, s5, 16\ns_sub_u32 s10, s72, s64\ns_or_b32 s5, s5, s10\nv_mov_b32 v5, s5")
            A("global_store_dwordx2 v2, v[4:5], s[6:7]")
            A.label(l)
    elif OPT["stamps"]:
        stamp(13); cstamp(15)
        A("s_waitcnt lgkmcnt(0)")
        A("s_mov_b64 exec, 1")
        A(f"s_lshl_b32 s5, s2, 3\ns_add_u32 s5, s5, s3\ns_lshl_b32 s5, s5, 6\ns_add_u32 s5, s5, {STAMP_OFF}")
        A("v_mov_b32 v2, s5")
        for i in list(range(n)) + [13, 14, 15]:
            A(f"v_mov_b32 v3, s{64+2*i}")
            A(f"global_store_dword v2, v3, s[42:43] offset:{4*i}")
    A("s_endpgm")

class LdsQ:
    def __init__(self): self.q = []; self.done = 0
    def issue(self, tag): self.q.append(tag)
    def wait(self, tag):
        idx = max(i for i, t in enumerate(self.q) if t == tag)
        if idx < self.done: return
        n = len(self.q) - 1 - idx
        A(f"s_waitcnt lgkmcnt({min(n,14)})")
        self.done = idx + 1 if n <= 14 else len(self.q) - 14
    def all(self):
        A("s_waitcnt lgkmcnt(0)"); self.done = len(self.q)
    def known_all(self): self.done = len(self.q)

def cmul(dst, p, w, t):
    A(f"v_pk_mul_f32 {vr(t,2)}, {vr(p,2)}, {vr(w,2)} op_sel:[0,0] op_sel_hi:[1,0]")
    A(f"v_pk_fma_f32 {vr(dst,2)}, {vr(p,2)}, {vr(w,2)}, {vr(t,2)} op_sel:[1,1,0] op_sel_hi:[0,1,1] neg_lo:[1,0,0]")
LANE63 = "s_mov_b32 exec_lo, 0\ns_mov_b32 exec_hi, 0x80000000"
DPP6 = ["row_shr:1 row_mask:0xf bank_mask:0xf bound_ctrl:0", "row_shr:2 row_mask:0xf bank_mask:0xf bound_ctrl:0",
        "row_shr:4 row_mask:0xf bank_mask:0xf bound_ctrl:0", "row_shr:8 row_mask:0xf bank_mask:0xf bound_ctrl:0",
        "row_bcast:15 row_mask:0xa bank_mask:0xf", "row_bcast:31 row_mask:0xc bank_mask:0xf"]

KD = lambda m: 8 + 4 * m
KS = 76
T2 = lambda d, hh: 80 + 8 * (d - 2) + 4 * hh
T3 = lambda d: 104 + 4 * (d - 4)
BOX = lambda i: 120 + 4 * i
ACC = lambda j: 140 + 4 * j
BR = lambda s: 172 + 4 * s
W1R = 204
BA = lambda i: 208 + 4 * i
SG = lambda i: 232 + 4 * i
vUB, vYW, vFL, vONE, vT0, vT1, vT2 = 244, 245, 246, 247, 248, 249, 250

hdr = open("stub_ref.txt").read().split("; @launch")[0]
head = hdr + f"""; @launch grid=(256,1,1) block=(512,1,1) lds={LDS_SIZE}
.amdgcn_target "amdgcn-amd-amdhsa--gfx950"
.text
.globl {NAME}_kernel
.p2align 8
.type {NAME}_kernel,@function
{NAME}_kernel:
"""

A("s_cmp_ge_u32 s2, 256\ns_cbranch_scc1 L_end")
A("s_load_dwordx16 s[16:31], s[0:1], 0")
A("s_load_dwordx8 s[32:39], s[0:1], 64")
A("s_load_dwordx2 s[40:41], s[0:1], 96")
A("s_load_dwordx2 s[42:43], s[0:1], 112")
stamp(0); cstamp(14)
EG = OPT["eg"]
EG1 = f"s_lshl_b32 s6, s8, 2\ns_add_u32 s6, s6, s49\ns_mul_i32 s6, s6, 1280\ns_add_u32 s6, s6, s62\nv_mul_u32_u24 v22, {128*1280}, v1\nv_add_u32 v22, s6, v22" if EG else ""
EG2 = f"s_bfm_b64 exec, {2*EG}, 0\nglobal_load_dword v251, v22, s[16:17]\ns_mov_b64 exec, -1" if EG else ""
A(f"""
s_getpc_b64 s[6:7]
L_pc:
s_lshr_b32 s8, s2, 3
v_lshrrev_b32 v2, 6, v0
s_lshl_b32 s5, s8, 10
v_lshl_add_u32 v5, v0, 1, s5
v_readfirstlane_b32 s3, v2
v_min_u32 v5, L_code_end-L_pc, v5
v_and_b32 v5, -4, v5
global_load_dword v252, v5, s[6:7]
v_and_b32 v1, 63, v0
v_lshlrev_b32 v3, 4, v1
v_lshlrev_b32 v4, 2, v1
v_mov_b32 v32, 0
v_mov_b32 v{vFL}, {FLG}
v_mov_b32 v{vONE}, 1
ds_write_b32 v{vFL}, v32 offset:{PUBC-FLG}
s_and_b32 s45, s3, 3
s_and_b32 s9, s2, 7
s_lshl_b32 s10, s2, 3
s_add_u32 s10, s10, s3
s_mul_i32 s11, s10, 1280
s_lshr_b32 s46, s3, 2
s_mul_i32 s12, s9, 20
s_add_u32 s44, s12, s8
s_lshr_b32 s49, s3, 1
s_lshr_b32 s5, s12, 4
s_and_b32 s6, s3, 1
s_add_u32 s5, s5, s6
s_lshl_b32 s62, s5, 7
s_lshl_b32 s6, s8, 2
s_add_u32 s6, s6, s49
s_mul_i32 s6, s6, {20480 if OPT['xall'] else 10240}
s_add_u32 s5, s62, s6
v_mul_u32_u24 v93, 1280, v1
v_add_u32 v22, s5, v93
s_lshl_b32 s5, s49, 3
s_add_u32 s5, s5, s9
s_min_u32 s5, s5, 26
s_lshl_b32 s5, s5, 7
s_mul_i32 s6, s8, {20*3456}
s_add_u32 s5, s5, s6
v_mul_u32_u24 v23, 3456, v1
v_add_u32 v23, s5, v23
s_lshl_b32 s5, s45, 8
s_lshl_b32 s6, s46, 7
s_add_u32 s5, s5, s6
s_lshl_b32 s6, s44, 10
s_add_u32 s5, s5, s6
v_lshl_add_u32 v6, v1, 1, s5
s_lshr_b32 s5, s5, 8
s_lshl_b32 s5, s5, 1
v_mov_b32 v7, s5
{EG1}
s_waitcnt lgkmcnt(0)
{EG2}
s_add_u32 s6, s16, s11
s_addc_u32 s7, s17, 0
global_load_dwordx4 v[8:11], v3, s[6:7]{NTR}
global_load_dword v12, v4, s[6:7] offset:1024{NTR}
global_load_dwordx4 v[16:19], v3, s[32:33]
global_load_dword v20, v4, s[32:33] offset:1024
global_load_dword v29, v32, s[42:43]
s_bitcmp1_b32 s3, 0
s_cselect_b32 s56, s36, s34
s_cselect_b32 s57, s37, s35
""")
stamp(1)
def early_pf():
    A(f"""
s_bfm_b64 exec, {(16 if OPT['xall'] else 8) - 2*EG}, {2*EG}
global_load_dword v251, v22, s[16:17]{NTX}
s_mov_b64 exec, -1
""")
    if not OPT["gul"]: gu_pf()
def gu_pf():
    A(f"""
s_mov_b64 exec, 0xfffff
global_load_dword v251, v23, s[56:57]{NTW}
s_mov_b64 exec, -1
""")
A(f"""
s_barrier
s_cmp_ge_u32 s2, 160
s_cbranch_scc1 L_nopar
global_load_ushort v40, v6, s[18:19]{NTW}
global_load_ushort v45, v7, s[26:27]
global_load_ushort v41, v6, s[20:21]{NTW}
global_load_ushort v42, v6, s[22:23]{NTW}
global_load_ushort v43, v6, s[24:25]{NTW}
global_load_ushort v46, v7, s[28:29]
L_nopar:
""")
if OPT["pfbar"]: A("s_barrier")
early_pf()
A("""
v_mov_b32 v33, 0
v_mov_b32 v34, 0
v_mov_b32 v35, 0
s_cbranch_scc1 L_notconv
""")
def row_loads():
    A(f"""
s_add_u32 s6, s16, s11
s_addc_u32 s7, s17, 0
global_load_dwordx4 v[8:11], v3, s[6:7]{NTR}
global_load_dword v12, v4, s[6:7] offset:1024{NTR}
global_load_dwordx4 v[16:19], v3, s[32:33]
global_load_dword v20, v4, s[32:33] offset:1024
""")
G1ADDR = (f"s_and_b32 s5, s10, 0x700\ns_lshl_b32 s5, s5, 3\ns_and_b32 s6, s10, 2\ns_lshl_b32 s6, s6, 9\ns_add_u32 s5, s5, s6\ns_and_b32 s6, s10, 0xfc\ns_lshl_b32 s6, s6, 2\ns_add_u32 s5, s5, s6\n"
          f"s_and_b32 s6, s10, 1\ns_lshl_b32 s6, s6, 3\ns_add_u32 s5, s5, s6\ns_add_u32 s5, s5, {G1_OFF}\nv_mov_b32 v34, s5") if OPT["g1l"] else f"v_add_u32 v34, {G1_OFF}, v33"
G1S = 1024 if OPT["g1l"] else 16
def stats_pre():
    A("s_mov_b32 s14, 0x9E3779B1\ns_mov_b32 s47, 0x3f803f80\ns_lshl_b32 s11, s10, 3\ns_sub_u32 s13, 2047, s10")
    A(f"v_mov_b32 v33, s11\n{G1ADDR}\nv_lshlrev_b32 v35, 1, v33\nv_add_u32 v35, {G2_OFF}, v35\nv_mov_b32 v36, 0x3acccccd")
def make_tag():
    pass
def stats(younger, cnt=False):
    A(vmw(younger - 1) if cnt else f"s_waitcnt vmcnt({younger-1})")
    stamp(2)
    A("s_setprio 2")
    for i in range(5):
        c = (lambda r: "0" if i == 0 else r)
        A(f"v_dot2_f32_bf16 v24, v{8+i}, s47, {c('v24')}")
        A(f"v_dot2_f32_bf16 v25, v{8+i}, v{8+i}, {c('v25')}")
        A(f"v_dot2_f32_bf16 v26, v{8+i}, v{16+i}, {c('v26')}")
        A(f"v_dot2_f32_bf16 v27, v{16+i}, s47, {c('v27')}")
    A(f"""
s_nop 0
v_permlane32_swap_b32 v24, v25
s_nop 0
v_permlane32_swap_b32 v26, v27
v_add_f32 v24, v24, v25
v_add_f32 v26, v26, v27
s_nop 0
v_mul_lo_u32 v29, v29, s14
v_permlane16_swap_b32 v24, v26
v_add_f32 v24, v24, v26
v_add_u32 v29, 0x7F4A7C15, v29
v_mov_b32 v31, v29
v_add_f32_dpp v24, v24, v24 row_shr:1 row_mask:0xf bank_mask:0xf bound_ctrl:0
v_readfirstlane_b32 s4, v29
s_nop 0
v_add_f32_dpp v24, v24, v24 row_shr:2 row_mask:0xf bank_mask:0xf bound_ctrl:0
s_nop 1
v_add_f32_dpp v24, v24, v24 row_shr:4 row_mask:0xf bank_mask:0xf bound_ctrl:0
s_nop 1
v_add_f32_dpp v24, v24, v24 row_shr:8 row_mask:0xf bank_mask:0xf bound_ctrl:0
s_mov_b64 exec, 1
v_readlane_b32 s6, v24, 15
v_readlane_b32 s7, v24, 47
v_readlane_b32 s14, v24, 31
v_readlane_b32 s15, v24, 63
v_mul_f32 v24, s6, v36
v_mul_f32 v25, s7, v36
v_mov_b32 v26, s14
v_fma_f32 v25, -v24, v24, v25
v_max_f32 v25, 0, v25
v_cvt_pk_bf16_f32 v28, v24, v25
v_and_b32 v25, 0xffff0000, v28
v_lshlrev_b32 v24, 16, v28
v_add_f32 v25, 0x3727c5ac, v25
v_cvt_pk_bf16_f32 v25, v25, v25
v_fma_f32 v26, -v24, s15, v26
v_and_b32 v25, 0xffff0000, v25
v_sqrt_f32 v25, v25
""")
    A("s_nop 0")
    A("""
v_cvt_pk_bf16_f32 v28, v24, v25
v_and_b32 v25, 0xffff0000, v28
v_rcp_f32 v25, v25
global_store_dwordx2 v34, v[28:29], s[42:43] sc1
v_mul_f32 v26, v26, v25
v_cvt_pk_bf16_f32 v26, v26, v26
v_ashrrev_i32 v27, 31, v26
v_or_b32 v27, 0x80000000, v27
v_xor_b32 v26, v26, v27
v_and_b32 v26, 0xffff0000, v26
v_or_b32 v30, s13, v26
global_store_dwordx4 v35, v[28:31], s[42:43] sc1
""")
    if cnt: A(f"ds_add_u32 v{vFL}, v{vONE} offset:{PUBC-FLG}")
    A("s_mov_b64 exec, -1\ns_setprio 0")
    stamp(3)
EG3 = (f"s_sub_u32 s5, s3, 4\ns_cmp_ge_u32 s5, {EG}\ns_cbranch_scc1 L_neg\ns_mov_b32 s48, 1\ns_mov_b32 s63, 0\n"
       + "".join(f"global_load_dwordx2 v[{96+2*r}:{97+2*r}], v94, s[16:17] offset:{1280*r}\n" for r in range(4)) + "L_neg:") if EG else ""
def vmw(n):
    if not EG: return f"s_waitcnt vmcnt({n})"
    l1 = A.newlabel("w"); l2 = A.newlabel("w")
    return f"s_cmp_eq_u32 s48, 0\ns_cbranch_scc1 {l1}\ns_waitcnt vmcnt({n+4})\ns_branch {l2}\n{l1}:\ns_waitcnt vmcnt({n})\n{l2}:"
def conv_init():
    A(f"""
s_and_b32 s6, s8, 15
s_lshl_b32 s6, s6, 1
s_and_b32 s7, s49, 1
s_add_u32 s6, s6, s7
s_add_u32 s6, s6, 32
s_mul_i32 s6, s6, 40960
s_add_u32 s5, s62, s6
v_add_u32 v93, s5, v93
v_mov_b32 v33, 0
v_mov_b32 v34, 0
v_mov_b32 v35, 0
v_lshlrev_b32 v7, 4, v0
v_add_u32 v7, {KB}, v7
ds_write_b128 v7, v[32:35]
ds_write_b128 v7, v[32:35] offset:8192
ds_write_b128 v7, v[32:35] offset:16384
v_min_u32 v7, {PUBC-16-24576}, v7
ds_write_b128 v7, v[32:35] offset:24576
s_mul_i32 s53, s45, {USTR}
s_add_u32 s53, s53, {UB}
v_lshl_add_u32 v7, v1, 3, s53
ds_write_b64 v7, v[32:33]
s_add_u32 s5, s45, 1
s_sub_u32 s13, s5, 32
s_lshl_b32 s5, s5, 1
v_add_u32 v36, s13, v1
v_add_u32 v92, 1, v36
v_mov_b32 v38, 0x3f800000
v_mov_b32 v39, 0x3f80
v_cmp_ge_u32 s[6:7], s5, v36
v_cmp_ge_u32 s[14:15], s5, v92
s_lshl_b32 s13, s45, 8
s_add_u32 s13, s13, {BOXB}
v_cndmask_b32 v38, 0, v38, s[6:7]
v_cndmask_b32 v39, 0, v39, s[14:15]
v_add_u32 v7, s13, v4
v_or_b32 v38, v38, v39
ds_write_b32 v7, v38
v_and_b32 v2, 15, v1
v_lshrrev_b32 v92, 4, v1
v_lshlrev_b32 v92, 3, v92
v_sub_u32 v92, v2, v92
v_lshlrev_b32 v92, 2, v92
v_add_u32 v92, {BOXB+96}, v92
s_mul_i32 s5, s45, {256*1280}
s_lshl_b32 s6, s44, 3
s_add_u32 s5, s5, s6
v_mul_u32_u24 v94, 5120, v1
v_add_u32 v94, s5, v94
{'s_lshl_b32 s55, s45, 1' if OPT['rev'] else 's_mov_b32 s55, 3'}
s_sub_u32 s55, 7, s55
s_mul_i32 s5, s55, {256*1280}
v_add_u32 v95, s5, v94
s_lshl_b32 s5, s45, 9
s_lshl_b32 s6, s46, 8
s_add_u32 s50, s5, s6
s_add_u32 s51, s50, {TBY}
s_mov_b32 m0, s51
v_mov_b32 v84, 0x3f80
v_mov_b32 v44, {LOG2E:#x}
{'s_mov_b32 s63, 1' if OPT['gul'] == 4 else 's_lshr_b32 s63, s3, 2'}
""")
if OPT["ip"] == 0:
    conv_init()
    if OPT["gul"] == 1: gu_pf()
stats_pre()
MK3 = 224
def setup():
    A(f"""
{vmw(4 - (OPT['gul'] in (2, 4)))}
v_lshlrev_b32 v40, 16, v40
v_lshlrev_b32 v45, 16, v45
v_mul_f32 v40, v44, v40
v_mul_f32 v44, v45, v44
v_exp_f32 v40, v40
v_exp_f32 v44, v44
v_lshlrev_b32 v41, 16, v41
v_lshlrev_b32 v42, 16, v42
v_cvt_pk_bf16_f32 v40, v44, v40
v_lshlrev_b32 v43, 16, v43
v_lshlrev_b32 v44, 16, v40
v_and_b32 v40, 0xffff0000, v40
v_mul_f32 v41, v41, v44
v_mul_f32 v40, v40, v44
v_add_f32 v44, v44, v44
v_mul_f32 v40, {NLOG2E:#x}, v40
v_mul_f32 v41, {INV2PI:#x}, v41
v_mul_f32 v48, v42, v44
v_mul_f32 v49, v43, v44
v_mul_f32 v56, 0x41000000, v40
v_mul_f32 v58, 0x41000000, v41
v_mul_f32 v57, 0x43800000, v40
v_mul_f32 v59, 0x43800000, v41
v_fract_f32 v58, v58
v_fract_f32 v60, v41
v_fract_f32 v59, v59
v_exp_f32 v56, v56
v_cos_f32 v52, v58
v_sin_f32 v53, v58
v_exp_f32 v61, v40
v_cos_f32 v50, v60
v_sin_f32 v51, v60
v_exp_f32 v57, v57
v_cos_f32 v54, v59
v_sin_f32 v55, v59
ds_read_b32 v{vT2}, v{vFL} offset:{PUBC-FLG}
v_mul_f32 v52, v52, v56
v_mul_f32_e64 v53, -v53, v56
v_mul_f32 v50, v50, v61
v_mul_f32 v51, v51, v61
v_mul_f32 v54, v54, v57
v_mul_f32 v55, v55, v57
""")
stats(9 - (OPT["gul"] >= 2), cnt=True); fstamp(1, 2)
if OPT["gul"] == 3: gu_pf()
if OPT["ip"] == 1: conv_init()
if OPT["hprio"]: A("s_cmp_lt_u32 s3, 4\ns_cbranch_scc1 L_hp\ns_setprio 1\nL_hp:")
setup()
fstamp(1, 3)
def gather(t, lo=0, hi=4):
    for r in range(lo, hi):
        A(f"global_load_dwordx2 v[{96+8*t+2*r}:{97+8*t+2*r}], v{94+t}, s[16:17] offset:{1280*r}")
def pubcheck(wait):
    l = A.newlabel("gc")
    A(f"s_cmp_eq_u32 s63, 0\ns_cbranch_scc1 {l}\ns_waitcnt lgkmcnt({wait})\nv_readfirstlane_b32 s5, v{vT2}\ns_cmp_lt_u32 s5, 8\ns_cbranch_scc1 {l}\ns_mov_b32 s63, 0")
    if OPT["gul"] == 4: gu_pf(); A(f"s_cmp_lt_u32 s3, 4\ns_cbranch_scc1 {l}")
    gather(0, 0, OPT["gan"])
    A.label(l)
if OPT["c0"]: pubcheck(0)
def gather_at(pos):
    if OPT["ga"] == pos:
        l = A.newlabel("ng")
        A(f"s_cmp_lt_u32 s3, 4\ns_cbranch_scc1 {l}")
        gather(0, 0, OPT["gan"])
        A.label(l)
    if OPT["xb"] == pos:
        l = A.newlabel("nx")
        A(f"s_cmp_ge_u32 s3, 4\ns_cbranch_scc1 {l}")
        A(f"s_mov_b32 exec_hi, 0\nglobal_load_dword v251, v93, s[16:17]{NTX}\ns_mov_b64 exec, -1")
        A.label(l)
gather_at(0)
pend = []
GRP = OPT["grp"]
tt = [0]
def emit_row(reg, rows):
    t = 84 + (tt[0] % (2 * GRP)); tt[0] += 1
    if reg is not None: A(f"v_cvt_pk_bf16_f32 v{t}, v{reg}, v{reg+1}")
    for r in rows: pend.append(f"ds_write_addtid_b32 v{t} offset:{r*TROW}")
    if tt[0] % GRP == 0: flush_rows()
def flush_rows():
    for p in pend: A(p)
    pend.clear()
emit_row(None, [0]); emit_row(52, [1])
cur = 52
CHK = [{5: 0, 9: 0, 13: 0, 17: 0, 22: 0, 29: 1}, {5: 0, 12: 0, 20: 1}, {8: 0, 16: 1}, {8: 1}, {2: 1}, {16: 1}, {31: 1}][OPT["chk"]]
for c in range(2, 32):
    dst = 64 + 2 * (c % 2)
    if c + 3 in CHK and not CHK[c + 3]: A(f"ds_read_b32 v{vT2}, v{vFL} offset:{PUBC-FLG}")
    if c in CHK:
        l = A.newlabel("gc")
        A(f"s_cmp_eq_u32 s63, 0\ns_cbranch_scc1 {l}")
        if not CHK[c]:
            A(f"s_waitcnt lgkmcnt(3)\nv_readfirstlane_b32 s5, v{vT2}\ns_cmp_lt_u32 s5, 8\ns_cbranch_scc1 {l}")
        A("s_mov_b32 s63, 0")
        if OPT["gul"] == 4: gu_pf(); A(f"s_cmp_lt_u32 s3, 4\ns_cbranch_scc1 {l}")
        fstamp(7, 1)
        gather(0, 0, OPT["gan"])
        fstamp(7, 2)
        A.label(l)
    cmul(dst, cur, 52, dst); emit_row(dst, [c]); cur = dst
    if c == 15: gather_at(3)
flush_rows()
fstamp(1, 4)
A("s_mov_b32 m0, s50")
gather_at(1)
if OPT["gbn"]:
    A("s_cmp_lt_u32 s3, 4\ns_cbranch_scc1 L_ngb")
    gather(1, 0, OPT["gbn"])
    A.label("L_ngb")
cmul(56, 50, 50, 56)
emit_row(48, [0])
cur = 48
rows0 = {1: [1], 2: [2], 3: [3], 4: [4, 8], 5: [5], 6: [6], 7: [7], 8: [12]}
for p in range(1, 9):
    dst = 64 + 2 * (p % 2)
    cmul(dst, cur, 50, dst); emit_row(dst, rows0[p]); cur = dst
for dst, src, w, rows in [(68, 48, 54, [9]), (70, 68, 56, [10]), (68, 70, 56, [11, 13]), (70, 68, 56, [14]), (72, 70, 56, [15]),
                          (70, 68, 54, [16]), (74, 72, 54, [17]), (68, 70, 54, [20]), (72, 74, 54, [21]),
                          (74, 72, 54, [18]), (72, 74, 54, [19]), (74, 72, 54, [22]), (72, 74, 54, [23])]:
    cmul(dst, src, w, dst); emit_row(dst, rows)
flush_rows()
fstamp(1, 5)
gather_at(4)
A("s_cmp_ge_u32 s3, 4\ns_cbranch_scc1 L_helper")

q = LdsQ()
A(f"""
v_and_b32 v2, 31, v1
v_lshrrev_b32 v3, 5, v1
v_mul_u32_u24 v5, {TROW}, v2
v_subrev_u32 v6, {16*TROW}, v5
v_cmp_le_u32 vcc, 24, v2
s_lshl_b32 s5, s45, 9
v_lshl_add_u32 v7, v3, 4, s5
v_cndmask_b32 v6, v5, v6, vcc
v_add_u32 v5, v5, v7
v_add_u32 v6, v6, v7
v_add_u32 v5, {TBY}, v5
s_waitcnt lgkmcnt(0)
""")
NB = 6
def kg_issue(s):
    b = 156 + 8 * (s % NB)
    A(f"ds_read_b128 {vr(b,4)}, v6 offset:{32*s}"); q.issue(("ka", s))
    A(f"ds_read_b128 {vr(b+4,4)}, v5 offset:{32*s}"); q.issue(("kb", s))
filler = f"""
s_mul_i32 s52, s45, {KSTR}
s_add_u32 s52, s52, {KB}
v_mul_u32_u24 v208, 80, v2
v_lshl_add_u32 v208, v3, 5, v208
v_add_u32 v208, s52, v208
v_add_u32 v207, 2560, v208
v_lshl_add_u32 v206, v3, 4, v208
v_add_u32 v205, 2560, v206
v_lshlrev_b32 v209, 2, v2
v_lshl_add_u32 v209, v3, 7, v209
v_add_u32 v209, s52, v209
v_lshlrev_b32 v210, 1, v2
v_lshl_add_u32 v210, v3, 7, v210
v_add_u32 v210, s52, v210
v_mov_b32 v211, s52
v_lshlrev_b32 v45, 16, v46
v_cmp_eq_u32 vcc, 0, v1
v_and_b32 v232, 15, v1
v_lshrrev_b32 v233, 4, v1
v_cndmask_b32 v45, 0, v45, vcc
v_lshlrev_b32 v234, 3, v233
v_sub_u32 v234, v232, v234
v_add_u32 v240, 25, v234
v_add_u32 v234, 29, v234
v_lshrrev_b32 v241, 3, v234
v_lshl_add_u32 v234, v234, 3, s52
v_lshl_add_u32 v234, v241, 4, v234
v_lshrrev_b32 v241, 3, v240
v_lshl_add_u32 v240, v240, 3, s52
v_lshl_add_u32 v240, v241, 4, v240
v_lshlrev_b32 v235, 2, v233
v_sub_u32 v235, v232, v235
v_add_u32 v235, 12, v235
v_lshl_add_u32 v236, v235, 2, s52
v_lshl_add_u32 v235, v235, 3, s52
v_add_u32 v236, {T3_O}, v236
v_lshlrev_b32 v{vUB}, 5, v232
v_lshl_add_u32 v{vUB}, v233, 4, v{vUB}
v_add_u32 v{vUB}, s53, v{vUB}
v_lshrrev_b32 v{vT0}, 1, v232
v_add_u32 v{vT0}, v{vT0}, v233
v_and_b32 v{vT0}, 3, v{vT0}
v_and_b32 v{vT1}, 7, v232
v_lshlrev_b32 v{vT1}, 6, v{vT1}
v_lshl_add_u32 v{vT1}, v{vT0}, 4, v{vT1}
v_lshrrev_b32 v{vT0}, 3, v232
v_mul_u32_u24 v{vT0}, {TROW}, v{vT0}
v_add3_u32 v{vYW}, v{vT0}, v{vT1}, s5
""".strip().split("\n")
late = [f"v_and_b32 v{KS+i}, v{KS+i}, v{BOX(0)+i}" for i in range(4)]
for r in [KS + i for i in range(4)] + [MK3 + i for i in range(4)]:
    late.append(f"v_pk_lshlrev_b16 v{r}, 2, v{r} op_sel_hi:[0,1]")
    late.append(f"v_pk_ashrrev_i16 v{r}, 15, v{r} op_sel_hi:[0,1]")
boxq = []
for dst, arr, offs in [(BOX(0), 0, 19), (KS, 0, 20), (MK3, 0, 22), (BOX(1), 1, 15), (BOX(2), 0, 11), (BOX(3), 2, 15), (BOX(4), 3, 15)]:
    o = arr * 64 + offs
    boxq.append(f"ds_read2_b32 {vr(dst,2)}, v92 offset0:{o} offset1:{o-2}")
    boxq.append(f"ds_read2_b32 {vr(dst+2,2)}, v92 offset0:{o-4} offset1:{o-6}")
filler += [f"s_lshl_b32 s5, s45, 2", f"v_add_u32 v{vT1}, s5, v{vFL}"]
filler += f"""s_mul_i32 s5, s44, {PART_STRIDE}
s_lshl_b32 s6, s45, 5
s_add_u32 s5, s5, s6
s_add_u32 s5, s5, {PART_OFF}
v_lshlrev_b32 v2, 7, v2
v_lshl_add_u32 v2, v3, 4, v2
v_add_u32 v2, s5, v2
v_add_u32 v3, 4096, v2
s_and_b32 s18, s4, 0xff
s_bfe_u32 s19, s4, 0x80008
s_bfe_u32 s20, s4, 0x80010
s_lshr_b32 s21, s4, 24
s_mov_b32 s56, 0x3fffff
s_mov_b32 s57, 0x3fffff""".split("\n")
for f in filler: A(f)
A("s_barrier")
stamp(4); fstamp(1, 6); fstamp(2, 1)
if OPT["mprio"]: A(f"s_setprio {OPT['mprio']}")
for s in range(NB): kg_issue(s)
for s in range(16):
    q.wait(("kb", s))
    b = 156 + 8 * (s % NB)
    A(f"v_mfma_f32_32x32x16_bf16 v[140:155], {vr(b,4)}, {vr(b+4,4)}, {'0' if s == 0 else 'v[140:155]'}")
    if s + NB < 16: kg_issue(s + NB)
    else:
        for _ in range(3):
            if boxq: A(boxq.pop(0)); q.issue("box")
assert not boxq
A(f"ds_read_b32 v{vT2}, v{vFL}"); q.issue(("flag", 0))
A.nop(11)
fstamp(2, 2)
K = lambda i: f"v{140+i}"
A(f"""
v_add_f32 {K(0)}, {K(0)}, v45
v_cvt_pk_bf16_f32 v215, {K(2)}, {K(1)}
v_cvt_pk_bf16_f32 v212, {K(3)}, {K(2)}
v_cvt_pk_bf16_f32 v214, {K(4)}, {K(3)}
v_cvt_pk_bf16_f32 v213, {K(1)}, {K(0)}
v_cvt_pk_bf16_f32 v222, {K(0)}, 0
v_cvt_pk_bf16_f32 v217, {K(5)}, {K(5)}
v_cvt_pk_bf16_f32 v219, {K(6)}, {K(5)}
v_cvt_pk_bf16_f32 v216, {K(7)}, {K(6)}
v_cvt_pk_bf16_f32 v218, {K(7)}, {K(7)}
v_cvt_pk_bf16_f32 v220, {K(8)}, {K(9)}
v_cvt_pk_bf16_f32 v221, {K(10)}, {K(11)}
v_cvt_pk_bf16_f32 v223, {K(9)}, {K(9)}
s_waitcnt lgkmcnt(0)
v_readfirstlane_b32 s5, v{vT2}
ds_write_b128 v208, v[212:215] offset:160
ds_write2_b32 v206, v213, v215 offset0:32 offset1:34
ds_write2_b32 v208, v212, v214 offset0:45 offset1:47
ds_write_b128 v207, v[216:219] offset:160
ds_write2_b32 v205, v217, v219 offset0:32 offset1:34
ds_write2_b32 v207, v216, v218 offset0:45 offset1:47
s_mov_b64 exec, 1
ds_write2_b32 v211, v222, v222 offset0:{UBY(13)//4} offset1:{UBY(15)//4+1}
s_mov_b64 exec, -1
""")
q.known_all()
for _ in range(7): q.issue("kw")
fstamp(2, 3)
kq = []
for m in [x for i in range(8) for x in (i, 8 + i)]:
    kq.append((("K", KD(m)), f"ds_read_b64 {vr(KD(m),2)}, v234 offset:{320*m}"))
    kq.append((("K", KD(m)), f"ds_read_b64 {vr(KD(m)+2,2)}, v240 offset:{320*m}"))
kq.append(("tw", f"ds_write_b32 v209, v220 offset:{T2_O+128}"))
kq.append(("tw", f"ds_write_b16 v210, v221 offset:{T3_O+64}"))
kq.append(("tw", f"ds_write_b16_d16_hi v210, v221 offset:{T3_O+64+64}"))
kq.append((("K", KD(16)), f"ds_read_b64 {vr(KD(16),2)}, v234 offset:{320*16}"))
kq.append((("K", KD(16)), f"ds_read_b64 {vr(KD(16)+2,2)}, v240 offset:{320*16}"))
for d in (2, 3, 4):
    for hh in (0, 1):
        o = 16 * d - 28 - 2 * hh
        kq.append((("K", T2(d, hh)), f"ds_read_b64 {vr(T2(d,hh),2)}, v235 offset:{T2_O+8*o}"))
        kq.append((("K", T2(d, hh)), f"ds_read_b64 {vr(T2(d,hh)+2,2)}, v235 offset:{T2_O+8*(o-1)}"))
for d in (4, 5, 6, 7):
    o = 16 * d - 60
    kq.append((("K", T3(d)), f"ds_read2_b32 {vr(T3(d),2)}, v236 offset0:{o} offset1:{o-1}"))
    kq.append((("K", T3(d)), f"ds_read2_b32 {vr(T3(d)+2,2)}, v236 offset0:{o-2} offset1:{o-3}"))
def kq_issue(n):
    for _ in range(n):
        if kq:
            t, x = kq.pop(0); A(x); q.issue(t)
kq_issue(4)
stamp(5); fstamp(2, 4)
def wait_flag(addr, off, val, nm, tmp):
    l = A.newlabel(nm); lo = A.newlabel(nm + "o")
    A(f"s_mov_b32 s54, {SPIN_MAX}")
    A.label(l)
    A(f"ds_read_b32 v{tmp}, v{addr} offset:{off}")
    A("s_waitcnt lgkmcnt(0)")
    A(f"v_readfirstlane_b32 s5, v{tmp}")
    A(f"s_sub_u32 s54, s54, 1\ns_cbranch_scc1 {lo}")
    A(f"s_cmp_lt_u32 s5, {val}\ns_cbranch_scc1 {l}")
    A.label(lo)
A("s_cmp_lg_u32 s5, 0\ns_cbranch_scc1 L_fast01")
ACC = lambda j: 140 + 4 * (j % 4)
SG2 = lambda b, hh: [156, 164, 232][b % 3] + 4 * hh
SG3 = lambda b: [240, 252, 204, 224][b]
WR = [196, 200]
NBR = 6
BA = lambda i: 208 + 4 * i if i < 4 else [None] * 4 and (228 if i == 4 else 4)
loads = []
for j in range(8):
    loads.append(("B", 8 * j))
    if j >= 2: loads += [("W0", j - 2), ("W1", j - 2)]
    for i in range(1, 8): loads.append(("B", 8 * j - i))
slot = {}
ring = 0
for k in loads:
    if k[0] == "B": slot[k] = BR(ring % NBR); ring += 1
    else: slot[k] = WR[int(k[0][1])]
touched = set()
prog = []
def MF(d, a, b, c, need=None):
    prog.append(dict(text=f"v_mfma_f32_16x16x32_bf16 {vr(d,4)}, {vr(a,4)}, {vr(b,4)}, {c}", need=need, valu=[], ds=[]))
def mf(j, a, b, need=None):
    c = vr(ACC(j), 4) if j in touched else "0"; touched.add(j)
    MF(ACC(j), a, b, c, need)
ydone = {}
for j in range(8):
    k0 = ("B", 8 * j)
    mf(j, KD(0), slot[k0], k0)
    if j + 1 <= 7: mf(j + 1, KD(8), slot[k0])
    cv = []; old = []; new = []
    if j >= 2:
        b = j - 2; w0, w1 = WR
        for i, bx in ((0, 0), (1, 1), (2, 2)) + (((4, 3),) if b <= 3 else ()):
            MF(BA(i), w0, BOX(bx), "0", ("W0", b))
        mf(j, KD(16), w0)
        for i, bx in ((3, 1),) + (((5, 4),) if b <= 3 else ()):
            MF(BA(i), w1, BOX(bx), "0", ("W1", b))
        for r in range(4): cv.append(f"v_cvt_pk_bf16_f32 v{SG2(b,r//2)+2*(r%2)}, v{BA(0)+r}, v{BA(1)+r}")
        for r in range(4): cv.append(f"v_cvt_pk_bf16_f32 v{SG2(b,r//2)+2*(r%2)+1}, v{BA(2)+r}, v{BA(3)+r}")
        if b <= 3:
            for r in range(4): cv.append(f"v_cvt_pk_bf16_f32 v{SG3(b)+r}, v{BA(4)+r}, v{BA(5)+r}")
        for d in (4, 3):
            if j - d >= 0: old += [(j, SG2(j - d, 0), T2(d, 0)), (j, SG2(j - d, 1), T2(d, 1))]
        for d in (7, 6, 5, 4):
            if j - d >= 0: old.append((j, SG3(j - d), T3(d)))
        new = [(j, SG2(b, 0), T2(2, 0)), (j, SG2(b, 1), T2(2, 1))]
        if b <= 3: mf(j + 2, KS, w0)
    for f in old: mf(*f)
    start = len(prog)
    for i in range(1, 8):
        k = ("B", 8 * j - i)
        mf(j, KD(i), slot[k], k)
        if i == 7:
            for f in new: mf(*f)
            ydone[j] = len(prog) - 1
        if j + 1 <= 7: mf(j + 1, KD(8 + i), slot[k])
    if cv:
        lastbox = max(i for i, e in enumerate(prog[:start]) if e["text"].rstrip().endswith(", 0") and f"v[{BA(3)}:" in e["text"] or f"v[{BA(5)}:" in e["text"].split(",")[0])
        pos = lastbox + 4
        per = 2 if j == 7 else 1
        while cv:
            for _ in range(per):
                if cv: prog[pos]["valu"].append(cv.pop(0))
            pos += 1
AHEAD = 4
first_use = {}
for i, e in enumerate(prog):
    if e["need"] and e["need"] not in first_use: first_use[e["need"]] = i
def ld_text(k):
    off = {"B": 480 + 64 * k[1], "W0": 480 + 512 * k[1], "W1": 464 + 512 * k[1]}[k[0]]
    return f"ds_read_b128 {vr(slot[k],4)}, v{vUB} offset:{off}"
last_use = {}
for i, e in enumerate(prog):
    for k in loads:
        pass
import re as _re
def uses(e, reg): return f"v[{reg}:{reg+3}]" in e["text"].split(",", 1)[1]
issue_at = {}
for n, k in enumerate(loads):
    if n <= AHEAD: continue
    p = first_use[loads[n - AHEAD - 1]]
    prev = [m for m in range(n) if slot[loads[m]] == slot[k]]
    if prev:
        lu = max(i for i in range(first_use[loads[prev[-1]]], first_use[k]) if uses(prog[i], slot[k]))
        p = max(p, lu)
    if n > AHEAD + 1: p = max(p, issue_at[loads[n - 1]])
    issue_at[k] = p
    prog[p]["ds"].append(("ld", k))
YD = OPT["yd"]
for j in range(7):
    prog[ydone[j] + YD]["ds"].append(("y", j)); prog[ydone[j] + YD + 1]["ds"].append(("yf", j))
for j in range(1, 8): prog[max(0, issue_at[("B", 8 * j)] - 6)]["ds"].insert(0, ("flag", j))
def ywrite(j):
    A(f"ds_write_b128 v{vYW}, {vr(ACC(j),4)} offset:{2*TROW*j}"); q.issue("yw")
def yflag(j):
    A(f"ds_write_b32 v{vT1}, v{vONE} offset:{48+16*j}"); q.issue("yf")
fix = ["v_readlane_b32 s6, v218, 63", "v_readlane_b32 s7, v223, 63"] + [f"v_and_b32 v{KS+i}, s7, v{KS+i}" for i in range(4)]
for n, f in enumerate(late): prog[n * 4 // 5]["valu"].append(f)
for n, f in enumerate(fix): prog[18 + n + (n >= 2)]["valu"].append(f)
for n in range(4): prog[26 + n]["valu"].append(f"v_and_or_b32 v{KD(16)+n}, v{MK3+n}, s6, v{KD(16)+n}")
prog[26]["pre"] = ("K", KD(16))
prog[40]["vm"] = True
def part_loads():
    A("global_load_dwordx4 v[56:59], v2, s[42:43] sc1\ns_mov_b64 exec, s[56:57]\nglobal_load_dwordx4 v[60:63], v3, s[42:43] sc1\ns_mov_b64 exec, -1")
if OPT["pl"] > 0:
    p = len(prog) - OPT["pl"]
    assert p - 2 >= first_use[("B", 56)]
    for k in range(4): prog[p - 2 + k // 2]["valu"].append(f"v_mov_b32 v{60+k}, s{18+k}")
    prog[p]["pl"] = True
slow = []
def emit(lo, hi, sfx):
    if lo == 0:
        stamp(6)
        for n in range(AHEAD + 1):
            A(ld_text(loads[n])); q.issue(loads[n])
            if 0 < n < OPT["pre"]: kq_issue(4)
    for i in range(lo, hi):
        e = prog[i]
        if e["need"] and e["need"][0] == "B" and e["need"][1] % 8 == 0 and first_use[e["need"]] == i : fstamp(3, 1 + e["need"][1] // 8)
        if e["need"]: q.wait(e["need"])
        for kr in _re.findall(r"v\[(\d+):", e["text"])[1:3]:
            if ("K", int(kr)) in q.q: q.wait(("K", int(kr)))
            assert all(t != ("K", int(kr)) for t, _ in kq), e["text"]
        if e.get("pre"): q.wait(e["pre"])
        if e.get("vm"): A("s_waitcnt vmcnt(0)")
        chk = [d for d in e["ds"] if d[0] == "ld" and d[1][0] == "B" and d[1][1] % 8 == 0 and d[1][1] > 0]
        if chk:
            q.wait(("flag", chk[0][1][1] // 8)); A(f"v_readfirstlane_b32 s5, v{vT2}")
        A(e["text"])
        if e.get("pl"): part_loads()
        for d in e["ds"]:
            if d[0] == "flag":
                A(f"ds_read_b32 v{vT2}, v{vFL} offset:{4*d[1]}"); q.issue(d)
            elif d[0] == "ld":
                if d in chk:
                    jj = d[1][1] // 8
                    A(f"s_cmp_eq_u32 s5, 0\ns_cbranch_scc1 L_uslow{jj}{sfx}\nL_uok{jj}{sfx}:")
                    slow.append((jj, sfx))
                A(ld_text(d[1])); q.issue(d[1])
            elif d[0] == "y": ywrite(d[1])
            else: yflag(d[1])
        kq_issue(2 if i < 16 else (1 if e["ds"] else 2))
        for v in e["valu"]: A(v)
import copy
JOIN = 32
kq_save, q_save = list(kq), copy.deepcopy(q)
kq_issue(len(kq))
wait_flag(vFL, 0, 1, "u0", vT2); q.known_all()
emit(0, JOIN, "a")
A.label("L_join")
emit(JOIN, len(prog), "")
A.nop(8); ywrite(7); yflag(7)
stamp(7); fstamp(3, 9)
if OPT["nopatch"]: A("s_endpgm")
XST = 16 * TROW
if OPT["pl"] == 0:
    for k in range(4): A(f"v_mov_b32 v{60+k}, s{18+k}")
    part_loads()
A("v_lshrrev_b32 v9, 5, v1")
lw = A.newlabel("st"); lwo = A.newlabel("sto")
A(f"""
s_lshl_b32 s5, s45, 3
v_lshl_add_u32 v24, v9, 2, s5
v_add_u32 v24, v24, v{vFL}
v_bfe_u32 v25, v1, 4, 1
s_mov_b32 s54, {SPIN_MAX}
{lw}:
ds_read_b128 v[28:31], v{vFL} offset:176
ds_read_b128 v[32:35], v{vFL} offset:{48+16*7}
ds_read_b32 v26, v24 offset:192
s_sub_u32 s54, s54, 1
s_cbranch_scc1 {lwo}
s_waitcnt lgkmcnt(0)
v_and_b32 v28, v28, v29
v_and_b32 v30, v30, v31
v_and_b32 v32, v32, v33
v_and_b32 v34, v34, v35
v_and_b32 v28, v28, v30
v_and_b32 v32, v32, v34
v_and_b32 v28, v28, v32
v_cmp_eq_u32 vcc, 0, v28
s_cbranch_vccnz {lw}
{lwo}:
v_and_b32 v27, 0x7ff, v26
v_sub_u32 v27, 2047, v27
v_mul_u32_u24 v28, {2*USTR}, v25
v_lshl_add_u32 v28, v27, 1, v28
v_add_u32 v28, {UB+512}, v28
v_lshlrev_b32 v29, 3, v27
v_lshl_add_u32 v29, v25, 2, v29
v_lshrrev_b32 v30, 7, v27
v_mul_u32_u24 v30, {TROW}, v30
v_bfe_u32 v31, v27, 4, 3
v_lshl_add_u32 v30, v31, 6, v30
v_lshrrev_b32 v31, 2, v27
v_lshrrev_b32 v32, 5, v27
v_add_u32 v31, v31, v32
v_and_b32 v31, 3, v31
v_lshl_add_u32 v30, v31, 4, v30
v_and_b32 v31, 3, v27
v_lshl_add_u32 v30, v31, 2, v30
v_lshl_add_u32 v30, v25, 10, v30
ds_read_u16 v36, v28
ds_read_u16 v37, v28 offset:{USTR}
ds_read_b32 v38, v29 offset:{XST}
ds_read_b32 v40, v30
ds_read_b32 v41, v30 offset:512
s_lshl_b32 s5, s44, 3
v_mul_u32_u24 v42, 1280, v27
v_lshl_add_u32 v42, v25, 2, v42
v_add_u32 v42, s5, v42
v_not_b32 v31, v26
v_ashrrev_i32 v31, 31, v31
v_or_b32 v31, 0x80000000, v31
v_xor_b32 v31, v26, v31
v_and_b32 v31, 0xffff0000, v31
v_mul_f32 v31, {NLOG2E:#x}, v31
v_exp_f32 v31, v31
s_waitcnt lgkmcnt(0)
v_add_f32 v31, 1.0, v31
v_rcp_f32 v43, v31
v_lshlrev_b32 v36, 16, v36
v_lshlrev_b32 v37, 16, v37
v_and_b32 v39, 0xffff0000, v38
v_lshlrev_b32 v38, 16, v38
s_mov_b32 s54, {SPIN_MAX}
""")
lP = A.newlabel("par"); lPo = A.newlabel("paro")
if OPT["pl"] < 0:
    for k in range(4): A(f"v_mov_b32 v{60+k}, s{18+k}")
    part_loads()
A.label(lP)
A("s_waitcnt vmcnt(0)")
for k in range(8): A(f"v_xor_b32 v{44+k}, s{18+k%4}, v{56+k}")
A(f"""
v_or3_b32 v52, v44, v45, v46
v_or3_b32 v53, v47, v48, v49
v_or3_b32 v52, v52, v50, v51
v_or_b32 v52, v52, v53
v_and_b32 v52, 0xff, v52
v_cmp_ne_u32 vcc, 0, v52
s_cbranch_vccz {lPo}
s_sub_u32 s54, s54, 1
s_cbranch_scc1 {lPo}
""")
if OPT["rt"]:
    A("s_and_b64 s[58:59], vcc, s[56:57]\ns_mov_b64 exec, vcc\nglobal_load_dwordx4 v[56:59], v2, s[42:43] sc1\ns_or_b64 exec, s[58:59], 1\nglobal_load_dwordx4 v[60:63], v3, s[42:43] sc1\ns_mov_b64 exec, -1")
else: part_loads()
A(f"s_branch {lP}")
A.label(lPo)
stamp(8)
for k in range(4): A(f"v_add_f32 v{44+k}, v{44+k}, v{48+k}")
A("s_nop 0\nv_permlane16_swap_b32 v44, v46\nv_permlane16_swap_b32 v45, v47\nv_add_f32 v44, v44, v46\nv_add_f32 v45, v45, v47")
for sh in (1, 2, 4, 8):
    A(f"s_nop 0\nv_add_f32_dpp v44, v44, v44 row_shr:{sh} row_mask:0xf bank_mask:0xf bound_ctrl:0\nv_add_f32_dpp v45, v45, v45 row_shr:{sh} row_mask:0xf bank_mask:0xf bound_ctrl:0")
A(f"""
v_fma_f32 v44, v44, v43, v36
v_fma_f32 v45, v45, v43, v37
v_mul_f32 v46, {NLOG2E:#x}, v44
v_mul_f32 v47, {NLOG2E:#x}, v45
v_exp_f32 v46, v46
v_exp_f32 v47, v47
v_mul_f32 v44, v44, v40
v_mul_f32 v45, v45, v41
v_add_f32 v46, 1.0, v46
v_add_f32 v47, 1.0, v47
v_rcp_f32 v46, v46
v_rcp_f32 v47, v47
s_mov_b32 exec_lo, 0x80008000
s_mov_b32 exec_hi, 0x80008000
v_fma_f32 v44, v44, v46, v38
v_fma_f32 v45, v45, v47, v39
v_cvt_pk_bf16_f32 v44, v44, v45
global_store_dword v42, v44, s[40:41]
""")
stamp(9)
if OPT["stamps"]:
    A("s_waitcnt vmcnt(0)")
    stamp(10)
finish(11)
A.label("L_fast01")
kq[:] = kq_save; q.q, q.done = q_save.q, q_save.done
emit(0, JOIN, "b")
assert not kq
q.wait(("K", T3(7)))
A("s_branch L_join")
for jj, sfx in slow:
    A.label(f"L_uslow{jj}{sfx}")
    wait_flag(vFL, 4 * jj, 1, "us", vT2)
    A(f"s_branch L_uok{jj}{sfx}")
A.label("L_helper")
A("s_setprio 0")
XF = [112, 144]; GG = [128, 160]; XR = [96, 104]; ST = [8, 16]; UU = [24, 32]
A(f"""
s_lshl_b32 s5, s45, 11
s_add_u32 s5, s5, {G1_OFF}
v_lshl_add_u32 v92, v1, {4 if OPT['g1l'] else 5}, s5
s_lshl_b32 s5, s55, 11
v_add_u32 v93, s5, v92
""")
G1A = f"global_load_dwordx4 v[8:11], v92, s[42:43] sc1\nglobal_load_dwordx4 v[12:15], v92, s[42:43] offset:{G1S} sc1"
if OPT["gb1"] or OPT["g1pre"]: A(G1A)
A("s_waitcnt lgkmcnt(0)\ns_barrier")
stamp(4); fstamp(6, 1); fstamp(7, 3)
gather(0, OPT["gan"], 4)
if OPT["gb1"]:
    assert OPT["gan"] == 4 and OPT["gbn"] == 0
    gather(1, 0, OPT["gb1"])
elif OPT["allb"]:
    gather(1, OPT["gbn"], 4)
    A(G1A)
    A("global_load_dwordx4 v[16:19], v93, s[42:43] sc1\nglobal_load_dwordx4 v[20:23], v93, s[42:43] offset:16 sc1")
elif not OPT["g1pre"]: A(G1A)
A(f"""
s_lshl_b32 s5, s45, 9
s_add_u32 s5, s5, {UB+512}
v_lshl_add_u32 v91, v1, 3, s5
v_lshrrev_b32 v2, 3, v1
v_add_u32 v2, v2, v1
v_and_b32 v2, 3, v2
v_and_b32 v3, 28, v1
v_add_u32 v2, v2, v3
v_lshlrev_b32 v2, 4, v2
v_lshrrev_b32 v3, 5, v1
v_mul_u32_u24 v3, {TROW}, v3
s_mul_i32 s5, s45, {2*TROW}
v_add3_u32 v90, v2, v3, s5
s_lshl_b32 s5, s45, 2
v_add_u32 v89, s5, v{vFL}
s_lshl_b32 s5, s45, 4
v_add_u32 v87, s5, v{vFL}
s_lshl_b32 s5, s45, 11
s_add_u32 s5, s5, {16*TROW}
v_lshl_add_u32 v86, v1, 5, s5
s_lshl_b32 s5, s55, 9
v_add_u32 v232, s5, v91
s_mul_i32 s5, s55, {2*TROW}
v_add_u32 v233, s5, v90
s_lshl_b32 s5, s55, 2
v_add_u32 v234, s5, v89
s_lshl_b32 s5, s55, 4
v_add_u32 v235, s5, v87
s_lshl_b32 s5, s55, 11
v_add_u32 v236, s5, v86
v_and_b32 v88, 7, v1
v_lshl_add_u32 v237, v88, 2, v{vFL}
v_lshlrev_b32 v88, 4, v88
v_add_u32 v88, {SEL_OFF}, v88
s_lshl_b32 s5, s9, {7 if OPT['rep8'] else 31}
s_and_b32 s5, s5, 0x380
v_add_u32 v88, s5, v88
s_lshl_b32 s5, s45, 8
s_add_u32 s5, s5, {MARK}
v_add_u32 v238, s5, v4
s_lshl_b32 s5, s55, 8
v_add_u32 v239, s5, v238
""")
def unpack_x(t):
    for r in range(4):
        for hw in range(2):
            src = XR[t] + 2 * r + hw
            A(f"v_lshlrev_b32 v{XF[t]+4*(2*hw)+r}, 16, v{src}")
            A(f"v_and_b32 v{XF[t]+4*(2*hw+1)+r}, 0xffff0000, v{src}")
def poll4(s, av, first_wait):
    l = A.newlabel("g"); lo = A.newlabel("go")
    A(f"s_mov_b32 s54, {SPIN_MAX}")
    A(f"s_waitcnt vmcnt({first_wait})")
    A.label(l)
    A(f"""
v_xor_b32 v2, s4, v{s+1}
v_xor_b32 v3, s4, v{s+3}
v_xor_b32 v5, s4, v{s+5}
v_xor_b32 v6, s4, v{s+7}
v_or3_b32 v2, v2, v3, v5
v_or_b32 v2, v2, v6
v_cmp_ne_u32 vcc, 0, v2
s_cbranch_vccz {lo}
s_sub_u32 s54, s54, 1
s_cbranch_scc1 {lo}
global_load_dwordx4 {vr(s,4)}, v{av}, s[42:43] sc1
global_load_dwordx4 {vr(s+4,4)}, v{av}, s[42:43] offset:{G1S} sc1
s_waitcnt vmcnt(0)
s_branch {l}
""")
    A.label(lo)
def normalize(t):
    s = ST[t]
    for r in range(4): A(f"v_and_b32 v{180+r}, 0xffff0000, v{s+2*r}")
    for r in range(4): A(f"v_rcp_f32 v{180+r}, v{180+r}")
    for r in range(4): A(f"v_lshlrev_b32 v{176+r}, 16, v{s+2*r}")
    for r in range(4): A(f"v_mul_f32 v{176+r}, v{176+r}, v{180+r}")
    for ch in range(4):
        N = GG[t] + 4 * ch
        for r in range(4): A(f"v_fma_f32 v{N+r}, v{XF[t]+4*ch+r}, v{180+r}, -v{176+r}")
        for p in range(2): A(f"v_cvt_pk_bf16_f32 v{UU[t]+2*ch+p}, v{N+2*p}, v{N+2*p+1}")
    for ch in range(4): A(f"ds_write_b64 v{[91,232][t]}, {vr(UU[t]+2*ch,2)} offset:{USTR*ch}")
    A(f"ds_write_b32 v{[89,234][t]}, v{vONE}")
def pre(t, rows):
    for r in rows:
        N = lambda ch: GG[t] + 4 * ch + r
        E = 188
        for i in range(4): A(f"v_mul_f32 v{E+i}, {NLOG2E:#x}, v{N(i)}")
        for i in range(4): A(f"v_exp_f32 v{E+i}, v{E+i}")
        for i in range(4): A(f"v_add_f32 v{E+i}, 1.0, v{E+i}")
        for i in range(4): A(f"v_rcp_f32 v{E+i}, v{E+i}")
        for i in range(4): A(f"v_mul_f32 v{N(i)}, v{N(i)}, v{E+i}")
def precompute(t): pre(t, range(4))
def yflag_read(t): A(f"ds_read_b128 v[192:195], v{[87,235][t]} offset:48")
def yflag_test():
    A("v_and_b32 v192, v192, v193\nv_and_b32 v194, v194, v195\nv_and_b32 v192, v192, v194\ns_nop 0\nv_readfirstlane_b32 s5, v192\ns_cmp_lg_u32 s5, 0")
def ywait(t):
    l = A.newlabel("y"); lo = A.newlabel("yo")
    A(f"s_mov_b32 s54, {SPIN_MAX}")
    A.label(l)
    yflag_read(t)
    A(f"s_sub_u32 s54, s54, 1\ns_cbranch_scc1 {lo}\ns_waitcnt lgkmcnt(0)")
    yflag_test()
    if OPT["slp"]: A(f"s_cbranch_scc1 {lo}\ns_sleep {OPT['slp']}\ns_branch {l}")
    else: A(f"s_cbranch_scc0 {l}")
    A.label(lo)
def yread(t):
    for ch in range(4): A(f"ds_read_b128 {vr(200+4*ch,4)}, v{[90,233][t]} offset:{512*ch}")
    A("s_waitcnt lgkmcnt(0)")
MSK = [18, 26]
def epi(t, rows, masked):
    for r in rows:
        for ch in range(4): A(f"v_fma_f32 v{200+4*ch+r}, v{200+4*ch+r}, v{GG[t]+4*ch+r}, v{XF[t]+4*ch+r}")
        A(f"v_cvt_pk_bf16_f32 v{216+2*r+8*t}, v{200+r}, v{204+r}")
        A(f"v_cvt_pk_bf16_f32 v{217+2*r+8*t}, v{208+r}, v{212+r}")
        if masked: A(f"s_mov_b64 exec, s[{MSK[t]+2*r}:{MSK[t]+2*r+1}]")
        if not OPT["nostore"]: A(f"global_store_dwordx2 v{94+t}, {vr(216+2*r+8*t,2)}, s[40:41] offset:{1280*r}{NTS}")
        if masked: A("s_mov_b64 exec, -1")
XST = 16 * TROW
def stash(t):
    A(f"ds_write_b128 v{[86,236][t]}, {vr(XR[t],4)}\nds_write_b128 v{[86,236][t]}, {vr(XR[t]+4,4)} offset:16")
def run_step(pr, pos, vq):
    def after(tag): return len(vq) - 1 - max(i for i, t in enumerate(vq) if t == tag)
    for c in pr[pos]:
        if c == "a": A(f"s_waitcnt vmcnt({after('xa')})"); unpack_x(0)
        elif c == "w": A(f"s_waitcnt vmcnt({after('xa')})")
        elif c == "u": unpack_x(0)
        elif c == "p": poll4(ST[0], 92, after("ga")); stamp(5)
        elif c == "B": gather(1); vq += ["xb"] * 4
        elif c == "b":
            A(f"global_load_dwordx4 v[16:19], v93, s[42:43] sc1\nglobal_load_dwordx4 v[20:23], v93, s[42:43] offset:{G1S} sc1"); vq += ["gb"] * 2
        elif c == "n": normalize(0); stamp(6)
        elif c == "0": precompute(0)
        elif c == "h": pre(0, [0, 1])
        elif c == "H": pre(0, [2, 3])
        elif c == "1": precompute(1)
        elif c == "N":
            A(f"s_waitcnt vmcnt({after('xb')})"); unpack_x(1); poll4(ST[1], 93, after("gb")); normalize(1); stamp(7)
        elif c == "S": A(SELLD); vq.append("sel")
        elif c in "Ee":
            ywait(0)
            if "sel" not in vq: A(SELLD); vq.append("sel")
            yread(0); epi(0, range(4), c == "e"); vq += ["sa"] * 4; stamp(8)
        elif c == "M":
            lS = A.newlabel("sel"); lSo = A.newlabel("selo")
            both = "e" in pr
            A(f"""
s_mov_b32 s54, {SPIN_MAX}
s_waitcnt vmcnt({after('sel')})
{lS}:
v_cmp_ne_u32 vcc, s4, v43
s_cbranch_vccz {lSo}
s_sub_u32 s54, s54, 1
s_cbranch_scc1 {lSo}
{SELLD}
s_waitcnt vmcnt(0)
s_branch {lS}
{lSo}:
v_and_b32 v44, 0x7ff, v40
v_sub_u32 v44, {MARK+2047}, v44
ds_write_b8 v44, v{vONE}
ds_write_b32 v237, v40 offset:192
{'ds_read_b32 v45, v238' if both else ''}
ds_read_b32 v46, v239
s_waitcnt lgkmcnt(0)
""")
            for t in ((0, 1) if both else (1,)):
                for r in range(4): A(f"v_cmp_eq_u32_sdwa s[{MSK[t]+2*r}:{MSK[t]+2*r+1}], v{45+t}, 0 src0_sel:BYTE_{r} src1_sel:DWORD")
        elif c == "k": A(f"s_waitcnt vmcnt({after('sa')})\nds_write_b32 v89, v{vONE} offset:176")
        elif c == "f": A(f"ds_write_b32 v89, v{vONE} offset:176")
        elif c == "G":
            ywait(1); yread(1); epi(1, range(4), True); vq += ["sb"] * 4; stamp(9)
        done = pr[:pr.index(c) + 1]
        if c in "EeN" and ("E" in done or "e" in done) and "N" in done: stash(0); stash(1)
SELLD = "global_load_dwordx4 v[40:43], v88, s[42:43] sc1"
progs = [OPT[f"prog{h}"] for h in range(4)]
def emit_tree(hs, pos, vq):
    while True:
        nxt = {}
        for h in hs: nxt.setdefault(progs[h][pos:pos+1] + ("e" if progs[h][pos:pos+1] == "M" and "e" in progs[h] else ""), []).append(h)
        if len(nxt) == 1:
            c = list(nxt)[0]
            if c == "": A("s_branch L_progend"); return
            run_step(progs[hs[0]], pos, vq); pos += 1
            continue
        groups = list(nxt.values()); labels = [A.newlabel("pg") for _ in groups]
        for g, l in list(zip(groups, labels))[1:]:
            for h in g: A(f"s_cmp_eq_u32 s45, {h}\ns_cbranch_scc1 {l}")
        for i, (g, l) in enumerate(zip(groups, labels)):
            if i: A.label(l)
            emit_tree(g, pos, list(vq))
        return
emit_tree([0, 1, 2, 3], 0, ["xa"] * 4 + ["ga"] * 2)
A.label("L_progend")
if OPT["stamps"]:
    A("s_waitcnt vmcnt(0)")
    stamp(10)
finish(11)

A.label("L_notconv")
PAIRTAB = 0x77277170 if OPT["bal"] else 0x77777210
def pair_of(dst, ps):
    A(f"""
s_lshl_b32 s6, s9, 2
s_lshr_b32 s6, {PAIRTAB:#x}, s6
s_and_b32 s6, s6, 7
s_cmp_ge_u32 {ps}, 3
s_cselect_b32 s6, s6, s9
s_lshl_b32 {dst}, {ps}, 3
s_add_u32 {dst}, {dst}, s6
""")
A("s_sub_u32 s62, s8, 20")
A(f"""
v_lshlrev_b32 v7, 4, v0
v_add_u32 v7, {KB}, v7
ds_write_b128 v7, v[32:35]
ds_write_b128 v7, v[32:35] offset:8192
s_lshr_b32 s63, s62, 1
""")
if OPT["gul"] == 1: gu_pf()
GU12 = OPT["gul"] == 2
if GU12:
    A(f"""
s_lshl_b32 s5, s49, 3
s_add_u32 s5, s5, s9
s_min_u32 s5, s5, 26
s_lshl_b32 s5, s5, 7
s_mul_i32 s6, s62, 54
v_add_u32 v23, s6, v1
v_min_u32 v23, 639, v23
v_mul_u32_u24 v23, 3456, v23
v_add_u32 v23, s5, v23
s_mov_b64 s[52:53], s[56:57]
""")
A("s_mov_b64 s[52:53], s[56:57]")
pair_of("s48", "s63")
A(f"""
s_lshl_b32 s48, s48, 1
s_and_b32 s5, s62, 1
s_add_u32 s48, s48, s5
s_mul_i32 s5, s49, {160*3456}
s_lshl_b32 s6, s48, 6
s_add_u32 s5, s5, s6
s_add_u32 s56, s56, s5
s_addc_u32 s57, s57, 0
s_mul_i32 s50, s3, 10240
s_mov_b32 m0, s50
v_lshrrev_b32 v5, 2, v1
v_mul_u32_u24 v5, 3456, v5
v_and_b32 v6, 3, v1
v_lshl_add_u32 v5, v6, 4, v5
""")
stats_pre()
stats(3 - (OPT["gul"] >= 2))
if OPT["gul"] == 3: A(f"s_mov_b64 exec, 0xfffff\nglobal_load_dword v251, v23, s[52:53]{NTW}\ns_mov_b64 exec, -1")
A("s_waitcnt lgkmcnt(0)")
A(f"""
s_barrier
{("s_mov_b64 exec, 0xfffff" + chr(10) + "global_load_dword v251, v23, s[52:53]") if OPT["gul"] == 4 else ""}
{"s_cmp_eq_u32 s2, 255" if GU12 else ""}
{"s_cbranch_scc1 L_selector" if GU12 else ""}
{"s_mov_b32 exec_hi, 0x3fffff" if GU12 else ""}
{("global_load_dword v251, v23, s[52:53]" + NTW) if GU12 and OPT["gupf"] else ""}
s_mov_b64 exec, -1
s_cmp_lt_u32 s48, 54
s_cbranch_scc1 L_moe
s_cmp_lt_u32 s62, 8
s_cbranch_scc1 L_fin
s_sub_u32 s63, s62, 8
""")
A("s_cmp_eq_u32 s2, 255\ns_cbranch_scc1 L_selector")
pair_of("s5", "s63")
A(f"""
s_cmp_ge_u32 s5, {27 if OPT['dpf'] else 0}
s_cbranch_scc1 L_fin
s_mul_i32 s5, s5, {64*1280}
s_add_u32 s5, s5, s50
v_lshl_add_u32 v5, v1, 7, s5
global_load_dword v251, v5, s[38:39]{NTW}
v_add_u32 v5, 8192, v5
s_mov_b64 exec, 0xffff
global_load_dword v251, v5, s[38:39]{NTW}
s_branch L_fin
L_moe:
""")
A(f"""
v_and_b32 v116, 15, v1
v_lshrrev_b32 v117, 4, v1
s_mul_i32 s5, s48, {32*1280}
s_lshl_b32 s6, s3, 8
s_add_u32 s5, s5, s6
v_mul_u32_u24 v34, {8*1280}, v117
v_lshl_add_u32 v34, v116, 4, v34
v_add_u32 v34, s5, v34
v_add_u32 v35, {4*1280}, v34
""")
if OPT["dfirst"] == 1:
    A("s_cmp_ge_u32 s3, 5\ns_cbranch_scc1 L_nod0")
    for j in range(8):
        A(f"global_load_dwordx4 {vr(80+4*j,4)}, v{34 + j//4}, s[38:39] offset:{1280*(j%4)}{NTW}")
    A.label("L_nod0")
for i in range(10):
    A(f"global_load_lds_dwordx4 v5, s[56:57]{NTW}")
    if i < 9: A(f"s_add_u32 m0, m0, 1024\ns_add_u32 s56, s56, {16*3456}\ns_addc_u32 s57, s57, 0")
A(f"""
v_and_b32 v39, 7, v1
s_lshl_b32 s5, s9, 7
s_add_u32 s5, s5, {SEL_OFF}
v_lshl_add_u32 v36, v39, 4, s5
s_mov_b32 s60, 0x05040100
s_mov_b32 s61, 0x07060302
v_mov_b32 v112, 0x3f803f80
v_mov_b32 v113, 0x3f803f80
v_mov_b32 v114, 0x3f803f80
v_mov_b32 v115, 0x3f803f80
s_mov_b32 s62, 0x00ff00ff
s_mov_b32 s63, 0x00ff00ff
v_lshlrev_b32 v7, 9, v117
v_bfe_u32 v38, v1, 2, 2
v_lshl_add_u32 v7, v38, 6, v7
v_and_b32 v38, 1, v1
v_lshl_add_u32 v7, v38, 3, v7
v_bfe_u32 v38, v1, 1, 1
v_mul_u32_u24 v38, 10240, v38
s_lshl_b32 s5, s45, 4
v_add3_u32 v7, v7, v38, s5
v_add_u32 v37, 40960, v7
v_lshlrev_b32 v118, 4, v1
v_lshlrev_b32 v204, 6, v39
v_and_b32 v38, 1, v117
v_lshl_add_u32 v204, v38, 3, v204
v_lshrrev_b32 v38, 1, v117
v_lshl_add_u32 v204, v38, 2, v204
s_add_u32 s5, s5, {HB}
v_add_u32 v204, s5, v204
v_lshlrev_b32 v206, 6, v39
v_lshl_add_u32 v206, v117, 4, v206
v_add_u32 v206, {HB}, v206
v_mov_b32 v207, {ZBLK}
v_cndmask_b32 v208, v207, v206, s[62:63]
v_cndmask_b32 v207, v206, v207, s[62:63]
s_and_b32 s5, s4, 0xff
v_mov_b32 v212, s5
s_bfe_u32 s5, s4, 0x80008
v_mov_b32 v213, s5
s_bfe_u32 s5, s4, 0x80010
v_mov_b32 v214, s5
s_lshr_b32 s5, s4, 24
v_mov_b32 v215, s5
v_bfe_u32 v216, v1, 3, 1
v_lshl_add_u32 v216, v117, 3, v216
v_mul_u32_u24 v216, {PART_STRIDE}, v216
v_lshl_add_u32 v216, v39, 4, v216
s_mul_i32 s5, s3, {32*PART_STRIDE}
s_lshl_b32 s6, s48, 7
s_add_u32 s5, s5, s6
s_add_u32 s5, s5, {PART_OFF}
v_add_u32 v216, s5, v216
v_add_u32 v217, {2*PART_STRIDE}, v216
v_add_u32 v218, {4*PART_STRIDE}, v216
v_add_u32 v219, {6*PART_STRIDE}, v216
v_min_u32 v220, 8, v116
v_mul_u32_u24 v220, {XRS}, v220
v_lshl_add_u32 v220, v117, 4, v220
v_add_u32 v220, {XRB}, v220
s_mul_i32 s55, s45, {XRS}
s_add_u32 s55, s55, {XRB}
s_add_u32 s47, s45, 4
v_min_u32 v38, 79, v0
v_lshlrev_b32 v38, 4, v38
v_add_u32 v38, {XRB + 8*XRS}, v38
ds_write_b128 v38, v[112:115]
s_waitcnt vmcnt(0)
s_cmp_ge_u32 s3, 5
s_cbranch_scc1 L_nod
""")
if OPT["dfirst"] == 0:
    for j in range(8):
        A(f"global_load_dwordx4 {vr(80+4*j,4)}, v{34 + j//4}, s[38:39] offset:{1280*(j%4)}{NTW}")
A("L_nod:\nglobal_load_dwordx4 v[8:11], v36, s[42:43] sc1\ns_barrier")
if OPT["dfirst"] == 2:
    A("s_cmp_ge_u32 s3, 5\ns_cbranch_scc1 L_nod0")
    for j in range(8):
        A(f"global_load_dwordx4 {vr(80+4*j,4)}, v{34 + j//4}, s[38:39] offset:{1280*(j%4)}{NTW}")
    A.label("L_nod0")
A("s_cmp_ge_u32 s3, 4\ns_cbranch_scc1 L_nocs")
for ks in range(20):
    for hf in range(2):
        A(f"ds_read_b64_tr_b16 {vr(120+4*ks+2*hf,2)}, v{7 if ks < 10 else 37} offset:{(ks//5 % 2)*20480 + (ks%5)*2048 + 256*hf}")
A.label("L_nocs")
stamp(4)
lS = A.newlabel("msel"); lSo = A.newlabel("mselo")
A(f"""
s_mov_b32 s54, {SPIN_MAX}
s_mov_b32 m0, s55
s_waitcnt vmcnt(0)
{lS}:
v_cmp_ne_u32 vcc, s4, v11
s_cbranch_vccz {lSo}
s_sub_u32 s54, s54, 1
s_cbranch_scc1 {lSo}
global_load_dwordx4 v[8:11], v36, s[42:43] sc1
s_waitcnt vmcnt(0)
s_branch {lS}
{lSo}:
s_cmp_lt_u32 s3, 4
s_cbranch_scc1 L_norow
v_readlane_b32 s52, v8, s45
v_readlane_b32 s53, v8, s47
s_and_b32 s52, s52, 0x7ff
s_and_b32 s53, s53, 0x7ff
s_sub_u32 s52, 2047, s52
s_sub_u32 s53, 2047, s53
s_mul_i32 s52, s52, 1280
s_mul_i32 s53, s53, 1280
s_add_u32 s56, s16, s52
s_addc_u32 s57, s17, 0
s_add_u32 s58, s16, s53
s_addc_u32 s59, s17, 0
global_load_lds_dwordx4 v118, s[56:57]
global_load_lds_dword v4, s[56:57] offset:1024
s_add_u32 m0, m0, {4*XRS}
s_nop 0
global_load_lds_dwordx4 v118, s[58:59]
global_load_lds_dword v4, s[58:59] offset:1024
L_norow:
""")
stamp(5)
for qq in range(8):
    for i in range(4):
        A(f"v_perm_b32 v{224+4*qq+i}, v{80+4*(2*i+1)+qq//2}, v{80+4*(2*i)+qq//2}, {'s60' if qq % 2 == 0 else 's61'}")
A(f"""
s_mov_b32 s60, 0xffffff00
v_and_b32 v33, 0xffff0000, v9
v_lshlrev_b32 v32, 16, v9
v_rcp_f32 v33, v33
v_xor_b32 v32, 0x80000000, v32
v_mul_f32 v30, {NLOG2E:#x}, v33
v_mul_f32 v31, v33, v33
s_waitcnt vmcnt(0) lgkmcnt(0)
s_barrier
""")
stamp(6)
A("s_cmp_ge_u32 s3, 4\ns_cbranch_scc1 L_nored")
mq = LdsQ()
XB = [40, 44, 48, 52, 56, 12, 16, 20]
def xr(ks): A(f"ds_read_b128 {vr(XB[ks % 8],4)}, v220 offset:{64*ks}"); mq.issue(ks)
for ks in range(7): xr(ks)
for ks in range(20):
    mq.wait(ks)
    A(f"v_mfma_f32_16x16x32_bf16 v[60:63], {vr(120+4*ks,4)}, {vr(XB[ks % 8],4)}, {'0' if ks == 0 else 'v[60:63]'}")
    if ks + 7 < 20: xr(ks + 7)
stamp(7)
A(f"""
s_nop 7
v_fmac_f32_dpp v60, v60, v32 row_ror:8 row_mask:0xf bank_mask:0xf
v_fmac_f32_dpp v62, v62, v32 row_ror:8 row_mask:0xf bank_mask:0xf
v_fmac_f32_dpp v61, v61, v32 row_ror:8 row_mask:0xf bank_mask:0xf
v_fmac_f32_dpp v63, v63, v32 row_ror:8 row_mask:0xf bank_mask:0xf
v_permlane32_swap_b32 v60, v62
s_nop 0
v_permlane32_swap_b32 v61, v63
v_mul_f32 v8, v60, v30
v_mul_f32 v9, v61, v30
v_exp_f32 v8, v8
v_exp_f32 v9, v9
v_mul_f32 v60, v60, v62
v_mul_f32 v61, v61, v63
v_add_f32 v8, 1.0, v8
v_add_f32 v9, 1.0, v9
v_rcp_f32 v8, v8
v_rcp_f32 v9, v9
v_mul_f32 v60, v60, v31
v_mul_f32 v61, v61, v31
v_mul_f32 v60, v60, v8
v_mul_f32 v61, v61, v9
s_mov_b64 exec, s[62:63]
v_cvt_pk_bf16_f32 v8, v60, v61
ds_write_b32 v204, v8
s_mov_b64 exec, -1
L_nored:
s_waitcnt lgkmcnt(0)
s_barrier
""")
stamp(8)
A(f"""
s_cmp_ge_u32 s3, 5
s_cbranch_scc1 L_fin
ds_read_b128 v[8:11], v208
ds_read_b128 v[12:15], v207
s_waitcnt lgkmcnt(1)
""")
for qq in range(4): A(f"v_mfma_f32_16x16x32_bf16 {vr(56+4*qq,4)}, {vr(224+4*qq,4)}, v[8:11], 0")
A("s_waitcnt lgkmcnt(0)")
for qq in range(4): A(f"v_mfma_f32_16x16x32_bf16 {vr(56+4*qq,4)}, {vr(240+4*qq,4)}, v[12:15], {vr(56+4*qq,4)}")
A.nop(5)
for r in range(4):
    for qq in range(4): A(f"v_bfi_b32 v{72+4*r+qq}, s60, v{56+4*qq+r}, v{212+qq}")
    A(f"global_store_dwordx4 v{216+r}, {vr(72+4*r,4)}, s[42:43] sc1")
stamp(9)
if OPT["stamps"]:
    A("s_waitcnt vmcnt(0)")
    stamp(10)
finish(11)
A.label("L_selector")
def rank16(key, lst, rk, t):
    prs = ["s[6:7]", "s[10:11]", "s[12:13]", "s[14:15]"]
    for i in range(4): A(f"v_cmp_gt_u32 {prs[i]}, v{lst+i}, v{key}")
    A(f"v_addc_co_u32_e64 v{rk}, vcc, 0, 0, {prs[0]}")
    for i in range(1, 4): A(f"v_addc_co_u32_e64 v{rk}, vcc, v{rk}, 0, {prs[i]}")
    A(f"v_mov_b32 v{t}, v{rk}\ns_nop 1\nv_permlane16_swap_b32 v{rk}, v{t}\nv_add_u32 v{rk}, v{rk}, v{t}")
    A(f"v_mov_b32 v{t}, v{rk}\ns_nop 1\nv_permlane32_swap_b32 v{rk}, v{t}\nv_add_u32 v{rk}, v{rk}, v{t}")
MSDB = 0
KEY = [50, 54, 58, 62]
def g2_loads(base):
    for r in range(4): A(f"global_load_dwordx4 {vr(base+4*r,4)}, v36, s[42:43] offset:{1024*r} sc1")
def g2_bad(base):
    A(f"v_xor_b32 v2, s4, v{base+3}\nv_xor_b32 v3, s4, v{base+7}\nv_xor_b32 v5, s4, v{base+11}\nv_xor_b32 v6, s4, v{base+15}")
    A("v_or3_b32 v2, v2, v3, v5\nv_or_b32 v2, v2, v6\nv_cmp_ne_u32 vcc, 0, v2")
A(f"""
v_and_b32 v116, 15, v1
v_lshrrev_b32 v117, 4, v1
s_lshl_b32 s5, s3, 12
s_add_u32 s5, s5, {G2_OFF}
v_lshl_add_u32 v36, v1, 4, s5
v_lshlrev_b32 v221, 2, v116
v_lshlrev_b32 v222, 4, v117
v_add_u32 v223, {HMAX}, v221
v_add_u32 v224, {HMAX}, v222
v_add_u32 v221, {LIST+DRY}, v221
v_add_u32 v222, {LIST+DRY}, v222
v_lshrrev_b32 v225, 5, v0
v_lshlrev_b32 v225, 2, v225
v_add_u32 v225, {HMAX}, v225
v_mov_b32 v19, {CNT+DRY}
v_lshlrev_b32 v40, 8, v117
v_add_u32 v40, {SEL_OFF}, v40
v_mov_b32 v41, 0
v_mov_b32 v46, s4
v_mov_b32 v47, s4
s_lshl_b32 s5, s3, 10
s_sub_u32 s5, {MSDB + 4*(2047-192)}, s5
v_sub_u32 v37, s5, v4
v_bfrev_b32 v50, v0
v_mov_b32 v54, 0
v_mov_b32 v58, 0
v_mov_b32 v62, 0
s_mov_b32 s59, 0
{'s_branch L_s_top' if OPT['dry'] else ''}
L_s_real:
v_subrev_u32 v221, {DRY}, v221
v_subrev_u32 v222, {DRY}, v222
v_subrev_u32 v19, {DRY}, v19
s_mov_b32 s59, 1
s_mov_b32 s54, {SPIN_MAX}
""")
stamp(4)
if OPT["dbl"]:
    g2_loads(48)
    A("L_s_poll:")
    g2_loads(64)
    A("s_waitcnt vmcnt(4)")
    g2_bad(48)
    A("s_cbranch_vccz L_s_top\ns_sub_u32 s54, s54, 1\ns_cbranch_scc1 L_s_top")
    g2_loads(48)
    A("s_waitcnt vmcnt(4)")
    g2_bad(64)
    A("s_cbranch_vccnz L_s_poll")
    for i in range(0, 16, 2): A(f"v_mov_b32 v{48+i}, v{64+i}")
else:
    if OPT["sd"]: A(f"s_sleep {OPT['sd']}")
    if OPT["rp"]:
        g2_loads(48)
        A("L_s_poll:\ns_waitcnt vmcnt(0)")
        for r in range(4): A(f"v_cmp_ne_u32 s[{[6,10,12,14][r]}:{[7,11,13,15][r]}], s4, v{51+4*r}")
        A("s_or_b64 s[50:51], s[6:7], s[10:11]\ns_or_b64 s[52:53], s[12:13], s[14:15]\ns_or_b64 s[50:51], s[50:51], s[52:53]\ns_cbranch_scc0 L_s_top\ns_sub_u32 s54, s54, 1\ns_cbranch_scc1 L_s_top")
        for r in range(4):
            l = A.newlabel("rp")
            A(f"s_mov_b64 exec, s[{[6,10,12,14][r]}:{[7,11,13,15][r]}]\ns_cbranch_execz {l}\nglobal_load_dwordx4 {vr(48+4*r,4)}, v36, s[42:43] offset:{1024*r} sc1\n{l}:")
        A("s_mov_b64 exec, -1\ns_branch L_s_poll")
    else:
        A("L_s_poll:")
        g2_loads(48)
        A("s_sub_u32 s54, s54, 1\ns_cbranch_scc1 L_s_top\ns_waitcnt vmcnt(0)")
        g2_bad(48)
        A("s_cbranch_vccnz L_s_poll")
A("L_s_top:")
stamp(5)
A(f"v_max3_u32 v16, v{KEY[0]}, v{KEY[1]}, v{KEY[2]}\nv_max_u32 v16, v16, v{KEY[3]}\ns_nop 1")
for i, mod in enumerate(DPP6[:5]):
    if i: A("s_nop 1")
    A(f"v_max_u32_dpp v16, v16, v16 {mod.replace(' bound_ctrl:0','')}")
A(f"""
s_mov_b32 exec_lo, 0x80000000
s_mov_b32 exec_hi, 0x80000000
ds_write_b32 v225, v16
s_mov_b64 exec, -1
s_waitcnt lgkmcnt(0)
s_barrier
ds_read_b32 v17, v223
ds_read_b128 v[20:23], v224
ds_write2st64_b32 v37, v60, v56 offset0:0 offset1:1
ds_write2st64_b32 v37, v52, v48 offset0:2 offset1:3
s_waitcnt lgkmcnt(2)
""")
rank16(17, 20, 18, 24)
A(f"""
v_cmp_eq_u32 vcc, 7, v18
s_ff1_i32_b64 s5, vcc
v_readlane_b32 s5, v17, s5
s_nop 1
v_cmp_le_u32 s[6:7], s5, v{KEY[0]}
v_cmp_le_u32 s[10:11], s5, v{KEY[1]}
v_cmp_le_u32 s[12:13], s5, v{KEY[2]}
v_cmp_le_u32 s[14:15], s5, v{KEY[3]}
v_addc_co_u32_e64 v21, vcc, 0, 0, s[6:7]
s_or_b64 s[50:51], s[6:7], s[10:11]
v_addc_co_u32_e64 v22, vcc, v21, 0, s[10:11]
s_or_b64 s[52:53], s[12:13], s[14:15]
v_addc_co_u32_e64 v23, vcc, v22, 0, s[12:13]
s_or_b64 exec, s[50:51], s[52:53]
v_addc_co_u32_e64 v24, vcc, v23, 0, s[14:15]
ds_add_rtn_u32 v25, v19, v24
s_waitcnt lgkmcnt(0)
v_lshl_add_u32 v25, v25, 2, v19
v_lshl_add_u32 v21, v21, 2, v25
v_lshl_add_u32 v22, v22, 2, v25
v_lshl_add_u32 v23, v23, 2, v25
s_mov_b64 exec, s[6:7]
ds_write_b32 v25, v{KEY[0]} offset:{LIST-CNT}
s_mov_b64 exec, s[10:11]
ds_write_b32 v21, v{KEY[1]} offset:{LIST-CNT}
s_mov_b64 exec, s[12:13]
ds_write_b32 v22, v{KEY[2]} offset:{LIST-CNT}
s_mov_b64 exec, s[14:15]
ds_write_b32 v23, v{KEY[3]} offset:{LIST-CNT}
s_mov_b64 exec, -1
s_waitcnt lgkmcnt(0)
s_barrier
{'' if OPT['dry'] else 's_cmp_lg_u32 s3, 0'}
{'' if OPT['dry'] else 's_cbranch_scc1 L_fin'}
ds_read_b32 v28, v19
ds_read_b32 v17, v221
ds_read_b128 v[20:23], v222
s_waitcnt lgkmcnt(1)
v_readfirstlane_b32 s51, v28
s_cmp_gt_u32 s51, 16
s_cbranch_scc1 L_rk_many
L_rk_done:
v_and_b32 v14, 0x7ff, v17
v_lshlrev_b32 v14, 2, v14
ds_read_b32 v45, v14 offset:{MSDB}
s_waitcnt lgkmcnt(1)
""")
stamp(6)
rank16(17, 20, 18, 24)
A(f"""
v_cmp_gt_u32 vcc, 8, v18
v_lshl_add_u32 v18, v18, 4, v40
v_mov_b32 v44, v17
s_cmp_eq_u32 s59, 0
s_cbranch_scc1 L_s_real
s_cmp_lg_u32 s3, 0
s_cbranch_scc1 L_fin
s_mov_b64 exec, vcc
s_waitcnt lgkmcnt(0)
global_store_dwordx4 v18, v[44:47], s[42:43] sc1
global_store_dwordx4 v18, v[44:47], s[42:43] offset:128 sc1
s_mov_b64 exec, 1
global_store_dword v41, v46, s[42:43] sc1
""")
stamp(7)
A("s_branch L_fin")
A(f"""
L_rk_many:
v_lshl_add_u32 v26, v1, 2, v19
v_mov_b32 v27, v1
s_lshl_b32 s5, s3, 6
s_add_u32 s58, s5, {SELW}
s_mov_b32 s50, 0
L_rk_outer:
ds_read_b32 v29, v26 offset:{LIST-CNT}
v_mov_b32 v30, 0
v_mov_b32 v31, v19
s_mov_b32 s52, 0
L_rk_inner:
ds_read_b128 v[8:11], v31 offset:{LIST-CNT}
v_add_u32 v31, 16, v31
s_add_u32 s52, s52, 4
s_waitcnt lgkmcnt(0)
""")
prs = ["s[6:7]", "s[10:11]", "s[12:13]", "s[14:15]"]
for i in range(4): A(f"v_cmp_gt_u32 {prs[i]}, v{8+i}, v29")
for i in range(4): A(f"v_addc_co_u32_e64 v30, vcc, v30, 0, {prs[i]}")
A(f"""
s_cmp_lt_u32 s52, s51
s_cbranch_scc1 L_rk_inner
v_cmp_gt_u32 s[6:7], 8, v30
v_cmp_gt_u32 s[10:11], s51, v27
v_lshl_add_u32 v30, v30, 2, s58
s_and_b64 exec, s[6:7], s[10:11]
ds_write_b32 v30, v29
s_mov_b64 exec, -1
v_add_u32 v26, 256, v26
v_add_u32 v27, 64, v27
s_add_u32 s50, s50, 64
s_cmp_lt_u32 s50, s51
s_cbranch_scc1 L_rk_outer
v_lshl_add_u32 v26, v116, 2, s58
v_lshl_add_u32 v27, v117, 4, s58
ds_read_b32 v17, v26
ds_read_b128 v[20:23], v27
s_waitcnt lgkmcnt(0)
s_branch L_rk_done
""")
A.label("L_fin")
finish(11)
A.label("L_end")
A("s_endpgm")
A.label("L_code_end")
A(".fill 64, 4, 0xBF800000")

tail = f"""
.section .rodata,"a"
.p2align 6
.amdhsa_kernel {NAME}_kernel
  .amdhsa_next_free_vgpr 256
  .amdhsa_next_free_sgpr 96
  .amdhsa_accum_offset 256
  .amdhsa_group_segment_fixed_size 0
  .amdhsa_kernarg_size 120
  .amdhsa_user_sgpr_count 2
  .amdhsa_user_sgpr_kernarg_segment_ptr 1
  .amdhsa_system_sgpr_workgroup_id_x 1
.end_amdhsa_kernel
"""
probs = check_hazards(A.lines)
for p in probs: print("HAZARD", p, file=sys.stderr)
open(sys.argv[1], "w").write(head + A.text() + tail)
print("written", sys.argv[1], len(A.lines), "lines", file=sys.stderr)
```

```python
import sys
from asmlib import *
NAME = "recurrent_scan__ssm_conv_s4d__moe_arch_mod__prompt"
OPT = dict(stamps=0, ntw=0, ntx=0, ntr=0, ga=7, fine=0, sfirst=0, grp=1, bal=0, xb=4, gbn=0, gan=4, pfbar=1, gul=1, gb1=0, xall=0, inj=0, g1pre=0, warm=0, allb=0, nfirst=0, ea=0, gb2=0, dbl=0, ord=0, nts=0, hint=0, rep8=1, dry=0, nopatch=0, nostore=0, hprio=0, slp=0, yd=6, chk=0, g1l=0, mprio=0, gupf=1, sd=0, s8=0, w4=0, rp=0, x2=0, pre=3, eg=0, selp=1, rev=1, p1f=4, dfirst=2, dpf=1, pl=0, ip=0, c0=1, rt=1, prog0="apBbn0NE1MkG", prog1="apBbn0NE1MkG", prog2="apBbn0NS1MefG", prog3="apBbn0NS1MefG")
for a in sys.argv[2:]:
    k, v = a.split("="); OPT[k] = v if k.startswith("prog") else int(v)

G1_OFF, G2_OFF, SEL_OFF, PART_OFF, PART_STRIDE = 0x1000, 0x5000, 0xD000, 0x10000, 7168
HINT_OFF = 0xE000
STAMP_OFF = 0x200000
TROW = 2064
TBX, TBY = 0, 24 * TROW
UB = TBY + 32 * TROW
USTR = 4608
BOXB = UB + 4 * USTR
KB = BOXB + 1024
PD_O, T2_O, T3_O = 0, 5600, 6112
KSTR = 6432
FLG = KB + 4 * KSTR
MARK = FLG + 224
PUBC = MARK + 2048
LDS_SIZE = PUBC + 16
UBY = lambda e: 80 * (e >> 3) + 8 * (e & 7)
RED = 81920
XRB, XRS = RED + 32768, 1296
HB = XRB + 9 * XRS
HMAX = HB + 512
PRM = UB + 512
CNT, ZBLK, SELW, LIST = KB, KB + 64, KB + 128, KB + 1024
SPIN_MAX = 1 << 20
DRY = 12288

LOG2E = 0x3FB8AA3B
NLOG2E = LOG2E ^ 0x80000000
INV2PI = 0x3E22F983
A = Asm()
NTW = " nt" if OPT["ntw"] else ""
NTX = " nt" if OPT["ntx"] else ""
NTR = " nt" if OPT["ntr"] else ""
NTS = ["", " nt", " sc0", " sc0 nt"][OPT["nts"]]
def fstamp(g, i):
    if OPT["fine"] == g: A(f"s_memtime s[{64+2*i}:{65+2*i}]")
def FS(g, i):
    return f"s_memtime s[{64+2*i}:{65+2*i}]" if OPT["fine"] == g else ""
def stamp(i):
    if OPT["fine"] and i not in (0, 13): return
    if OPT["stamps"] == 3: A(f"s_memtime s[{64+2*i}:{65+2*i}]")
    elif OPT["stamps"]: A(f"s_memrealtime s[{64+2*i}:{65+2*i}]")
def cstamp(i):
    if OPT["stamps"]: A(f"s_memtime s[{64+2*i}:{65+2*i}]")
def finish(n, dbgmap=None):
    if OPT["stamps"] == 2:
        if n == 13:
            l = A.newlabel("nd")
            stamp(13)
            A("s_load_dwordx2 s[6:7], s[0:1], 104")
            A(f"s_cmp_ge_u32 s2, 8\ns_cbranch_scc1 {l}\ns_cmp_lg_u32 s3, 7\ns_cbranch_scc1 {l}")
            A("s_waitcnt lgkmcnt(0)\ns_mov_b64 exec, 1\ns_lshl_b32 s5, s2, 3\nv_mov_b32 v2, s5")
            A("s_sub_u32 s5, s68, s64\ns_lshl_b32 s5, s5, 16\ns_and_b32 s10, s64, 0xffff\ns_or_b32 s5, s5, s10\nv_mov_b32 v4, s5")
            A("s_sub_u32 s5, s90, s64\ns_lshl_b32 s5, s5, 16\ns_sub_u32 s10, s72, s64\ns_or_b32 s5, s5, s10\nv_mov_b32 v5, s5")
            A("global_store_dwordx2 v2, v[4:5], s[6:7]")
            A.label(l)
    elif OPT["stamps"]:
        stamp(13); cstamp(15)
        A("s_waitcnt lgkmcnt(0)")
        A("s_mov_b64 exec, 1")
        A(f"s_lshl_b32 s5, s2, 3\ns_add_u32 s5, s5, s3\ns_lshl_b32 s5, s5, 6\ns_add_u32 s5, s5, {STAMP_OFF}")
        A("v_mov_b32 v2, s5")
        for i in list(range(n)) + [13, 14, 15]:
            A(f"v_mov_b32 v3, s{64+2*i}")
            A(f"global_store_dword v2, v3, s[42:43] offset:{4*i}")
    A("s_endpgm")

class LdsQ:
    def __init__(self): self.q = []; self.done = 0
    def issue(self, tag): self.q.append(tag)
    def wait(self, tag):
        idx = max(i for i, t in enumerate(self.q) if t == tag)
        if idx < self.done: return
        n = len(self.q) - 1 - idx
        A(f"s_waitcnt lgkmcnt({min(n,14)})")
        self.done = idx + 1 if n <= 14 else len(self.q) - 14
    def all(self):
        A("s_waitcnt lgkmcnt(0)"); self.done = len(self.q)
    def known_all(self): self.done = len(self.q)

def cmul(dst, p, w, t):
    A(f"v_pk_mul_f32 {vr(t,2)}, {vr(p,2)}, {vr(w,2)} op_sel:[0,0] op_sel_hi:[1,0]")
    A(f"v_pk_fma_f32 {vr(dst,2)}, {vr(p,2)}, {vr(w,2)}, {vr(t,2)} op_sel:[1,1,0] op_sel_hi:[0,1,1] neg_lo:[1,0,0]")
LANE63 = "s_mov_b32 exec_lo, 0\ns_mov_b32 exec_hi, 0x80000000"
DPP6 = ["row_shr:1 row_mask:0xf bank_mask:0xf bound_ctrl:0", "row_shr:2 row_mask:0xf bank_mask:0xf bound_ctrl:0",
        "row_shr:4 row_mask:0xf bank_mask:0xf bound_ctrl:0", "row_shr:8 row_mask:0xf bank_mask:0xf bound_ctrl:0",
        "row_bcast:15 row_mask:0xa bank_mask:0xf", "row_bcast:31 row_mask:0xc bank_mask:0xf"]

KD = lambda m: 8 + 4 * m
KS = 76
T2 = lambda d, hh: 80 + 8 * (d - 2) + 4 * hh
T3 = lambda d: 104 + 4 * (d - 4)
BOX = lambda i: 120 + 4 * i
ACC = lambda j: 140 + 4 * j
BR = lambda s: 172 + 4 * s
W1R = 204
BA = lambda i: 208 + 4 * i
SG = lambda i: 232 + 4 * i
vUB, vYW, vFL, vONE, vT0, vT1, vT2 = 244, 245, 246, 247, 248, 249, 250

hdr = open("stub_ref.txt").read().split("; @launch")[0]
head = hdr + f"""; @launch grid=(256,1,1) block=(512,1,1) lds={LDS_SIZE}
.amdgcn_target "amdgcn-amd-amdhsa--gfx950"
.text
.globl {NAME}_kernel
.p2align 8
.type {NAME}_kernel,@function
{NAME}_kernel:
; ---------------------------------------------------------------------------------------------
; One fused launch, 256 workgroups x 8 waves (one per CU).  Every wave first computes the LayerNorm
; statistics and the router score of one row and publishes them in d_ws as self-validating granules
; (payload + launch tag; the tag is derived from an epoch word so that older hand-offs never match).
;   wg <  160 : S4D convolution of 4 channels.  All waves build bf16 power tables of exp(A*dt),
;               waves 0-3 contract them on MFMA into the kernel taps (641 distinct positions, since
;               pos is bf16), then run the causal convolution as Toeplitz MFMA tiles (dense taps up to
;               lag 514, box-summed taps beyond); waves 4-7 gather x columns, normalise, apply the SiLU
;               gate and store.  Waves 0-3 finally patch the 8 routed rows.
;   54 wgs    : SwiGLU FFN, 32 hidden columns each, publish down-projection partial sums.
;   wg 255    : top-8 of the scores.   The rest: L2 prefetch of weights.
; wg%8 is only used for L2 locality; every hand-off uses sc1 stores/loads and tag checks.
; ---------------------------------------------------------------------------------------------
"""

A("s_cmp_ge_u32 s2, 256\ns_cbranch_scc1 L_end")
A("s_load_dwordx16 s[16:31], s[0:1], 0")
A("s_load_dwordx8 s[32:39], s[0:1], 64")
A("s_load_dwordx2 s[40:41], s[0:1], 96")
A("s_load_dwordx2 s[42:43], s[0:1], 112")
stamp(0); cstamp(14)
EG = OPT["eg"]
EG1 = f"s_lshl_b32 s6, s8, 2\ns_add_u32 s6, s6, s49\ns_mul_i32 s6, s6, 1280\ns_add_u32 s6, s6, s62\nv_mul_u32_u24 v22, {128*1280}, v1\nv_add_u32 v22, s6, v22" if EG else ""
EG2 = f"s_bfm_b64 exec, {2*EG}, 0\nglobal_load_dword v251, v22, s[16:17]\ns_mov_b64 exec, -1" if EG else ""
A(f"""
s_getpc_b64 s[6:7]
L_pc:
s_lshr_b32 s8, s2, 3
v_lshrrev_b32 v2, 6, v0
s_lshl_b32 s5, s8, 10
v_lshl_add_u32 v5, v0, 1, s5
v_readfirstlane_b32 s3, v2
v_min_u32 v5, L_code_end-L_pc, v5
v_and_b32 v5, -4, v5
global_load_dword v252, v5, s[6:7]
v_and_b32 v1, 63, v0
v_lshlrev_b32 v3, 4, v1
v_lshlrev_b32 v4, 2, v1
v_mov_b32 v32, 0
v_mov_b32 v{vFL}, {FLG}
v_mov_b32 v{vONE}, 1
ds_write_b32 v{vFL}, v32 offset:{PUBC-FLG}
s_and_b32 s45, s3, 3
s_and_b32 s9, s2, 7
s_lshl_b32 s10, s2, 3
s_add_u32 s10, s10, s3
s_mul_i32 s11, s10, 1280
s_lshr_b32 s46, s3, 2
s_mul_i32 s12, s9, 20
s_add_u32 s44, s12, s8
s_lshr_b32 s49, s3, 1
s_lshr_b32 s5, s12, 4
s_and_b32 s6, s3, 1
s_add_u32 s5, s5, s6
s_lshl_b32 s62, s5, 7
s_lshl_b32 s6, s8, 2
s_add_u32 s6, s6, s49
s_mul_i32 s6, s6, {20480 if OPT['xall'] else 10240}
s_add_u32 s5, s62, s6
v_mul_u32_u24 v93, 1280, v1
v_add_u32 v22, s5, v93
s_lshl_b32 s5, s49, 3
s_add_u32 s5, s5, s9
s_min_u32 s5, s5, 26
s_lshl_b32 s5, s5, 7
s_mul_i32 s6, s8, {20*3456}
s_add_u32 s5, s5, s6
v_mul_u32_u24 v23, 3456, v1
v_add_u32 v23, s5, v23
s_lshl_b32 s5, s45, 8
s_lshl_b32 s6, s46, 7
s_add_u32 s5, s5, s6
s_lshl_b32 s6, s44, 10
s_add_u32 s5, s5, s6
v_lshl_add_u32 v6, v1, 1, s5
s_lshr_b32 s5, s5, 8
s_lshl_b32 s5, s5, 1
v_mov_b32 v7, s5
{EG1}
s_waitcnt lgkmcnt(0)
{EG2}
s_add_u32 s6, s16, s11
s_addc_u32 s7, s17, 0
global_load_dwordx4 v[8:11], v3, s[6:7]{NTR}
global_load_dword v12, v4, s[6:7] offset:1024{NTR}
global_load_dwordx4 v[16:19], v3, s[32:33]
global_load_dword v20, v4, s[32:33] offset:1024
global_load_dword v29, v32, s[42:43]
s_bitcmp1_b32 s3, 0
s_cselect_b32 s56, s36, s34
s_cselect_b32 s57, s37, s35
""")
stamp(1)
def early_pf():
    A(f"""
s_bfm_b64 exec, {(16 if OPT['xall'] else 8) - 2*EG}, {2*EG}
global_load_dword v251, v22, s[16:17]{NTX}
s_mov_b64 exec, -1
""")
    if not OPT["gul"]: gu_pf()
def gu_pf():
    A(f"""
s_mov_b64 exec, 0xfffff
global_load_dword v251, v23, s[56:57]{NTW}
s_mov_b64 exec, -1
""")
A(f"""
s_barrier
s_cmp_ge_u32 s2, 160
s_cbranch_scc1 L_nopar
global_load_ushort v40, v6, s[18:19]{NTW}
global_load_ushort v45, v7, s[26:27]
global_load_ushort v41, v6, s[20:21]{NTW}
global_load_ushort v42, v6, s[22:23]{NTW}
global_load_ushort v43, v6, s[24:25]{NTW}
global_load_ushort v46, v7, s[28:29]
L_nopar:
""")
if OPT["pfbar"]: A("s_barrier")
early_pf()
A("""
v_mov_b32 v33, 0
v_mov_b32 v34, 0
v_mov_b32 v35, 0
s_cbranch_scc1 L_notconv
""")
def row_loads():
    A(f"""
s_add_u32 s6, s16, s11
s_addc_u32 s7, s17, 0
global_load_dwordx4 v[8:11], v3, s[6:7]{NTR}
global_load_dword v12, v4, s[6:7] offset:1024{NTR}
global_load_dwordx4 v[16:19], v3, s[32:33]
global_load_dword v20, v4, s[32:33] offset:1024
""")
G1ADDR = (f"s_and_b32 s5, s10, 0x700\ns_lshl_b32 s5, s5, 3\ns_and_b32 s6, s10, 2\ns_lshl_b32 s6, s6, 9\ns_add_u32 s5, s5, s6\ns_and_b32 s6, s10, 0xfc\ns_lshl_b32 s6, s6, 2\ns_add_u32 s5, s5, s6\n"
          f"s_and_b32 s6, s10, 1\ns_lshl_b32 s6, s6, 3\ns_add_u32 s5, s5, s6\ns_add_u32 s5, s5, {G1_OFF}\nv_mov_b32 v34, s5") if OPT["g1l"] else f"v_add_u32 v34, {G1_OFF}, v33"
G1S = 1024 if OPT["g1l"] else 16
def stats_pre():
    A("s_mov_b32 s14, 0x9E3779B1\ns_mov_b32 s47, 0x3f803f80\ns_lshl_b32 s11, s10, 3\ns_sub_u32 s13, 2047, s10")
    A(f"v_mov_b32 v33, s11\n{G1ADDR}\nv_lshlrev_b32 v35, 1, v33\nv_add_u32 v35, {G2_OFF}, v35\nv_mov_b32 v36, 0x3acccccd")
def make_tag():
    pass
def stats(younger, cnt=False):
    A(vmw(younger - 1) if cnt else f"s_waitcnt vmcnt({younger-1})")
    stamp(2)
    A("s_setprio 2")
    for i in range(5):
        c = (lambda r: "0" if i == 0 else r)
        A(f"v_dot2_f32_bf16 v24, v{8+i}, s47, {c('v24')}")
        A(f"v_dot2_f32_bf16 v25, v{8+i}, v{8+i}, {c('v25')}")
        A(f"v_dot2_f32_bf16 v26, v{8+i}, v{16+i}, {c('v26')}")
        A(f"v_dot2_f32_bf16 v27, v{16+i}, s47, {c('v27')}")
    A(f"""
s_nop 0
v_permlane32_swap_b32 v24, v25
s_nop 0
v_permlane32_swap_b32 v26, v27
v_add_f32 v24, v24, v25
v_add_f32 v26, v26, v27
s_nop 0
v_mul_lo_u32 v29, v29, s14
v_permlane16_swap_b32 v24, v26
v_add_f32 v24, v24, v26
v_add_u32 v29, 0x7F4A7C15, v29
v_mov_b32 v31, v29
v_add_f32_dpp v24, v24, v24 row_shr:1 row_mask:0xf bank_mask:0xf bound_ctrl:0
v_readfirstlane_b32 s4, v29
s_nop 0
v_add_f32_dpp v24, v24, v24 row_shr:2 row_mask:0xf bank_mask:0xf bound_ctrl:0
s_nop 1
v_add_f32_dpp v24, v24, v24 row_shr:4 row_mask:0xf bank_mask:0xf bound_ctrl:0
s_nop 1
v_add_f32_dpp v24, v24, v24 row_shr:8 row_mask:0xf bank_mask:0xf bound_ctrl:0
s_mov_b64 exec, 1
v_readlane_b32 s6, v24, 15
v_readlane_b32 s7, v24, 47
v_readlane_b32 s14, v24, 31
v_readlane_b32 s15, v24, 63
v_mul_f32 v24, s6, v36
v_mul_f32 v25, s7, v36
v_mov_b32 v26, s14
v_fma_f32 v25, -v24, v24, v25
v_max_f32 v25, 0, v25
v_cvt_pk_bf16_f32 v28, v24, v25
v_and_b32 v25, 0xffff0000, v28
v_lshlrev_b32 v24, 16, v28
v_add_f32 v25, 0x3727c5ac, v25
v_cvt_pk_bf16_f32 v25, v25, v25
v_fma_f32 v26, -v24, s15, v26
v_and_b32 v25, 0xffff0000, v25
v_sqrt_f32 v25, v25
""")
    A("s_nop 0")
    A("""
v_cvt_pk_bf16_f32 v28, v24, v25
v_and_b32 v25, 0xffff0000, v28
v_rcp_f32 v25, v25
global_store_dwordx2 v34, v[28:29], s[42:43] sc1
v_mul_f32 v26, v26, v25
v_cvt_pk_bf16_f32 v26, v26, v26
v_ashrrev_i32 v27, 31, v26
v_or_b32 v27, 0x80000000, v27
v_xor_b32 v26, v26, v27
v_and_b32 v26, 0xffff0000, v26
v_or_b32 v30, s13, v26
global_store_dwordx4 v35, v[28:31], s[42:43] sc1
""")
    if cnt: A(f"ds_add_u32 v{vFL}, v{vONE} offset:{PUBC-FLG}")
    A("s_mov_b64 exec, -1\ns_setprio 0")
    stamp(3)
EG3 = (f"s_sub_u32 s5, s3, 4\ns_cmp_ge_u32 s5, {EG}\ns_cbranch_scc1 L_neg\ns_mov_b32 s48, 1\ns_mov_b32 s63, 0\n"
       + "".join(f"global_load_dwordx2 v[{96+2*r}:{97+2*r}], v94, s[16:17] offset:{1280*r}\n" for r in range(4)) + "L_neg:") if EG else ""
def vmw(n):
    if not EG: return f"s_waitcnt vmcnt({n})"
    l1 = A.newlabel("w"); l2 = A.newlabel("w")
    return f"s_cmp_eq_u32 s48, 0\ns_cbranch_scc1 {l1}\ns_waitcnt vmcnt({n+4})\ns_branch {l2}\n{l1}:\ns_waitcnt vmcnt({n})\n{l2}:"
def conv_init():
    A(f"""
s_and_b32 s6, s8, 15
s_lshl_b32 s6, s6, 1
s_and_b32 s7, s49, 1
s_add_u32 s6, s6, s7
s_add_u32 s6, s6, 32
s_mul_i32 s6, s6, 40960
s_add_u32 s5, s62, s6
v_add_u32 v93, s5, v93
v_mov_b32 v33, 0
v_mov_b32 v34, 0
v_mov_b32 v35, 0
v_lshlrev_b32 v7, 4, v0
v_add_u32 v7, {KB}, v7
ds_write_b128 v7, v[32:35]
ds_write_b128 v7, v[32:35] offset:8192
ds_write_b128 v7, v[32:35] offset:16384
v_min_u32 v7, {PUBC-16-24576}, v7
ds_write_b128 v7, v[32:35] offset:24576
s_mul_i32 s53, s45, {USTR}
s_add_u32 s53, s53, {UB}
v_lshl_add_u32 v7, v1, 3, s53
ds_write_b64 v7, v[32:33]
s_add_u32 s5, s45, 1
s_sub_u32 s13, s5, 32
s_lshl_b32 s5, s5, 1
v_add_u32 v36, s13, v1
v_add_u32 v92, 1, v36
v_mov_b32 v38, 0x3f800000
v_mov_b32 v39, 0x3f80
v_cmp_ge_u32 s[6:7], s5, v36
v_cmp_ge_u32 s[14:15], s5, v92
s_lshl_b32 s13, s45, 8
s_add_u32 s13, s13, {BOXB}
v_cndmask_b32 v38, 0, v38, s[6:7]
v_cndmask_b32 v39, 0, v39, s[14:15]
v_add_u32 v7, s13, v4
v_or_b32 v38, v38, v39
ds_write_b32 v7, v38
v_and_b32 v2, 15, v1
v_lshrrev_b32 v92, 4, v1
v_lshlrev_b32 v92, 3, v92
v_sub_u32 v92, v2, v92
v_lshlrev_b32 v92, 2, v92
v_add_u32 v92, {BOXB+96}, v92
s_mul_i32 s5, s45, {256*1280}
s_lshl_b32 s6, s44, 3
s_add_u32 s5, s5, s6
v_mul_u32_u24 v94, 5120, v1
v_add_u32 v94, s5, v94
{'s_lshl_b32 s55, s45, 1' if OPT['rev'] else 's_mov_b32 s55, 3'}
s_sub_u32 s55, 7, s55
s_mul_i32 s5, s55, {256*1280}
v_add_u32 v95, s5, v94
s_lshl_b32 s5, s45, 9
s_lshl_b32 s6, s46, 8
s_add_u32 s50, s5, s6
s_add_u32 s51, s50, {TBY}
s_mov_b32 m0, s51
v_mov_b32 v84, 0x3f80
v_mov_b32 v44, {LOG2E:#x}
{'s_mov_b32 s63, 1' if OPT['gul'] == 4 else 's_lshr_b32 s63, s3, 2'}
""")
if OPT["ip"] == 0:
    conv_init()
    if OPT["gul"] == 1: gu_pf()
stats_pre()
MK3 = 224
def setup():
    A(f"""
{vmw(4 - (OPT['gul'] in (2, 4)))}
v_lshlrev_b32 v40, 16, v40
v_lshlrev_b32 v45, 16, v45
v_mul_f32 v40, v44, v40
v_mul_f32 v44, v45, v44
v_exp_f32 v40, v40
v_exp_f32 v44, v44
v_lshlrev_b32 v41, 16, v41
v_lshlrev_b32 v42, 16, v42
v_cvt_pk_bf16_f32 v40, v44, v40
v_lshlrev_b32 v43, 16, v43
v_lshlrev_b32 v44, 16, v40
v_and_b32 v40, 0xffff0000, v40
v_mul_f32 v41, v41, v44
v_mul_f32 v40, v40, v44
v_add_f32 v44, v44, v44
v_mul_f32 v40, {NLOG2E:#x}, v40
v_mul_f32 v41, {INV2PI:#x}, v41
v_mul_f32 v48, v42, v44
v_mul_f32 v49, v43, v44
v_mul_f32 v56, 0x41000000, v40
v_mul_f32 v58, 0x41000000, v41
v_mul_f32 v57, 0x43800000, v40
v_mul_f32 v59, 0x43800000, v41
v_fract_f32 v58, v58
v_fract_f32 v60, v41
v_fract_f32 v59, v59
v_exp_f32 v56, v56
v_cos_f32 v52, v58
v_sin_f32 v53, v58
v_exp_f32 v61, v40
v_cos_f32 v50, v60
v_sin_f32 v51, v60
v_exp_f32 v57, v57
v_cos_f32 v54, v59
v_sin_f32 v55, v59
ds_read_b32 v{vT2}, v{vFL} offset:{PUBC-FLG}
v_mul_f32 v52, v52, v56
v_mul_f32_e64 v53, -v53, v56
v_mul_f32 v50, v50, v61
v_mul_f32 v51, v51, v61
v_mul_f32 v54, v54, v57
v_mul_f32 v55, v55, v57
""")
stats(9 - (OPT["gul"] >= 2), cnt=True); fstamp(1, 2)
if OPT["gul"] == 3: gu_pf()
if OPT["ip"] == 1: conv_init()
if OPT["hprio"]: A("s_cmp_lt_u32 s3, 4\ns_cbranch_scc1 L_hp\ns_setprio 1\nL_hp:")
setup()
fstamp(1, 3)
def gather(t, lo=0, hi=4):
    for r in range(lo, hi):
        A(f"global_load_dwordx2 v[{96+8*t+2*r}:{97+8*t+2*r}], v{94+t}, s[16:17] offset:{1280*r}")
def pubcheck(wait):
    l = A.newlabel("gc")
    A(f"s_cmp_eq_u32 s63, 0\ns_cbranch_scc1 {l}\ns_waitcnt lgkmcnt({wait})\nv_readfirstlane_b32 s5, v{vT2}\ns_cmp_lt_u32 s5, 8\ns_cbranch_scc1 {l}\ns_mov_b32 s63, 0")
    if OPT["gul"] == 4: gu_pf(); A(f"s_cmp_lt_u32 s3, 4\ns_cbranch_scc1 {l}")
    gather(0, 0, OPT["gan"])
    A.label(l)
if OPT["c0"]: pubcheck(0)
def gather_at(pos):
    if OPT["ga"] == pos:
        l = A.newlabel("ng")
        A(f"s_cmp_lt_u32 s3, 4\ns_cbranch_scc1 {l}")
        gather(0, 0, OPT["gan"])
        A.label(l)
    if OPT["xb"] == pos:
        l = A.newlabel("nx")
        A(f"s_cmp_ge_u32 s3, 4\ns_cbranch_scc1 {l}")
        A(f"s_mov_b32 exec_hi, 0\nglobal_load_dword v251, v93, s[16:17]{NTX}\ns_mov_b64 exec, -1")
        A.label(l)
gather_at(0)
pend = []
GRP = OPT["grp"]
tt = [0]
def emit_row(reg, rows):
    t = 84 + (tt[0] % (2 * GRP)); tt[0] += 1
    if reg is not None: A(f"v_cvt_pk_bf16_f32 v{t}, v{reg}, v{reg+1}")
    for r in rows: pend.append(f"ds_write_addtid_b32 v{t} offset:{r*TROW}")
    if tt[0] % GRP == 0: flush_rows()
def flush_rows():
    for p in pend: A(p)
    pend.clear()
emit_row(None, [0]); emit_row(52, [1])
cur = 52
CHK = [{5: 0, 9: 0, 13: 0, 17: 0, 22: 0, 29: 1}, {5: 0, 12: 0, 20: 1}, {8: 0, 16: 1}, {8: 1}, {2: 1}, {16: 1}, {31: 1}, {5: 0, 9: 0, 13: 0, 18: 0, 24: 0, 31: 0}][OPT["chk"]]
for c in range(2, 32):
    dst = 64 + 2 * (c % 2)
    if c + 3 in CHK and not CHK[c + 3]: A(f"ds_read_b32 v{vT2}, v{vFL} offset:{PUBC-FLG}")
    if c in CHK:
        l = A.newlabel("gc")
        A(f"s_cmp_eq_u32 s63, 0\ns_cbranch_scc1 {l}")
        if not CHK[c]:
            A(f"s_waitcnt lgkmcnt(3)\nv_readfirstlane_b32 s5, v{vT2}\ns_cmp_lt_u32 s5, 8\ns_cbranch_scc1 {l}")
        A("s_mov_b32 s63, 0")
        if OPT["gul"] == 4: gu_pf(); A(f"s_cmp_lt_u32 s3, 4\ns_cbranch_scc1 {l}")
        fstamp(7, 1)
        gather(0, 0, OPT["gan"])
        fstamp(7, 2)
        A.label(l)
    cmul(dst, cur, 52, dst); emit_row(dst, [c]); cur = dst
    if c == 15: gather_at(3)
flush_rows()
fstamp(1, 4)
A("s_mov_b32 m0, s50")
gather_at(1)
if OPT["gbn"]:
    A("s_cmp_lt_u32 s3, 4\ns_cbranch_scc1 L_ngb")
    gather(1, 0, OPT["gbn"])
    A.label("L_ngb")
cmul(56, 50, 50, 56)
emit_row(48, [0])
cur = 48
rows0 = {1: [1], 2: [2], 3: [3], 4: [4, 8], 5: [5], 6: [6], 7: [7], 8: [12]}
for p in range(1, 9):
    dst = 64 + 2 * (p % 2)
    cmul(dst, cur, 50, dst); emit_row(dst, rows0[p]); cur = dst
for dst, src, w, rows in [(68, 48, 54, [9]), (70, 68, 56, [10]), (68, 70, 56, [11, 13]), (70, 68, 56, [14]), (72, 70, 56, [15]),
                          (70, 68, 54, [16]), (74, 72, 54, [17]), (68, 70, 54, [20]), (72, 74, 54, [21]),
                          (74, 72, 54, [18]), (72, 74, 54, [19]), (74, 72, 54, [22]), (72, 74, 54, [23])]:
    cmul(dst, src, w, dst); emit_row(dst, rows)
flush_rows()
fstamp(1, 5)
gather_at(4)
A("s_cmp_ge_u32 s3, 4\ns_cbranch_scc1 L_helper")

q = LdsQ()
A(f"""
v_and_b32 v2, 31, v1
v_lshrrev_b32 v3, 5, v1
v_mul_u32_u24 v5, {TROW}, v2
v_subrev_u32 v6, {16*TROW}, v5
v_cmp_le_u32 vcc, 24, v2
s_lshl_b32 s5, s45, 9
v_lshl_add_u32 v7, v3, 4, s5
v_cndmask_b32 v6, v5, v6, vcc
v_add_u32 v5, v5, v7
v_add_u32 v6, v6, v7
v_add_u32 v5, {TBY}, v5
s_waitcnt lgkmcnt(0)
""")
NB = 6
def kg_issue(s):
    b = 156 + 8 * (s % NB)
    A(f"ds_read_b128 {vr(b,4)}, v6 offset:{32*s}"); q.issue(("ka", s))
    A(f"ds_read_b128 {vr(b+4,4)}, v5 offset:{32*s}"); q.issue(("kb", s))
filler = f"""
s_mul_i32 s52, s45, {KSTR}
s_add_u32 s52, s52, {KB}
v_mul_u32_u24 v208, 80, v2
v_lshl_add_u32 v208, v3, 5, v208
v_add_u32 v208, s52, v208
v_add_u32 v207, 2560, v208
v_lshl_add_u32 v206, v3, 4, v208
v_add_u32 v205, 2560, v206
v_lshlrev_b32 v209, 2, v2
v_lshl_add_u32 v209, v3, 7, v209
v_add_u32 v209, s52, v209
v_lshlrev_b32 v210, 1, v2
v_lshl_add_u32 v210, v3, 7, v210
v_add_u32 v210, s52, v210
v_mov_b32 v211, s52
v_lshlrev_b32 v45, 16, v46
v_cmp_eq_u32 vcc, 0, v1
v_and_b32 v232, 15, v1
v_lshrrev_b32 v233, 4, v1
v_cndmask_b32 v45, 0, v45, vcc
v_lshlrev_b32 v234, 3, v233
v_sub_u32 v234, v232, v234
v_add_u32 v240, 25, v234
v_add_u32 v234, 29, v234
v_lshrrev_b32 v241, 3, v234
v_lshl_add_u32 v234, v234, 3, s52
v_lshl_add_u32 v234, v241, 4, v234
v_lshrrev_b32 v241, 3, v240
v_lshl_add_u32 v240, v240, 3, s52
v_lshl_add_u32 v240, v241, 4, v240
v_lshlrev_b32 v235, 2, v233
v_sub_u32 v235, v232, v235
v_add_u32 v235, 12, v235
v_lshl_add_u32 v236, v235, 2, s52
v_lshl_add_u32 v235, v235, 3, s52
v_add_u32 v236, {T3_O}, v236
v_lshlrev_b32 v{vUB}, 5, v232
v_lshl_add_u32 v{vUB}, v233, 4, v{vUB}
v_add_u32 v{vUB}, s53, v{vUB}
v_lshrrev_b32 v{vT0}, 1, v232
v_add_u32 v{vT0}, v{vT0}, v233
v_and_b32 v{vT0}, 3, v{vT0}
v_and_b32 v{vT1}, 7, v232
v_lshlrev_b32 v{vT1}, 6, v{vT1}
v_lshl_add_u32 v{vT1}, v{vT0}, 4, v{vT1}
v_lshrrev_b32 v{vT0}, 3, v232
v_mul_u32_u24 v{vT0}, {TROW}, v{vT0}
v_add3_u32 v{vYW}, v{vT0}, v{vT1}, s5
""".strip().split("\n")
late = [f"v_and_b32 v{KS+i}, v{KS+i}, v{BOX(0)+i}" for i in range(4)]
for r in [KS + i for i in range(4)] + [MK3 + i for i in range(4)]:
    late.append(f"v_pk_lshlrev_b16 v{r}, 2, v{r} op_sel_hi:[0,1]")
    late.append(f"v_pk_ashrrev_i16 v{r}, 15, v{r} op_sel_hi:[0,1]")
boxq = []
for dst, arr, offs in [(BOX(0), 0, 19), (KS, 0, 20), (MK3, 0, 22), (BOX(1), 1, 15), (BOX(2), 0, 11), (BOX(3), 2, 15), (BOX(4), 3, 15)]:
    o = arr * 64 + offs
    boxq.append(f"ds_read2_b32 {vr(dst,2)}, v92 offset0:{o} offset1:{o-2}")
    boxq.append(f"ds_read2_b32 {vr(dst+2,2)}, v92 offset0:{o-4} offset1:{o-6}")
filler += [f"s_lshl_b32 s5, s45, 2", f"v_add_u32 v{vT1}, s5, v{vFL}"]
filler += f"""s_mul_i32 s5, s44, {PART_STRIDE}
s_lshl_b32 s6, s45, 5
s_add_u32 s5, s5, s6
s_add_u32 s5, s5, {PART_OFF}
v_lshlrev_b32 v2, 7, v2
v_lshl_add_u32 v2, v3, 4, v2
v_add_u32 v2, s5, v2
v_add_u32 v3, 4096, v2
s_and_b32 s18, s4, 0xff
s_bfe_u32 s19, s4, 0x80008
s_bfe_u32 s20, s4, 0x80010
s_lshr_b32 s21, s4, 24
s_mov_b32 s56, 0x3fffff
s_mov_b32 s57, 0x3fffff""".split("\n")
for f in filler: A(f)
A("s_barrier")
stamp(4); fstamp(1, 6); fstamp(2, 1)
if OPT["mprio"]: A(f"s_setprio {OPT['mprio']}")
for s in range(NB): kg_issue(s)
for s in range(16):
    q.wait(("kb", s))
    b = 156 + 8 * (s % NB)
    A(f"v_mfma_f32_32x32x16_bf16 v[140:155], {vr(b,4)}, {vr(b+4,4)}, {'0' if s == 0 else 'v[140:155]'}")
    if s + NB < 16: kg_issue(s + NB)
    else:
        for _ in range(3):
            if boxq: A(boxq.pop(0)); q.issue("box")
assert not boxq
A(f"ds_read_b32 v{vT2}, v{vFL}"); q.issue(("flag", 0))
A.nop(11)
fstamp(2, 2)
K = lambda i: f"v{140+i}"
A(f"""
v_add_f32 {K(0)}, {K(0)}, v45
v_cvt_pk_bf16_f32 v215, {K(2)}, {K(1)}
v_cvt_pk_bf16_f32 v212, {K(3)}, {K(2)}
v_cvt_pk_bf16_f32 v214, {K(4)}, {K(3)}
v_cvt_pk_bf16_f32 v213, {K(1)}, {K(0)}
v_cvt_pk_bf16_f32 v222, {K(0)}, 0
v_cvt_pk_bf16_f32 v217, {K(5)}, {K(5)}
v_cvt_pk_bf16_f32 v219, {K(6)}, {K(5)}
v_cvt_pk_bf16_f32 v216, {K(7)}, {K(6)}
v_cvt_pk_bf16_f32 v218, {K(7)}, {K(7)}
v_cvt_pk_bf16_f32 v220, {K(8)}, {K(9)}
v_cvt_pk_bf16_f32 v221, {K(10)}, {K(11)}
v_cvt_pk_bf16_f32 v223, {K(9)}, {K(9)}
s_waitcnt lgkmcnt(0)
v_readfirstlane_b32 s5, v{vT2}
ds_write_b128 v208, v[212:215] offset:160
ds_write2_b32 v206, v213, v215 offset0:32 offset1:34
ds_write2_b32 v208, v212, v214 offset0:45 offset1:47
ds_write_b128 v207, v[216:219] offset:160
ds_write2_b32 v205, v217, v219 offset0:32 offset1:34
ds_write2_b32 v207, v216, v218 offset0:45 offset1:47
s_mov_b64 exec, 1
ds_write2_b32 v211, v222, v222 offset0:{UBY(13)//4} offset1:{UBY(15)//4+1}
s_mov_b64 exec, -1
""")
q.known_all()
for _ in range(7): q.issue("kw")
fstamp(2, 3)
kq = []
for m in [x for i in range(8) for x in (i, 8 + i)]:
    kq.append((("K", KD(m)), f"ds_read_b64 {vr(KD(m),2)}, v234 offset:{320*m}"))
    kq.append((("K", KD(m)), f"ds_read_b64 {vr(KD(m)+2,2)}, v240 offset:{320*m}"))
kq.append(("tw", f"ds_write_b32 v209, v220 offset:{T2_O+128}"))
kq.append(("tw", f"ds_write_b16 v210, v221 offset:{T3_O+64}"))
kq.append(("tw", f"ds_write_b16_d16_hi v210, v221 offset:{T3_O+64+64}"))
kq.append((("K", KD(16)), f"ds_read_b64 {vr(KD(16),2)}, v234 offset:{320*16}"))
kq.append((("K", KD(16)), f"ds_read_b64 {vr(KD(16)+2,2)}, v240 offset:{320*16}"))
for d in (2, 3, 4):
    for hh in (0, 1):
        o = 16 * d - 28 - 2 * hh
        kq.append((("K", T2(d, hh)), f"ds_read_b64 {vr(T2(d,hh),2)}, v235 offset:{T2_O+8*o}"))
        kq.append((("K", T2(d, hh)), f"ds_read_b64 {vr(T2(d,hh)+2,2)}, v235 offset:{T2_O+8*(o-1)}"))
for d in (4, 5, 6, 7):
    o = 16 * d - 60
    kq.append((("K", T3(d)), f"ds_read2_b32 {vr(T3(d),2)}, v236 offset0:{o} offset1:{o-1}"))
    kq.append((("K", T3(d)), f"ds_read2_b32 {vr(T3(d)+2,2)}, v236 offset0:{o-2} offset1:{o-3}"))
def kq_issue(n):
    for _ in range(n):
        if kq:
            t, x = kq.pop(0); A(x); q.issue(t)
kq_issue(4)
stamp(5); fstamp(2, 4)
def wait_flag(addr, off, val, nm, tmp):
    l = A.newlabel(nm); lo = A.newlabel(nm + "o")
    A(f"s_mov_b32 s54, {SPIN_MAX}")
    A.label(l)
    A(f"ds_read_b32 v{tmp}, v{addr} offset:{off}")
    A("s_waitcnt lgkmcnt(0)")
    A(f"v_readfirstlane_b32 s5, v{tmp}")
    A(f"s_sub_u32 s54, s54, 1\ns_cbranch_scc1 {lo}")
    A(f"s_cmp_lt_u32 s5, {val}\ns_cbranch_scc1 {l}")
    A.label(lo)
A("s_cmp_lg_u32 s5, 0\ns_cbranch_scc1 L_fast01")
ACC = lambda j: 140 + 4 * (j % 4)
SG2 = lambda b, hh: [156, 164, 232][b % 3] + 4 * hh
SG3 = lambda b: [240, 252, 204, 224][b]
WR = [196, 200]
NBR = 6
BA = lambda i: 208 + 4 * i if i < 4 else [None] * 4 and (228 if i == 4 else 4)
loads = []
for j in range(8):
    loads.append(("B", 8 * j))
    if j >= 2: loads += [("W0", j - 2), ("W1", j - 2)]
    for i in range(1, 8): loads.append(("B", 8 * j - i))
slot = {}
ring = 0
for k in loads:
    if k[0] == "B": slot[k] = BR(ring % NBR); ring += 1
    else: slot[k] = WR[int(k[0][1])]
touched = set()
prog = []
def MF(d, a, b, c, need=None):
    prog.append(dict(text=f"v_mfma_f32_16x16x32_bf16 {vr(d,4)}, {vr(a,4)}, {vr(b,4)}, {c}", need=need, valu=[], ds=[]))
def mf(j, a, b, need=None):
    c = vr(ACC(j), 4) if j in touched else "0"; touched.add(j)
    MF(ACC(j), a, b, c, need)
ydone = {}
for j in range(8):
    k0 = ("B", 8 * j)
    mf(j, KD(0), slot[k0], k0)
    if j + 1 <= 7: mf(j + 1, KD(8), slot[k0])
    cv = []; old = []; new = []
    if j >= 2:
        b = j - 2; w0, w1 = WR
        for i, bx in ((0, 0), (1, 1), (2, 2)) + (((4, 3),) if b <= 3 else ()):
            MF(BA(i), w0, BOX(bx), "0", ("W0", b))
        mf(j, KD(16), w0)
        for i, bx in ((3, 1),) + (((5, 4),) if b <= 3 else ()):
            MF(BA(i), w1, BOX(bx), "0", ("W1", b))
        for r in range(4): cv.append(f"v_cvt_pk_bf16_f32 v{SG2(b,r//2)+2*(r%2)}, v{BA(0)+r}, v{BA(1)+r}")
        for r in range(4): cv.append(f"v_cvt_pk_bf16_f32 v{SG2(b,r//2)+2*(r%2)+1}, v{BA(2)+r}, v{BA(3)+r}")
        if b <= 3:
            for r in range(4): cv.append(f"v_cvt_pk_bf16_f32 v{SG3(b)+r}, v{BA(4)+r}, v{BA(5)+r}")
        for d in (4, 3):
            if j - d >= 0: old += [(j, SG2(j - d, 0), T2(d, 0)), (j, SG2(j - d, 1), T2(d, 1))]
        for d in (7, 6, 5, 4):
            if j - d >= 0: old.append((j, SG3(j - d), T3(d)))
        new = [(j, SG2(b, 0), T2(2, 0)), (j, SG2(b, 1), T2(2, 1))]
        if b <= 3: mf(j + 2, KS, w0)
    for f in old: mf(*f)
    start = len(prog)
    for i in range(1, 8):
        k = ("B", 8 * j - i)
        mf(j, KD(i), slot[k], k)
        if i == 7:
            for f in new: mf(*f)
            ydone[j] = len(prog) - 1
        if j + 1 <= 7: mf(j + 1, KD(8 + i), slot[k])
    if cv:
        lastbox = max(i for i, e in enumerate(prog[:start]) if e["text"].rstrip().endswith(", 0") and f"v[{BA(3)}:" in e["text"] or f"v[{BA(5)}:" in e["text"].split(",")[0])
        pos = lastbox + 4
        per = 2 if j == 7 else 1
        while cv:
            for _ in range(per):
                if cv: prog[pos]["valu"].append(cv.pop(0))
            pos += 1
AHEAD = 4
first_use = {}
for i, e in enumerate(prog):
    if e["need"] and e["need"] not in first_use: first_use[e["need"]] = i
def ld_text(k):
    off = {"B": 480 + 64 * k[1], "W0": 480 + 512 * k[1], "W1": 464 + 512 * k[1]}[k[0]]
    return f"ds_read_b128 {vr(slot[k],4)}, v{vUB} offset:{off}"
last_use = {}
for i, e in enumerate(prog):
    for k in loads:
        pass
import re as _re
def uses(e, reg): return f"v[{reg}:{reg+3}]" in e["text"].split(",", 1)[1]
issue_at = {}
for n, k in enumerate(loads):
    if n <= AHEAD: continue
    p = first_use[loads[n - AHEAD - 1]]
    prev = [m for m in range(n) if slot[loads[m]] == slot[k]]
    if prev:
        lu = max(i for i in range(first_use[loads[prev[-1]]], first_use[k]) if uses(prog[i], slot[k]))
        p = max(p, lu)
    if n > AHEAD + 1: p = max(p, issue_at[loads[n - 1]])
    issue_at[k] = p
    prog[p]["ds"].append(("ld", k))
YD = OPT["yd"]
for j in range(7):
    prog[ydone[j] + YD]["ds"].append(("y", j)); prog[ydone[j] + YD + 1]["ds"].append(("yf", j))
for j in range(1, 8): prog[max(0, issue_at[("B", 8 * j)] - 6)]["ds"].insert(0, ("flag", j))
def ywrite(j):
    A(f"ds_write_b128 v{vYW}, {vr(ACC(j),4)} offset:{2*TROW*j}"); q.issue("yw")
def yflag(j):
    A(f"ds_write_b32 v{vT1}, v{vONE} offset:{48+16*j}"); q.issue("yf")
fix = ["v_readlane_b32 s6, v218, 63", "v_readlane_b32 s7, v223, 63"] + [f"v_and_b32 v{KS+i}, s7, v{KS+i}" for i in range(4)]
for n, f in enumerate(late): prog[n * 4 // 5]["valu"].append(f)
for n, f in enumerate(fix): prog[18 + n + (n >= 2)]["valu"].append(f)
for n in range(4): prog[26 + n]["valu"].append(f"v_and_or_b32 v{KD(16)+n}, v{MK3+n}, s6, v{KD(16)+n}")
prog[26]["pre"] = ("K", KD(16))
prog[40]["vm"] = True
def part_loads():
    A("global_load_dwordx4 v[56:59], v2, s[42:43] sc1\ns_mov_b64 exec, s[56:57]\nglobal_load_dwordx4 v[60:63], v3, s[42:43] sc1\ns_mov_b64 exec, -1")
if OPT["pl"] > 0:
    p = len(prog) - OPT["pl"]
    assert p - 2 >= first_use[("B", 56)]
    for k in range(4): prog[p - 2 + k // 2]["valu"].append(f"v_mov_b32 v{60+k}, s{18+k}")
    prog[p]["pl"] = True
slow = []
def emit(lo, hi, sfx):
    if lo == 0:
        stamp(6)
        for n in range(AHEAD + 1):
            A(ld_text(loads[n])); q.issue(loads[n])
            if 0 < n < OPT["pre"]: kq_issue(4)
    for i in range(lo, hi):
        e = prog[i]
        if e["need"] and e["need"][0] == "B" and e["need"][1] % 8 == 0 and first_use[e["need"]] == i : fstamp(3, 1 + e["need"][1] // 8)
        if e["need"]: q.wait(e["need"])
        for kr in _re.findall(r"v\[(\d+):", e["text"])[1:3]:
            if ("K", int(kr)) in q.q: q.wait(("K", int(kr)))
            assert all(t != ("K", int(kr)) for t, _ in kq), e["text"]
        if e.get("pre"): q.wait(e["pre"])
        if e.get("vm"): A("s_waitcnt vmcnt(0)")
        chk = [d for d in e["ds"] if d[0] == "ld" and d[1][0] == "B" and d[1][1] % 8 == 0 and d[1][1] > 0]
        if chk:
            q.wait(("flag", chk[0][1][1] // 8)); A(f"v_readfirstlane_b32 s5, v{vT2}")
        A(e["text"])
        if e.get("pl"): part_loads()
        for d in e["ds"]:
            if d[0] == "flag":
                A(f"ds_read_b32 v{vT2}, v{vFL} offset:{4*d[1]}"); q.issue(d)
            elif d[0] == "ld":
                if d in chk:
                    jj = d[1][1] // 8
                    A(f"s_cmp_eq_u32 s5, 0\ns_cbranch_scc1 L_uslow{jj}{sfx}\nL_uok{jj}{sfx}:")
                    slow.append((jj, sfx))
                A(ld_text(d[1])); q.issue(d[1])
            elif d[0] == "y": ywrite(d[1])
            else: yflag(d[1])
        kq_issue(2 if i < 16 else (1 if e["ds"] else 2))
        for v in e["valu"]: A(v)
import copy
JOIN = 32
kq_save, q_save = list(kq), copy.deepcopy(q)
kq_issue(len(kq))
wait_flag(vFL, 0, 1, "u0", vT2); q.known_all()
emit(0, JOIN, "a")
A.label("L_join")
emit(JOIN, len(prog), "")
A.nop(8); ywrite(7); yflag(7)
stamp(7); fstamp(3, 9)
if OPT["nopatch"]: A("s_endpgm")
XST = 16 * TROW
if OPT["pl"] == 0:
    for k in range(4): A(f"v_mov_b32 v{60+k}, s{18+k}")
    part_loads()
A("v_lshrrev_b32 v9, 5, v1")
lw = A.newlabel("st"); lwo = A.newlabel("sto")
A(f"""
s_lshl_b32 s5, s45, 3
v_lshl_add_u32 v24, v9, 2, s5
v_add_u32 v24, v24, v{vFL}
v_bfe_u32 v25, v1, 4, 1
s_mov_b32 s54, {SPIN_MAX}
{lw}:
ds_read_b128 v[28:31], v{vFL} offset:176
ds_read_b128 v[32:35], v{vFL} offset:{48+16*7}
ds_read_b32 v26, v24 offset:192
s_sub_u32 s54, s54, 1
s_cbranch_scc1 {lwo}
s_waitcnt lgkmcnt(0)
v_and_b32 v28, v28, v29
v_and_b32 v30, v30, v31
v_and_b32 v32, v32, v33
v_and_b32 v34, v34, v35
v_and_b32 v28, v28, v30
v_and_b32 v32, v32, v34
v_and_b32 v28, v28, v32
v_cmp_eq_u32 vcc, 0, v28
s_cbranch_vccnz {lw}
{lwo}:
v_and_b32 v27, 0x7ff, v26
v_sub_u32 v27, 2047, v27
v_mul_u32_u24 v28, {2*USTR}, v25
v_lshl_add_u32 v28, v27, 1, v28
v_add_u32 v28, {UB+512}, v28
v_lshlrev_b32 v29, 3, v27
v_lshl_add_u32 v29, v25, 2, v29
v_lshrrev_b32 v30, 7, v27
v_mul_u32_u24 v30, {TROW}, v30
v_bfe_u32 v31, v27, 4, 3
v_lshl_add_u32 v30, v31, 6, v30
v_lshrrev_b32 v31, 2, v27
v_lshrrev_b32 v32, 5, v27
v_add_u32 v31, v31, v32
v_and_b32 v31, 3, v31
v_lshl_add_u32 v30, v31, 4, v30
v_and_b32 v31, 3, v27
v_lshl_add_u32 v30, v31, 2, v30
v_lshl_add_u32 v30, v25, 10, v30
ds_read_u16 v36, v28
ds_read_u16 v37, v28 offset:{USTR}
ds_read_b32 v38, v29 offset:{XST}
ds_read_b32 v40, v30
ds_read_b32 v41, v30 offset:512
s_lshl_b32 s5, s44, 3
v_mul_u32_u24 v42, 1280, v27
v_lshl_add_u32 v42, v25, 2, v42
v_add_u32 v42, s5, v42
v_not_b32 v31, v26
v_ashrrev_i32 v31, 31, v31
v_or_b32 v31, 0x80000000, v31
v_xor_b32 v31, v26, v31
v_and_b32 v31, 0xffff0000, v31
v_mul_f32 v31, {NLOG2E:#x}, v31
v_exp_f32 v31, v31
s_waitcnt lgkmcnt(0)
v_add_f32 v31, 1.0, v31
v_rcp_f32 v43, v31
v_lshlrev_b32 v36, 16, v36
v_lshlrev_b32 v37, 16, v37
v_and_b32 v39, 0xffff0000, v38
v_lshlrev_b32 v38, 16, v38
s_mov_b32 s54, {SPIN_MAX}
""")
lP = A.newlabel("par"); lPo = A.newlabel("paro")
if OPT["pl"] < 0:
    for k in range(4): A(f"v_mov_b32 v{60+k}, s{18+k}")
    part_loads()
A.label(lP)
A("s_waitcnt vmcnt(0)")
for k in range(8): A(f"v_xor_b32 v{44+k}, s{18+k%4}, v{56+k}")
A(f"""
v_or3_b32 v52, v44, v45, v46
v_or3_b32 v53, v47, v48, v49
v_or3_b32 v52, v52, v50, v51
v_or_b32 v52, v52, v53
v_and_b32 v52, 0xff, v52
v_cmp_ne_u32 vcc, 0, v52
s_cbranch_vccz {lPo}
s_sub_u32 s54, s54, 1
s_cbranch_scc1 {lPo}
""")
if OPT["rt"]:
    A("s_and_b64 s[58:59], vcc, s[56:57]\ns_mov_b64 exec, vcc\nglobal_load_dwordx4 v[56:59], v2, s[42:43] sc1\ns_or_b64 exec, s[58:59], 1\nglobal_load_dwordx4 v[60:63], v3, s[42:43] sc1\ns_mov_b64 exec, -1")
else: part_loads()
A(f"s_branch {lP}")
A.label(lPo)
stamp(8)
for k in range(4): A(f"v_add_f32 v{44+k}, v{44+k}, v{48+k}")
A("s_nop 0\nv_permlane16_swap_b32 v44, v46\nv_permlane16_swap_b32 v45, v47\nv_add_f32 v44, v44, v46\nv_add_f32 v45, v45, v47")
for sh in (1, 2, 4, 8):
    A(f"s_nop 0\nv_add_f32_dpp v44, v44, v44 row_shr:{sh} row_mask:0xf bank_mask:0xf bound_ctrl:0\nv_add_f32_dpp v45, v45, v45 row_shr:{sh} row_mask:0xf bank_mask:0xf bound_ctrl:0")
A(f"""
v_fma_f32 v44, v44, v43, v36
v_fma_f32 v45, v45, v43, v37
v_mul_f32 v46, {NLOG2E:#x}, v44
v_mul_f32 v47, {NLOG2E:#x}, v45
v_exp_f32 v46, v46
v_exp_f32 v47, v47
v_mul_f32 v44, v44, v40
v_mul_f32 v45, v45, v41
v_add_f32 v46, 1.0, v46
v_add_f32 v47, 1.0, v47
v_rcp_f32 v46, v46
v_rcp_f32 v47, v47
s_mov_b32 exec_lo, 0x80008000
s_mov_b32 exec_hi, 0x80008000
v_fma_f32 v44, v44, v46, v38
v_fma_f32 v45, v45, v47, v39
v_cvt_pk_bf16_f32 v44, v44, v45
global_store_dword v42, v44, s[40:41]
""")
stamp(9)
if OPT["stamps"]:
    A("s_waitcnt vmcnt(0)")
    stamp(10)
finish(11)
A.label("L_fast01")
kq[:] = kq_save; q.q, q.done = q_save.q, q_save.done
emit(0, JOIN, "b")
assert not kq
q.wait(("K", T3(7)))
A("s_branch L_join")
for jj, sfx in slow:
    A.label(f"L_uslow{jj}{sfx}")
    wait_flag(vFL, 4 * jj, 1, "us", vT2)
    A(f"s_branch L_uok{jj}{sfx}")
A.label("L_helper")
A("s_setprio 0")
XF = [112, 144]; GG = [128, 160]; XR = [96, 104]; ST = [8, 16]; UU = [24, 32]
A(f"""
s_lshl_b32 s5, s45, 11
s_add_u32 s5, s5, {G1_OFF}
v_lshl_add_u32 v92, v1, {4 if OPT['g1l'] else 5}, s5
s_lshl_b32 s5, s55, 11
v_add_u32 v93, s5, v92
""")
G1A = f"global_load_dwordx4 v[8:11], v92, s[42:43] sc1\nglobal_load_dwordx4 v[12:15], v92, s[42:43] offset:{G1S} sc1"
if OPT["gb1"] or OPT["g1pre"]: A(G1A)
A("s_waitcnt lgkmcnt(0)\ns_barrier")
stamp(4); fstamp(6, 1); fstamp(7, 3)
if OPT["chk"] == 7:
    A("s_cmp_eq_u32 s63, 0\ns_cbranch_scc1 L_gdone")
    gather(0, 0, OPT["gan"])
    A.label("L_gdone")
gather(0, OPT["gan"], 4)
if OPT["gb1"]:
    assert OPT["gan"] == 4 and OPT["gbn"] == 0
    gather(1, 0, OPT["gb1"])
elif OPT["allb"]:
    gather(1, OPT["gbn"], 4)
    A(G1A)
    A("global_load_dwordx4 v[16:19], v93, s[42:43] sc1\nglobal_load_dwordx4 v[20:23], v93, s[42:43] offset:16 sc1")
elif not OPT["g1pre"]: A(G1A)
A(f"""
s_lshl_b32 s5, s45, 9
s_add_u32 s5, s5, {UB+512}
v_lshl_add_u32 v91, v1, 3, s5
v_lshrrev_b32 v2, 3, v1
v_add_u32 v2, v2, v1
v_and_b32 v2, 3, v2
v_and_b32 v3, 28, v1
v_add_u32 v2, v2, v3
v_lshlrev_b32 v2, 4, v2
v_lshrrev_b32 v3, 5, v1
v_mul_u32_u24 v3, {TROW}, v3
s_mul_i32 s5, s45, {2*TROW}
v_add3_u32 v90, v2, v3, s5
s_lshl_b32 s5, s45, 2
v_add_u32 v89, s5, v{vFL}
s_lshl_b32 s5, s45, 4
v_add_u32 v87, s5, v{vFL}
s_lshl_b32 s5, s45, 11
s_add_u32 s5, s5, {16*TROW}
v_lshl_add_u32 v86, v1, 5, s5
s_lshl_b32 s5, s55, 9
v_add_u32 v232, s5, v91
s_mul_i32 s5, s55, {2*TROW}
v_add_u32 v233, s5, v90
s_lshl_b32 s5, s55, 2
v_add_u32 v234, s5, v89
s_lshl_b32 s5, s55, 4
v_add_u32 v235, s5, v87
s_lshl_b32 s5, s55, 11
v_add_u32 v236, s5, v86
v_and_b32 v88, 7, v1
v_lshl_add_u32 v237, v88, 2, v{vFL}
v_lshlrev_b32 v88, 4, v88
v_add_u32 v88, {SEL_OFF}, v88
s_lshl_b32 s5, s9, {7 if OPT['rep8'] else 31}
s_and_b32 s5, s5, 0x380
v_add_u32 v88, s5, v88
s_lshl_b32 s5, s45, 8
s_add_u32 s5, s5, {MARK}
v_add_u32 v238, s5, v4
s_lshl_b32 s5, s55, 8
v_add_u32 v239, s5, v238
""")
def unpack_x(t):
    for r in range(4):
        for hw in range(2):
            src = XR[t] + 2 * r + hw
            A(f"v_lshlrev_b32 v{XF[t]+4*(2*hw)+r}, 16, v{src}")
            A(f"v_and_b32 v{XF[t]+4*(2*hw+1)+r}, 0xffff0000, v{src}")
def poll4(s, av, first_wait):
    l = A.newlabel("g"); lo = A.newlabel("go")
    A(f"s_mov_b32 s54, {SPIN_MAX}")
    A(f"s_waitcnt vmcnt({first_wait})")
    A.label(l)
    A(f"""
v_xor_b32 v2, s4, v{s+1}
v_xor_b32 v3, s4, v{s+3}
v_xor_b32 v5, s4, v{s+5}
v_xor_b32 v6, s4, v{s+7}
v_or3_b32 v2, v2, v3, v5
v_or_b32 v2, v2, v6
v_cmp_ne_u32 vcc, 0, v2
s_cbranch_vccz {lo}
s_sub_u32 s54, s54, 1
s_cbranch_scc1 {lo}
global_load_dwordx4 {vr(s,4)}, v{av}, s[42:43] sc1
global_load_dwordx4 {vr(s+4,4)}, v{av}, s[42:43] offset:{G1S} sc1
s_waitcnt vmcnt(0)
s_branch {l}
""")
    A.label(lo)
def normalize(t):
    s = ST[t]
    for r in range(4): A(f"v_and_b32 v{180+r}, 0xffff0000, v{s+2*r}")
    for r in range(4): A(f"v_rcp_f32 v{180+r}, v{180+r}")
    for r in range(4): A(f"v_lshlrev_b32 v{176+r}, 16, v{s+2*r}")
    for r in range(4): A(f"v_mul_f32 v{176+r}, v{176+r}, v{180+r}")
    for ch in range(4):
        N = GG[t] + 4 * ch
        for r in range(4): A(f"v_fma_f32 v{N+r}, v{XF[t]+4*ch+r}, v{180+r}, -v{176+r}")
        for p in range(2): A(f"v_cvt_pk_bf16_f32 v{UU[t]+2*ch+p}, v{N+2*p}, v{N+2*p+1}")
    for ch in range(4): A(f"ds_write_b64 v{[91,232][t]}, {vr(UU[t]+2*ch,2)} offset:{USTR*ch}")
    A(f"ds_write_b32 v{[89,234][t]}, v{vONE}")
def pre(t, rows):
    for r in rows:
        N = lambda ch: GG[t] + 4 * ch + r
        E = 188
        for i in range(4): A(f"v_mul_f32 v{E+i}, {NLOG2E:#x}, v{N(i)}")
        for i in range(4): A(f"v_exp_f32 v{E+i}, v{E+i}")
        for i in range(4): A(f"v_add_f32 v{E+i}, 1.0, v{E+i}")
        for i in range(4): A(f"v_rcp_f32 v{E+i}, v{E+i}")
        for i in range(4): A(f"v_mul_f32 v{N(i)}, v{N(i)}, v{E+i}")
def precompute(t): pre(t, range(4))
def yflag_read(t): A(f"ds_read_b128 v[192:195], v{[87,235][t]} offset:48")
def yflag_test():
    A("v_and_b32 v192, v192, v193\nv_and_b32 v194, v194, v195\nv_and_b32 v192, v192, v194\ns_nop 0\nv_readfirstlane_b32 s5, v192\ns_cmp_lg_u32 s5, 0")
def ywait(t):
    l = A.newlabel("y"); lo = A.newlabel("yo")
    A(f"s_mov_b32 s54, {SPIN_MAX}")
    A.label(l)
    yflag_read(t)
    A(f"s_sub_u32 s54, s54, 1\ns_cbranch_scc1 {lo}\ns_waitcnt lgkmcnt(0)")
    yflag_test()
    if OPT["slp"]: A(f"s_cbranch_scc1 {lo}\ns_sleep {OPT['slp']}\ns_branch {l}")
    else: A(f"s_cbranch_scc0 {l}")
    A.label(lo)
def yread(t):
    for ch in range(4): A(f"ds_read_b128 {vr(200+4*ch,4)}, v{[90,233][t]} offset:{512*ch}")
    A("s_waitcnt lgkmcnt(0)")
MSK = [18, 26]
def epi(t, rows, masked):
    for r in rows:
        for ch in range(4): A(f"v_fma_f32 v{200+4*ch+r}, v{200+4*ch+r}, v{GG[t]+4*ch+r}, v{XF[t]+4*ch+r}")
        A(f"v_cvt_pk_bf16_f32 v{216+2*r+8*t}, v{200+r}, v{204+r}")
        A(f"v_cvt_pk_bf16_f32 v{217+2*r+8*t}, v{208+r}, v{212+r}")
        if masked: A(f"s_mov_b64 exec, s[{MSK[t]+2*r}:{MSK[t]+2*r+1}]")
        if not OPT["nostore"]: A(f"global_store_dwordx2 v{94+t}, {vr(216+2*r+8*t,2)}, s[40:41] offset:{1280*r}{NTS}")
        if masked: A("s_mov_b64 exec, -1")
XST = 16 * TROW
def stash(t):
    A(f"ds_write_b128 v{[86,236][t]}, {vr(XR[t],4)}\nds_write_b128 v{[86,236][t]}, {vr(XR[t]+4,4)} offset:16")
def run_step(pr, pos, vq):
    def after(tag): return len(vq) - 1 - max(i for i, t in enumerate(vq) if t == tag)
    for c in pr[pos]:
        if c == "a": A(f"s_waitcnt vmcnt({after('xa')})"); unpack_x(0)
        elif c == "w": A(f"s_waitcnt vmcnt({after('xa')})")
        elif c == "u": unpack_x(0)
        elif c == "p": poll4(ST[0], 92, after("ga")); stamp(5)
        elif c == "B": gather(1); vq += ["xb"] * 4
        elif c == "b":
            A(f"global_load_dwordx4 v[16:19], v93, s[42:43] sc1\nglobal_load_dwordx4 v[20:23], v93, s[42:43] offset:{G1S} sc1"); vq += ["gb"] * 2
        elif c == "n": normalize(0); stamp(6)
        elif c == "0": precompute(0)
        elif c == "h": pre(0, [0, 1])
        elif c == "H": pre(0, [2, 3])
        elif c == "1": precompute(1)
        elif c == "N":
            A(f"s_waitcnt vmcnt({after('xb')})"); unpack_x(1); poll4(ST[1], 93, after("gb")); normalize(1); stamp(7)
        elif c == "S": A(SELLD); vq.append("sel")
        elif c in "Ee":
            ywait(0)
            if "sel" not in vq: A(SELLD); vq.append("sel")
            yread(0); epi(0, range(4), c == "e"); vq += ["sa"] * 4; stamp(8)
        elif c == "M":
            lS = A.newlabel("sel"); lSo = A.newlabel("selo")
            both = "e" in pr
            A(f"""
s_mov_b32 s54, {SPIN_MAX}
s_waitcnt vmcnt({after('sel')})
{lS}:
v_cmp_ne_u32 vcc, s4, v43
s_cbranch_vccz {lSo}
s_sub_u32 s54, s54, 1
s_cbranch_scc1 {lSo}
{SELLD}
s_waitcnt vmcnt(0)
s_branch {lS}
{lSo}:
v_and_b32 v44, 0x7ff, v40
v_sub_u32 v44, {MARK+2047}, v44
ds_write_b8 v44, v{vONE}
ds_write_b32 v237, v40 offset:192
{'ds_read_b32 v45, v238' if both else ''}
ds_read_b32 v46, v239
s_waitcnt lgkmcnt(0)
""")
            for t in ((0, 1) if both else (1,)):
                for r in range(4): A(f"v_cmp_eq_u32_sdwa s[{MSK[t]+2*r}:{MSK[t]+2*r+1}], v{45+t}, 0 src0_sel:BYTE_{r} src1_sel:DWORD")
        elif c == "k": A(f"s_waitcnt vmcnt({after('sa')})\nds_write_b32 v89, v{vONE} offset:176")
        elif c == "f": A(f"ds_write_b32 v89, v{vONE} offset:176")
        elif c == "G":
            ywait(1); yread(1); epi(1, range(4), True); vq += ["sb"] * 4; stamp(9)
        done = pr[:pr.index(c) + 1]
        if c in "EeN" and ("E" in done or "e" in done) and "N" in done: stash(0); stash(1)
SELLD = "global_load_dwordx4 v[40:43], v88, s[42:43] sc1"
progs = [OPT[f"prog{h}"] for h in range(4)]
def emit_tree(hs, pos, vq):
    while True:
        nxt = {}
        for h in hs: nxt.setdefault(progs[h][pos:pos+1] + ("e" if progs[h][pos:pos+1] == "M" and "e" in progs[h] else ""), []).append(h)
        if len(nxt) == 1:
            c = list(nxt)[0]
            if c == "": A("s_branch L_progend"); return
            run_step(progs[hs[0]], pos, vq); pos += 1
            continue
        groups = list(nxt.values()); labels = [A.newlabel("pg") for _ in groups]
        for g, l in list(zip(groups, labels))[1:]:
            for h in g: A(f"s_cmp_eq_u32 s45, {h}\ns_cbranch_scc1 {l}")
        for i, (g, l) in enumerate(zip(groups, labels)):
            if i: A.label(l)
            emit_tree(g, pos, list(vq))
        return
emit_tree([0, 1, 2, 3], 0, ["xa"] * 4 + ["ga"] * 2)
A.label("L_progend")
if OPT["stamps"]:
    A("s_waitcnt vmcnt(0)")
    stamp(10)
finish(11)

A.label("L_notconv")
PAIRTAB = 0x77277170 if OPT["bal"] else 0x77777210
def pair_of(dst, ps):
    A(f"""
s_lshl_b32 s6, s9, 2
s_lshr_b32 s6, {PAIRTAB:#x}, s6
s_and_b32 s6, s6, 7
s_cmp_ge_u32 {ps}, 3
s_cselect_b32 s6, s6, s9
s_lshl_b32 {dst}, {ps}, 3
s_add_u32 {dst}, {dst}, s6
""")
A("s_sub_u32 s62, s8, 20")
A(f"""
v_lshlrev_b32 v7, 4, v0
v_add_u32 v7, {KB}, v7
ds_write_b128 v7, v[32:35]
ds_write_b128 v7, v[32:35] offset:8192
s_lshr_b32 s63, s62, 1
""")
if OPT["gul"] == 1: gu_pf()
GU12 = OPT["gul"] == 2
if GU12:
    A(f"""
s_lshl_b32 s5, s49, 3
s_add_u32 s5, s5, s9
s_min_u32 s5, s5, 26
s_lshl_b32 s5, s5, 7
s_mul_i32 s6, s62, 54
v_add_u32 v23, s6, v1
v_min_u32 v23, 639, v23
v_mul_u32_u24 v23, 3456, v23
v_add_u32 v23, s5, v23
s_mov_b64 s[52:53], s[56:57]
""")
A("s_mov_b64 s[52:53], s[56:57]")
pair_of("s48", "s63")
A(f"""
s_lshl_b32 s48, s48, 1
s_and_b32 s5, s62, 1
s_add_u32 s48, s48, s5
s_mul_i32 s5, s49, {160*3456}
s_lshl_b32 s6, s48, 6
s_add_u32 s5, s5, s6
s_add_u32 s56, s56, s5
s_addc_u32 s57, s57, 0
s_mul_i32 s50, s3, 10240
s_mov_b32 m0, s50
v_lshrrev_b32 v5, 2, v1
v_mul_u32_u24 v5, 3456, v5
v_and_b32 v6, 3, v1
v_lshl_add_u32 v5, v6, 4, v5
""")
stats_pre()
stats(3 - (OPT["gul"] >= 2))
if OPT["gul"] == 3: A(f"s_mov_b64 exec, 0xfffff\nglobal_load_dword v251, v23, s[52:53]{NTW}\ns_mov_b64 exec, -1")
A("s_waitcnt lgkmcnt(0)")
A(f"""
s_barrier
{("s_mov_b64 exec, 0xfffff" + chr(10) + "global_load_dword v251, v23, s[52:53]") if OPT["gul"] == 4 else ""}
{"s_cmp_eq_u32 s2, 255" if GU12 else ""}
{"s_cbranch_scc1 L_selector" if GU12 else ""}
{"s_mov_b32 exec_hi, 0x3fffff" if GU12 else ""}
{("global_load_dword v251, v23, s[52:53]" + NTW) if GU12 and OPT["gupf"] else ""}
s_mov_b64 exec, -1
s_cmp_lt_u32 s48, 54
s_cbranch_scc1 L_moe
s_cmp_lt_u32 s62, 8
s_cbranch_scc1 L_fin
s_sub_u32 s63, s62, 8
""")
A("s_cmp_eq_u32 s62, 11\ns_cbranch_scc1 L_selector" if OPT["s8"] else "s_cmp_eq_u32 s2, 255\ns_cbranch_scc1 L_selector")
SLOT3 = f"""s_cmp_ge_u32 s9, 3
s_cbranch_scc1 L_fin
s_lshl_b32 s6, s63, 3
s_add_u32 s6, s6, s3
s_mul_i32 s6, s6, 27
v_add_u32 v5, s6, v1
v_min_u32 v5, 639, v5
s_add_u32 s5, s9, 24
s_mul_i32 s5, s5, {64*1280}
v_lshl_add_u32 v5, v5, 7, s5
s_bfm_b64 exec, 27, 0
global_load_dword v251, v5, s[38:39]""" if OPT["s8"] else ""
pair_of("s5", "s63")
A(f"""
s_cmp_ge_u32 s5, {27 if OPT['dpf'] else 0}
s_cbranch_scc1 {'L_idle' if OPT['s8'] else 'L_fin'}
s_mul_i32 s5, s5, {64*1280}
s_add_u32 s5, s5, s50
v_lshl_add_u32 v5, v1, 7, s5
global_load_dword v251, v5, s[38:39]{NTW}
v_add_u32 v5, 8192, v5
s_mov_b64 exec, 0xffff
global_load_dword v251, v5, s[38:39]{NTW}
s_mov_b64 exec, -1
L_idle:
{SLOT3}
s_branch L_fin
L_moe:
""")
A(f"""
v_and_b32 v116, 15, v1
v_lshrrev_b32 v117, 4, v1
s_mul_i32 s5, s48, {32*1280}
s_lshl_b32 s6, s3, 8
s_add_u32 s5, s5, s6
v_mul_u32_u24 v34, {8*1280}, v117
v_lshl_add_u32 v34, v116, 4, v34
v_add_u32 v34, s5, v34
v_add_u32 v35, {4*1280}, v34
""")
if OPT["dfirst"] == 1:
    A("s_cmp_ge_u32 s3, 5\ns_cbranch_scc1 L_nod0")
    for j in range(8):
        A(f"global_load_dwordx4 {vr(80+4*j,4)}, v{34 + j//4}, s[38:39] offset:{1280*(j%4)}{NTW}")
    A.label("L_nod0")
for i in range(10):
    A(f"global_load_lds_dwordx4 v5, s[56:57]{NTW}")
    if i < 9: A(f"s_add_u32 m0, m0, 1024\ns_add_u32 s56, s56, {16*3456}\ns_addc_u32 s57, s57, 0")
A(f"""
v_and_b32 v39, 7, v1
s_lshl_b32 s5, s9, 7
s_add_u32 s5, s5, {SEL_OFF}
v_lshl_add_u32 v36, v39, 4, s5
s_mov_b32 s60, 0x05040100
s_mov_b32 s61, 0x07060302
v_mov_b32 v112, 0x3f803f80
v_mov_b32 v113, 0x3f803f80
v_mov_b32 v114, 0x3f803f80
v_mov_b32 v115, 0x3f803f80
s_mov_b32 s62, 0x00ff00ff
s_mov_b32 s63, 0x00ff00ff
v_lshlrev_b32 v7, 9, v117
v_bfe_u32 v38, v1, 2, 2
v_lshl_add_u32 v7, v38, 6, v7
v_and_b32 v38, 1, v1
v_lshl_add_u32 v7, v38, 3, v7
v_bfe_u32 v38, v1, 1, 1
v_mul_u32_u24 v38, 10240, v38
s_lshl_b32 s5, s45, 4
v_add3_u32 v7, v7, v38, s5
v_add_u32 v37, 40960, v7
v_lshlrev_b32 v118, 4, v1
v_lshlrev_b32 v204, 6, v39
v_and_b32 v38, 1, v117
v_lshl_add_u32 v204, v38, 3, v204
v_lshrrev_b32 v38, 1, v117
v_lshl_add_u32 v204, v38, 2, v204
s_add_u32 s5, s5, {HB}
v_add_u32 v204, s5, v204
v_lshlrev_b32 v206, 6, v39
v_lshl_add_u32 v206, v117, 4, v206
v_add_u32 v206, {HB}, v206
v_mov_b32 v207, {ZBLK}
v_cndmask_b32 v208, v207, v206, s[62:63]
v_cndmask_b32 v207, v206, v207, s[62:63]
s_and_b32 s5, s4, 0xff
v_mov_b32 v212, s5
s_bfe_u32 s5, s4, 0x80008
v_mov_b32 v213, s5
s_bfe_u32 s5, s4, 0x80010
v_mov_b32 v214, s5
s_lshr_b32 s5, s4, 24
v_mov_b32 v215, s5
v_bfe_u32 v216, v1, 3, 1
v_lshl_add_u32 v216, v117, 3, v216
v_mul_u32_u24 v216, {PART_STRIDE}, v216
v_lshl_add_u32 v216, v39, 4, v216
s_mul_i32 s5, s3, {32*PART_STRIDE}
s_lshl_b32 s6, s48, 7
s_add_u32 s5, s5, s6
s_add_u32 s5, s5, {PART_OFF}
v_add_u32 v216, s5, v216
v_add_u32 v217, {2*PART_STRIDE}, v216
v_add_u32 v218, {4*PART_STRIDE}, v216
v_add_u32 v219, {6*PART_STRIDE}, v216
v_min_u32 v220, 8, v116
v_mul_u32_u24 v220, {XRS}, v220
v_lshl_add_u32 v220, v117, 4, v220
v_add_u32 v220, {XRB}, v220
s_mul_i32 s55, s45, {XRS}
s_add_u32 s55, s55, {XRB}
s_add_u32 s47, s45, 4
v_min_u32 v38, 79, v0
v_lshlrev_b32 v38, 4, v38
v_add_u32 v38, {XRB + 8*XRS}, v38
ds_write_b128 v38, v[112:115]
s_waitcnt vmcnt(0)
s_cmp_ge_u32 s3, 5
s_cbranch_scc1 L_nod
""")
if OPT["dfirst"] == 0:
    for j in range(8):
        A(f"global_load_dwordx4 {vr(80+4*j,4)}, v{34 + j//4}, s[38:39] offset:{1280*(j%4)}{NTW}")
A("L_nod:\nglobal_load_dwordx4 v[8:11], v36, s[42:43] sc1\ns_barrier")
if OPT["dfirst"] == 2:
    A(f"s_cmp_ge_u32 s3, {4 if OPT['w4'] else 5}\ns_cbranch_scc1 L_nod0")
    for j in range(8):
        A(f"global_load_dwordx4 {vr(80+4*j,4)}, v{34 + j//4}, s[38:39] offset:{1280*(j%4)}{NTW}")
    A.label("L_nod0")
A("s_cmp_ge_u32 s3, 4\ns_cbranch_scc1 L_nocs")
for ks in range(20):
    for hf in range(2):
        A(f"ds_read_b64_tr_b16 {vr(120+4*ks+2*hf,2)}, v{7 if ks < 10 else 37} offset:{(ks//5 % 2)*20480 + (ks%5)*2048 + 256*hf}")
A.label("L_nocs")
stamp(4)
lS = A.newlabel("msel"); lSo = A.newlabel("mselo")
W4A = ("s_cmp_eq_u32 s3, 4\ns_cbranch_scc1 L_w4\ns_waitcnt vmcnt(0) lgkmcnt(0)\ns_barrier\ns_barrier\ns_branch L_fin") if OPT["w4"] else ""
A(f"""
s_mov_b32 s54, {SPIN_MAX}
s_mov_b32 m0, s55
s_waitcnt vmcnt(0)
{lS}:
v_cmp_ne_u32 vcc, s4, v11
s_cbranch_vccz {lSo}
s_sub_u32 s54, s54, 1
s_cbranch_scc1 {lSo}
global_load_dwordx4 v[8:11], v36, s[42:43] sc1
s_waitcnt vmcnt(0)
s_branch {lS}
{lSo}:
s_cmp_lt_u32 s3, 4
s_cbranch_scc1 L_norow
v_readlane_b32 s52, v8, s45
v_readlane_b32 s53, v8, s47
s_and_b32 s52, s52, 0x7ff
s_and_b32 s53, s53, 0x7ff
s_sub_u32 s52, 2047, s52
s_sub_u32 s53, 2047, s53
s_mul_i32 s52, s52, 1280
s_mul_i32 s53, s53, 1280
s_add_u32 s56, s16, s52
s_addc_u32 s57, s17, 0
s_add_u32 s58, s16, s53
s_addc_u32 s59, s17, 0
global_load_lds_dwordx4 v118, s[56:57]
global_load_lds_dword v4, s[56:57] offset:1024
s_add_u32 m0, m0, {4*XRS}
s_nop 0
global_load_lds_dwordx4 v118, s[58:59]
global_load_lds_dword v4, s[58:59] offset:1024
{W4A}
L_norow:
""")
stamp(5)
def perms():
    for qq in range(8):
        for i in range(4):
            A(f"v_perm_b32 v{224+4*qq+i}, v{80+4*(2*i+1)+qq//2}, v{80+4*(2*i)+qq//2}, {'s60' if qq % 2 == 0 else 's61'}")
perms()
A(f"""
s_mov_b32 s59, 0xffffff00
v_and_b32 v33, 0xffff0000, v9
v_lshlrev_b32 v32, 16, v9
v_rcp_f32 v33, v33
v_xor_b32 v32, 0x80000000, v32
v_mul_f32 v30, {NLOG2E:#x}, v33
v_mul_f32 v31, v33, v33
s_waitcnt vmcnt(0) lgkmcnt(0)
s_barrier
""")
stamp(6)
A("s_cmp_ge_u32 s3, 4\ns_cbranch_scc1 L_nored")
mq = LdsQ()
XB = [40, 44, 48, 52, 56, 12, 16, 20]
def xr(ks): A(f"ds_read_b128 {vr(XB[ks % 8],4)}, v220 offset:{64*ks}"); mq.issue(ks)
for ks in range(7): xr(ks)
for ks in range(20):
    mq.wait(ks)
    A(f"v_mfma_f32_16x16x32_bf16 v[60:63], {vr(120+4*ks,4)}, {vr(XB[ks % 8],4)}, {'0' if ks == 0 else 'v[60:63]'}")
    if ks + 7 < 20: xr(ks + 7)
stamp(7)
A(f"""
s_nop 7
v_fmac_f32_dpp v60, v60, v32 row_ror:8 row_mask:0xf bank_mask:0xf
v_fmac_f32_dpp v62, v62, v32 row_ror:8 row_mask:0xf bank_mask:0xf
v_fmac_f32_dpp v61, v61, v32 row_ror:8 row_mask:0xf bank_mask:0xf
v_fmac_f32_dpp v63, v63, v32 row_ror:8 row_mask:0xf bank_mask:0xf
v_permlane32_swap_b32 v60, v62
s_nop 0
v_permlane32_swap_b32 v61, v63
v_mul_f32 v8, v60, v30
v_mul_f32 v9, v61, v30
v_exp_f32 v8, v8
v_exp_f32 v9, v9
v_mul_f32 v60, v60, v62
v_mul_f32 v61, v61, v63
v_add_f32 v8, 1.0, v8
v_add_f32 v9, 1.0, v9
v_rcp_f32 v8, v8
v_rcp_f32 v9, v9
v_mul_f32 v60, v60, v31
v_mul_f32 v61, v61, v31
v_mul_f32 v60, v60, v8
v_mul_f32 v61, v61, v9
s_mov_b64 exec, s[62:63]
v_cvt_pk_bf16_f32 v8, v60, v61
ds_write_b32 v204, v8
s_mov_b64 exec, -1
L_nored:
s_waitcnt lgkmcnt(0)
s_barrier
""")
stamp(8)
A(f"""
s_cmp_ge_u32 s3, 5
s_cbranch_scc1 L_fin
ds_read_b128 v[8:11], v208
ds_read_b128 v[12:15], v207
s_waitcnt lgkmcnt(1)
""")
for qq in range(4): A(f"v_mfma_f32_16x16x32_bf16 {vr(56+4*qq,4)}, {vr(224+4*qq,4)}, v[8:11], 0")
A("s_waitcnt lgkmcnt(0)")
for qq in range(4): A(f"v_mfma_f32_16x16x32_bf16 {vr(56+4*qq,4)}, {vr(240+4*qq,4)}, v[12:15], {vr(56+4*qq,4)}")
A.nop(5)
for r in range(4):
    for qq in range(4): A(f"v_bfi_b32 v{72+4*r+qq}, s59, v{56+4*qq+r}, v{212+qq}")
    A(f"global_store_dwordx4 v{216+r}, {vr(72+4*r,4)}, s[42:43] sc1")
stamp(9)
if OPT["stamps"]:
    A("s_waitcnt vmcnt(0)")
    stamp(10)
finish(11)
if OPT["w4"]:
    A.label("L_w4")
    for j in range(8):
        A(f"global_load_dwordx4 {vr(80+4*j,4)}, v{34 + j//4}, s[38:39] offset:{1280*(j%4)}{NTW}")
    A("s_waitcnt vmcnt(8) lgkmcnt(0)\ns_barrier\ns_mov_b32 s59, 0xffffff00\ns_waitcnt vmcnt(0)")
    perms()
    A("s_branch L_nored")
A.label("L_selector")
SELA = f"s_lshl_b32 s5, s9, 7\ns_add_u32 s5, s5, {SEL_OFF}\nv_mov_b32 v40, s5" if OPT["s8"] else f"v_lshlrev_b32 v40, 8, v117\nv_add_u32 v40, {SEL_OFF}, v40"
SELS = ("s_and_b64 exec, vcc, 0xffff\ns_waitcnt lgkmcnt(0)\n" + ("global_store_dwordx4 v18, v[44:47], s[42:43]\n" if OPT["s8"] == 1 else "") + "global_store_dwordx4 v18, v[44:47], s[42:43] sc1\ns_cmp_lg_u32 s2, 255\ns_cbranch_scc1 L_fin") if OPT["s8"] else \
       "s_mov_b64 exec, vcc\ns_waitcnt lgkmcnt(0)\nglobal_store_dwordx4 v18, v[44:47], s[42:43] sc1\nglobal_store_dwordx4 v18, v[44:47], s[42:43] offset:128 sc1"
def rank16(key, lst, rk, t):
    prs = ["s[6:7]", "s[10:11]", "s[12:13]", "s[14:15]"]
    for i in range(4): A(f"v_cmp_gt_u32 {prs[i]}, v{lst+i}, v{key}")
    A(f"v_addc_co_u32_e64 v{rk}, vcc, 0, 0, {prs[0]}")
    for i in range(1, 4): A(f"v_addc_co_u32_e64 v{rk}, vcc, v{rk}, 0, {prs[i]}")
    A(f"v_mov_b32 v{t}, v{rk}\ns_nop 1\nv_permlane16_swap_b32 v{rk}, v{t}\nv_add_u32 v{rk}, v{rk}, v{t}")
    A(f"v_mov_b32 v{t}, v{rk}\ns_nop 1\nv_permlane32_swap_b32 v{rk}, v{t}\nv_add_u32 v{rk}, v{rk}, v{t}")
MSDB = 0
KEY = [50, 54, 58, 62]
def g2_loads(base):
    for r in range(4): A(f"global_load_dwordx4 {vr(base+4*r,4)}, v36, s[42:43] offset:{1024*r} sc1")
def g2_bad(base):
    A(f"v_xor_b32 v2, s4, v{base+3}\nv_xor_b32 v3, s4, v{base+7}\nv_xor_b32 v5, s4, v{base+11}\nv_xor_b32 v6, s4, v{base+15}")
    A("v_or3_b32 v2, v2, v3, v5\nv_or_b32 v2, v2, v6\nv_cmp_ne_u32 vcc, 0, v2")
A(f"""
v_and_b32 v116, 15, v1
v_lshrrev_b32 v117, 4, v1
s_lshl_b32 s5, s3, 12
s_add_u32 s5, s5, {G2_OFF}
v_lshl_add_u32 v36, v1, 4, s5
v_lshlrev_b32 v221, 2, v116
v_lshlrev_b32 v222, 4, v117
v_add_u32 v223, {HMAX}, v221
v_add_u32 v224, {HMAX}, v222
v_add_u32 v221, {LIST+DRY}, v221
v_add_u32 v222, {LIST+DRY}, v222
v_lshrrev_b32 v225, 5, v0
v_lshlrev_b32 v225, 2, v225
v_add_u32 v225, {HMAX}, v225
v_mov_b32 v19, {CNT+DRY}
{SELA}
v_mov_b32 v41, 0
v_mov_b32 v46, s4
v_mov_b32 v47, s4
s_lshl_b32 s5, s3, 10
s_sub_u32 s5, {MSDB + 4*(2047-192)}, s5
v_sub_u32 v37, s5, v4
v_bfrev_b32 v50, v0
v_mov_b32 v54, 0
v_mov_b32 v58, 0
v_mov_b32 v62, 0
s_mov_b32 s59, 0
{'s_branch L_s_top' if OPT['dry'] else ''}
L_s_real:
v_subrev_u32 v221, {DRY}, v221
v_subrev_u32 v222, {DRY}, v222
v_subrev_u32 v19, {DRY}, v19
s_mov_b32 s59, 1
s_mov_b32 s54, {SPIN_MAX}
""")
stamp(4)
if OPT["dbl"]:
    g2_loads(48)
    A("L_s_poll:")
    g2_loads(64)
    A("s_waitcnt vmcnt(4)")
    g2_bad(48)
    A("s_cbranch_vccz L_s_top\ns_sub_u32 s54, s54, 1\ns_cbranch_scc1 L_s_top")
    g2_loads(48)
    A("s_waitcnt vmcnt(4)")
    g2_bad(64)
    A("s_cbranch_vccnz L_s_poll")
    for i in range(0, 16, 2): A(f"v_mov_b32 v{48+i}, v{64+i}")
else:
    if OPT["sd"]: A(f"s_sleep {OPT['sd']}")
    if OPT["rp"]:
        g2_loads(48)
        A("L_s_poll:\ns_waitcnt vmcnt(0)")
        for r in range(4): A(f"v_cmp_ne_u32 s[{[6,10,12,14][r]}:{[7,11,13,15][r]}], s4, v{51+4*r}")
        A("s_or_b64 s[50:51], s[6:7], s[10:11]\ns_or_b64 s[52:53], s[12:13], s[14:15]\ns_or_b64 s[50:51], s[50:51], s[52:53]\ns_cbranch_scc0 L_s_top\ns_sub_u32 s54, s54, 1\ns_cbranch_scc1 L_s_top")
        for r in range(4):
            l = A.newlabel("rp")
            A(f"s_mov_b64 exec, s[{[6,10,12,14][r]}:{[7,11,13,15][r]}]\ns_cbranch_execz {l}\nglobal_load_dwordx4 {vr(48+4*r,4)}, v36, s[42:43] offset:{1024*r} sc1\n{l}:")
        A("s_mov_b64 exec, -1\ns_branch L_s_poll")
    else:
        A("L_s_poll:")
        g2_loads(48)
        A("s_sub_u32 s54, s54, 1\ns_cbranch_scc1 L_s_top\ns_waitcnt vmcnt(0)")
        g2_bad(48)
        A("s_cbranch_vccnz L_s_poll")
A("L_s_top:")
stamp(5)
A(f"v_max3_u32 v16, v{KEY[0]}, v{KEY[1]}, v{KEY[2]}\nv_max_u32 v16, v16, v{KEY[3]}\ns_nop 1")
for i, mod in enumerate(DPP6[:5]):
    if i: A("s_nop 1")
    A(f"v_max_u32_dpp v16, v16, v16 {mod.replace(' bound_ctrl:0','')}")
A(f"""
s_mov_b32 exec_lo, 0x80000000
s_mov_b32 exec_hi, 0x80000000
ds_write_b32 v225, v16
s_mov_b64 exec, -1
s_waitcnt lgkmcnt(0)
s_barrier
ds_read_b32 v17, v223
ds_read_b128 v[20:23], v224
ds_write2st64_b32 v37, v60, v56 offset0:0 offset1:1
ds_write2st64_b32 v37, v52, v48 offset0:2 offset1:3
s_waitcnt lgkmcnt(2)
""")
rank16(17, 20, 18, 24)
A(f"""
v_cmp_eq_u32 vcc, 7, v18
s_ff1_i32_b64 s5, vcc
v_readlane_b32 s5, v17, s5
s_nop 1
v_cmp_le_u32 s[6:7], s5, v{KEY[0]}
v_cmp_le_u32 s[10:11], s5, v{KEY[1]}
v_cmp_le_u32 s[12:13], s5, v{KEY[2]}
v_cmp_le_u32 s[14:15], s5, v{KEY[3]}
v_addc_co_u32_e64 v21, vcc, 0, 0, s[6:7]
s_or_b64 s[50:51], s[6:7], s[10:11]
v_addc_co_u32_e64 v22, vcc, v21, 0, s[10:11]
s_or_b64 s[52:53], s[12:13], s[14:15]
v_addc_co_u32_e64 v23, vcc, v22, 0, s[12:13]
s_or_b64 exec, s[50:51], s[52:53]
v_addc_co_u32_e64 v24, vcc, v23, 0, s[14:15]
ds_add_rtn_u32 v25, v19, v24
s_waitcnt lgkmcnt(0)
v_lshl_add_u32 v25, v25, 2, v19
v_lshl_add_u32 v21, v21, 2, v25
v_lshl_add_u32 v22, v22, 2, v25
v_lshl_add_u32 v23, v23, 2, v25
s_mov_b64 exec, s[6:7]
ds_write_b32 v25, v{KEY[0]} offset:{LIST-CNT}
s_mov_b64 exec, s[10:11]
ds_write_b32 v21, v{KEY[1]} offset:{LIST-CNT}
s_mov_b64 exec, s[12:13]
ds_write_b32 v22, v{KEY[2]} offset:{LIST-CNT}
s_mov_b64 exec, s[14:15]
ds_write_b32 v23, v{KEY[3]} offset:{LIST-CNT}
s_mov_b64 exec, -1
s_waitcnt lgkmcnt(0)
s_barrier
{'' if OPT['dry'] else 's_cmp_lg_u32 s3, 0'}
{'' if OPT['dry'] else 's_cbranch_scc1 L_fin'}
ds_read_b32 v28, v19
ds_read_b32 v17, v221
ds_read_b128 v[20:23], v222
s_waitcnt lgkmcnt(1)
v_readfirstlane_b32 s51, v28
s_cmp_gt_u32 s51, 16
s_cbranch_scc1 L_rk_many
L_rk_done:
v_and_b32 v14, 0x7ff, v17
v_lshlrev_b32 v14, 2, v14
ds_read_b32 v45, v14 offset:{MSDB}
s_waitcnt lgkmcnt(1)
""")
stamp(6)
rank16(17, 20, 18, 24)
A(f"""
v_cmp_gt_u32 vcc, 8, v18
v_lshl_add_u32 v18, v18, 4, v40
v_mov_b32 v44, v17
s_cmp_eq_u32 s59, 0
s_cbranch_scc1 L_s_real
s_cmp_lg_u32 s3, 0
s_cbranch_scc1 L_fin
{SELS}
s_mov_b64 exec, 1
global_store_dword v41, v46, s[42:43] sc1
""")
stamp(7)
A("s_branch L_fin")
A(f"""
L_rk_many:
v_lshl_add_u32 v26, v1, 2, v19
v_mov_b32 v27, v1
s_lshl_b32 s5, s3, 6
s_add_u32 s58, s5, {SELW}
s_mov_b32 s50, 0
L_rk_outer:
ds_read_b32 v29, v26 offset:{LIST-CNT}
v_mov_b32 v30, 0
v_mov_b32 v31, v19
s_mov_b32 s52, 0
L_rk_inner:
ds_read_b128 v[8:11], v31 offset:{LIST-CNT}
v_add_u32 v31, 16, v31
s_add_u32 s52, s52, 4
s_waitcnt lgkmcnt(0)
""")
prs = ["s[6:7]", "s[10:11]", "s[12:13]", "s[14:15]"]
for i in range(4): A(f"v_cmp_gt_u32 {prs[i]}, v{8+i}, v29")
for i in range(4): A(f"v_addc_co_u32_e64 v30, vcc, v30, 0, {prs[i]}")
A(f"""
s_cmp_lt_u32 s52, s51
s_cbranch_scc1 L_rk_inner
v_cmp_gt_u32 s[6:7], 8, v30
v_cmp_gt_u32 s[10:11], s51, v27
v_lshl_add_u32 v30, v30, 2, s58
s_and_b64 exec, s[6:7], s[10:11]
ds_write_b32 v30, v29
s_mov_b64 exec, -1
v_add_u32 v26, 256, v26
v_add_u32 v27, 64, v27
s_add_u32 s50, s50, 64
s_cmp_lt_u32 s50, s51
s_cbranch_scc1 L_rk_outer
v_lshl_add_u32 v26, v116, 2, s58
v_lshl_add_u32 v27, v117, 4, s58
ds_read_b32 v17, v26
ds_read_b128 v[20:23], v27
s_waitcnt lgkmcnt(0)
s_branch L_rk_done
""")
A.label("L_fin")
finish(11)
A.label("L_end")
A("s_endpgm")
A.label("L_code_end")
A(".fill 64, 4, 0xBF800000")

tail = f"""
.section .rodata,"a"
.p2align 6
.amdhsa_kernel {NAME}_kernel
  .amdhsa_next_free_vgpr 256
  .amdhsa_next_free_sgpr 96
  .amdhsa_accum_offset 256
  .amdhsa_group_segment_fixed_size 0
  .amdhsa_kernarg_size 120
  .amdhsa_user_sgpr_count 2
  .amdhsa_user_sgpr_kernarg_segment_ptr 1
  .amdhsa_system_sgpr_workgroup_id_x 1
.end_amdhsa_kernel
"""
probs = check_hazards(A.lines)
for p in probs: print("HAZARD", p, file=sys.stderr)
open(sys.argv[1], "w").write(head + A.text() + tail)
print("written", sys.argv[1], len(A.lines), "lines", file=sys.stderr)
```
